```python
import torch

def _softmax(x, axis=-1):
    return torch.softmax(x, dim=axis)
def _gelu(x):
    return torch.nn.functional.gelu(x, approximate="tanh")
def _silu(x):
    return torch.nn.functional.silu(x)
def _sigmoid(x):
    return torch.sigmoid(x)
def _layernorm(x, axis=-1, eps=1e-5):
    m = x.mean(dim=axis, keepdim=True)
    v = x.var(dim=axis, keepdim=True, unbiased=False)
    return (x - m) / torch.sqrt(v + eps)
def _scatter_add(tgt, idx, src, axis=0):
    return tgt.clone().index_add_(axis, idx, src)
def _segment_sum(src, seg, n):
    out = torch.zeros((n,) + src.shape[1:], dtype=src.dtype)
    return out.index_add_(0, seg, src)
def _pad(x, pw):
    flat = tuple(v for pair in reversed(pw) for v in pair)
    return torch.nn.functional.pad(x, flat)

kernel_name = 'standalone__gqa_softmax__sampling'

def setup_inputs():

    _w = (lambda a: (lambda t: t.to(torch.bfloat16) if t.is_floating_point() else t)(torch.as_tensor(a)))
    B, Hq, Hkv, Sq, Sk, D = 8, 32, 8, 32, 8192, 128
    return {
        "q": _w((lambda *s: torch.randn(*s, dtype=torch.bfloat16) * 0.8)(B, Hq, Sq, D)),
        "k": _w((lambda *s: torch.randn(*s, dtype=torch.bfloat16) * 0.8)(B, Hkv, Sk, D)),
        "v": _w((lambda *s: torch.randn(*s, dtype=torch.bfloat16) * 0.05)(B, Hkv, Sk, D)),
    }

def reference(q, k, v):
    B, Hq, Sq, D = q.shape
    Hkv = k.shape[1]
    rep = Hq // Hkv
    k = (lambda x, n, axis: torch.repeat_interleave(x, n, dim=axis))(k, rep, axis=1)
    v = (lambda x, n, axis: torch.repeat_interleave(x, n, dim=axis))(v, rep, axis=1)
    scale = D ** -0.5
    scores = torch.einsum("bhqd,bhkd->bhqk", q, k) * scale
    p = _softmax(scores, axis=-1)
    return torch.einsum("bhqk,bhkd->bhqd", p, v)
```

```python
import re

TRANS = ("v_exp_f32", "v_log_f32", "v_rcp_f32", "v_rsq_f32", "v_sqrt_f32")


def regs_of(tok):
    tok = tok.strip()
    tok = tok.lstrip("-")
    m = re.fullmatch(r"abs\((.*)\)", tok)
    if m:
        tok = m.group(1)
    m = re.fullmatch(r"([vsa])(\d+)", tok)
    if m:
        return {(m.group(1), int(m.group(2)))}
    m = re.fullmatch(r"([vsa])\[(\d+):(\d+)\]", tok)
    if m:
        return {(m.group(1), i) for i in range(int(m.group(2)), int(m.group(3)) + 1)}
    if tok == "vcc":
        return {("s", "vcc")}
    if tok == "m0":
        return {("s", "m0")}
    if tok == "exec":
        return {("s", "exec")}
    return set()


class Ins:
    def __init__(self, text):
        self.text = text
        t = text.split(";")[0].strip()
        self.label = t.endswith(":")
        self.op = t.split()[0] if t else ""
        rest = t[len(self.op):].strip()
        ops = [o.strip() for o in rest.split(",")] if rest else []
        self.mods = ""
        if ops:
            parts = ops[-1].split()
            ops[-1] = parts[0]
            self.mods = " ".join(parts[1:])
        self.ops = ops
        op = self.op
        self.w = set()
        self.r = set()
        self.kind = "other"
        self.A = self.B = self.C = set()
        if self.label or not op or op.startswith("."):
            self.kind = "none"
            return
        R = [regs_of(o) for o in ops]
        if op.startswith("v_mfma"):
            self.kind = "mfma"
            self.w = R[0]
            self.A, self.B, self.C = R[1], R[2], R[3]
            self.r = R[1] | R[2] | R[3]
        elif op.startswith("v_permlane"):
            self.kind = "valu"
            self.w = R[0] | R[1]
            self.r = R[0] | R[1]
        elif op.startswith("v_"):
            self.kind = "valu"
            self.w = R[0]
            self.r = set().union(*R[1:]) if len(R) > 1 else set()
            if op.startswith("v_fmac") or op.startswith("v_pk_fmac"):
                self.r |= R[0]
            if op.startswith("v_add_co") or op.startswith("v_addc_co"):
                self.w |= R[1]
        elif op.startswith("ds_read"):
            self.kind = "ds"
            self.w = R[0]
            self.r = R[1]
        elif op.startswith("ds_write"):
            self.kind = "ds"
            self.r = set().union(*R)
        elif op.startswith("ds_"):
            self.kind = "ds"
            self.w = R[0]
            self.r = set().union(*R)
        elif op.startswith("buffer_load") or op.startswith("global_load"):
            self.kind = "vmem"
            if "lds" in self.mods.split() or op.startswith("global_load_lds"):
                self.r = set().union(*R) | {("s", "m0")}
                self.dma = True
            else:
                self.w = R[0]
                self.r = set().union(*R[1:])
        elif op.startswith("buffer_store") or op.startswith("global_store") or "atomic" in op:
            self.kind = "vmem"
            self.r = set().union(*R)
            if "atomic" in op and "sc0" in self.mods.split():
                self.w = R[0]
        elif op.startswith("s_"):
            self.kind = "salu"
            if op.startswith("s_cmp") or op in ("s_waitcnt", "s_barrier", "s_nop", "s_endpgm", "s_setprio", "s_sleep") or op.startswith("s_cbranch") or op == "s_branch":
                self.r = set().union(*R) if R else set()
            else:
                self.w = R[0] if R else set()
                self.r = set().union(*R[1:]) if len(R) > 1 else set()

    def states(self):
        if self.kind == "none":
            return 0
        if self.op == "s_nop":
            return int(self.ops[0], 0) + 1
        return 1


def vg(s):
    return {x for x in s if x[0] in "va"}


def sg(s):
    return {x for x in s if x[0] == "s"}


def check_hazards(lines, name=""):
    ins = [Ins(l) for l in lines]
    ins = [i for i in ins if i.kind != "none"]
    errs = []
    for j, c in enumerate(ins):
        dist = 0
        for i in range(j - 1, -1, -1):
            p = ins[i]
            need = 0
            why = ""
            if p.kind == "valu":
                wv = vg(p.w)
                ws = sg(p.w)
                if c.kind == "mfma" and wv & c.r:
                    need, why = 2, "valu->mfma"
                if c.op.startswith("v_permlane") and wv & c.r:
                    need, why = max(need, 2), "valu->permlane"
                if c.op in ("v_readfirstlane_b32", "v_readlane_b32") and wv & c.r:
                    need, why = max(need, 1), "valu->readlane"
                if p.op.startswith(TRANS) and c.kind == "valu" and not c.op.startswith(TRANS) and wv & c.r:
                    need, why = max(need, 1), "trans->valu"
                if p.op.startswith(TRANS) and c.kind in ("vmem", "ds", "mfma") and wv & c.r:
                    need, why = max(need, 2), "trans->mem"
                if ws:
                    if c.kind == "valu" and ws & c.r:
                        need, why = max(need, 2), "valu sgpr->valu"
                    if c.kind == "vmem" and ws & c.r:
                        need, why = max(need, 5), "valu sgpr->vmem"
                    if c.kind == "salu" and ws & c.r:
                        need, why = max(need, 1), "valu sgpr->salu(pad)"
            if p.kind == "mfma":
                big = "32x32" in p.op
                n_use, n_c, n_war = (12, 10, 7) if big else (8, 6, 3)
                if c.kind == "mfma":
                    if p.w & (c.A | c.B):
                        need, why = n_use, "mfma D->A/B"
                    elif p.w & c.C and p.w != c.C:
                        need, why = n_c, "mfma D->C partial"
                    elif p.w & c.w and p.w != c.w:
                        need, why = n_use, "mfma D->D partial"
                    elif p.w & c.w and not (p.w & c.C):
                        need, why = n_use, "mfma D->D waw (conservative)"
                elif c.kind in ("valu", "ds", "vmem"):
                    if p.w & (c.r | c.w):
                        need, why = n_use, "mfma D->use"
                    elif c.kind == "valu" and p.C & c.w:
                        need, why = n_war, "mfma C war"
            if p.kind == "vmem" and ("store" in p.op or "atomic" in p.op) and ("x4" in p.op or "x3" in p.op):
                data = regs_of(p.ops[0]) if p.op.startswith("buffer") else regs_of(p.ops[1])
                if data & c.w:
                    need, why = max(need, 2), "store data war"
            if p.kind == "salu" and ("s", "m0") in p.w and c.kind == "vmem" and ("s", "m0") in c.r:
                need, why = max(need, 1), "m0->dma"
            if p.kind == "salu" and ("s", "exec") in p.w and False:
                pass
            if need > dist:
                errs.append(f"[{name}] {why}: need {need} have {dist}: '{p.text.strip()}' -> '{c.text.strip()}'")
            dist += p.states()
            if dist >= 20:
                break
    return errs


def auto_lgkm(lines, pending=None):
    out = []
    q = list(pending or [])
    for l in lines:
        c = Ins(l)
        if c.kind == "none":
            out.append(l)
            continue
        if c.op == "s_waitcnt":
            m = re.search(r"lgkmcnt\((\d+)\)", l)
            if m:
                n = int(m.group(1))
                q = q[len(q) - n:] if n < len(q) else q
                if n == 0:
                    q = []
            out.append(l)
            continue
        touched = c.r | c.w
        last = -1
        for k, s in enumerate(q):
            if s & touched:
                last = k
        if last >= 0:
            n = len(q) - 1 - last
            assert n <= 15
            out.append(f"  s_waitcnt lgkmcnt({n})")
            q = q[last + 1:]
        if c.kind == "ds":
            q.append(set(c.w))
            assert len(q) <= 15, "too many outstanding ds ops"
        out.append(l)
    return out, q
```

```python
import struct, sys, math
from asmlib import check_hazards, auto_lgkm

NAME = "standalone__gqa_softmax__sampling_kernel"

HEADER = """; Kernarg layout for this problem (48 bytes, ptrs only, base s[0:1]):
;   offset   0: d_in[0] q  shape=(8, 32, 32, 128) dtype=bfloat16 strides=(262144, 8192, 256, 2) contiguous=True
;   offset   8: d_in[1] k  shape=(8, 8, 8192, 128) dtype=bfloat16 strides=(16777216, 2097152, 256, 2) contiguous=True
;   offset  16: d_in[2] v  shape=(8, 8, 8192, 128) dtype=bfloat16 strides=(16777216, 2097152, 256, 2) contiguous=True
;   offset  24: d_out     shape=(8, 32, 32, 128) dtype=bfloat16 (2 bytes/elem)
"""


def f32(x):
    return "0x%08x" % struct.unpack("<I", struct.pack("<f", x))[0]


V_M, V_L0, V_L1, V_MX, V_T0, V_T1, V_DM = 2, 3, 4, 5, 6, 7, 8
V_LANE16 = 9
V_FADDR = 10
V_OUTA = 11
V_T2, V_T3 = 12, 13
V_KA = 16
V_VA = 24
V_FR = 32
V_O = 64
V_S = 128
V_X = 160
V_P = 192
V_Q = 208
NVGPR = 240

S_K, S_V, S_Q, S_OUT, S_WS, S_DBG = 16, 20, 24, 28, 32, 36
S_BH, S_SP, S_W = 40, 41, 42
S_C = 44
S_CNT, S_DK, S_DV = 46, 47, 48
S_T0, S_T1, S_T2, S_T3 = 50, 51, 52, 53
S_OD = 54
S_OI = 57
S_ML = 58
S_F = 62
S_FO = 63
S_DB = 64
S_ST = 70

OFF_ML = 16 << 20
OFF_F = 17 << 20
OFF_T = 20 << 20
WS_BYTES = 32 << 20


def vr(base, n):
    return f"v[{base}:{base+n-1}]"


def srd(b):
    return f"s[{b}:{b+3}]"


def gen(LA=3, pol="nt", grp="xcd", inter=0, bf16p=0, T=8.0, RA=4, diag=0, opol="", qpol="", NT=32, prio=3, abl="", NL=4):
    L = []
    A = L.append
    traces = {}
    nstamp = [0]

    def stamp(dst):
        if diag:
            k = nstamp[0]
            nstamp[0] += 1
            dst.append(f"  s_memrealtime s[{S_ST+2*k}:{S_ST+2*k+1}]")
            dst.append("  s_waitcnt lgkmcnt(0)")

    R = 2048 if bf16p else 4096
    c = math.log2(math.e) / math.sqrt(128.0)
    E = []
    E += [
        "  s_cmp_ge_u32 s2, 256",
        "  s_cbranch_scc1 L_end",
        "  s_load_dwordx4 s[4:7], s[0:1], 0",
        "  s_load_dwordx4 s[8:11], s[0:1], 16",
        "  s_load_dwordx4 s[12:15], s[0:1], 32",
        "  v_lshrrev_b32 v1, 6, v0",
        "  v_and_b32 v0, 63, v0",
        "  v_readfirstlane_b32 s3, v1",
    ]
    if grp == "xcd":
        E += [
            f"  s_and_b32 s{S_T0}, s2, 7",
            f"  s_lshr_b32 s{S_T1}, s2, 3",
            f"  s_and_b32 s{S_SP}, s{S_T1}, 3",
            f"  s_lshr_b32 s{S_T1}, s{S_T1}, 2",
            f"  s_lshl_b32 s{S_BH}, s{S_T0}, 3",
            f"  s_add_u32 s{S_BH}, s{S_BH}, s{S_T1}",
        ]
    elif grp == "lo":
        E += [
            f"  s_lshr_b32 s{S_BH}, s2, 2",
            f"  s_and_b32 s{S_SP}, s2, 3",
        ]
    elif grp == "lo2":
        E += [
            f"  s_and_b32 s{S_SP}, s2, 3",
            f"  s_lshr_b32 s{S_BH}, s2, 3",
            f"  s_and_b32 s{S_T0}, s2, 4",
            f"  s_lshl_b32 s{S_T0}, s{S_T0}, 3",
            f"  s_add_u32 s{S_BH}, s{S_BH}, s{S_T0}",
        ]
    E += [
        f"  s_cmp_ge_u32 s3, {NL}",
        "  s_cbranch_scc1 L_cons",
    ]
    LD = []
    tstep = 16384 * (4 if inter else 1)
    LD += [
        f"  s_setprio {prio}",
        f"  s_lshl_b32 s{S_T0}, s{S_BH}, 21",
        f"  s_lshl_b32 s{S_T1}, s{S_SP}, {14 if inter else 19}",
        f"  s_add_u32 s{S_T0}, s{S_T0}, s{S_T1}",
        "  v_lshrrev_b32 v3, 4, v0",
        "  v_and_b32 v4, 15, v0",
    ]
    for j in range(4):
        LD += [
            f"  v_add_u32 v5, {4*j}, v3",
            "  v_xor_b32 v5, v5, v4",
            "  v_lshlrev_b32 v5, 4, v5",
            f"  v_lshl_add_u32 v{10+j}, v3, 8, v5",
        ]
    LD += [
        "  v_lshlrev_b32 v5, 2, v3",
        "  v_xor_b32 v5, v5, v4",
        "  v_lshlrev_b32 v5, 4, v5",
        "  v_lshl_add_u32 v14, v3, 8, v5",
        f"  s_sub_u32 s{S_K+2}, 0x8000000, s{S_T0}",
        f"  s_mov_b32 s{S_K+3}, 0x20000",
        f"  s_mov_b32 s{S_V+2}, s{S_K+2}",
        f"  s_mov_b32 s{S_V+3}, 0x20000",
        f"  s_mul_i32 s54, s3, {16384 // NL}",
        "  s_mov_b32 s55, s54",
        "  s_mov_b32 s56, s54",
        "  s_add_u32 s57, s54, 0x10000",
        "  s_waitcnt lgkmcnt(0)",
        f"  s_add_u32 s{S_K}, s6, s{S_T0}",
        f"  s_addc_u32 s{S_K+1}, s7, 0",
        f"  s_add_u32 s{S_V}, s8, s{S_T0}",
        f"  s_addc_u32 s{S_V+1}, s9, 0",
    ]

    NG = 4 // NL
    PP = 4 * NG

    def part(dst, which):
        go, lo, sr = (54, 56, S_K) if which == "K" else (55, 57, S_V)
        for g in range(NG):
            dst.append(f"  s_add_u32 m0, s{lo}, {g*4096}")
            dst.append(f"  s_add_u32 s{S_T2}, s{go}, {g*4096}")
            for j in range(4):
                vo = 10 + j if which == "K" else 14
                dst.append(f"  buffer_load_dwordx4 v{vo}, {srd(sr)}, s{S_T2} offen offset:{j*1024} {pol} lds")
        dst.append(f"  s_add_u32 s{go}, s{go}, {tstep}")
        dst.append(f"  s_add_u32 s{lo}, s{lo}, 16384")
        dst.append(f"  s_and_b32 s{lo}, s{lo}, 0xffff")
        if which == "V":
            dst.append(f"  s_or_b32 s{lo}, s{lo}, 0x10000")

    LDL = []
    LDT = []
    W = lambda n: [f"  s_waitcnt vmcnt({n*PP})", "  s_barrier"]
    assert LA * PP <= 63
    loopend = [f"  s_sub_u32 s{S_CNT}, s{S_CNT}, 1", f"  s_cmp_lg_u32 s{S_CNT}, 0", "  s_cbranch_scc1 L_ldloop"]
    if LA == 4:
        for wh in "KKVKV":
            part(LD, wh)
        LD += W(4) + [f"  s_mov_b32 s{S_CNT}, {NT-3}"]
        part(LDL, "K")
        part(LDL, "V")
        LDL += W(4) + loopend
        part(LDT, "V")
        LDT += W(3) + W(1) + W(0) + ["  s_endpgm"]
    elif LA == 3:
        for wh in "KKVK":
            part(LD, wh)
        LD += W(3) + [f"  s_mov_b32 s{S_CNT}, {NT-3}"]
        part(LDL, "V")
        part(LDL, "K")
        LDL += W(3) + loopend
        part(LDT, "V")
        part(LDT, "V")
        LDT += W(3) + W(1) + W(0) + ["  s_endpgm"]
    elif LA == 2:
        for wh in "KKV":
            part(LD, wh)
        LD += W(2) + [f"  s_mov_b32 s{S_CNT}, {NT-2}"]
        part(LDL, "K")
        part(LDL, "V")
        LDL += W(2) + loopend
        part(LDT, "V")
        LDT += W(1) + W(0) + ["  s_endpgm"]
    traces["loader"] = E + LD + LDL + LDL + LDT

    P = []
    stamp(P)
    P += [
        f"  s_sub_u32 s{S_W}, s3, {NL}",
        f"  s_lshl_b32 s{S_T0}, s{S_BH}, 2",
        f"  s_add_u32 s{S_T1}, s{S_T0}, s{S_W}",
        f"  s_lshl_b32 s{S_T2}, s{S_T1}, 13",
        f"  s_lshl_b32 s{S_F}, s{S_T1}, 7",
        f"  s_add_u32 s{S_F}, s{S_F}, {OFF_F}",
        f"  s_lshl_b32 s{S_FO}, s{S_SP}, 2",
        f"  s_add_u32 s{S_FO}, s{S_FO}, s{S_F}",
        f"  s_lshl_b32 s{S_DB}, s{S_BH}, 2",
        f"  v_and_b32 v{V_T0}, 31, v0",
        f"  v_lshrrev_b32 v{V_T1}, 5, v0",
        f"  v_lshlrev_b32 v{V_T2}, 4, v{V_T1}",
        f"  v_lshl_add_u32 v{V_OUTA}, v{V_T0}, 8, v{V_T2}",
        f"  s_mov_b32 s{S_Q+2}, 8192",
        f"  s_mov_b32 s{S_Q+3}, 0x20000",
        f"  s_mov_b32 s{S_OUT+2}, 8192",
        f"  s_mov_b32 s{S_OUT+3}, 0x20000",
        f"  s_mov_b32 s{S_WS+2}, {WS_BYTES}",
        f"  s_mov_b32 s{S_WS+3}, 0x20000",
        f"  s_mov_b32 s{S_DBG+2}, 256",
        f"  s_mov_b32 s{S_DBG+3}, 0x20000",
        "  s_waitcnt lgkmcnt(0)",
        f"  s_add_u32 s{S_Q}, s4, s{S_T2}",
        f"  s_addc_u32 s{S_Q+1}, s5, 0",
        f"  s_add_u32 s{S_OUT}, s10, s{S_T2}",
        f"  s_addc_u32 s{S_OUT+1}, s11, 0",
        f"  s_mov_b32 s{S_WS}, s14",
        f"  s_mov_b32 s{S_WS+1}, s15",
        f"  s_mov_b32 s{S_DBG}, s12",
        f"  s_mov_b32 s{S_DBG+1}, s13",
    ]
    for kk in range(8):
        P.append(f"  buffer_load_dwordx4 {vr(V_Q+4*kk,4)}, v{V_OUTA}, {srd(S_Q)}, 0 offen offset:{kk*32} {qpol}")
    P += [
        f"  v_mov_b32 v{V_T2}, 0",
        "  s_mov_b64 exec, 1",
        f"  buffer_store_dword v{V_T2}, off, {srd(S_WS)}, s{S_FO} sc1",
        "  s_mov_b64 exec, -1",
    ]
    P += [
        f"  v_and_b32 v{V_T2}, 15, v0",
        f"  v_xor_b32 v{V_T2}, v{V_T2}, v{V_T1}",
        f"  v_lshlrev_b32 v{V_T2}, 4, v{V_T2}",
        f"  v_lshl_add_u32 v{V_KA}, v{V_T0}, 8, v{V_T2}",
    ]
    for kk in range(1, 8):
        P.append(f"  v_xor_b32 v{V_KA+kk}, {kk*32}, v{V_KA}")
    P += [
        f"  v_bfe_u32 v{V_T2}, v0, 2, 2",
        f"  v_lshl_add_u32 v{V_T3}, v{V_T1}, 2, v{V_T2}",
        f"  v_lshlrev_b32 v{V_T3}, 8, v{V_T3}",
        f"  v_xor_b32 v{V_T2}, s{S_SP}, v{V_T2}",
        f"  v_lshl_add_u32 v{V_T3}, v{V_T2}, 6, v{V_T3}",
        f"  v_bfe_u32 v{V_T2}, v0, 4, 1",
        f"  v_lshl_add_u32 v{V_T3}, v{V_T2}, 5, v{V_T3}",
        f"  v_and_b32 v{V_T2}, 3, v0",
        f"  v_lshl_add_u32 v{V_T3}, v{V_T2}, 3, v{V_T3}",
        f"  v_lshlrev_b32 v{V_FADDR}, 2, v{V_T2}",
        f"  v_add_u32 v{V_VA}, 0x10000, v{V_T3}",
    ]
    for j in range(1, 4):
        P.append(f"  v_xor_b32 v{V_VA+j}, {j*64}, v{V_VA}")
    P += [
        f"  v_lshlrev_b32 v{V_LANE16}, 4, v0",
        f"  s_lshl_b32 s{S_T2}, s{S_SP}, 6",
        f"  v_add_u32 v{V_OUTA}, s{S_T2}, v{V_OUTA}",
        f"  s_mov_b32 s{S_C}, {f32(c)}",
        f"  v_mov_b32 v{V_L0}, 0",
        f"  v_mov_b32 v{V_L1}, 0",
    ]
    for j in range(0, 4):
        P += [
            f"  s_xor_b32 s{S_T1}, s{S_SP}, {j}",
            f"  s_add_u32 s{S_T1}, s{S_T1}, s{S_T0}",
            f"  s_lshl_b32 s{S_T1}, s{S_T1}, 2",
            f"  s_add_u32 s{S_T1}, s{S_T1}, s{S_W}",
            f"  s_lshl_b32 s{S_ML+j}, s{S_T1}, 9",
            f"  s_add_u32 s{S_ML+j}, s{S_ML+j}, {OFF_ML}",
        ]
        if j == 0:
            P.append(f"  s_mul_i32 s{S_OI}, s{S_T1}, {3*R}")
        else:
            P.append(f"  s_mul_i32 s{S_OD+j-1}, s{S_T1}, {3*R}")
            P.append(f"  s_add_u32 s{S_OD+j-1}, s{S_OD+j-1}, {(j-1)*R}")
    for i in range(64):
        P.append(f"  v_mov_b32 v{V_O+i}, 0")
    P += ["  s_waitcnt vmcnt(0)", "  s_barrier"]
    stamp(P)
    P += [
        f"  s_cmp_lg_u32 s{S_W}, 0",
        "  s_cbranch_scc1 L_noatom",
    ]
    PA = [
        f"  v_mov_b32 v{V_T2}, 1",
        "  s_mov_b64 exec, 1",
        f"  buffer_atomic_add v{V_T2}, off, {srd(S_DBG)}, s{S_DB} sc1",
        "  s_mov_b64 exec, -1",
    ]

    def kread(a):
        blk, kk = a >> 3, a & 7
        return [f"  ds_read_b128 {vr(V_FR+4*(a&7),4)}, v{V_KA+kk} offset:{blk*8192}"]

    def qk(a):
        blk, kk = a >> 3, a & 7
        d = vr(V_S + 16 * blk, 16)
        return f"  v_mfma_f32_32x32x16_bf16 {d}, {vr(V_FR+4*(a&7),4)}, {vr(V_Q+4*kk,4)}, {d if kk else 0}"

    def vread(slot, t, j):
        f = V_FR + 4 * (slot & 7)
        return [f"  ds_read_b64_tr_b16 {vr(f,2)}, v{V_VA+j} offset:{t*4096}",
                f"  ds_read_b64_tr_b16 {vr(f+2,2)}, v{V_VA+j} offset:{t*4096+2048}"]

    def pv(slot, t, j):
        d = vr(V_O + 16 * j, 16)
        return f"  v_mfma_f32_32x32x16_bf16 {d}, {vr(V_FR+4*(slot&7),4)}, {vr(V_P+4*t,4)}, {d}"

    def maxops(blk, dst):
        b = V_S + 16 * blk
        o = [f"  v_max3_f32 v{dst}, v{b}, v{b+1}, v{b+2}"]
        for k in range(3, 15, 2):
            o.append(f"  v_max3_f32 v{dst}, v{dst}, v{b+k}, v{b+k+1}")
        return o

    def maxfin():
        return [
            f"  v_max3_f32 v{V_T0}, v{V_T0}, v{V_S+15}, v{V_S+31}",
            f"  v_max_f32 v{V_MX}, v{V_T0}, v{V_T1}",
            f"  v_max_f32 v{V_T1}, v{V_T0}, v{V_T1}",
            "  s_nop 1",
            f"  v_permlane32_swap_b32 v{V_MX}, v{V_T1}",
            f"  v_max_f32 v{V_MX}, v{V_MX}, v{V_T1}",
            f"  v_mul_f32 v{V_MX}, s{S_C}, v{V_MX}",
        ]

    def fma(i):
        return f"  v_fma_f32 v{V_X+i}, v{V_S+i}, s{S_C}, -v{V_M}"

    def exps(k):
        return [f"  v_exp_f32 v{V_X+2*k}, v{V_X+2*k}", f"  v_exp_f32 v{V_X+2*k+1}, v{V_X+2*k+1}"]

    def post(k):
        return [f"  v_add_f32 v{V_L0}, v{V_L0}, v{V_X+2*k}",
                f"  v_add_f32 v{V_L1}, v{V_L1}, v{V_X+2*k+1}",
                f"  v_cvt_pk_bf16_f32 v{V_P+k}, v{V_X+2*k}, v{V_X+2*k+1}"]

    P2 = []
    for a in range(RA):
        P2 += kread(a)
    for a in range(16):
        if a + RA < 16:
            P2 += kread(a + RA)
        P2.append(qk(a))
    for kk in range(8):
        P2.append(f"  v_add_u32 v{V_KA+kk}, 0x4000, v{V_KA+kk}")
    P2 += maxops(0, V_T0)
    P2 += maxops(1, V_T1)
    P2 += maxfin()
    P2.append(f"  v_mov_b32 v{V_M}, v{V_MX}")
    for i in range(32):
        P2.append(fma(i))
    P2.append(f"  s_mov_b32 s{S_CNT}, 0")
    P2, pend = auto_lgkm(P2)
    assert not pend

    B = []
    if diag == 2:
        B += ["  s_memtime s[90:91]", "  s_waitcnt lgkmcnt(0)"]
    B += ["  s_barrier"]
    if diag == 3:
        B += ["  s_memrealtime s[92:93]", "  s_memtime s[90:91]", f"  s_add_u32 s94, s{S_CNT}, 32", "  s_waitcnt lgkmcnt(0)",
              f"  s_mov_b32 m0, s{S_CNT}", "  v_writelane_b32 v14, s92, m0", "  s_mov_b32 m0, s94", "  v_writelane_b32 v14, s90, m0"]
    if diag == 2:
        B += ["  s_memtime s[92:93]", "  s_waitcnt lgkmcnt(0)", "  s_sub_u32 s92, s92, s90", "  s_add_u32 s94, s94, s92"]
        P2 += ["  s_mov_b32 s94, 0", "  s_memtime s[96:97]", "  s_memrealtime s[98:99]", "  s_waitcnt lgkmcnt(0)"]
    for a in range(RA):
        B += kread(a)
    B += [
        f"  s_add_u32 s{S_CNT}, s{S_CNT}, 1",
        f"  s_and_b32 s{S_T0}, s{S_CNT}, 3",
        f"  s_cmp_eq_u32 s{S_T0}, 3",
        f"  s_cselect_b32 s{S_DK}, {(-49152) & 0xffffffff}, 0x4000".replace(", 0x4000", f", s{S_T3}"),
        f"  s_cmp_eq_u32 s{S_T0}, 0",
        f"  s_cselect_b32 s{S_DV}, {(-49152) & 0xffffffff}, s{S_T3}",
    ]
    P2.append(f"  s_mov_b32 s{S_T3}, 0x4000")
    NPRE = 3
    for k in range(NPRE):
        B += exps(k)
        if k:
            B += post(k - 1)
    vorder = [(b >> 2, b & 3) for b in range(16)]
    mx0 = maxops(0, V_T0)
    for a in range(16):
        n = a + RA
        if n < 16:
            B += kread(n)
        else:
            B += vread(n, *vorder[n - 16])
        B.append(qk(a))
        k = a + NPRE
        if k < 16:
            B += exps(k)
        if k - 1 < 16:
            B += post(k - 1)
        if a >= 14:
            B += mx0[(a - 14) * 4:(a - 14) * 4 + 4]
    fill = [[] for _ in range(16)]
    for kk in range(8):
        fill[kk >> 2].append(f"  v_add_u32 v{V_KA+kk}, s{S_DK}, v{V_KA+kk}")
    mx1 = maxops(1, V_T1)
    fill[2] += mx1[:4]
    fill[3] += mx1[4:]
    mf = maxfin()
    fill[3] += mf[:3]
    fill[4] += mf[4:]
    fill[4] += [
        f"  v_sub_f32 v{V_T0}, v{V_MX}, v{V_M}",
        f"  v_cmp_lt_f32 vcc, {f32(T)}, v{V_T0}",
    ]
    fill[5] += [
        f"  v_cndmask_b32 v{V_T0}, v{V_M}, v{V_MX}, vcc",
        f"  v_sub_f32 v{V_DM}, v{V_M}, v{V_T0}",
        f"  v_mov_b32 v{V_M}, v{V_T0}",
    ]
    fm = [fma(i) for i in range(32)]
    k = 0
    for b in range(5, 16):
        n = 2 if b == 5 else 3
        fill[b] += fm[k:k + n]
        k += n
    assert k == 32
    for j in range(4):
        fill[12 + j].append(f"  v_add_u32 v{V_VA+j}, s{S_DV}, v{V_VA+j}")
    assert RA >= 4
    for b in range(16):
        n = b + RA
        if n < 16:
            B += vread(16 + n, *vorder[n])
        B.append(pv(16 + b, *vorder[b]))
        B += fill[b]
    if "d" in abl:
        B = [l for l in B if not l.strip().startswith("ds_")]
    if "m" in abl:
        B = [l for l in B if not l.strip().startswith("v_mfma")] + ["  s_waitcnt lgkmcnt(0)"]
        BB = []
        nds = 0
        for l in B:
            BB.append(l)
            if l.strip().startswith("ds_"):
                nds += 1
                if nds % 4 == 0:
                    BB.append("  s_waitcnt lgkmcnt(8)")
        B = BB
    if "v" in abl:
        B = [l for l in B if not (l.strip().startswith("v_") and not l.strip().startswith("v_mfma") and not l.strip().startswith("v_add_u32"))] + ["  s_mov_b64 vcc, 0"]
    B, pend = auto_lgkm(B)
    assert not pend
    B += ["  s_cbranch_vccnz L_rescale"]
    BE = [f"  s_cmp_lg_u32 s{S_CNT}, {NT-1}", "  s_cbranch_scc1 L_loop"]
    RS = [f"  v_exp_f32 v{V_DM}, v{V_DM}", "  s_nop 10",
          f"  v_mul_f32 v{V_L0}, v{V_DM}, v{V_L0}", f"  v_mul_f32 v{V_L1}, v{V_DM}, v{V_L1}"]
    for i in range(64):
        RS.append(f"  v_mul_f32 v{V_O+i}, v{V_DM}, v{V_O+i}")
    RS.append("  s_branch L_norescale")

    Tl = []
    if diag == 2:
        Tl += ["  s_memtime s[90:91]", "  s_memrealtime s[92:93]", "  s_waitcnt lgkmcnt(0)", "  s_sub_u32 s96, s90, s96", "  s_sub_u32 s98, s92, s98"]
    for k in range(17):
        if k < 16:
            Tl += exps(k)
        if k:
            Tl += post(k - 1)
    Tl += [
        f"  v_add_f32 v{V_L0}, v{V_L0}, v{V_L1}",
        f"  v_mov_b32 v{V_L1}, v{V_L0}",
        f"  v_lshrrev_b32 v{V_T0}, 1, v{V_LANE16}",
        "  s_nop 0",
        f"  v_permlane32_swap_b32 v{V_L0}, v{V_L1}",
        f"  v_add_f32 v{V_L0}, v{V_L0}, v{V_L1}",
        f"  buffer_store_dwordx2 v[{V_M}:{V_L0}], v{V_T0}, {srd(S_WS)}, s{S_ML} offen sc1",
    ]
    assert V_L0 == V_M + 1 and V_M % 2 == 0
    TD = [
        f"  buffer_load_dword v{V_T1}, off, {srd(S_DBG)}, s{S_DB} sc1",
        "  s_waitcnt vmcnt(0)",
        f"  v_cmp_ne_u32 vcc, 4, v{V_T1}",
        "  s_cbranch_vccnz L_dbgpoll",
    ]
    T2 = []
    stamp(T2)
    T2.append("  s_barrier")
    stamp(T2)
    order = [(t, j) for j in (1, 2, 3, 0) for t in range(4)]

    def ostore(j):
        o = []
        if bf16p:
            b = V_S + 8 * (j - 1)
            for i in range(8):
                o.append(f"  v_cvt_pk_bf16_f32 v{b+i}, v{V_O+16*j+2*i}, v{V_O+16*j+2*i+1}")
            for i in range(2):
                o.append(f"  buffer_store_dwordx4 {vr(b+4*i,4)}, v{V_LANE16}, {srd(S_WS)}, s{S_OD+j-1} offen offset:{i*1024} sc1")
        else:
            for i in range(4):
                o.append(f"  buffer_store_dwordx4 {vr(V_O+16*j+4*i,4)}, v{V_LANE16}, {srd(S_WS)}, s{S_OD+j-1} offen offset:{i*1024} sc1")
        return o
    TRA = 6
    for b in range(TRA):
        T2 += vread(b, *order[b])
    for b in range(16):
        if b + TRA < 16:
            T2 += vread(b + TRA, *order[b + TRA])
        T2.append(pv(b, *order[b]))
        if b == 8:
            T2 += ostore(1)
        if b == 12:
            T2 += ["  s_nop 1"] + ostore(2)
    T2 += ["  s_nop 6"] + ostore(3)
    T2, pend = auto_lgkm(T2)
    assert not pend
    T2 += [
        f"  v_mov_b32 v{V_T1}, 1",
        "  s_waitcnt vmcnt(0)",
        "  s_mov_b64 exec, 1",
        f"  buffer_store_dword v{V_T1}, off, {srd(S_WS)}, s{S_FO} sc1",
        "  s_mov_b64 exec, -1",
    ]
    stamp(T2)
    TP = [
        f"  buffer_load_dword v{V_T1}, v{V_FADDR}, {srd(S_WS)}, s{S_F} offen sc1",
        "  s_waitcnt vmcnt(0)",
        f"  v_cmp_ne_u32 vcc, 1, v{V_T1}",
        "  s_cbranch_vccnz L_poll",
    ]
    T3 = []
    stamp(T3)
    VML = V_P
    VIN = V_S
    for j in range(1, 4):
        T3.append(f"  buffer_load_dwordx2 {vr(VML+2*(j-1),2)}, v{V_T0}, {srd(S_WS)}, s{S_ML+j} offen sc1")
    nld = 2 if bf16p else 4
    for j in range(1, 4):
        if j > 1 and not bf16p:
            T3.append(f"  s_add_u32 s{S_OI}, s{S_OI}, {R}")
        if j == 3 and bf16p:
            T3.append(f"  s_add_u32 s{S_OI}, s{S_OI}, {2*R}")
        for i in range(nld):
            off = i * 1024 + (R if (bf16p and j == 2) else 0)
            T3.append(f"  buffer_load_dwordx4 {vr(VIN+4*nld*(j-1)+4*i,4)}, v{V_LANE16}, {srd(S_WS)}, s{S_OI} offen offset:{off} sc1")
    G = V_P + 8
    T3 += [
        f"  s_waitcnt vmcnt({3*nld})",
        f"  v_max3_f32 v{V_MX}, v{VML}, v{VML+2}, v{VML+4}",
        f"  v_max_f32 v{V_MX}, v{V_MX}, v{V_M}",
        f"  v_sub_f32 v{G}, v{V_M}, v{V_MX}",
    ]
    for j in range(1, 4):
        T3.append(f"  v_sub_f32 v{G+j}, v{VML+2*(j-1)}, v{V_MX}")
    for j in range(4):
        T3.append(f"  v_exp_f32 v{G+j}, v{G+j}")
    T3.append(f"  v_mul_f32 v{V_T1}, v{G}, v{V_L0}")
    for j in range(1, 4):
        T3.append(f"  v_fmac_f32 v{V_T1}, v{G+j}, v{VML+2*(j-1)+1}")
    T3 += [f"  v_rcp_f32 v{V_T1}, v{V_T1}", "  s_nop 0"]
    for j in range(4):
        T3.append(f"  v_mul_f32 v{G+j}, v{G+j}, v{V_T1}")
    for i in range(16):
        T3.append(f"  v_mul_f32 v{V_O+i}, v{G}, v{V_O+i}")
    for j in range(1, 4):
        T3.append(f"  s_waitcnt vmcnt({(3-j)*nld})")
        if bf16p:
            U = V_O + 16
            for i in range(8):
                src = VIN + 8 * (j - 1) + i
                T3.append(f"  v_lshlrev_b32 v{U+2*i}, 16, v{src}")
                T3.append(f"  v_and_b32 v{U+2*i+1}, 0xffff0000, v{src}")
            for i in range(16):
                T3.append(f"  v_fmac_f32 v{V_O+i}, v{G+j}, v{U+i}")
        else:
            for i in range(16):
                T3.append(f"  v_fmac_f32 v{V_O+i}, v{G+j}, v{VIN+16*(j-1)+i}")
    stamp(T3)
    OV = V_O + 32
    for i in range(8):
        T3.append(f"  v_cvt_pk_bf16_f32 v{OV+i}, v{V_O+2*i}, v{V_O+2*i+1}")
    T3 += [
        f"  v_permlane32_swap_b32 v{OV}, v{OV+2}",
        f"  v_permlane32_swap_b32 v{OV+1}, v{OV+3}",
        f"  buffer_store_dwordx4 {vr(OV,4)}, v{V_OUTA}, {srd(S_OUT)}, 0 offen {opol}",
        f"  v_permlane32_swap_b32 v{OV+4}, v{OV+6}",
        f"  v_permlane32_swap_b32 v{OV+5}, v{OV+7}",
        f"  buffer_store_dwordx4 {vr(OV+4,4)}, v{V_OUTA}, {srd(S_OUT)}, 0 offen offset:32 {opol}",
    ]
    if diag:
        T3.append("  s_waitcnt vmcnt(0)")
        stamp(T3)
        T3.append("  s_getreg_b32 s4, hwreg(HW_REG_XCC_ID)")
        for k in range(nstamp[0]):
            T3.append(f"  v_mov_b32 v{V_S+k}, s{S_ST+2*k}")
        T3.append(f"  v_mov_b32 v{V_S+15}, s4")
        if diag == 3:
            T3 += [f"  s_lshl_b32 s{S_T0}, s2, 2", f"  s_add_u32 s{S_T0}, s{S_T0}, s{S_W}", f"  s_lshl_b32 s{S_T0}, s{S_T0}, 8",
                   f"  s_add_u32 s{S_T0}, s{S_T0}, {OFF_T + (1 << 20)}", f"  v_lshrrev_b32 v{V_T0}, 2, v{V_LANE16}",
                   f"  buffer_store_dword v14, v{V_T0}, {srd(S_WS)}, s{S_T0} offen"]
        if diag == 2:
            T3 += [f"  v_mov_b32 v{V_S+12}, s94", f"  v_mov_b32 v{V_S+13}, s96", f"  v_mov_b32 v{V_S+14}, s98"]
        T3 += [
            f"  s_lshl_b32 s{S_T0}, s2, 2",
            f"  s_add_u32 s{S_T0}, s{S_T0}, s{S_W}",
            f"  s_lshl_b32 s{S_T0}, s{S_T0}, 6",
            f"  s_add_u32 s{S_T0}, s{S_T0}, {OFF_T}",
            "  s_mov_b64 exec, 1",
        ]
        for i in range(4):
            T3.append(f"  buffer_store_dwordx4 {vr(V_S+4*i,4)}, off, {srd(S_WS)}, s{S_T0} offset:{16*i}")
    T3.append("  s_endpgm")

    traces["cons_a"] = E + P + PA + P2 + B + BE + B + RS + BE + B + BE + Tl + TD + T2 + TP + T3
    traces["cons_b"] = E + P + P2 + B + RS + BE + Tl + TD + TD + T2 + TP + TP + T3
    errs = []
    for n, t in traces.items():
        errs += check_hazards(t, n)
    if errs and not abl:
        raise RuntimeError("hazards:\n" + "\n".join(errs))

    out = [HEADER.rstrip(),
           "; 256 workgroups = 64 (batch, kv head) pairs x 4 key splits; wave 0 streams K/V into an LDS ring,",
           "; waves 1-4 each own one query head (32 rows); partial results are exchanged through d_ws.",
           f"; @launch grid=(256,1,1) block=({256+64*NL},1,1) lds=131072",
           '.amdgcn_target "amdgcn-amd-amdhsa--gfx950"', ".text", f".globl {NAME}", ".p2align 8",
           f".type {NAME},@function", f"{NAME}:"]
    out += E + LD + ["L_ldloop:"] + LDL + LDT
    out += ["L_cons:"] + P + PA + ["L_noatom:"] + P2
    out += [".p2align 6" if False else "", "L_loop:"] + B + ["L_norescale:"] + BE
    out += Tl + ["L_dbgpoll:"] + TD + T2 + ["L_poll:"] + TP + T3
    out += ["L_rescale:"] + RS
    out += ["L_end:", "  s_endpgm"]
    out += ['.section .rodata,"a"', ".p2align 6", f".amdhsa_kernel {NAME}",
            f"  .amdhsa_next_free_vgpr {NVGPR}", "  .amdhsa_next_free_sgpr 102",
            f"  .amdhsa_accum_offset {NVGPR}", "  .amdhsa_group_segment_fixed_size 0",
            "  .amdhsa_kernarg_size 48", "  .amdhsa_user_sgpr_count 2",
            "  .amdhsa_user_sgpr_kernarg_segment_ptr 1", "  .amdhsa_system_sgpr_workgroup_id_x 1",
            ".end_amdhsa_kernel"]
    return "\n".join(l.rstrip() for l in out if l is not None) + "\n"


if __name__ == "__main__":
    kw = eval("dict(%s)" % sys.argv[1]) if len(sys.argv) > 1 else {}
    sys.stdout.write(gen(**kw))
```

```python
import struct, sys, math
from asmlib import check_hazards, auto_lgkm

NAME = "standalone__gqa_softmax__sampling_kernel"

HEADER = """; Kernarg layout for this problem (48 bytes, ptrs only, base s[0:1]):
;   offset   0: d_in[0] q  shape=(8, 32, 32, 128) dtype=bfloat16 strides=(262144, 8192, 256, 2) contiguous=True
;   offset   8: d_in[1] k  shape=(8, 8, 8192, 128) dtype=bfloat16 strides=(16777216, 2097152, 256, 2) contiguous=True
;   offset  16: d_in[2] v  shape=(8, 8, 8192, 128) dtype=bfloat16 strides=(16777216, 2097152, 256, 2) contiguous=True
;   offset  24: d_out     shape=(8, 32, 32, 128) dtype=bfloat16 (2 bytes/elem)
"""


def f32(x):
    return "0x%08x" % struct.unpack("<I", struct.pack("<f", x))[0]


V_M = 2
V_T0, V_T1, V_T2, V_T3 = 4, 5, 6, 7
V_LANE16 = 8
V_FADDR = 9
V_OUTA = 10
V_TR = 11
V_KA = 12
V_VA = 16
V_X = 24
V_FR = 32
V_O = 64
V_S = 128
V_P = 160
V_L = 176
V_ONE = 192
V_NM = 196
V_NA, V_N = 204, 205
V_Q = 208
NVGPR = 240

S_K, S_V, S_Q, S_OUT, S_WS, S_DBG = 16, 20, 24, 28, 32, 36
S_BH, S_SP, S_W = 40, 41, 42
S_C, S_THR = 44, 45
S_CNT, S_DK, S_DV = 46, 47, 48
S_T0, S_T1, S_T2, S_T3 = 50, 51, 52, 53
S_OD = 54
S_OI = 57
S_ML = 58
S_F = 62
S_FO = 63
S_DB = 64
S_RET = 66
S_ST = 70

OFF_ML = 16 << 20
OFF_F = 18 << 20
OFF_CT = 19 << 20
OFF_T = 20 << 20
LDS_N = 131072
WS_BYTES = 32 << 20


def vr(base, n):
    return f"v[{base}:{base+n-1}]"


def srd(b):
    return f"s[{b}:{b+3}]"


def cost(l):
    op = l.split()[0]
    if op.startswith("v_exp"):
        return 2
    return 1


def spread(fillers, nslots, weights=None):
    weights = weights or [1] * nslots
    tot = sum(cost(f) for f in fillers)
    wt = sum(weights)
    out = [[] for _ in range(nslots)]
    acc = 0
    k = 0
    cw = 0
    for s in range(nslots):
        cw += weights[s]
        tgt = tot * cw / wt
        while k < len(fillers) and acc + cost(fillers[k]) / 2.0 <= tgt + 1e-9:
            out[s].append(fillers[k])
            acc += cost(fillers[k])
            k += 1
    out[-1] += fillers[k:]
    return out


def gen(W=36, gs=4, fine=1, pol="nt", grp="mix", bf16p=0, THR=2.0 ** 24, diag=0, opol="", qpol="", NT=32, prio=3,
        abl="", NL=1, pre=0, LPOS=2, WG=2, RD=4, ramp=(), chain=1, dyn=1, NS=16, early=1):
    traces = {}
    nstamp = [0]

    def stamp(dst):
        if diag:
            k = nstamp[0]
            nstamp[0] += 1
            dst.append(f"  s_memrealtime s[{S_ST+2*k}:{S_ST+2*k+1}]")
            dst.append("  s_waitcnt lgkmcnt(0)")

    R = 2048 if bf16p else 4096
    c = math.log2(math.e) / math.sqrt(128.0)
    E = [
        "  s_cmp_ge_u32 s2, 256",
        "  s_cbranch_scc1 L_end",
        "  s_load_dwordx4 s[4:7], s[0:1], 0",
        "  s_load_dwordx4 s[8:11], s[0:1], 16",
        "  s_load_dwordx4 s[12:15], s[0:1], 32",
        "  v_lshrrev_b32 v1, 6, v0",
        "  v_and_b32 v0, 63, v0",
        "  v_readfirstlane_b32 s3, v1",
    ]
    if grp == "xcd":
        E += [
            f"  s_and_b32 s{S_T0}, s2, 7",
            f"  s_lshr_b32 s{S_T1}, s2, 3",
            f"  s_and_b32 s{S_SP}, s{S_T1}, 3",
            f"  s_lshr_b32 s{S_T1}, s{S_T1}, 2",
            f"  s_lshl_b32 s{S_BH}, s{S_T0}, 3",
            f"  s_add_u32 s{S_BH}, s{S_BH}, s{S_T1}",
        ]
    elif grp == "lo":
        E += [
            f"  s_lshr_b32 s{S_BH}, s2, 2",
            f"  s_and_b32 s{S_SP}, s2, 3",
        ]
    elif grp == "mix":
        E += [
            f"  s_and_b32 s{S_SP}, s2, 1",
            f"  s_bfe_u32 s{S_T0}, s2, {2 | (1 << 16)}",
            f"  s_lshl_b32 s{S_T0}, s{S_T0}, 1",
            f"  s_or_b32 s{S_SP}, s{S_SP}, s{S_T0}",
            f"  s_lshr_b32 s{S_BH}, s2, 3",
            f"  s_and_b32 s{S_T0}, s2, 2",
            f"  s_lshl_b32 s{S_T0}, s{S_T0}, 4",
            f"  s_add_u32 s{S_BH}, s{S_BH}, s{S_T0}",
        ]
    elif grp == "lo2":
        E += [
            f"  s_and_b32 s{S_SP}, s2, 3",
            f"  s_lshr_b32 s{S_BH}, s2, 3",
            f"  s_and_b32 s{S_T0}, s2, 4",
            f"  s_lshl_b32 s{S_T0}, s{S_T0}, 3",
            f"  s_add_u32 s{S_BH}, s{S_BH}, s{S_T0}",
        ]
    E += [
        f"  s_cmp_ge_u32 s3, {NL}",
        "  s_cbranch_scc1 L_cons",
    ]
    LD = [
        f"  s_setprio {prio}",
        f"  s_lshl_b32 s{S_T0}, s{S_BH}, 21",
        "  v_lshrrev_b32 v3, 4, v0",
        "  v_and_b32 v4, 15, v0",
    ]
    for j in range(4):
        LD += [
            f"  v_add_u32 v5, {4*j}, v3",
            "  v_xor_b32 v5, v5, v4",
            "  v_lshlrev_b32 v5, 4, v5",
            f"  v_lshl_add_u32 v{10+j}, v3, 8, v5",
        ]
    for j in range(2):
        LD += [
            f"  v_add_u32 v5, {4*j}, v3",
            "  v_lshlrev_b32 v5, 1, v5",
            "  v_xor_b32 v5, v5, v4",
            "  v_lshlrev_b32 v5, 4, v5",
            f"  v_lshl_add_u32 v{14+j}, v3, 8, v5",
        ]
    LD += [
        f"  s_mov_b32 s{S_K+2}, 0x200000",
        f"  s_mov_b32 s{S_K+3}, 0x20000",
        f"  s_mov_b32 s{S_V+2}, 0x200000",
        f"  s_mov_b32 s{S_V+3}, 0x20000",
        f"  s_lshl_b32 s54, s{S_SP}, 19",
        "  s_mov_b32 s55, s54",
        "  s_mov_b32 s56, 0",
        "  s_mov_b32 s57, 0x10000",
        "  s_waitcnt lgkmcnt(0)",
        f"  s_add_u32 s{S_K}, s6, s{S_T0}",
        f"  s_addc_u32 s{S_K+1}, s7, 0",
        f"  s_add_u32 s{S_V}, s8, s{S_T0}",
        f"  s_addc_u32 s{S_V+1}, s9, 0",
    ]
    st = dict(pos=0, pend=[], load=True)

    def part(dst, which, w):
        go, lo, sr = (54, 56, S_K) if which == "K" else (55, 57, S_V)
        for g in range(4):
            dst.append(f"  s_add_u32 m0, s{lo}, {g*4096}")
            dst.append(f"  s_add_u32 s{S_T2}, s{go}, {g*4096}")
            for j in range(4):
                x = w - gs
                if j % gs == 0 and st["pos"] > x:
                    if fine or (st["pend"] and st["pos"] - st["pend"][0] >= x):
                        dst.append(f"  s_waitcnt vmcnt({x})")
                    while st["pend"] and st["pos"] - st["pend"][0] >= x:
                        dst.append("  s_barrier")
                        st["pend"].pop(0)
                vo = 10 + j if which == "K" else 14 + (j & 1)
                if st["load"]:
                    dst.append(f"  buffer_load_dwordx4 v{vo}, {srd(sr)}, s{S_T2} offen offset:{j*1024} {pol} lds")
                st["pos"] += 1
        dst.append(f"  s_add_u32 s{lo}, s{lo}, 16384")
        dst.append(f"  s_and_b32 s{lo}, s{lo}, 0xffff")
        if which == "V":
            dst.append(f"  s_or_b32 s{lo}, s{lo}, 0x10000")

    def body(dst, w):
        part(dst, "K", w)
        part(dst, "V", w)
        dst += ["  s_mov_b32 s55, s54", "  s_add_u32 s54, s54, 16384"]
        st["pend"].append(st["pos"])

    def rel():
        return [st["pos"] - p for p in st["pend"]]
    assert W % gs == 0 and 4 <= W <= 64
    rampw = list(ramp)
    part(LD, "K", rampw[0] if rampw else W)
    st["pend"].append(st["pos"])
    LD += ["  s_add_u32 s54, s54, 16384"]
    if dyn:
        LD += [
            f"  s_mov_b32 s{S_DBG}, s12", f"  s_mov_b32 s{S_DBG+1}, s13", f"  s_mov_b32 s{S_DBG+2}, 256", f"  s_mov_b32 s{S_DBG+3}, 0x20000",
            f"  s_lshl_b32 s{S_DB}, s{S_BH}, 2",
            f"  s_lshl_b32 s{S_F}, s{S_BH}, 8", f"  s_add_u32 s{S_F}, s{S_F}, {OFF_CT}",
            f"  s_add_u32 s60, s14, s{S_F}", "  s_addc_u32 s61, s15, 0",
            f"  v_mov_b32 v20, {LDS_N}", "  v_mov_b32 v21, 0",
            "  ds_write_b32 v20, v21", "  s_waitcnt lgkmcnt(0)",
        ]
    nb = 0
    while True:
        r0 = rel()
        body(LD, rampw[nb + 1] if nb + 1 < len(rampw) else W)
        nb += 1
        if nb + 1 >= len(rampw) and nb >= (4 if "L" in abl else 1):
            save = (st["pos"], list(st["pend"]))
            r1 = rel()
            body([], W)
            r2 = rel()
            st["pos"], st["pend"] = save
            if r1 == r2:
                break
    if "L" in abl:
        st["load"] = False
    nstat = (NS - 3 if dyn else NT - 1) - nb
    assert nstat >= 1
    LD.append(f"  s_mov_b32 s{S_CNT}, {nstat}")
    D1 = []
    body(D1, W)
    D1 += [f"  s_sub_u32 s{S_CNT}, s{S_CNT}, 1", f"  s_cmp_lg_u32 s{S_CNT}, 0", "  s_cbranch_scc1 L_ldloop"]
    D6 = []
    if dyn:
        D2 = [f"  buffer_load_dword v22, off, {srd(S_DBG)}, s{S_DB} sc1"]
        body(D2, W)
        D2 += ["  s_waitcnt vmcnt(32)", "  v_cmp_ne_u32 vcc, 4, v22", "  s_cbranch_vccz L_dbgok"]
        D3 = [f"  buffer_load_dword v22, off, {srd(S_DBG)}, s{S_DB} sc1", "  s_waitcnt vmcnt(0)",
              "  v_cmp_ne_u32 vcc, 4, v22", "  s_cbranch_vccnz L_dbgpoll"]
        D4 = [f"  s_mov_b32 s{S_CNT}, {NS-1}"]
        D5 = ["  s_mov_b32 s59, 1", "  s_atomic_add s59, s[60:61], 0x0 glc"]
        body(D5, W)
        D5 += [
            f"  s_add_u32 s{S_CNT}, s{S_CNT}, 1",
            "  s_waitcnt lgkmcnt(0)",
            "  s_and_b32 s58, s59, 3", "  s_lshl_b32 s58, s58, 19",
            "  s_lshr_b32 s54, s59, 2", f"  s_add_u32 s54, s54, {NS}", "  s_lshl_b32 s54, s54, 14",
            "  s_add_u32 s54, s54, s58",
            f"  s_cmp_lt_u32 s59, {128 - 4*NS}",
            "  s_cbranch_scc1 L_dyn",
        ]
        D6 += [f"  v_mov_b32 v21, s{S_CNT}", "  ds_write_b32 v20, v21", "  s_waitcnt lgkmcnt(0)"]
    part(D6, "V", W)
    st["pend"].append(st["pos"])
    for r in rel():
        D6 += [f"  s_waitcnt vmcnt({r})", "  s_barrier"]
    D6.append("  s_endpgm")
    if dyn:
        traces["loader"] = E + LD + D1 + D1 + D2 + D3 + D4 + D5 + D5 + D6
        LOADER = LD + ["L_ldloop:"] + D1 + D2 + ["L_dbgpoll:"] + D3 + ["L_dbgok:"] + D4 + ["L_dyn:"] + D5 + D6
        nbar = sum(l == "  s_barrier" for l in LD + D1 * nstat + D2 + D5 + D6)
        assert nbar == NS + 1, nbar
    else:
        traces["loader"] = E + LD + D1 + D1 + D6
        LOADER = LD + ["L_ldloop:"] + D1 + D6
        nbar = sum(l == "  s_barrier" for l in LD + D1 * nstat + D6)
        assert nbar == NT + 1, nbar

    P = []
    stamp(P)
    P += [
        f"  s_sub_u32 s{S_W}, s3, {NL}",
        f"  s_lshl_b32 s{S_T0}, s{S_BH}, 2",
        f"  s_add_u32 s{S_T1}, s{S_T0}, s{S_W}",
        f"  s_lshl_b32 s{S_T2}, s{S_T1}, 13",
        f"  s_lshl_b32 s{S_F}, s{S_T1}, 7",
        f"  s_add_u32 s{S_F}, s{S_F}, {OFF_F}",
        f"  s_lshl_b32 s{S_FO}, s{S_SP}, 2",
        f"  s_add_u32 s{S_FO}, s{S_FO}, s{S_F}",
        f"  s_lshl_b32 s{S_DB}, s{S_BH}, 2",
        f"  v_and_b32 v{V_T0}, 15, v0",
        f"  v_lshrrev_b32 v{V_T1}, 4, v0",
        f"  v_lshlrev_b32 v{V_T2}, 4, v{V_T1}",
        f"  v_lshl_add_u32 v{V_T3}, v{V_T0}, 8, v{V_T2}",
        f"  s_mov_b32 s{S_Q+2}, 8192",
        f"  s_mov_b32 s{S_Q+3}, 0x20000",
        f"  s_mov_b32 s{S_OUT+2}, 8192",
        f"  s_mov_b32 s{S_OUT+3}, 0x20000",
        f"  s_mov_b32 s{S_WS+2}, {WS_BYTES}",
        f"  s_mov_b32 s{S_WS+3}, 0x20000",
        f"  s_mov_b32 s{S_DBG+2}, 256",
        f"  s_mov_b32 s{S_DBG+3}, 0x20000",
        f"  s_movk_i32 s{S_T3}, 0x1000",
        "  s_waitcnt lgkmcnt(0)",
        f"  s_add_u32 s{S_Q}, s4, s{S_T2}",
        f"  s_addc_u32 s{S_Q+1}, s5, 0",
        f"  s_add_u32 s{S_OUT}, s10, s{S_T2}",
        f"  s_addc_u32 s{S_OUT+1}, s11, 0",
        f"  s_mov_b32 s{S_WS}, s14",
        f"  s_mov_b32 s{S_WS+1}, s15",
        f"  s_mov_b32 s{S_DBG}, s12",
        f"  s_mov_b32 s{S_DBG+1}, s13",
    ]
    Qf = lambda qb, ks: V_Q + 4 * (qb * 4 + ks)
    for qb in range(2):
        for ks in range(4):
            so = f"s{S_T3}" if qb else "0"
            P.append(f"  buffer_load_dwordx4 {vr(Qf(qb,ks),4)}, v{V_T3}, {srd(S_Q)}, {so} offen offset:{ks*64} {qpol}")
    P += [
        f"  v_mov_b32 v{V_T2}, 0",
        "  s_mov_b64 exec, 1",
        f"  buffer_store_dword v{V_T2}, off, {srd(S_WS)}, s{S_FO} sc1",
    ]
    if dyn:
        P += [
            f"  s_or_b32 s{S_T1}, s{S_SP}, s{S_W}",
            f"  s_lshl_b32 s{S_T2}, s{S_BH}, 8", f"  s_add_u32 s{S_T2}, s{S_T2}, {OFF_CT}",
            f"  s_cmp_eq_u32 s{S_T1}, 0",
            f"  s_cselect_b32 s{S_T2}, s{S_T2}, s{S_FO}",
            f"  buffer_store_dword v{V_T2}, off, {srd(S_WS)}, s{S_T2} sc1",
        ]
    P += ["  s_mov_b64 exec, -1"]
    if dyn:
        P += [f"  v_mov_b32 v{V_NA}, {LDS_N}"]
    P += [
        f"  v_xor_b32 v{V_T2}, v{V_T0}, v{V_T1}",
        f"  v_lshlrev_b32 v{V_T2}, 4, v{V_T2}",
        f"  v_lshl_add_u32 v{V_KA}, v{V_T0}, 8, v{V_T2}",
    ]
    for ks in range(1, 4):
        P.append(f"  v_xor_b32 v{V_KA+ks}, {ks*64}, v{V_KA}")
    P += [
        f"  v_lshrrev_b32 v{V_T2}, 2, v0",
        f"  v_lshlrev_b32 v{V_T3}, 8, v{V_T2}",
        f"  v_and_b32 v{V_T2}, 7, v{V_T2}",
        f"  s_lshl_b32 s{S_T2}, s{S_SP}, 1",
        f"  v_xor_b32 v{V_T2}, s{S_T2}, v{V_T2}",
        f"  v_lshl_add_u32 v{V_T3}, v{V_T2}, 5, v{V_T3}",
        f"  v_and_b32 v{V_T2}, 3, v0",
        f"  v_lshl_add_u32 v{V_T3}, v{V_T2}, 3, v{V_T3}",
        f"  v_lshlrev_b32 v{V_FADDR}, 2, v{V_T2}",
        f"  v_add_u32 v{V_VA}, 0x10000, v{V_T3}",
    ]
    for db in range(1, 8):
        P.append(f"  v_xor_b32 v{V_VA+db}, {db*32}, v{V_VA}")
    P += [
        f"  v_cmp_eq_u32 vcc, 0, v{V_T2}",
        f"  v_mov_b32 v{V_T3}, 0x3f803f80",
        f"  v_lshlrev_b32 v{V_LANE16}, 4, v0",
        f"  v_cndmask_b32 v{V_ONE}, 0, v{V_T3}, vcc",
        f"  v_cndmask_b32 v{V_ONE+1}, 0, v{V_T3}, vcc",
        f"  v_cndmask_b32 v{V_ONE+2}, 0, v{V_T3}, vcc",
        f"  v_cndmask_b32 v{V_ONE+3}, 0, v{V_T3}, vcc",
        f"  v_and_b32 v{V_T2}, 1, v{V_T1}",
        f"  v_lshlrev_b32 v{V_T2}, 5, v{V_T2}",
        f"  v_lshl_add_u32 v{V_OUTA}, v{V_T0}, 8, v{V_T2}",
        f"  v_lshrrev_b32 v{V_T2}, 1, v{V_T1}",
        f"  v_lshl_add_u32 v{V_OUTA}, v{V_T2}, 4, v{V_OUTA}",
        f"  s_lshl_b32 s{S_T2}, s{S_SP}, 6",
        f"  v_add_u32 v{V_OUTA}, s{S_T2}, v{V_OUTA}",
        f"  s_mov_b32 s{S_C}, {f32(c)}",
        f"  s_mov_b32 s{S_THR}, {f32(THR)}",
    ]
    for j in range(0, 4):
        P += [
            f"  s_xor_b32 s{S_T1}, s{S_SP}, {j}",
            f"  s_add_u32 s{S_T1}, s{S_T1}, s{S_T0}",
            f"  s_lshl_b32 s{S_T1}, s{S_T1}, 2",
            f"  s_add_u32 s{S_T1}, s{S_T1}, s{S_W}",
            f"  s_lshl_b32 s{S_ML+j}, s{S_T1}, 10",
            f"  s_add_u32 s{S_ML+j}, s{S_ML+j}, {OFF_ML}",
        ]
        if j == 0:
            P.append(f"  s_mul_i32 s{S_OI}, s{S_T1}, {3*R}")
        else:
            P.append(f"  s_mul_i32 s{S_OD+j-1}, s{S_T1}, {3*R}")
            P.append(f"  s_add_u32 s{S_OD+j-1}, s{S_OD+j-1}, {(j-1)*R}")
    for i in range(64):
        P.append(f"  v_mov_b32 v{V_O+i}, 0")
    P += [f"  s_mov_b32 s{S_T3}, 0x4000"] + (["  s_barrier"] if early else []) + ["  s_waitcnt vmcnt(0)"]
    if pre:
        for i in range(32):
            q = V_Q + i
            P += [f"  v_lshlrev_b32 v{V_T0}, 16, v{q}", f"  v_and_b32 v{V_T1}, 0xffff0000, v{q}",
                  f"  v_mul_f32 v{V_T0}, s{S_C}, v{V_T0}", f"  v_mul_f32 v{V_T1}, s{S_C}, v{V_T1}",
                  f"  v_cvt_pk_bf16_f32 v{q}, v{V_T0}, v{V_T1}"]
    if not early:
        P += ["  s_barrier"]
    stamp(P)
    PA = [
        f"  v_mov_b32 v{V_T2}, 1",
        "  s_mov_b64 exec, 1",
        f"  buffer_atomic_add v{V_T2}, off, {srd(S_DBG)}, s{S_DB} sc1",
        "  s_mov_b64 exec, -1",
    ]

    Sb = lambda par, kbl, qb: V_S + 16 * par + 4 * (kbl * 2 + qb)
    Pb = lambda par, qb: V_P + 8 * par + 4 * qb
    Lb = lambda par, qb: V_L + 8 * par + 4 * qb
    Ob = lambda db, qb: V_O + 4 * (db * 2 + qb)
    Fr = lambda half, f: V_FR + 16 * half + 4 * f

    def kreads(half, kb):
        return [f"  ds_read_b128 {vr(Fr(half,ks),4)}, v{V_KA+ks} offset:{kb*4096}" for ks in range(4)]

    def vreads(half, lst):
        o = []
        for f, (kp, db) in enumerate(lst):
            for u in range(2):
                o.append(f"  ds_read_b64_tr_b16 {vr(Fr(half,f)+2*u,2)}, v{V_VA+db} offset:{kp*8192+u*4096}")
        return o

    def qkm(half, kb, first=False):
        par, kbl = kb >> 1, kb & 1
        o = []
        order = [(qb, ks) for qb in range(2) for ks in range(4)] if chain else [(qb, ks) for ks in range(4) for qb in range(2)]
        for qb, ks in order:
            d = vr(Sb(par, kbl, qb), 4)
            c0 = vr(V_NM + 4 * qb, 4) if (pre and not first) else 0
            o.append(f"  v_mfma_f32_16x16x32_bf16 {d}, {vr(Fr(half,ks),4)}, {vr(Qf(qb,ks),4)}, {d if ks else c0}")
        return o

    def pvm(half, lst):
        o = []
        for f, (kp, db) in enumerate(lst):
            for qb in range(2):
                d = vr(Ob(db, qb), 4)
                o.append(f"  v_mfma_f32_16x16x32_bf16 {d}, {vr(Fr(half,f),4)}, {vr(Pb(kp,qb),4)}, {d}")
        return o

    def lm(par, first=False):
        return [f"  v_mfma_f32_16x16x32_bf16 {vr(Lb(par,qb),4)}, {vr(V_ONE,4)}, {vr(Pb(par,qb),4)}, {0 if first else vr(Lb(par^1,qb),4)}"
                for qb in range(2)]

    def softmax(par):
        pairs = [(kbl, qb, h) for kbl in range(2) for qb in range(2) for h in range(2)]
        st = [[], [], []]
        for k, (kbl, qb, h) in enumerate(pairs):
            s = Sb(par, kbl, qb) + 2 * h
            x = V_X + 2 * (k & 3)
            if pre:
                st[0].append([])
                st[1].append([f"  v_exp_f32 v{x}, v{s}", f"  v_exp_f32 v{x+1}, v{s+1}"])
            else:
                st[0].append([f"  v_fma_f32 v{x}, v{s}, s{S_C}, -v{V_M+qb}", f"  v_fma_f32 v{x+1}, v{s+1}, s{S_C}, -v{V_M+qb}"])
                st[1].append([f"  v_exp_f32 v{x}, v{x}", f"  v_exp_f32 v{x+1}, v{x+1}"])
            st[2].append([f"  v_cvt_pk_bf16_f32 v{Pb(par,qb)+2*kbl+h}, v{x}, v{x+1}"])
        o = []
        for k in range(10):
            if k < 8:
                o += st[0][k]
            if 0 <= k - 1 < 8:
                o += st[1][k - 1]
            if k == 9:
                o += ["  s_nop 0"] if False else []
            if 0 <= k - 2 < 8:
                o += st[2][k - 2]
        return o

    def check(par, site):
        return [f"  v_add_f32 v{V_T0}, v{Lb(par,0)}, v{Lb(par,1)}",
                f"  v_cmp_nge_f32 vcc, s{S_THR}, v{V_T0}",
                f"  s_cbranch_vccnz L_fix{site}",
                f"L_ret{site}:"]

    def xmax(reg, tmp):
        return [f"  v_mov_b32 v{tmp}, v{reg}", "  s_nop 1", f"  v_permlane16_swap_b32 v{reg}, v{tmp}",
                f"  v_max_f32 v{reg}, v{reg}, v{tmp}",
                f"  v_mov_b32 v{tmp}, v{reg}", "  s_nop 1", f"  v_permlane32_swap_b32 v{reg}, v{tmp}",
                f"  v_max_f32 v{reg}, v{reg}, v{tmp}"]

    def maxof(dst, regs):
        o = [f"  v_max3_f32 v{dst}, v{regs[0]}, v{regs[1]}, v{regs[2]}"]
        k = 3
        while k + 1 < len(regs):
            o.append(f"  v_max3_f32 v{dst}, v{dst}, v{regs[k]}, v{regs[k+1]}")
            k += 2
        if k < len(regs):
            o.append(f"  v_max_f32 v{dst}, v{dst}, v{regs[k]}")
        return o

    def group(mf, reads, fill):
        o = []
        per = -(-len(reads) // RD) if reads else 0
        for i, m in enumerate(mf):
            o.append(m)
            o += reads[i * per:(i + 1) * per]
            o += fill[i]
        return o

    def coarse_waits(lines):
        return lines

    VG = [[(0, db) for db in range(4)], [(0, db) for db in range(4, 8)],
          [(1, db) for db in range(4)], [(1, db) for db in range(4, 8)]]

    def pre_wait(lines, nfrag_ops, pending_new):
        return lines

    def gwait(mf, kind):
        return mf

    P2 = kreads(0, 0) + kreads(1, 1) + qkm(0, 0, True) + kreads(0, 2) + qkm(1, 1, True) + kreads(1, 3) + qkm(0, 2, True) + qkm(1, 3, True)
    for ks in range(4):
        P2.append(f"  v_add_u32 v{V_KA+ks}, 0x4000, v{V_KA+ks}")
    P2.append("  s_nop 3")
    for qb in range(2):
        regs = [Sb(par, kbl, qb) + r for par in range(2) for kbl in range(2) for r in range(4)]
        P2 += maxof(V_M + qb, regs)
    for qb in range(2):
        P2 += xmax(V_M + qb, V_T0)
    if pre:
        for qb in range(2):
            for par in range(2):
                for kbl in range(2):
                    for r in range(4):
                        s = Sb(par, kbl, qb) + r
                        P2.append(f"  v_sub_f32 v{s}, v{s}, v{V_M+qb}")
            for r in range(4):
                P2.append(f"  v_sub_f32 v{V_NM+4*qb+r}, 0, v{V_M+qb}")
    else:
        for qb in range(2):
            P2.append(f"  v_mul_f32 v{V_M+qb}, s{S_C}, v{V_M+qb}")
    sm = softmax(0)
    P2 += sm[:-1] + ["  s_nop 0", sm[-1], "  s_nop 1"] + lm(0, True)
    P2 += [f"  s_mov_b32 s{S_CNT}, 0", f"  s_mov_b32 s{S_DK}, s{S_T3}", "  s_barrier"]
    P2 += kreads(0, 0)
    P2, pend0 = auto_lgkm(P2)
    P2 += [f"  s_cmp_lg_u32 s{S_W}, 0", "  s_cbranch_scc1 L_mid"] + PA + ["  s_branch L_mid"]
    if diag == 2:
        P2 = P2[:-7] + ["  s_mov_b32 s94, 0", "  s_waitcnt lgkmcnt(0)", "  s_memtime s[96:97]", "  s_memrealtime s[98:99]", "  s_waitcnt lgkmcnt(0)"] + P2[-7:]

    def with_l(mf, par):
        return mf[:LPOS] + lm(par) + mf[LPOS:]

    def step_fill(par):
        n = 24 + max(LPOS - 1, 0)
        f = spread(softmax(par), n)
        return f + [[] for _ in range(34 - n)]

    fa = step_fill(1)
    fb = step_fill(0)
    B1 = []
    if diag == 2:
        B1 += ["  s_waitcnt lgkmcnt(0)", "  s_memtime s[90:91]"]
    B1 += ["  s_waitcnt lgkmcnt(0)", "  s_barrier"]
    if diag == 2:
        B1 += ["  s_memtime s[92:93]", "  s_waitcnt lgkmcnt(0)", "  s_sub_u32 s92, s92, s90", "  s_add_u32 s94, s94, s92"]
    if diag == 4:
        B1 += [f"  s_cmp_lg_u32 s{S_CNT}, 8", "  s_cbranch_scc1 L_nost", "  s_memtime s[96:97]", "  s_memrealtime s[98:99]", "  s_waitcnt lgkmcnt(0)", "  s_mov_b32 s94, 0", "L_nost:"]
    if diag == 3:
        B1 += ["  s_memrealtime s[92:93]", "  s_memtime s[90:91]", f"  s_min_u32 s95, s{S_CNT}, 31", "  s_add_u32 s94, s95, 32", "  s_waitcnt lgkmcnt(0)",
               "  s_mov_b32 m0, s95", f"  v_writelane_b32 v{V_TR}, s92, m0", "  s_mov_b32 m0, s94", f"  v_writelane_b32 v{V_TR}, s90, m0"]
    f7 = [list(x) for x in fb[24:34]]
    vup = [f"  v_add_u32 v{V_VA+db}, s{S_DV}, v{V_VA+db}" for db in range(8)]
    for i in range(8):
        f7[2 + i].append(vup[i])
    G7 = with_l(pvm(1, VG[3]), 0)
    B1 += group(G7, kreads(0, 0), f7)
    B1 += check(0, 0)
    B2 = []
    B2 += group(qkm(0, 0), kreads(1, 1), fa[0:8])
    B2 += group(qkm(1, 1), vreads(0, VG[0]), fa[8:16])
    B2 += group(pvm(0, VG[0]), vreads(1, VG[1]), fa[16:24])
    f3 = [list(x) for x in fa[24:34]]
    f3[4] += [f"  s_add_u32 s{S_CNT}, s{S_CNT}, 1", f"  s_and_b32 s{S_T0}, s{S_CNT}, 3"]
    f3[5] += [f"  s_cmp_eq_u32 s{S_T0}, 3", f"  s_cselect_b32 s{S_DK}, {(-49152) & 0xffffffff}, s{S_T3}"]
    f3[6] += [f"  s_cmp_eq_u32 s{S_T0}, 0", f"  s_cselect_b32 s{S_DV}, {(-49152) & 0xffffffff}, s{S_T3}"]
    if dyn:
        f3[7] += [f"  ds_read_b32 v{V_N}, v{V_NA}"]
    B2 += group(with_l(pvm(1, VG[1]), 1), kreads(0, 2), f3)
    B2 += check(1, 1)
    B2 += group(qkm(0, 2), kreads(1, 3), fb[0:8])
    B2 += group(qkm(1, 3), vreads(0, VG[2]), fb[8:16])
    f6 = [list(x) for x in fb[16:24]]
    for ks in range(4):
        f6[4 + ks].append(f"  v_add_u32 v{V_KA+ks}, s{S_DK}, v{V_KA+ks}")
    if dyn:
        f6[0] = [f"  v_readfirstlane_b32 s{S_T0}, v{V_N}"] + f6[0]
        f6[2] += [f"  s_sub_u32 s{S_T0}, s{S_T0}, 1"]
    B2 += group(pvm(0, VG[2]), vreads(1, VG[3]), f6)
    B2 += [f"  s_cmp_lg_u32 s{S_CNT}, " + (f"s{S_T0}" if dyn else f"{NT-1}"), "  s_cbranch_scc1 L_loop"]

    def ablate(B):
        if "d" in abl:
            B = [l for l in B if not l.strip().startswith("ds_")]
        if "v" in abl:
            B = [l for l in B if not l.strip().startswith(("v_exp", "v_fma", "v_cvt"))]
        return B

    def coarse(lines, pend):
        if WG >= 4:
            return auto_lgkm(lines, pend)
        out = []
        n = 4 // WG
        for l in lines:
            if l.strip().startswith("v_mfma"):
                a = int(l.split(",")[1].split("[")[1].split(":")[0])
                if V_FR <= a < V_FR + 32:
                    f = (a - V_FR) // 4
                    last = V_FR + 4 * ((f // n) * n + n - 1) + 3
                    out.append(f"  v_touch v{last}, v{last}")
            out.append(l)
        out, pend = auto_lgkm(out, pend)
        return [l for l in out if not l.strip().startswith("v_touch")], pend

    B1 = ablate(B1)
    B2 = ablate(B2)
    B1, pend1 = coarse(B1, [])
    assert "d" in abl or pend1 == pend0, (pend0, pend1)
    B2, pend2 = coarse(B2, pend1)

    def fix(par):
        o = ["  s_nop 7"]
        for qb in range(2):
            regs = [Sb(par, kbl, qb) + r for kbl in range(2) for r in range(4)]
            o += maxof(V_T0 + qb, regs)
        for qb in range(2):
            o += xmax(V_T0 + qb, V_T2)
        for qb in range(2):
            t = V_T0 + qb
            if pre:
                o += [f"  v_max_f32 v{t}, 0, v{t}", f"  v_add_f32 v{V_M+qb}, v{V_M+qb}, v{t}"]
                for p2 in range(2):
                    for kbl in range(2):
                        for r in range(4):
                            s = Sb(p2, kbl, qb) + r
                            o.append(f"  v_sub_f32 v{s}, v{s}, v{t}")
                for r in range(4):
                    o.append(f"  v_sub_f32 v{V_NM+4*qb+r}, 0, v{V_M+qb}")
                o += [f"  v_exp_f32 v{t}, -v{t}"]
            else:
                o += [f"  v_mul_f32 v{t}, s{S_C}, v{t}", f"  v_max_f32 v{t}, v{t}, v{V_M+qb}",
                      f"  v_sub_f32 v{V_T2}, v{V_M+qb}, v{t}", f"  v_mov_b32 v{V_M+qb}, v{t}", f"  v_exp_f32 v{t}, v{V_T2}"]
        o.append("  s_nop 0")
        for qb in range(2):
            o.append(f"  v_mul_f32 v{Lb(par^1,qb)}, v{V_T0+qb}, v{Lb(par^1,qb)}")
            for db in range(8):
                for r in range(4):
                    o.append(f"  v_mul_f32 v{Ob(db,qb)+r}, v{V_T0+qb}, v{Ob(db,qb)+r}")
        sm = softmax(par)
        o += sm[:-1] + ["  s_nop 0", sm[-1], "  s_nop 1"] + lm(par) + ["  s_nop 7"]
        return o
    FIX = [fix(0), fix(1)]

    T1 = []
    if diag in (2, 4):
        T1 += ["  s_waitcnt lgkmcnt(0)", "  s_memtime s[90:91]", "  s_memrealtime s[92:93]", "  s_waitcnt lgkmcnt(0)", "  s_sub_u32 s96, s90, s96", "  s_sub_u32 s98, s92, s98"]
    if not dyn:
        T1 += [f"  buffer_load_dword v{V_T3}, off, {srd(S_DBG)}, s{S_DB} sc1"]
    T1 += group(G7, [], f7)
    T1, pend = auto_lgkm(T1, pend2)
    assert not pend
    T1 += check(0, 2)
    sm = softmax(1)
    T1b = sm[:-1] + ["  s_nop 0", sm[-1], "  s_nop 1"] + lm(1) + ["  s_nop 7"] + check(1, 3)
    ML = V_X
    T1c = [
        f"  v_mov_b32 v{ML}, v{V_M}", f"  v_mov_b32 v{ML+1}, v{Lb(1,0)}",
        f"  v_mov_b32 v{ML+2}, v{V_M+1}", f"  v_mov_b32 v{ML+3}, v{Lb(1,1)}",
        f"  buffer_store_dwordx4 {vr(ML,4)}, v{V_LANE16}, {srd(S_WS)}, s{S_ML} offen sc1",
        "  s_waitcnt vmcnt(1)",
        f"  v_cmp_ne_u32 vcc, 4, v{V_T3}",
        "  s_cbranch_vccz L_dbgok",
    ]
    TD = [
        f"  buffer_load_dword v{V_T3}, off, {srd(S_DBG)}, s{S_DB} sc1",
        "  s_waitcnt vmcnt(0)",
        f"  v_cmp_ne_u32 vcc, 4, v{V_T3}",
        "  s_cbranch_vccnz L_dbgpoll",
    ]
    if dyn:
        T1c = T1c[:-3]
        TD = []
    T2 = []
    stamp(T2)
    T2.append("  s_barrier")
    stamp(T2)

    def ostore(j):
        o = []
        if bf16p:
            b = V_S + 8 * (j - 1)
            for i in range(8):
                o.append(f"  v_cvt_pk_bf16_f32 v{b+i}, v{V_O+16*j+2*i}, v{V_O+16*j+2*i+1}")
            for i in range(2):
                o.append(f"  buffer_store_dwordx4 {vr(b+4*i,4)}, v{V_LANE16}, {srd(S_WS)}, s{S_OD+j-1} offen offset:{i*1024} sc1")
        else:
            for i in range(4):
                o.append(f"  buffer_store_dwordx4 {vr(V_O+16*j+4*i,4)}, v{V_LANE16}, {srd(S_WS)}, s{S_OD+j-1} offen offset:{i*1024} sc1")
        return o
    TG = [[(kp, 2 * j + e) for kp in range(2) for e in range(2)] for j in (1, 2, 3, 0)]
    T2 += vreads(0, TG[0])
    for g in range(4):
        fl = [[] for _ in range(8)]
        if g >= 1:
            fl[7 if g == 3 else 4] = ostore(g)
        T2 += group(pvm(g & 1, TG[g]), vreads((g + 1) & 1, TG[g + 1]) if g < 3 else [], fl)
    T2, pend = auto_lgkm(T2)
    assert not pend
    T2 += [
        f"  v_mov_b32 v{V_T1}, 1",
        "  s_waitcnt vmcnt(0)",
        "  s_mov_b64 exec, 1",
        f"  buffer_store_dword v{V_T1}, off, {srd(S_WS)}, s{S_FO} sc1",
        "  s_mov_b64 exec, -1",
    ]
    stamp(T2)
    TP = [
        f"  buffer_load_dword v{V_T1}, v{V_FADDR}, {srd(S_WS)}, s{S_F} offen sc1",
        "  s_waitcnt vmcnt(0)",
        f"  v_cmp_ne_u32 vcc, 1, v{V_T1}",
        "  s_cbranch_vccnz L_poll",
    ]
    T3 = []
    stamp(T3)
    VML = V_FR
    VIN = V_S
    for j in range(1, 4):
        T3.append(f"  buffer_load_dwordx4 {vr(VML+4*(j-1),4)}, v{V_LANE16}, {srd(S_WS)}, s{S_ML+j} offen sc1")
    nld = 2 if bf16p else 4
    for j in range(1, 4):
        if j > 1 and not bf16p:
            T3.append(f"  s_add_u32 s{S_OI}, s{S_OI}, {R}")
        if j == 3 and bf16p:
            T3.append(f"  s_add_u32 s{S_OI}, s{S_OI}, {2*R}")
        for i in range(nld):
            off = i * 1024 + (R if (bf16p and j == 2) else 0)
            T3.append(f"  buffer_load_dwordx4 {vr(VIN+4*nld*(j-1)+4*i,4)}, v{V_LANE16}, {srd(S_WS)}, s{S_OI} offen offset:{off} sc1")
    G = V_FR + 16
    T3.append(f"  s_waitcnt vmcnt({3*nld})")
    ml = lambda j, qb: (ML if j == 0 else VML + 4 * (j - 1)) + 2 * qb
    for qb in range(2):
        T3 += [f"  v_max3_f32 v{V_T0+qb}, v{ml(0,qb)}, v{ml(1,qb)}, v{ml(2,qb)}"]
    for qb in range(2):
        T3 += [f"  v_max_f32 v{V_T0+qb}, v{V_T0+qb}, v{ml(3,qb)}"]
    for j in range(4):
        for qb in range(2):
            T3.append(f"  v_sub_f32 v{G+4*qb+j}, v{ml(j,qb)}, v{V_T0+qb}")
    for j in range(4):
        for qb in range(2):
            T3.append(f"  v_exp_f32 v{G+4*qb+j}, v{G+4*qb+j}")
    for j in range(4):
        for qb in range(2):
            op = "v_fmac_f32" if j else "v_mul_f32"
            T3.append(f"  {op} v{V_T0+qb}, v{G+4*qb+j}, v{ml(j,qb)+1}")
    T3 += [f"  v_rcp_f32 v{V_T0}, v{V_T0}", f"  v_rcp_f32 v{V_T1}, v{V_T1}", "  s_nop 0"]
    for j in range(4):
        for qb in range(2):
            T3.append(f"  v_mul_f32 v{G+4*qb+j}, v{G+4*qb+j}, v{V_T0+qb}")
    qbof = lambda i: (i >> 2) & 1
    for i in range(16):
        T3.append(f"  v_mul_f32 v{V_O+i}, v{G+4*qbof(i)}, v{V_O+i}")
    for j in range(1, 4):
        T3.append(f"  s_waitcnt vmcnt({(3-j)*nld})")
        if bf16p:
            U = V_O + 16
            for i in range(8):
                src = VIN + 8 * (j - 1) + i
                T3.append(f"  v_lshlrev_b32 v{U+2*i}, 16, v{src}")
                T3.append(f"  v_and_b32 v{U+2*i+1}, 0xffff0000, v{src}")
            for i in range(16):
                T3.append(f"  v_fmac_f32 v{V_O+i}, v{G+4*qbof(i)+j}, v{U+i}")
        else:
            for i in range(16):
                T3.append(f"  v_fmac_f32 v{V_O+i}, v{G+4*qbof(i)+j}, v{VIN+16*(j-1)+i}")
    stamp(T3)
    OV = V_O + 32
    for qb in range(2):
        for e in range(2):
            for h in range(2):
                T3.append(f"  v_cvt_pk_bf16_f32 v{OV+4*qb+2*e+h}, v{Ob(e,qb)+2*h}, v{Ob(e,qb)+2*h+1}")
    T3 += [
        f"  s_movk_i32 s{S_T0}, 0x1000",
        f"  v_permlane16_swap_b32 v{OV}, v{OV+2}",
        f"  v_permlane16_swap_b32 v{OV+1}, v{OV+3}",
        f"  buffer_store_dwordx4 {vr(OV,4)}, v{V_OUTA}, {srd(S_OUT)}, 0 offen {opol}",
        f"  v_permlane16_swap_b32 v{OV+4}, v{OV+6}",
        f"  v_permlane16_swap_b32 v{OV+5}, v{OV+7}",
        f"  buffer_store_dwordx4 {vr(OV+4,4)}, v{V_OUTA}, {srd(S_OUT)}, s{S_T0} offen {opol}",
    ]
    if diag:
        T3.append("  s_waitcnt vmcnt(0)")
        stamp(T3)
        T3.append("  s_getreg_b32 s4, hwreg(HW_REG_XCC_ID)")
        for k in range(nstamp[0]):
            T3.append(f"  v_mov_b32 v{V_S+k}, s{S_ST+2*k}")
        T3.append(f"  v_mov_b32 v{V_S+15}, s4")
        T3.append(f"  v_mov_b32 v{V_S+11}, s{S_CNT}")
        if diag == 3:
            T3 += [f"  s_lshl_b32 s{S_T0}, s2, 2", f"  s_add_u32 s{S_T0}, s{S_T0}, s{S_W}", f"  s_lshl_b32 s{S_T0}, s{S_T0}, 8",
                   f"  s_add_u32 s{S_T0}, s{S_T0}, {OFF_T + (1 << 20)}", f"  v_lshrrev_b32 v{V_T0}, 2, v{V_LANE16}",
                   f"  buffer_store_dword v{V_TR}, v{V_T0}, {srd(S_WS)}, s{S_T0} offen"]
        if diag in (2, 4):
            T3 += [f"  v_mov_b32 v{V_S+12}, s94", f"  v_mov_b32 v{V_S+13}, s96", f"  v_mov_b32 v{V_S+14}, s98"]
        T3 += [
            f"  s_lshl_b32 s{S_T0}, s2, 2",
            f"  s_add_u32 s{S_T0}, s{S_T0}, s{S_W}",
            f"  s_lshl_b32 s{S_T0}, s{S_T0}, 6",
            f"  s_add_u32 s{S_T0}, s{S_T0}, {OFF_T}",
            "  s_mov_b64 exec, 1",
        ]
        for i in range(4):
            T3.append(f"  buffer_store_dwordx4 {vr(V_S+4*i,4)}, off, {srd(S_WS)}, s{S_T0} offset:{16*i}")
    T3.append("  s_endpgm")

    sm = softmax(0)
    REDO = sm[:-1] + ["  s_nop 0", sm[-1]]

    def inline_fix(lines):
        o = []
        for l in lines:
            o.append(l)
            if l.strip().startswith("s_cbranch_vccnz L_fix"):
                o += FIX[int(l.strip()[-1]) & 1]
                if l.strip()[-1] == "3":
                    o += REDO
        return o
    main = E + P + P2 + B2 + B1 + B2 + B1 + B2 + T1 + T1b + T1c + TD + T2 + TP + T3
    traces["cons_a"] = main
    traces["cons_b"] = inline_fix(main)
    errs = []
    for n, t in traces.items():
        errs += check_hazards(t, n)
    if errs and not abl.strip("L"):
        raise RuntimeError("hazards:\n" + "\n".join(errs))

    out = [HEADER.rstrip(),
           "; 256 workgroups = 64 (batch, kv head) pairs x 4 key splits; the first wave(s) stream K/V into an LDS ring,",
           "; four waves each own one query head (32 rows); partial results are exchanged through d_ws.",
           f"; @launch grid=(256,1,1) block=({256+64*NL},1,1) lds={131072 + (64 if dyn else 0)}",
           '.amdgcn_target "amdgcn-amd-amdhsa--gfx950"', ".text", f".globl {NAME}", ".p2align 8",
           f".type {NAME},@function", f"{NAME}:"]
    out += E + LOADER
    out += ["L_cons:"] + P + P2
    out += [".p2align 6", "L_loop:"] + B1 + ["L_mid:"] + B2
    out += T1 + T1b + T1c + ([] if dyn else ["L_dbgpoll:"] + TD + ["L_dbgok:"]) + T2 + ["L_poll:"] + TP + T3
    for site in range(4):
        out += [f"L_fix{site}:", f"  s_call_b64 s[{S_RET}:{S_RET+1}], L_fixfn{site&1}"] + (REDO if site == 3 else []) + [f"  s_branch L_ret{site}"]
    for par in range(2):
        out += [f"L_fixfn{par}:"] + FIX[par] + [f"  s_setpc_b64 s[{S_RET}:{S_RET+1}]"]
    out += ["L_end:", "  s_endpgm"]
    out += ['.section .rodata,"a"', ".p2align 6", f".amdhsa_kernel {NAME}",
            f"  .amdhsa_next_free_vgpr {NVGPR}", "  .amdhsa_next_free_sgpr 102",
            f"  .amdhsa_accum_offset {NVGPR}", "  .amdhsa_group_segment_fixed_size 0",
            "  .amdhsa_kernarg_size 48", "  .amdhsa_user_sgpr_count 2",
            "  .amdhsa_user_sgpr_kernarg_segment_ptr 1", "  .amdhsa_system_sgpr_workgroup_id_x 1",
            ".end_amdhsa_kernel"]
    return "\n".join(l.rstrip() for l in out if l is not None) + "\n"


if __name__ == "__main__":
    kw = eval("dict(%s)" % sys.argv[1]) if len(sys.argv) > 1 else {}
    sys.stdout.write(gen(**kw))
```

```python
import struct, sys, math
from asmlib import check_hazards, auto_lgkm

NAME = "standalone__gqa_softmax__sampling_kernel"

HEADER = """; Kernarg layout for this problem (48 bytes, ptrs only, base s[0:1]):
;   offset   0: d_in[0] q  shape=(8, 32, 32, 128) dtype=bfloat16 strides=(262144, 8192, 256, 2) contiguous=True
;   offset   8: d_in[1] k  shape=(8, 8, 8192, 128) dtype=bfloat16 strides=(16777216, 2097152, 256, 2) contiguous=True
;   offset  16: d_in[2] v  shape=(8, 8, 8192, 128) dtype=bfloat16 strides=(16777216, 2097152, 256, 2) contiguous=True
;   offset  24: d_out     shape=(8, 32, 32, 128) dtype=bfloat16 (2 bytes/elem)
"""


def f32(x):
    return "0x%08x" % struct.unpack("<I", struct.pack("<f", x))[0]


V_M = 2
V_T0, V_T1, V_T2, V_T3 = 4, 5, 6, 7
V_LANE16 = 8
V_FADDR = 9
V_OUTA = 10
V_TR = 11
V_KA = 12
V_VA = 16
V_X = 24
V_FR = 32
V_O = 64
V_S = 128
V_P = 160
V_L = 176
V_ONE = 192
V_NM = 196
V_NA, V_N = 204, 205
V_Q = 208
NVGPR = 240

S_K, S_V, S_Q, S_OUT, S_WS, S_DBG = 16, 20, 24, 28, 32, 36
S_BH, S_SP, S_W = 40, 41, 42
S_C, S_THR = 44, 45
S_CNT, S_DK, S_DV = 46, 47, 48
S_T0, S_T1, S_T2, S_T3 = 50, 51, 52, 53
S_OD = 54
S_OI = 57
S_ML = 58
S_F = 62
S_FO = 63
S_DB = 64
S_RET = 66
S_ST = 70

OFF_ML = 16 << 20
OFF_F = 18 << 20
OFF_CT = 19 << 20
OFF_T = 20 << 20
LDS_N = 131072
WS_BYTES = 32 << 20


def vr(base, n):
    return f"v[{base}:{base+n-1}]"


def srd(b):
    return f"s[{b}:{b+3}]"


def cost(l):
    op = l.split()[0]
    if op.startswith("v_exp"):
        return 2
    return 1


def spread(fillers, nslots, weights=None):
    weights = weights or [1] * nslots
    tot = sum(cost(f) for f in fillers)
    wt = sum(weights)
    out = [[] for _ in range(nslots)]
    acc = 0
    k = 0
    cw = 0
    for s in range(nslots):
        cw += weights[s]
        tgt = tot * cw / wt
        while k < len(fillers) and acc + cost(fillers[k]) / 2.0 <= tgt + 1e-9:
            out[s].append(fillers[k])
            acc += cost(fillers[k])
            k += 1
    out[-1] += fillers[k:]
    return out


def gen(W=20, gs=4, fine=1, wend=(), slp=0, vpol=None, spol="sc1", pol="nt", grp="xcd", bf16p=1, THR=2.0 ** 24, diag=0, opol="", qpol="", NT=32, prio=3,
        abl="", NL=1, pre=0, LPOS=2, WG=2, RD=4, ramp=(), chain=1, dyn=0, NS=16, early=1):
    traces = {}
    nstamp = [0]

    def stamp(dst):
        if diag:
            k = nstamp[0]
            nstamp[0] += 1
            dst.append(f"  s_memrealtime s[{S_ST+2*k}:{S_ST+2*k+1}]")
            dst.append("  s_waitcnt lgkmcnt(0)")

    R = 2048 if bf16p else 4096
    c = math.log2(math.e) / math.sqrt(128.0)
    E = [
        "  s_cmp_ge_u32 s2, 256",
        "  s_cbranch_scc1 L_end",
    ] + (["  s_memrealtime s[68:69]"] if diag == 6 else []) + [
        "  s_load_dwordx4 s[4:7], s[0:1], 0",
        "  s_load_dwordx4 s[8:11], s[0:1], 16",
        "  s_load_dwordx4 s[12:15], s[0:1], 32",
        "  v_lshrrev_b32 v1, 6, v0",
        "  v_and_b32 v0, 63, v0",
        "  v_readfirstlane_b32 s3, v1",
    ]
    if grp == "xcd":
        E += [
            f"  s_and_b32 s{S_T0}, s2, 7",
            f"  s_lshr_b32 s{S_T1}, s2, 3",
            f"  s_and_b32 s{S_SP}, s{S_T1}, 3",
            f"  s_lshr_b32 s{S_T1}, s{S_T1}, 2",
            f"  s_lshl_b32 s{S_BH}, s{S_T0}, 3",
            f"  s_add_u32 s{S_BH}, s{S_BH}, s{S_T1}",
        ]
    elif grp == "lo":
        E += [
            f"  s_lshr_b32 s{S_BH}, s2, 2",
            f"  s_and_b32 s{S_SP}, s2, 3",
        ]
    elif grp == "mix":
        E += [
            f"  s_and_b32 s{S_SP}, s2, 1",
            f"  s_bfe_u32 s{S_T0}, s2, {2 | (1 << 16)}",
            f"  s_lshl_b32 s{S_T0}, s{S_T0}, 1",
            f"  s_or_b32 s{S_SP}, s{S_SP}, s{S_T0}",
            f"  s_lshr_b32 s{S_BH}, s2, 3",
            f"  s_and_b32 s{S_T0}, s2, 2",
            f"  s_lshl_b32 s{S_T0}, s{S_T0}, 4",
            f"  s_add_u32 s{S_BH}, s{S_BH}, s{S_T0}",
        ]
    elif grp == "lo2":
        E += [
            f"  s_and_b32 s{S_SP}, s2, 3",
            f"  s_lshr_b32 s{S_BH}, s2, 3",
            f"  s_and_b32 s{S_T0}, s2, 4",
            f"  s_lshl_b32 s{S_T0}, s{S_T0}, 3",
            f"  s_add_u32 s{S_BH}, s{S_BH}, s{S_T0}",
        ]
    E += [
        f"  s_cmp_ge_u32 s3, {NL}",
        "  s_cbranch_scc1 L_cons",
    ]
    LD = [
        f"  s_setprio {prio}",
        f"  s_lshl_b32 s{S_T0}, s{S_BH}, 21",
        "  v_lshrrev_b32 v3, 4, v0",
        "  v_and_b32 v4, 15, v0",
    ]
    for j in range(4):
        LD += [
            f"  v_add_u32 v5, {4*j}, v3",
            "  v_xor_b32 v5, v5, v4",
            "  v_lshlrev_b32 v5, 4, v5",
            f"  v_lshl_add_u32 v{10+j}, v3, 8, v5",
        ]
    for j in range(2):
        LD += [
            f"  v_add_u32 v5, {4*j}, v3",
            "  v_lshlrev_b32 v5, 1, v5",
            "  v_xor_b32 v5, v5, v4",
            "  v_lshlrev_b32 v5, 4, v5",
            f"  v_lshl_add_u32 v{14+j}, v3, 8, v5",
        ]
    LD += [
        f"  s_mov_b32 s{S_K+2}, 0x200000",
        f"  s_mov_b32 s{S_K+3}, 0x20000",
        f"  s_mov_b32 s{S_V+2}, 0x200000",
        f"  s_mov_b32 s{S_V+3}, 0x20000",
        f"  s_lshl_b32 s54, s{S_SP}, 19",
        "  s_mov_b32 s55, s54",
        "  s_mov_b32 s56, 0",
        "  s_mov_b32 s57, 0x10000",
        "  s_waitcnt lgkmcnt(0)",
        f"  s_add_u32 s{S_K}, s6, s{S_T0}",
        f"  s_addc_u32 s{S_K+1}, s7, 0",
        f"  s_add_u32 s{S_V}, s8, s{S_T0}",
        f"  s_addc_u32 s{S_V+1}, s9, 0",
    ]
    lst = [0]

    def lstamp(dst):
        if diag == 6 and lst[0] < 13 and dst is LD:
            dst += [f"  s_memrealtime s[{70+2*lst[0]}:{71+2*lst[0]}]", "  s_waitcnt lgkmcnt(0)"]
            lst[0] += 1
    lstamp(LD)
    st = dict(pos=0, pend=[], load=True)

    def part(dst, which, w):
        go, lo, sr = (54, 56, S_K) if which == "K" else (55, 57, S_V)
        for g in range(4):
            dst.append(f"  s_add_u32 m0, s{lo}, {g*4096}")
            dst.append(f"  s_add_u32 s{S_T2}, s{go}, {g*4096}")
            for j in range(4):
                x = w - gs
                if j % gs == 0 and st["pos"] > x:
                    if fine or (st["pend"] and st["pos"] - st["pend"][0] >= x):
                        dst.append(f"  s_waitcnt vmcnt({x})")
                    while st["pend"] and st["pos"] - st["pend"][0] >= x:
                        lstamp(dst)
                        dst.append("  s_barrier")
                        lstamp(dst)
                        st["pend"].pop(0)
                vo = 10 + j if which == "K" else 14 + (j & 1)
                if st["load"]:
                    dst.append(f"  buffer_load_dwordx4 v{vo}, {srd(sr)}, s{S_T2} offen offset:{j*1024} {pol if (which == 'K' or vpol is None) else vpol} lds")
                st["pos"] += 1
        dst.append(f"  s_add_u32 s{lo}, s{lo}, 16384")
        dst.append(f"  s_and_b32 s{lo}, s{lo}, 0xffff")
        if which == "V":
            dst.append(f"  s_or_b32 s{lo}, s{lo}, 0x10000")

    def body(dst, w):
        part(dst, "K", w)
        part(dst, "V", w)
        dst += ["  s_mov_b32 s55, s54", "  s_add_u32 s54, s54, 16384"]
        if NT > 32:
            dst += ["  s_and_b32 s54, s54, 0x7ffff", "  s_and_b32 s58, s55, 0x180000", "  s_or_b32 s54, s54, s58"]
        st["pend"].append(st["pos"])

    def rel():
        return [st["pos"] - p for p in st["pend"]]
    assert W % gs == 0 and 4 <= W <= 64
    rampw = list(ramp)
    part(LD, "K", rampw[0] if rampw else W)
    st["pend"].append(st["pos"])
    LD += ["  s_add_u32 s54, s54, 16384"]
    if dyn:
        LD += [
            f"  s_mov_b32 s{S_DBG}, s12", f"  s_mov_b32 s{S_DBG+1}, s13", f"  s_mov_b32 s{S_DBG+2}, 256", f"  s_mov_b32 s{S_DBG+3}, 0x20000",
            f"  s_lshl_b32 s{S_DB}, s{S_BH}, 2",
            f"  s_lshl_b32 s{S_F}, s{S_BH}, 8", f"  s_add_u32 s{S_F}, s{S_F}, {OFF_CT}",
            f"  s_add_u32 s60, s14, s{S_F}", "  s_addc_u32 s61, s15, 0",
            f"  v_mov_b32 v20, {LDS_N}", "  v_mov_b32 v21, 0",
            "  ds_write_b32 v20, v21", "  s_waitcnt lgkmcnt(0)",
        ]
    nb = 0
    while True:
        r0 = rel()
        body(LD, rampw[nb + 1] if nb + 1 < len(rampw) else W)
        nb += 1
        if nb + 1 >= len(rampw) and nb >= (4 if "L" in abl else 6 if diag == 6 else 1):
            save = (st["pos"], list(st["pend"]))
            r1 = rel()
            body([], W)
            r2 = rel()
            st["pos"], st["pend"] = save
            if r1 == r2:
                break
    if "L" in abl:
        st["load"] = False
    nstat = (NS - 3 if dyn else NT - 1 - max(len(wend) - 1, 0)) - nb
    assert nstat >= 1
    LD.append(f"  s_mov_b32 s{S_CNT}, {nstat}")
    D1 = []
    body(D1, W)
    D1 += [f"  s_sub_u32 s{S_CNT}, s{S_CNT}, 1", f"  s_cmp_lg_u32 s{S_CNT}, 0", "  s_cbranch_scc1 L_ldloop"]
    D6 = []
    if dyn:
        D2 = [f"  buffer_load_dword v22, off, {srd(S_DBG)}, s{S_DB} sc1"]
        body(D2, W)
        D2 += ["  s_waitcnt vmcnt(32)", "  v_cmp_ne_u32 vcc, 4, v22", "  s_cbranch_vccz L_dbgok"]
        D3 = [f"  buffer_load_dword v22, off, {srd(S_DBG)}, s{S_DB} sc1", "  s_waitcnt vmcnt(0)",
              "  v_cmp_ne_u32 vcc, 4, v22", "  s_cbranch_vccnz L_dbgpoll"]
        D4 = [f"  s_mov_b32 s{S_CNT}, {NS-1}"]
        D5 = ["  s_mov_b32 s59, 1", "  s_atomic_add s59, s[60:61], 0x0 glc"]
        body(D5, W)
        D5 += [
            f"  s_add_u32 s{S_CNT}, s{S_CNT}, 1",
            "  s_waitcnt lgkmcnt(0)",
            "  s_and_b32 s58, s59, 3", "  s_lshl_b32 s58, s58, 19",
            "  s_lshr_b32 s54, s59, 2", f"  s_add_u32 s54, s54, {NS}", "  s_lshl_b32 s54, s54, 14",
            "  s_add_u32 s54, s54, s58",
            f"  s_cmp_lt_u32 s59, {128 - 4*NS}",
            "  s_cbranch_scc1 L_dyn",
        ]
        D6 += [f"  v_mov_b32 v21, s{S_CNT}", "  ds_write_b32 v20, v21", "  s_waitcnt lgkmcnt(0)"]
    for w_ in wend[:-1]:
        body(D6, w_)
    part(D6, "V", wend[-1] if wend else W)
    st["pend"].append(st["pos"])
    for r in rel():
        D6 += [f"  s_waitcnt vmcnt({r})", "  s_barrier"]
    if diag == 6:
        D6 = D6[:-1] + ["  s_memrealtime s[96:97]", "  s_barrier", "  s_waitcnt lgkmcnt(0)"]
        D6 += [f"  s_mov_b32 s{S_WS}, s14", f"  s_mov_b32 s{S_WS+1}, s15", f"  s_mov_b32 s{S_WS+2}, {WS_BYTES}", f"  s_mov_b32 s{S_WS+3}, 0x20000"]
        for k in range(15):
            D6.append(f"  v_mov_b32 v{32+k}, s{68+2*k}")
        D6 += [f"  s_lshl_b32 s{S_T0}, s2, 6", f"  s_add_u32 s{S_T0}, s{S_T0}, {OFF_T + (2 << 20)}", "  s_mov_b64 exec, 1"]
        for i in range(4):
            D6.append(f"  buffer_store_dwordx4 {vr(32+4*i,4)}, off, {srd(S_WS)}, s{S_T0} offset:{16*i}")
    D6.append("  s_endpgm")
    if dyn:
        traces["loader"] = E + LD + D1 + D1 + D2 + D3 + D4 + D5 + D5 + D6
        LOADER = LD + ["L_ldloop:"] + D1 + D2 + ["L_dbgpoll:"] + D3 + ["L_dbgok:"] + D4 + ["L_dyn:"] + D5 + D6
        nbar = sum(l == "  s_barrier" for l in LD + D1 * nstat + D2 + D5 + D6)
        assert nbar == NS + 1, nbar
    else:
        traces["loader"] = E + LD + D1 + D1 + D6
        LOADER = LD + ["L_ldloop:"] + D1 + D6
        nbar = sum(l == "  s_barrier" for l in LD + D1 * nstat + D6)
        assert nbar == NT + 1, nbar

    P = []
    stamp(P)
    P += [
        f"  s_sub_u32 s{S_W}, s3, {NL}",
        f"  s_lshl_b32 s{S_T0}, s{S_BH}, 2",
        f"  s_add_u32 s{S_T1}, s{S_T0}, s{S_W}",
        f"  s_lshl_b32 s{S_T2}, s{S_T1}, 13",
        f"  s_lshl_b32 s{S_F}, s{S_T1}, 7",
        f"  s_add_u32 s{S_F}, s{S_F}, {OFF_F}",
        f"  s_lshl_b32 s{S_FO}, s{S_SP}, 2",
        f"  s_add_u32 s{S_FO}, s{S_FO}, s{S_F}",
        f"  s_lshl_b32 s{S_DB}, s{S_BH}, 2",
    ] + ([f"  s_and_b32 s{S_DB}, s{S_BH}, 0xfc", f"  s_add_u32 s{S_DB}, s{S_DB}, 192",
          f"  s_and_b32 s65, s{S_BH}, 3", "  s_lshl_b32 s65, s65, 3"] if diag == 5 else []) + [
        f"  v_and_b32 v{V_T0}, 15, v0",
        f"  v_lshrrev_b32 v{V_T1}, 4, v0",
        f"  v_lshlrev_b32 v{V_T2}, 4, v{V_T1}",
        f"  v_lshl_add_u32 v{V_T3}, v{V_T0}, 8, v{V_T2}",
        f"  s_mov_b32 s{S_Q+2}, 8192",
        f"  s_mov_b32 s{S_Q+3}, 0x20000",
        f"  s_mov_b32 s{S_OUT+2}, 8192",
        f"  s_mov_b32 s{S_OUT+3}, 0x20000",
        f"  s_mov_b32 s{S_WS+2}, {WS_BYTES}",
        f"  s_mov_b32 s{S_WS+3}, 0x20000",
        f"  s_mov_b32 s{S_DBG+2}, 256",
        f"  s_mov_b32 s{S_DBG+3}, 0x20000",
        f"  s_movk_i32 s{S_T3}, 0x1000",
        "  s_waitcnt lgkmcnt(0)",
        f"  s_add_u32 s{S_Q}, s4, s{S_T2}",
        f"  s_addc_u32 s{S_Q+1}, s5, 0",
        f"  s_add_u32 s{S_OUT}, s10, s{S_T2}",
        f"  s_addc_u32 s{S_OUT+1}, s11, 0",
        f"  s_mov_b32 s{S_WS}, s14",
        f"  s_mov_b32 s{S_WS+1}, s15",
        f"  s_mov_b32 s{S_DBG}, s12",
        f"  s_mov_b32 s{S_DBG+1}, s13",
    ]
    Qf = lambda qb, ks: V_Q + 4 * (qb * 4 + ks)
    for qb in range(2):
        for ks in range(4):
            so = f"s{S_T3}" if qb else "0"
            P.append(f"  buffer_load_dwordx4 {vr(Qf(qb,ks),4)}, v{V_T3}, {srd(S_Q)}, {so} offen offset:{ks*64} {qpol}")
    P += [
        f"  v_mov_b32 v{V_T2}, 0",
        "  s_mov_b64 exec, 1",
        f"  buffer_store_dword v{V_T2}, off, {srd(S_WS)}, s{S_FO} sc1",
    ]
    if dyn:
        P += [
            f"  s_or_b32 s{S_T1}, s{S_SP}, s{S_W}",
            f"  s_lshl_b32 s{S_T2}, s{S_BH}, 8", f"  s_add_u32 s{S_T2}, s{S_T2}, {OFF_CT}",
            f"  s_cmp_eq_u32 s{S_T1}, 0",
            f"  s_cselect_b32 s{S_T2}, s{S_T2}, s{S_FO}",
            f"  buffer_store_dword v{V_T2}, off, {srd(S_WS)}, s{S_T2} sc1",
        ]
    P += ["  s_mov_b64 exec, -1"]
    if dyn:
        P += [f"  v_mov_b32 v{V_NA}, {LDS_N}"]
    P += [
        f"  v_xor_b32 v{V_T2}, v{V_T0}, v{V_T1}",
        f"  v_lshlrev_b32 v{V_T2}, 4, v{V_T2}",
        f"  v_lshl_add_u32 v{V_KA}, v{V_T0}, 8, v{V_T2}",
    ]
    for ks in range(1, 4):
        P.append(f"  v_xor_b32 v{V_KA+ks}, {ks*64}, v{V_KA}")
    P += [
        f"  v_lshrrev_b32 v{V_T2}, 2, v0",
        f"  v_lshlrev_b32 v{V_T3}, 8, v{V_T2}",
        f"  v_and_b32 v{V_T2}, 7, v{V_T2}",
        f"  s_lshl_b32 s{S_T2}, s{S_SP}, 1",
        f"  v_xor_b32 v{V_T2}, s{S_T2}, v{V_T2}",
        f"  v_lshl_add_u32 v{V_T3}, v{V_T2}, 5, v{V_T3}",
        f"  v_and_b32 v{V_T2}, 3, v0",
        f"  v_lshl_add_u32 v{V_T3}, v{V_T2}, 3, v{V_T3}",
        f"  v_lshlrev_b32 v{V_FADDR}, 2, v{V_T2}",
        f"  v_add_u32 v{V_VA}, 0x10000, v{V_T3}",
    ]
    for db in range(1, 8):
        P.append(f"  v_xor_b32 v{V_VA+db}, {db*32}, v{V_VA}")
    P += [
        f"  v_cmp_eq_u32 vcc, 0, v{V_T2}",
        f"  v_mov_b32 v{V_T3}, 0x3f803f80",
        f"  v_lshlrev_b32 v{V_LANE16}, 4, v0",
        f"  v_cndmask_b32 v{V_ONE}, 0, v{V_T3}, vcc",
        f"  v_cndmask_b32 v{V_ONE+1}, 0, v{V_T3}, vcc",
        f"  v_cndmask_b32 v{V_ONE+2}, 0, v{V_T3}, vcc",
        f"  v_cndmask_b32 v{V_ONE+3}, 0, v{V_T3}, vcc",
        f"  v_and_b32 v{V_T2}, 1, v{V_T1}",
        f"  v_lshlrev_b32 v{V_T2}, 5, v{V_T2}",
        f"  v_lshl_add_u32 v{V_OUTA}, v{V_T0}, 8, v{V_T2}",
        f"  v_lshrrev_b32 v{V_T2}, 1, v{V_T1}",
        f"  v_lshl_add_u32 v{V_OUTA}, v{V_T2}, 4, v{V_OUTA}",
        f"  s_lshl_b32 s{S_T2}, s{S_SP}, 6",
        f"  v_add_u32 v{V_OUTA}, s{S_T2}, v{V_OUTA}",
        f"  s_mov_b32 s{S_C}, {f32(c)}",
        f"  s_mov_b32 s{S_THR}, {f32(THR)}",
    ]
    for j in range(0, 4):
        P += [
            f"  s_xor_b32 s{S_T1}, s{S_SP}, {j}",
            f"  s_add_u32 s{S_T1}, s{S_T1}, s{S_T0}",
            f"  s_lshl_b32 s{S_T1}, s{S_T1}, 2",
            f"  s_add_u32 s{S_T1}, s{S_T1}, s{S_W}",
            f"  s_lshl_b32 s{S_ML+j}, s{S_T1}, 10",
            f"  s_add_u32 s{S_ML+j}, s{S_ML+j}, {OFF_ML}",
        ]
        if j == 0:
            P.append(f"  s_mul_i32 s{S_OI}, s{S_T1}, {3*R}")
        else:
            P.append(f"  s_mul_i32 s{S_OD+j-1}, s{S_T1}, {3*R}")
            P.append(f"  s_add_u32 s{S_OD+j-1}, s{S_OD+j-1}, {(j-1)*R}")
    for i in range(64):
        P.append(f"  v_mov_b32 v{V_O+i}, 0")
    P += [f"  s_mov_b32 s{S_T3}, 0x4000"] + (["  s_barrier"] if early else []) + ["  s_waitcnt vmcnt(0)"]
    if pre:
        for i in range(32):
            q = V_Q + i
            P += [f"  v_lshlrev_b32 v{V_T0}, 16, v{q}", f"  v_and_b32 v{V_T1}, 0xffff0000, v{q}",
                  f"  v_mul_f32 v{V_T0}, s{S_C}, v{V_T0}", f"  v_mul_f32 v{V_T1}, s{S_C}, v{V_T1}",
                  f"  v_cvt_pk_bf16_f32 v{q}, v{V_T0}, v{V_T1}"]
    if not early:
        P += ["  s_barrier"]
    stamp(P)
    PA = [
        f"  v_mov_b32 v{V_T2}, 1" if diag != 5 else f"  v_lshlrev_b32_e64 v{V_T2}, s65, 1",
        "  s_mov_b64 exec, 1",
        f"  buffer_atomic_add v{V_T2}, off, {srd(S_DBG)}, s{S_DB} sc1",
        "  s_mov_b64 exec, -1",
    ]

    Sb = lambda par, kbl, qb: V_S + 16 * par + 4 * (kbl * 2 + qb)
    Pb = lambda par, qb: V_P + 8 * par + 4 * qb
    Lb = lambda par, qb: V_L + 8 * par + 4 * qb
    Ob = lambda db, qb: V_O + 4 * (db * 2 + qb)
    Fr = lambda half, f: V_FR + 16 * half + 4 * f

    def kreads(half, kb):
        return [f"  ds_read_b128 {vr(Fr(half,ks),4)}, v{V_KA+ks} offset:{kb*4096}" for ks in range(4)]

    def vreads(half, lst):
        o = []
        for f, (kp, db) in enumerate(lst):
            for u in range(2):
                o.append(f"  ds_read_b64_tr_b16 {vr(Fr(half,f)+2*u,2)}, v{V_VA+db} offset:{kp*8192+u*4096}")
        return o

    def qkm(half, kb, first=False):
        par, kbl = kb >> 1, kb & 1
        o = []
        order = [(qb, ks) for qb in range(2) for ks in range(4)] if chain else [(qb, ks) for ks in range(4) for qb in range(2)]
        for qb, ks in order:
            d = vr(Sb(par, kbl, qb), 4)
            c0 = vr(V_NM + 4 * qb, 4) if (pre and not first) else 0
            o.append(f"  v_mfma_f32_16x16x32_bf16 {d}, {vr(Fr(half,ks),4)}, {vr(Qf(qb,ks),4)}, {d if ks else c0}")
        return o

    def pvm(half, lst):
        o = []
        for f, (kp, db) in enumerate(lst):
            for qb in range(2):
                d = vr(Ob(db, qb), 4)
                o.append(f"  v_mfma_f32_16x16x32_bf16 {d}, {vr(Fr(half,f),4)}, {vr(Pb(kp,qb),4)}, {d}")
        return o

    def lm(par, first=False):
        return [f"  v_mfma_f32_16x16x32_bf16 {vr(Lb(par,qb),4)}, {vr(V_ONE,4)}, {vr(Pb(par,qb),4)}, {0 if first else vr(Lb(par^1,qb),4)}"
                for qb in range(2)]

    def softmax(par):
        pairs = [(kbl, qb, h) for kbl in range(2) for qb in range(2) for h in range(2)]
        st = [[], [], []]
        for k, (kbl, qb, h) in enumerate(pairs):
            s = Sb(par, kbl, qb) + 2 * h
            x = V_X + 2 * (k & 3)
            if pre:
                st[0].append([])
                st[1].append([f"  v_exp_f32 v{x}, v{s}", f"  v_exp_f32 v{x+1}, v{s+1}"])
            else:
                st[0].append([f"  v_fma_f32 v{x}, v{s}, s{S_C}, -v{V_M+qb}", f"  v_fma_f32 v{x+1}, v{s+1}, s{S_C}, -v{V_M+qb}"])
                st[1].append([f"  v_exp_f32 v{x}, v{x}", f"  v_exp_f32 v{x+1}, v{x+1}"])
            st[2].append([f"  v_cvt_pk_bf16_f32 v{Pb(par,qb)+2*kbl+h}, v{x}, v{x+1}"])
        o = []
        for k in range(10):
            if k < 8:
                o += st[0][k]
            if 0 <= k - 1 < 8:
                o += st[1][k - 1]
            if k == 9:
                o += ["  s_nop 0"] if False else []
            if 0 <= k - 2 < 8:
                o += st[2][k - 2]
        return o

    def check(par, site):
        return [f"  v_add_f32 v{V_T0}, v{Lb(par,0)}, v{Lb(par,1)}",
                f"  v_cmp_nge_f32 vcc, s{S_THR}, v{V_T0}",
                f"  s_cbranch_vccnz L_fix{site}",
                f"L_ret{site}:"]

    def xmax(reg, tmp):
        return [f"  v_mov_b32 v{tmp}, v{reg}", "  s_nop 1", f"  v_permlane16_swap_b32 v{reg}, v{tmp}",
                f"  v_max_f32 v{reg}, v{reg}, v{tmp}",
                f"  v_mov_b32 v{tmp}, v{reg}", "  s_nop 1", f"  v_permlane32_swap_b32 v{reg}, v{tmp}",
                f"  v_max_f32 v{reg}, v{reg}, v{tmp}"]

    def maxof(dst, regs):
        o = [f"  v_max3_f32 v{dst}, v{regs[0]}, v{regs[1]}, v{regs[2]}"]
        k = 3
        while k + 1 < len(regs):
            o.append(f"  v_max3_f32 v{dst}, v{dst}, v{regs[k]}, v{regs[k+1]}")
            k += 2
        if k < len(regs):
            o.append(f"  v_max_f32 v{dst}, v{dst}, v{regs[k]}")
        return o

    def group(mf, reads, fill):
        o = []
        per = -(-len(reads) // RD) if reads else 0
        for i, m in enumerate(mf):
            o.append(m)
            o += reads[i * per:(i + 1) * per]
            o += fill[i]
        return o

    def coarse_waits(lines):
        return lines

    VG = [[(0, db) for db in range(4)], [(0, db) for db in range(4, 8)],
          [(1, db) for db in range(4)], [(1, db) for db in range(4, 8)]]

    def pre_wait(lines, nfrag_ops, pending_new):
        return lines

    def gwait(mf, kind):
        return mf

    P2 = kreads(0, 0) + kreads(1, 1) + qkm(0, 0, True) + kreads(0, 2) + qkm(1, 1, True) + kreads(1, 3) + qkm(0, 2, True) + qkm(1, 3, True)
    for ks in range(4):
        P2.append(f"  v_add_u32 v{V_KA+ks}, 0x4000, v{V_KA+ks}")
    P2.append("  s_nop 3")
    for qb in range(2):
        regs = [Sb(par, kbl, qb) + r for par in range(2) for kbl in range(2) for r in range(4)]
        P2 += maxof(V_M + qb, regs)
    for qb in range(2):
        P2 += xmax(V_M + qb, V_T0)
    if pre:
        for qb in range(2):
            for par in range(2):
                for kbl in range(2):
                    for r in range(4):
                        s = Sb(par, kbl, qb) + r
                        P2.append(f"  v_sub_f32 v{s}, v{s}, v{V_M+qb}")
            for r in range(4):
                P2.append(f"  v_sub_f32 v{V_NM+4*qb+r}, 0, v{V_M+qb}")
    else:
        for qb in range(2):
            P2.append(f"  v_mul_f32 v{V_M+qb}, s{S_C}, v{V_M+qb}")
    sm = softmax(0)
    P2 += sm[:-1] + ["  s_nop 0", sm[-1], "  s_nop 1"] + lm(0, True)
    P2 += [f"  s_mov_b32 s{S_CNT}, 0", f"  s_mov_b32 s{S_DK}, s{S_T3}", "  s_barrier"]
    P2 += kreads(0, 0)
    P2, pend0 = auto_lgkm(P2)
    P2 += [f"  s_cmp_lg_u32 s{S_W}, 0", "  s_cbranch_scc1 L_mid"] + PA + ["  s_branch L_mid"]
    if diag == 2:
        P2 = P2[:-7] + ["  s_mov_b32 s94, 0", "  s_waitcnt lgkmcnt(0)", "  s_memtime s[96:97]", "  s_memrealtime s[98:99]", "  s_waitcnt lgkmcnt(0)"] + P2[-7:]

    def with_l(mf, par):
        return mf[:LPOS] + lm(par) + mf[LPOS:]

    def step_fill(par):
        n = 24 + max(LPOS - 1, 0)
        f = spread(softmax(par), n)
        return f + [[] for _ in range(34 - n)]

    fa = step_fill(1)
    fb = step_fill(0)
    B1 = []
    if diag == 2:
        B1 += ["  s_waitcnt lgkmcnt(0)", "  s_memtime s[90:91]"]
    B1 += ["  s_waitcnt lgkmcnt(0)", "  s_barrier"]
    if diag == 2:
        B1 += ["  s_memtime s[92:93]", "  s_waitcnt lgkmcnt(0)", "  s_sub_u32 s92, s92, s90", "  s_add_u32 s94, s94, s92"]
    if diag == 4:
        B1 += [f"  s_cmp_lg_u32 s{S_CNT}, 8", "  s_cbranch_scc1 L_nost", "  s_memtime s[96:97]", "  s_memrealtime s[98:99]", "  s_waitcnt lgkmcnt(0)", "  s_mov_b32 s94, 0", "L_nost:"]
    if diag == 3:
        B1 += ["  s_memrealtime s[92:93]", "  s_memtime s[90:91]", f"  s_min_u32 s95, s{S_CNT}, 31", "  s_add_u32 s94, s95, 32", "  s_waitcnt lgkmcnt(0)",
               "  s_mov_b32 m0, s95", f"  v_writelane_b32 v{V_TR}, s92, m0", "  s_mov_b32 m0, s94", f"  v_writelane_b32 v{V_TR}, s90, m0"]
    f7 = [list(x) for x in fb[24:34]]
    vup = [f"  v_add_u32 v{V_VA+db}, s{S_DV}, v{V_VA+db}" for db in range(8)]
    for i in range(8):
        f7[2 + i].append(vup[i])
    G7 = with_l(pvm(1, VG[3]), 0)
    B1 += group(G7, kreads(0, 0), f7)
    B1 += check(0, 0)
    B2 = []
    B2 += group(qkm(0, 0), kreads(1, 1), fa[0:8])
    B2 += group(qkm(1, 1), vreads(0, VG[0]), fa[8:16])
    B2 += group(pvm(0, VG[0]), vreads(1, VG[1]), fa[16:24])
    f3 = [list(x) for x in fa[24:34]]
    f3[4] += [f"  s_add_u32 s{S_CNT}, s{S_CNT}, 1", f"  s_and_b32 s{S_T0}, s{S_CNT}, 3"]
    f3[5] += [f"  s_cmp_eq_u32 s{S_T0}, 3", f"  s_cselect_b32 s{S_DK}, {(-49152) & 0xffffffff}, s{S_T3}"]
    f3[6] += [f"  s_cmp_eq_u32 s{S_T0}, 0", f"  s_cselect_b32 s{S_DV}, {(-49152) & 0xffffffff}, s{S_T3}"]
    if dyn:
        f3[7] += [f"  ds_read_b32 v{V_N}, v{V_NA}"]
    B2 += group(with_l(pvm(1, VG[1]), 1), kreads(0, 2), f3)
    B2 += check(1, 1)
    B2 += group(qkm(0, 2), kreads(1, 3), fb[0:8])
    B2 += group(qkm(1, 3), vreads(0, VG[2]), fb[8:16])
    f6 = [list(x) for x in fb[16:24]]
    for ks in range(4):
        f6[4 + ks].append(f"  v_add_u32 v{V_KA+ks}, s{S_DK}, v{V_KA+ks}")
    if dyn:
        f6[0] = [f"  v_readfirstlane_b32 s{S_T0}, v{V_N}"] + f6[0]
        f6[2] += [f"  s_sub_u32 s{S_T0}, s{S_T0}, 1"]
    B2 += group(pvm(0, VG[2]), vreads(1, VG[3]), f6)
    B2 += [f"  s_cmp_lg_u32 s{S_CNT}, " + (f"s{S_T0}" if dyn else f"{NT-1}"), "  s_cbranch_scc1 L_loop"]

    def ablate(B):
        if "d" in abl:
            B = [l for l in B if not l.strip().startswith("ds_")]
        if "v" in abl:
            B = [l for l in B if not l.strip().startswith(("v_exp", "v_fma", "v_cvt"))]
        return B

    def coarse(lines, pend):
        if WG >= 4:
            return auto_lgkm(lines, pend)
        out = []
        n = 4 // WG
        for l in lines:
            if l.strip().startswith("v_mfma"):
                a = int(l.split(",")[1].split("[")[1].split(":")[0])
                if V_FR <= a < V_FR + 32:
                    f = (a - V_FR) // 4
                    last = V_FR + 4 * ((f // n) * n + n - 1) + 3
                    out.append(f"  v_touch v{last}, v{last}")
            out.append(l)
        out, pend = auto_lgkm(out, pend)
        return [l for l in out if not l.strip().startswith("v_touch")], pend

    B1 = ablate(B1)
    B2 = ablate(B2)
    B1, pend1 = coarse(B1, [])
    assert "d" in abl or pend1 == pend0, (pend0, pend1)
    B2, pend2 = coarse(B2, pend1)

    def fix(par):
        o = ["  s_nop 7"]
        for qb in range(2):
            regs = [Sb(par, kbl, qb) + r for kbl in range(2) for r in range(4)]
            o += maxof(V_T0 + qb, regs)
        for qb in range(2):
            o += xmax(V_T0 + qb, V_T2)
        for qb in range(2):
            t = V_T0 + qb
            if pre:
                o += [f"  v_max_f32 v{t}, 0, v{t}", f"  v_add_f32 v{V_M+qb}, v{V_M+qb}, v{t}"]
                for p2 in range(2):
                    for kbl in range(2):
                        for r in range(4):
                            s = Sb(p2, kbl, qb) + r
                            o.append(f"  v_sub_f32 v{s}, v{s}, v{t}")
                for r in range(4):
                    o.append(f"  v_sub_f32 v{V_NM+4*qb+r}, 0, v{V_M+qb}")
                o += [f"  v_exp_f32 v{t}, -v{t}"]
            else:
                o += [f"  v_mul_f32 v{t}, s{S_C}, v{t}", f"  v_max_f32 v{t}, v{t}, v{V_M+qb}",
                      f"  v_sub_f32 v{V_T2}, v{V_M+qb}, v{t}", f"  v_mov_b32 v{V_M+qb}, v{t}", f"  v_exp_f32 v{t}, v{V_T2}"]
        o.append("  s_nop 0")
        for qb in range(2):
            o.append(f"  v_mul_f32 v{Lb(par^1,qb)}, v{V_T0+qb}, v{Lb(par^1,qb)}")
            for db in range(8):
                for r in range(4):
                    o.append(f"  v_mul_f32 v{Ob(db,qb)+r}, v{V_T0+qb}, v{Ob(db,qb)+r}")
        sm = softmax(par)
        o += sm[:-1] + ["  s_nop 0", sm[-1], "  s_nop 1"] + lm(par) + ["  s_nop 7"]
        return o
    FIX = [fix(0), fix(1)]

    T1 = []
    if diag in (2, 4):
        T1 += ["  s_waitcnt lgkmcnt(0)", "  s_memtime s[90:91]", "  s_memrealtime s[92:93]", "  s_waitcnt lgkmcnt(0)", "  s_sub_u32 s96, s90, s96", "  s_sub_u32 s98, s92, s98"]
    if not dyn:
        T1 += [f"  buffer_load_dword v{V_T3}, off, {srd(S_DBG)}, s{S_DB} sc1"]
    T1 += group(G7, [], f7)
    T1, pend = auto_lgkm(T1, pend2)
    assert not pend
    T1 += check(0, 2)
    sm = softmax(1)
    T1b = sm[:-1] + ["  s_nop 0", sm[-1], "  s_nop 1"] + lm(1) + ["  s_nop 7"] + check(1, 3)
    ML = V_X
    T1c = [
        f"  v_mov_b32 v{ML}, v{V_M}", f"  v_mov_b32 v{ML+1}, v{Lb(1,0)}",
        f"  v_mov_b32 v{ML+2}, v{V_M+1}", f"  v_mov_b32 v{ML+3}, v{Lb(1,1)}",
        f"  buffer_store_dwordx4 {vr(ML,4)}, v{V_LANE16}, {srd(S_WS)}, s{S_ML} offen sc1",
        "  s_waitcnt vmcnt(1)",
    ] + ([f"  v_bfe_u32 v{V_T3}, v{V_T3}, s65, 8"] if diag == 5 else []) + [
        f"  v_cmp_ne_u32 vcc, 4, v{V_T3}",
        "  s_cbranch_vccz L_dbgok",
    ]
    TD = [
        f"  buffer_load_dword v{V_T3}, off, {srd(S_DBG)}, s{S_DB} sc1",
        "  s_waitcnt vmcnt(0)",
    ] + ([f"  v_bfe_u32 v{V_T3}, v{V_T3}, s65, 8"] if diag == 5 else []) + [
        f"  v_cmp_ne_u32 vcc, 4, v{V_T3}",
        "  s_cbranch_vccnz L_dbgpoll",
    ]
    if dyn:
        T1c = T1c[:-3]
        TD = []
    T2 = []
    stamp(T2)
    T2.append("  s_barrier")
    stamp(T2)

    def ostore(j):
        o = []
        if bf16p:
            b = V_S + 8 * (j - 1)
            for i in range(8):
                o.append(f"  v_cvt_pk_bf16_f32 v{b+i}, v{V_O+16*j+2*i}, v{V_O+16*j+2*i+1}")
            for i in range(2):
                o.append(f"  buffer_store_dwordx4 {vr(b+4*i,4)}, v{V_LANE16}, {srd(S_WS)}, s{S_OD+j-1} offen offset:{i*1024} {spol}")
        else:
            for i in range(4):
                o.append(f"  buffer_store_dwordx4 {vr(V_O+16*j+4*i,4)}, v{V_LANE16}, {srd(S_WS)}, s{S_OD+j-1} offen offset:{i*1024} {spol}")
        return o
    TG = [[(kp, 2 * j + e) for kp in range(2) for e in range(2)] for j in (1, 2, 3, 0)]
    T2 += vreads(0, TG[0])
    for g in range(4):
        fl = [[] for _ in range(8)]
        if g >= 1:
            fl[7 if g == 3 else 4] = ostore(g)
        T2 += group(pvm(g & 1, TG[g]), vreads((g + 1) & 1, TG[g + 1]) if g < 3 else [], fl)
    T2, pend = auto_lgkm(T2)
    assert not pend
    T2 += [
        f"  v_mov_b32 v{V_T1}, 1",
        "  s_waitcnt vmcnt(0)",
        "  s_mov_b64 exec, 1",
        f"  buffer_store_dword v{V_T1}, off, {srd(S_WS)}, s{S_FO} sc1",
        "  s_mov_b64 exec, -1",
    ]
    stamp(T2)
    TP = ([f"  s_sleep {slp}"] if slp else []) + [
        f"  buffer_load_dword v{V_T1}, v{V_FADDR}, {srd(S_WS)}, s{S_F} offen sc1",
        "  s_waitcnt vmcnt(0)",
        f"  v_cmp_ne_u32 vcc, 1, v{V_T1}",
        "  s_cbranch_vccnz L_poll",
    ]
    T3 = []
    stamp(T3)
    VML = V_FR
    VIN = V_S
    for j in range(1, 4):
        T3.append(f"  buffer_load_dwordx4 {vr(VML+4*(j-1),4)}, v{V_LANE16}, {srd(S_WS)}, s{S_ML+j} offen sc1")
    nld = 2 if bf16p else 4
    for j in range(1, 4):
        if j > 1 and not bf16p:
            T3.append(f"  s_add_u32 s{S_OI}, s{S_OI}, {R}")
        if j == 3 and bf16p:
            T3.append(f"  s_add_u32 s{S_OI}, s{S_OI}, {2*R}")
        for i in range(nld):
            off = i * 1024 + (R if (bf16p and j == 2) else 0)
            T3.append(f"  buffer_load_dwordx4 {vr(VIN+4*nld*(j-1)+4*i,4)}, v{V_LANE16}, {srd(S_WS)}, s{S_OI} offen offset:{off} sc1")
    G = V_FR + 16
    T3.append(f"  s_waitcnt vmcnt({3*nld})")
    ml = lambda j, qb: (ML if j == 0 else VML + 4 * (j - 1)) + 2 * qb
    for qb in range(2):
        T3 += [f"  v_max3_f32 v{V_T0+qb}, v{ml(0,qb)}, v{ml(1,qb)}, v{ml(2,qb)}"]
    for qb in range(2):
        T3 += [f"  v_max_f32 v{V_T0+qb}, v{V_T0+qb}, v{ml(3,qb)}"]
    for j in range(4):
        for qb in range(2):
            T3.append(f"  v_sub_f32 v{G+4*qb+j}, v{ml(j,qb)}, v{V_T0+qb}")
    for j in range(4):
        for qb in range(2):
            T3.append(f"  v_exp_f32 v{G+4*qb+j}, v{G+4*qb+j}")
    for j in range(4):
        for qb in range(2):
            op = "v_fmac_f32" if j else "v_mul_f32"
            T3.append(f"  {op} v{V_T0+qb}, v{G+4*qb+j}, v{ml(j,qb)+1}")
    T3 += [f"  v_rcp_f32 v{V_T0}, v{V_T0}", f"  v_rcp_f32 v{V_T1}, v{V_T1}", "  s_nop 0"]
    for j in range(4):
        for qb in range(2):
            T3.append(f"  v_mul_f32 v{G+4*qb+j}, v{G+4*qb+j}, v{V_T0+qb}")
    qbof = lambda i: (i >> 2) & 1
    for i in range(16):
        T3.append(f"  v_mul_f32 v{V_O+i}, v{G+4*qbof(i)}, v{V_O+i}")
    for j in range(1, 4):
        T3.append(f"  s_waitcnt vmcnt({(3-j)*nld})")
        if bf16p:
            U = V_O + 16
            for i in range(8):
                src = VIN + 8 * (j - 1) + i
                T3.append(f"  v_lshlrev_b32 v{U+2*i}, 16, v{src}")
                T3.append(f"  v_and_b32 v{U+2*i+1}, 0xffff0000, v{src}")
            for i in range(16):
                T3.append(f"  v_fmac_f32 v{V_O+i}, v{G+4*qbof(i)+j}, v{U+i}")
        else:
            for i in range(16):
                T3.append(f"  v_fmac_f32 v{V_O+i}, v{G+4*qbof(i)+j}, v{VIN+16*(j-1)+i}")
    stamp(T3)
    OV = V_O + 32
    for qb in range(2):
        for e in range(2):
            for h in range(2):
                T3.append(f"  v_cvt_pk_bf16_f32 v{OV+4*qb+2*e+h}, v{Ob(e,qb)+2*h}, v{Ob(e,qb)+2*h+1}")
    T3 += [
        f"  s_movk_i32 s{S_T0}, 0x1000",
        f"  v_permlane16_swap_b32 v{OV}, v{OV+2}",
        f"  v_permlane16_swap_b32 v{OV+1}, v{OV+3}",
        f"  buffer_store_dwordx4 {vr(OV,4)}, v{V_OUTA}, {srd(S_OUT)}, 0 offen {opol}",
        f"  v_permlane16_swap_b32 v{OV+4}, v{OV+6}",
        f"  v_permlane16_swap_b32 v{OV+5}, v{OV+7}",
        f"  buffer_store_dwordx4 {vr(OV+4,4)}, v{V_OUTA}, {srd(S_OUT)}, s{S_T0} offen {opol}",
    ]
    if diag:
        T3.append("  s_waitcnt vmcnt(0)")
        stamp(T3)
        T3.append("  s_getreg_b32 s4, hwreg(HW_REG_XCC_ID)")
        for k in range(nstamp[0]):
            T3.append(f"  v_mov_b32 v{V_S+k}, s{S_ST+2*k}")
        T3.append(f"  v_mov_b32 v{V_S+15}, s4")
        T3.append(f"  v_mov_b32 v{V_S+11}, s{S_CNT}")
        if diag == 3:
            T3 += [f"  s_lshl_b32 s{S_T0}, s2, 2", f"  s_add_u32 s{S_T0}, s{S_T0}, s{S_W}", f"  s_lshl_b32 s{S_T0}, s{S_T0}, 8",
                   f"  s_add_u32 s{S_T0}, s{S_T0}, {OFF_T + (1 << 20)}", f"  v_lshrrev_b32 v{V_T0}, 2, v{V_LANE16}",
                   f"  buffer_store_dword v{V_TR}, v{V_T0}, {srd(S_WS)}, s{S_T0} offen"]
        if diag in (2, 4):
            T3 += [f"  v_mov_b32 v{V_S+12}, s94", f"  v_mov_b32 v{V_S+13}, s96", f"  v_mov_b32 v{V_S+14}, s98"]
        T3 += [
            f"  s_lshl_b32 s{S_T0}, s2, 2",
            f"  s_add_u32 s{S_T0}, s{S_T0}, s{S_W}",
            f"  s_lshl_b32 s{S_T0}, s{S_T0}, 6",
            f"  s_add_u32 s{S_T0}, s{S_T0}, {OFF_T}",
            "  s_mov_b64 exec, 1",
        ]
        for i in range(4):
            T3.append(f"  buffer_store_dwordx4 {vr(V_S+4*i,4)}, off, {srd(S_WS)}, s{S_T0} offset:{16*i}")
        if diag == 5:
            T3 += [f"  s_cmp_lg_u32 s{S_W}, 0", "  s_cbranch_scc1 L_end"]
            for k in range(8):
                T3 += [f"  v_not_b32 v{V_O+k}, v{V_S+k}",
                       f"  buffer_atomic_umax v{V_S+k}, off, {srd(S_DBG)}, 0 offset:{4*k} sc1",
                       f"  buffer_atomic_umax v{V_O+k}, off, {srd(S_DBG)}, 0 offset:{32+4*k} sc1"]
    T3.append("  s_endpgm")

    sm = softmax(0)
    REDO = sm[:-1] + ["  s_nop 0", sm[-1]]

    def inline_fix(lines):
        o = []
        for l in lines:
            o.append(l)
            if l.strip().startswith("s_cbranch_vccnz L_fix"):
                o += FIX[int(l.strip()[-1]) & 1]
                if l.strip()[-1] == "3":
                    o += REDO
        return o
    main = E + P + P2 + B2 + B1 + B2 + B1 + B2 + T1 + T1b + T1c + TD + T2 + TP + T3
    traces["cons_a"] = main
    traces["cons_b"] = inline_fix(main)
    errs = []
    for n, t in traces.items():
        errs += check_hazards(t, n)
    if errs and not abl.strip("L"):
        raise RuntimeError("hazards:\n" + "\n".join(errs))

    out = [HEADER.rstrip(),
           "; 256 workgroups = 64 (batch, kv head) pairs x 4 key splits; the first wave(s) stream K/V into an LDS ring,",
           "; four waves each own one query head (32 rows); partial results are exchanged through d_ws.",
           f"; @launch grid=(256,1,1) block=({256+64*NL},1,1) lds={131072 + (64 if dyn else 0)}",
           '.amdgcn_target "amdgcn-amd-amdhsa--gfx950"', ".text", f".globl {NAME}", ".p2align 8",
           f".type {NAME},@function", f"{NAME}:"]
    out += E + LOADER
    out += ["L_cons:"] + P + P2
    out += [".p2align 6", "L_loop:"] + B1 + ["L_mid:"] + B2
    out += T1 + T1b + T1c + ([] if dyn else ["L_dbgpoll:"] + TD + ["L_dbgok:"]) + T2 + ["L_poll:"] + TP + T3
    for site in range(4):
        out += [f"L_fix{site}:", f"  s_call_b64 s[{S_RET}:{S_RET+1}], L_fixfn{site&1}"] + (REDO if site == 3 else []) + [f"  s_branch L_ret{site}"]
    for par in range(2):
        out += [f"L_fixfn{par}:"] + FIX[par] + [f"  s_setpc_b64 s[{S_RET}:{S_RET+1}]"]
    out += ["L_end:", "  s_endpgm"]
    out += ['.section .rodata,"a"', ".p2align 6", f".amdhsa_kernel {NAME}",
            f"  .amdhsa_next_free_vgpr {NVGPR}", "  .amdhsa_next_free_sgpr 102",
            f"  .amdhsa_accum_offset {NVGPR}", "  .amdhsa_group_segment_fixed_size 0",
            "  .amdhsa_kernarg_size 48", "  .amdhsa_user_sgpr_count 2",
            "  .amdhsa_user_sgpr_kernarg_segment_ptr 1", "  .amdhsa_system_sgpr_workgroup_id_x 1",
            ".end_amdhsa_kernel"]
    return "\n".join(l.rstrip() for l in out if l is not None) + "\n"


if __name__ == "__main__":
    kw = eval("dict(%s)" % sys.argv[1]) if len(sys.argv) > 1 else {}
    sys.stdout.write(gen(**kw))
```

```python
import struct, sys, math
from asmlib import check_hazards, auto_lgkm

NAME = "standalone__gqa_softmax__sampling_kernel"

HEADER = """; Kernarg layout for this problem (48 bytes, ptrs only, base s[0:1]):
;   offset   0: d_in[0] q  shape=(8, 32, 32, 128) dtype=bfloat16 strides=(262144, 8192, 256, 2) contiguous=True
;   offset   8: d_in[1] k  shape=(8, 8, 8192, 128) dtype=bfloat16 strides=(16777216, 2097152, 256, 2) contiguous=True
;   offset  16: d_in[2] v  shape=(8, 8, 8192, 128) dtype=bfloat16 strides=(16777216, 2097152, 256, 2) contiguous=True
;   offset  24: d_out     shape=(8, 32, 32, 128) dtype=bfloat16 (2 bytes/elem)
"""


def f32(x):
    return "0x%08x" % struct.unpack("<I", struct.pack("<f", x))[0]


V_M = 2
V_T0, V_T1, V_T2, V_T3 = 4, 5, 6, 7
V_LANE16 = 8
V_FADDR = 9
V_OUTA = 10
V_TR = 11
V_KA = 12
V_VA = 16
V_X = 24
V_FR = 32
V_O = 64
V_S = 128
V_P = 160
V_L = 176
V_ONE = 192
V_NM = 196
V_JUNK = 204
V_Q = 208
NVGPR = 240

S_K, S_V, S_Q, S_OUT, S_WS, S_DBG = 16, 20, 24, 28, 32, 36
S_BH, S_SP, S_W = 40, 41, 42
S_MODE = 43
S_C, S_THR = 44, 45
S_CNT = 46
S_T0, S_T1, S_T2, S_T3 = 50, 51, 52, 53
S_OD = 54
S_OI = 57
S_ML = 58
S_F = 62
S_FO = 63
S_DB = 64
S_RET = 66
S_ST = 70

OFF_T = 20 << 20
NU = 64


def vr(base, n):
    return f"v[{base}:{base+n-1}]"


def srd(b):
    return f"s[{b}:{b+3}]"


def cost(l):
    return 2 if l.split()[0].startswith("v_exp") else 1


def spread(fillers, weights):
    nslots = len(weights)
    tot = sum(cost(f) for f in fillers)
    wt = sum(weights)
    out = [[] for _ in range(nslots)]
    acc = k = cw = 0
    for s in range(nslots):
        cw += weights[s]
        tgt = tot * cw / wt
        while k < len(fillers) and acc + cost(fillers[k]) / 2.0 <= tgt + 1e-9:
            out[s].append(fillers[k])
            acc += cost(fillers[k])
            k += 1
    out[-1] += fillers[k:]
    return out


def gen(W=20, gs=4, ramp=(), wend=(), lags=(), vfirst=0, lpol="sc1", ppol="sc1", slp=4, pol="nt", grp="xcd", bf16p=1, THR=2.0 ** 24, diag=0,
        opol="", qpol="", prio=3, abl="", pre=0, LPOS=2, WG=2, RD=4, NSL=4, l2=0, warm=1, bal=1, lds=98304, NE=10, pf=0):
    traces = {}
    NE = min(NE, 4 if pre else 10)
    nstamp = [0]

    def stamp(dst):
        if diag:
            k = nstamp[0]
            nstamp[0] += 1
            dst.append(f"  s_memrealtime s[{S_ST+2*k}:{S_ST+2*k+1}]")
            dst.append("  s_waitcnt lgkmcnt(0)")

    R = 2048 if bf16p else 4096
    GB = 17 if bf16p else 18
    OFF_ML = 48 * R
    OFF_F = OFF_ML + 16384
    VBASE = NSL * 8192
    LDS_MODE = 2 * VBASE
    lds = max(lds, LDS_MODE + 64)
    spol = "" if l2 else "sc1"
    c = math.log2(math.e) / math.sqrt(128.0)
    E = ["  s_cmp_ge_u32 s2, 256", "  s_cbranch_scc1 L_end"]
    if diag == 6:
        E += ["  s_memrealtime s[68:69]"]
    E += [
        "  s_load_dwordx4 s[4:7], s[0:1], 0",
        "  s_load_dwordx4 s[8:11], s[0:1], 16",
        "  s_load_dwordx4 s[12:15], s[0:1], 32",
        "  v_lshrrev_b32 v1, 6, v0",
        "  v_and_b32 v0, 63, v0",
        "  v_readfirstlane_b32 s3, v1",
    ]
    if grp == "xcd":
        E += [
            f"  s_and_b32 s{S_T0}, s2, 7",
            f"  s_bfe_u32 s{S_SP}, s2, {3 | (2 << 16)}",
            f"  s_lshr_b32 s{S_T1}, s2, 5",
            f"  s_lshl_b32 s{S_BH}, s{S_T0}, 3",
            f"  s_add_u32 s{S_BH}, s{S_BH}, s{S_T1}",
        ]
    elif grp == "lo":
        E += [f"  s_lshr_b32 s{S_BH}, s2, 2", f"  s_and_b32 s{S_SP}, s2, 3"]
    E += ["  s_cmp_lg_u32 s3, 0", "  s_cbranch_scc1 L_cons"]

    LD = [
        f"  s_setprio {prio}",
        f"  s_lshl_b32 s{S_T0}, s{S_BH}, 21",
        f"  s_lshl_b32 s{S_T1}, s{S_SP}, 19",
        f"  s_add_u32 s{S_T0}, s{S_T0}, s{S_T1}",
        "  v_lshrrev_b32 v3, 4, v0",
        "  v_and_b32 v4, 15, v0",
        "  v_xor_b32 v5, v3, v4",
        "  v_lshlrev_b32 v5, 4, v5",
        "  v_lshl_add_u32 v10, v3, 8, v5",
        "  v_xor_b32 v11, 64, v10",
        "  v_xor_b32 v12, 0x80, v10",
        "  v_xor_b32 v13, 0xc0, v10",
        "  v_lshlrev_b32 v5, 1, v3",
        "  v_xor_b32 v5, v5, v4",
        "  v_lshlrev_b32 v5, 4, v5",
        "  v_lshl_add_u32 v14, v3, 8, v5",
        "  v_xor_b32 v15, 0x80, v14",
        f"  s_mov_b32 s{S_K+2}, 0x80000",
        f"  s_mov_b32 s{S_K+3}, 0x20000",
        f"  s_mov_b32 s{S_V+2}, 0x80000",
        f"  s_mov_b32 s{S_V+3}, 0x20000",
        "  s_mov_b32 s54, 0",
        "  s_mov_b32 s55, 0",
        "  s_waitcnt lgkmcnt(0)",
        f"  s_add_u32 s{S_K}, s6, s{S_T0}",
        f"  s_addc_u32 s{S_K+1}, s7, 0",
        f"  s_add_u32 s{S_V}, s8, s{S_T0}",
        f"  s_addc_u32 s{S_V+1}, s9, 0",
    ]
    lst = [0]

    def lstamp(dst):
        if diag == 6 and lst[0] < 13 and dst is LD:
            dst += [f"  s_memrealtime s[{70+2*lst[0]}:{71+2*lst[0]}]", "  s_waitcnt lgkmcnt(0)"]
            lst[0] += 1
    lstamp(LD)
    st = dict(pos=0, pend=[], load=True, nbar=0, ku=0, vu=0, nmark=0)

    def part(dst, which, w):
        go, sr = (54, S_K) if which == "K" else (55, S_V)
        u = st["ku" if which == "K" else "vu"]
        needb = u - NSL if which == "K" else u - NSL + 2
        for g in range(2):
            if which == "K":
                dst.append(f"  s_and_b32 m0, s{go}, {VBASE - 1}")
            else:
                dst.append(f"  s_and_b32 s{S_T2}, s{go}, {VBASE - 1}")
                dst.append(f"  s_or_b32 m0, s{S_T2}, {VBASE}")
            first = True
            for j in range(4):
                x = w - gs
                if j % gs == 0 and st["pos"] > x:
                    dst.append(f"  s_waitcnt vmcnt({x})")
                    first = False
                    while st["pend"] and st["pos"] - st["pend"][0][0] >= max(x, st["pend"][0][1]):
                        lstamp(dst)
                        dst.append("  s_barrier")
                        lstamp(dst)
                        st["pend"].pop(0)
                        st["nbar"] += 1
                if first:
                    dst.append("  s_nop 0")
                    first = False
                assert u < NSL or st["nbar"] > needb, (which, u, st["nbar"])
                vo = 10 + j if which == "K" else 14 + (j & 1)
                if st["load"]:
                    dst.append(f"  buffer_load_dwordx4 v{vo}, {srd(sr)}, s{go} offen offset:{j*1024} {pol} lds")
                st["pos"] += 1
            dst.append(f"  s_add_u32 s{go}, s{go}, 4096")
        st["ku" if which == "K" else "vu"] += 1

    def mark():
        k = st["nmark"]
        st["nmark"] += 1
        st["pend"].append((st["pos"], lags[k] if k < len(lags) else 0))

    def body(dst, w):
        part(dst, "K", w)
        part(dst, "V", w)
        mark()

    def rel():
        return [(st["pos"] - p, l) for p, l in st["pend"]]
    assert W % gs == 0 and 4 <= W <= 64
    rw = lambda i: ramp[i] if i < len(ramp) else W
    if vfirst:
        part(LD, "K", rw(0)); part(LD, "V", rw(0)); part(LD, "K", rw(0)); mark()
        part(LD, "K", rw(1)); mark()
    else:
        part(LD, "K", rw(0)); part(LD, "K", rw(0)); mark()
        part(LD, "K", rw(1)); part(LD, "V", rw(1)); mark()
    nb = 2
    while True:
        body(LD, rw(nb))
        nb += 1
        if nb >= len(ramp) and nb >= len(lags) and nb >= (NSL + 3 if "L" in abl else 9 if diag == 6 else 3):
            save = dict(st, pend=list(st["pend"]))
            r1 = rel()
            body([], W)
            r2 = rel()
            st.update(save)
            if r1 == r2:
                break
    if "L" in abl:
        st["load"] = False
    LD += [
        f"  s_mov_b32 s{S_DBG}, s12", f"  s_mov_b32 s{S_DBG+1}, s13", f"  s_mov_b32 s{S_DBG+2}, 256", f"  s_mov_b32 s{S_DBG+3}, 0x20000",
        f"  s_lshl_b32 s{S_DB}, s{S_BH}, 2",
        f"  v_mov_b32 v20, {LDS_MODE}",
    ]
    nfull_end = max(len(wend) - 2, 0)
    nloop = NU - 1 - nb - nfull_end
    n1 = nloop // 2
    LD += [f"  s_mov_b32 s{S_CNT}, {nloop}"]
    D1 = []
    body(D1, W)
    for _ in range(nloop - 1):
        body([], W)
    D1 += [f"  s_sub_u32 s{S_CNT}, s{S_CNT}, 1",
           f"  s_cmp_eq_u32 s{S_CNT}, {n1}", "  s_cbranch_scc1 L_hs0",
           f"  s_cmp_eq_u32 s{S_CNT}, {n1-4}", "  s_cbranch_scc1 L_hs1",
           f"  s_cmp_lg_u32 s{S_CNT}, 0", "  s_cbranch_scc1 L_ldloop"]
    H0 = [f"  buffer_load_dword v22, off, {srd(S_DBG)}, s{S_DB} sc1", "  s_branch L_ldloop"]
    H1 = ["  v_and_b32 v21, 15, v22", "  v_cmp_ne_u32 vcc, 4, v21", "  s_cbranch_vccz L_hs2",
          f"  buffer_load_dword v22, off, {srd(S_DBG)}, s{S_DB} sc1", "  s_waitcnt vmcnt(0)", "  s_branch L_hs1"]
    H2 = []
    if l2:
        H2 += [f"  s_getreg_b32 s{S_T2}, hwreg(HW_REG_XCC_ID, 0, 3)", f"  s_mul_i32 s{S_T2}, s{S_T2}, 3", f"  s_add_u32 s{S_T2}, s{S_T2}, 4",
               f"  v_bfe_u32 v21, v22, s{S_T2}, 3", "  ds_write_b32 v20, v21", "  s_waitcnt lgkmcnt(0)"]
    H2 += ["  s_branch L_ldloop"]
    D6 = []
    for w_ in wend[:nfull_end]:
        body(D6, w_)
    we = list(wend[-2:]) if len(wend) >= 2 else [W, W]
    part(D6, "V", we[0]); mark()
    part(D6, "V", we[1]); mark()
    assert st["ku"] == NU and st["vu"] == NU, st
    for r, _ in rel():
        D6 += [f"  s_waitcnt vmcnt({r})", "  s_barrier"]
        st["nbar"] += 1
    assert st["nbar"] == NU + 1, st["nbar"]
    if diag == 6:
        D6 = D6[:-1] + ["  s_memrealtime s[96:97]", "  s_barrier", "  s_waitcnt lgkmcnt(0)"]
        D6 += [f"  s_mov_b32 s{S_WS}, s14", f"  s_mov_b32 s{S_WS+1}, s15", f"  s_mov_b32 s{S_WS+2}, {32<<20}", f"  s_mov_b32 s{S_WS+3}, 0x20000"]
        for k in range(15):
            D6.append(f"  v_mov_b32 v{32+k}, s{68+2*k}")
        D6 += [f"  s_lshl_b32 s{S_T0}, s2, 6", f"  s_add_u32 s{S_T0}, s{S_T0}, {OFF_T + (2 << 20)}", "  s_mov_b64 exec, 1"]
        for i in range(4):
            D6.append(f"  buffer_store_dwordx4 {vr(32+4*i,4)}, off, {srd(S_WS)}, s{S_T0} offset:{16*i}")
    D6.append("  s_endpgm")
    traces["loader"] = E + LD + D1 + H0 + D1 + H1 + H1 + H2 + D1 + D6
    LOADER = LD + ["L_ldloop:"] + D1 + D6 + ["L_hs0:"] + H0 + ["L_hs1:"] + H1 + ["L_hs2:"] + H2

    P = []
    stamp(P)
    Qf = lambda qb, ks: V_Q + 4 * (qb * 4 + ks)
    P += [
        f"  s_sub_u32 s{S_W}, s3, 1",
        f"  s_lshl_b32 s{S_DB}, s{S_BH}, 2",
        f"  s_add_u32 s{S_T1}, s{S_DB}, s{S_W}",
        f"  s_lshl_b32 s{S_T2}, s{S_T1}, 13",
        f"  v_and_b32 v{V_T0}, 15, v0",
        f"  v_lshrrev_b32 v{V_T1}, 4, v0",
        f"  v_lshlrev_b32 v{V_T2}, 4, v{V_T1}",
        f"  v_lshl_add_u32 v{V_T3}, v{V_T0}, 8, v{V_T2}",
        f"  s_mov_b32 s{S_Q+2}, 8192",
        f"  s_mov_b32 s{S_Q+3}, 0x20000",
        f"  s_movk_i32 s{S_T3}, 0x1000",
        f"  s_lshl_b32 s{S_T0}, s{S_BH}, {GB}",
        "  s_waitcnt lgkmcnt(0)",
        f"  s_add_u32 s{S_Q}, s4, s{S_T2}",
        f"  s_addc_u32 s{S_Q+1}, s5, 0",
    ]
    for qb in range(2):
        for ks in range(4):
            so = f"s{S_T3}" if qb else "0"
            P.append(f"  buffer_load_dwordx4 {vr(Qf(qb,ks),4)}, v{V_T3}, {srd(S_Q)}, {so} offen offset:{ks*64} {qpol}")
    P += [
        f"  s_add_u32 s{S_WS}, s14, s{S_T0}",
        f"  s_addc_u32 s{S_WS+1}, s15, 0",
        f"  s_mov_b32 s{S_WS+2}, {1 << GB}",
        f"  s_mov_b32 s{S_WS+3}, 0x20000",
        f"  s_add_u32 s{S_OUT}, s10, s{S_T2}",
        f"  s_addc_u32 s{S_OUT+1}, s11, 0",
        f"  s_mov_b32 s{S_OUT+2}, 8192",
        f"  s_mov_b32 s{S_OUT+3}, 0x20000",
        f"  s_lshl_b32 s{S_F}, s{S_W}, 7",
        f"  s_add_u32 s{S_F}, s{S_F}, {OFF_F}",
        f"  s_lshl_b32 s{S_FO}, s{S_SP}, 2",
        f"  s_add_u32 s{S_FO}, s{S_FO}, s{S_F}",
        f"  v_mov_b32 v{V_T2}, 0",
        "  s_mov_b64 exec, 1",
        f"  buffer_store_dword v{V_T2}, off, {srd(S_WS)}, s{S_FO} sc1",
    ]
    if warm:
        P.append(f"  buffer_load_dword v{V_JUNK}, off, {srd(S_OUT)}, 0")
    P += ["  s_mov_b64 exec, -1"]
    P += [
        f"  v_xor_b32 v{V_T2}, v{V_T0}, v{V_T1}",
        f"  v_lshlrev_b32 v{V_T2}, 4, v{V_T2}",
        f"  v_lshl_add_u32 v{V_KA}, v{V_T0}, 8, v{V_T2}",
    ]
    for ks in range(1, 4):
        P.append(f"  v_xor_b32 v{V_KA+ks}, {ks*64}, v{V_KA}")
    P += [
        f"  v_lshrrev_b32 v{V_T2}, 2, v0",
        f"  v_lshlrev_b32 v{V_T3}, 8, v{V_T2}",
        f"  v_and_b32 v{V_T2}, 7, v{V_T2}",
        f"  s_lshl_b32 s{S_T2}, s{S_SP}, 1",
        f"  v_xor_b32 v{V_T2}, s{S_T2}, v{V_T2}",
        f"  v_lshl_add_u32 v{V_T3}, v{V_T2}, 5, v{V_T3}",
        f"  v_and_b32 v{V_T2}, 3, v0",
        f"  v_lshl_add_u32 v{V_T3}, v{V_T2}, 3, v{V_T3}",
        f"  v_lshlrev_b32 v{V_FADDR}, 2, v{V_T2}",
        f"  v_add_u32 v{V_VA}, {VBASE}, v{V_T3}",
    ]
    for db in range(1, 8):
        P.append(f"  v_xor_b32 v{V_VA+db}, {db*32}, v{V_VA}")
    P += [
        f"  v_cmp_eq_u32 vcc, 0, v{V_T2}",
        f"  v_mov_b32 v{V_T3}, 0x3f803f80",
        f"  v_lshlrev_b32 v{V_LANE16}, 4, v0",
        f"  v_cndmask_b32 v{V_ONE}, 0, v{V_T3}, vcc",
        f"  v_cndmask_b32 v{V_ONE+1}, 0, v{V_T3}, vcc",
        f"  v_cndmask_b32 v{V_ONE+2}, 0, v{V_T3}, vcc",
        f"  v_cndmask_b32 v{V_ONE+3}, 0, v{V_T3}, vcc",
        f"  s_mov_b32 s{S_C}, {f32(c)}",
        f"  s_mov_b32 s{S_THR}, {f32(THR)}",
    ]
    for i in range(32):
        P.append(f"  v_mov_b64 v[{V_O+2*i}:{V_O+2*i+1}], 0")
    X = []
    for j in range(4):
        X += [f"  s_xor_b32 s{S_T1}, s{S_SP}, {j}", f"  s_lshl_b32 s{S_T1}, s{S_T1}, 2", f"  s_add_u32 s{S_T1}, s{S_T1}, s{S_W}",
              f"  s_lshl_b32 s{S_ML+j}, s{S_T1}, 10", f"  s_add_u32 s{S_ML+j}, s{S_ML+j}, {OFF_ML}"]
        if j == 0:
            X.append(f"  s_mul_i32 s{S_OI}, s{S_T1}, {3*R}")
        else:
            X += [f"  s_mul_i32 s{S_OD+j-1}, s{S_T1}, {3*R}", f"  s_add_u32 s{S_OD+j-1}, s{S_OD+j-1}, {(j-1)*R}"]
    X += [
        f"  v_and_b32 v{V_T2}, 15, v0", f"  v_lshlrev_b32 v{V_OUTA}, 8, v{V_T2}",
        f"  v_bfe_u32 v{V_T2}, v0, 4, 1", f"  v_lshl_add_u32 v{V_OUTA}, v{V_T2}, 5, v{V_OUTA}",
        f"  v_lshrrev_b32 v{V_T2}, 5, v0", f"  v_lshl_add_u32 v{V_OUTA}, v{V_T2}, 4, v{V_OUTA}",
        f"  s_lshl_b32 s{S_T2}, s{S_SP}, 6", f"  v_add_u32 v{V_OUTA}, s{S_T2}, v{V_OUTA}",
    ]
    if pf:
        X += [f"  s_add_u32 s{S_T1}, s{S_OI}, 4096"]
        for i in range(6):
            X.append(f"  buffer_load_dwordx4 {vr(V_S+4*i,4)}, v{V_LANE16}, {srd(S_WS)}, s{S_OI if i < 4 else S_T1} offen offset:{(i&3)*1024}")
        X.append(f"  buffer_load_dwordx4 {vr(V_S+24,4)}, v{V_LANE16}, {srd(S_WS)}, s{S_ML} offen")
    P += ["  s_barrier"] + X + ["  s_waitcnt vmcnt(0)"]
    if pre:
        for i in range(32):
            q = V_Q + i
            P += [f"  v_lshlrev_b32 v{V_T0}, 16, v{q}", f"  v_and_b32 v{V_T1}, 0xffff0000, v{q}",
                  f"  v_mul_f32 v{V_T0}, s{S_C}, v{V_T0}", f"  v_mul_f32 v{V_T1}, s{S_C}, v{V_T1}",
                  f"  v_cvt_pk_bf16_f32 v{q}, v{V_T0}, v{V_T1}"]
    stamp(P)
    PA = [f"  s_mov_b32 s{S_DBG}, s12", f"  s_mov_b32 s{S_DBG+1}, s13", f"  s_mov_b32 s{S_DBG+2}, 256", f"  s_mov_b32 s{S_DBG+3}, 0x20000"]
    if l2:
        PA += [f"  s_getreg_b32 s{S_T2}, hwreg(HW_REG_XCC_ID, 0, 3)", f"  s_mul_i32 s{S_T2}, s{S_T2}, 3",
               f"  s_lshl_b32 s{S_T2}, 16, s{S_T2}", f"  s_add_u32 s{S_T2}, s{S_T2}, 1", f"  v_mov_b32 v{V_T2}, s{S_T2}"]
    else:
        PA += [f"  v_mov_b32 v{V_T2}, 1"]
    PA += [
        "  s_mov_b64 exec, 1",
        f"  buffer_atomic_add v{V_T2}, off, {srd(S_DBG)}, s{S_DB} sc1",
        "  s_mov_b64 exec, -1",
    ]

    Sb = lambda par, kbl, qb: V_S + 16 * par + 4 * (kbl * 2 + qb)
    Pb = lambda par, qb: V_P + 8 * par + 4 * qb
    Lb = lambda par, qb: V_L + 8 * par + 4 * qb
    Ob = lambda db, qb: V_O + 4 * (db * 2 + qb)
    Fr = lambda half, f: V_FR + 16 * half + 4 * f

    def kreads(half, u, kbl):
        return [f"  ds_read_b128 {vr(Fr(half,ks),4)}, v{V_KA+ks} offset:{(u % NSL)*8192 + kbl*4096}" for ks in range(4)]

    def vreads(half, u, dbs):
        o = []
        for f, db in enumerate(dbs):
            for h in range(2):
                o.append(f"  ds_read_b64_tr_b16 {vr(Fr(half,f)+2*h,2)}, v{V_VA+db} offset:{(u % NSL)*8192 + h*4096}")
        return o

    def qkm(half, u, kbl, first=False):
        o = []
        for qb in range(2):
            for ks in range(4):
                d = vr(Sb(u & 1, kbl, qb), 4)
                c0 = vr(V_NM + 4 * qb, 4) if (pre and not first) else 0
                o.append(f"  v_mfma_f32_16x16x32_bf16 {d}, {vr(Fr(half,ks),4)}, {vr(Qf(qb,ks),4)}, {d if ks else c0}")
        return o

    def pvm(half, u, dbs):
        o = []
        for f, db in enumerate(dbs):
            for qb in range(2):
                d = vr(Ob(db, qb), 4)
                o.append(f"  v_mfma_f32_16x16x32_bf16 {d}, {vr(Fr(half,f),4)}, {vr(Pb(u&1,qb),4)}, {d}")
        return o

    def lm(par, first=False):
        return [f"  v_mfma_f32_16x16x32_bf16 {vr(Lb(par,qb),4)}, {vr(V_ONE,4)}, {vr(Pb(par,qb),4)}, {0 if first else vr(Lb(par^1,qb),4)}"
                for qb in range(2)]

    def softmax(par):
        pairs = [(kbl, qb, h) for kbl in range(2) for qb in range(2) for h in range(2)]
        s3 = [[], [], []]
        for k, (kbl, qb, h) in enumerate(pairs):
            s = Sb(par, kbl, qb) + 2 * h
            x = V_X + 2 * (k & 3)
            if pre:
                s3[0].append([])
                s3[1].append([f"  v_exp_f32 v{x}, v{s}", f"  v_exp_f32 v{x+1}, v{s+1}"])
            else:
                s3[0].append([f"  v_fma_f32 v{x}, v{s}, s{S_C}, -v{V_M+qb}", f"  v_fma_f32 v{x+1}, v{s+1}, s{S_C}, -v{V_M+qb}"])
                s3[1].append([f"  v_exp_f32 v{x}, v{x}", f"  v_exp_f32 v{x+1}, v{x+1}"])
            s3[2].append([f"  v_cvt_pk_bf16_f32 v{Pb(par,qb)+2*kbl+h}, v{x}, v{x+1}"])
        o = []
        for k in range(10):
            for j in range(3):
                if 0 <= k - j < 8:
                    o += s3[j][k - j]
        return o

    def softmax_plain(par):
        sm = softmax(par)
        return sm[:-1] + ["  s_nop 0", sm[-1], "  s_nop 1"]

    def chk(par):
        return [f"  v_add_f32 v{V_T0}, v{Lb(par,0)}, v{Lb(par,1)}", f"  v_cmp_nge_f32 vcc, s{S_THR}, v{V_T0}"]

    sites = []

    def br(par):
        k = len(sites)
        sites.append(par)
        return [f"  s_cbranch_vccnz L_fix{k}", f"L_ret{k}:"]

    def xmax(reg, tmp):
        return [f"  v_mov_b32 v{tmp}, v{reg}", "  s_nop 1", f"  v_permlane16_swap_b32 v{reg}, v{tmp}",
                f"  v_max_f32 v{reg}, v{reg}, v{tmp}",
                f"  v_mov_b32 v{tmp}, v{reg}", "  s_nop 1", f"  v_permlane32_swap_b32 v{reg}, v{tmp}",
                f"  v_max_f32 v{reg}, v{reg}, v{tmp}"]

    def maxof(dst, regs):
        o = [f"  v_max3_f32 v{dst}, v{regs[0]}, v{regs[1]}, v{regs[2]}"]
        k = 3
        while k + 1 < len(regs):
            o.append(f"  v_max3_f32 v{dst}, v{dst}, v{regs[k]}, v{regs[k+1]}")
            k += 2
        if k < len(regs):
            o.append(f"  v_max_f32 v{dst}, v{dst}, v{regs[k]}")
        return o

    def group(mf, reads, fill, rd=None):
        o = []
        rd = rd or RD
        per = -(-len(reads) // rd) if reads else 0
        for i, m in enumerate(mf):
            o.append(m)
            o += reads[i * per:(i + 1) * per]
            o += fill[i]
        return o

    def coarse(lines, pend):
        if WG >= 4:
            return auto_lgkm(lines, pend)
        out = []
        n = 4 // WG
        for l in lines:
            if l.strip().startswith("v_mfma"):
                a = int(l.split(",")[1].split("[")[1].split(":")[0])
                if V_FR <= a < V_FR + 32:
                    f = (a - V_FR) // 4
                    last = V_FR + 4 * ((f // n) * n + n - 1) + 3
                    out.append(f"  v_touch v{last}, v{last}")
            out.append(l)
        out, pend = auto_lgkm(out, pend)
        return [l for l in out if not l.strip().startswith("v_touch")], pend

    def ablate(B):
        if "d" in abl:
            B = [l for l in B if not l.strip().startswith("ds_")]
        if "v" in abl:
            B = [l for l in B if not l.strip().startswith(("v_exp", "v_fma", "v_cvt"))]
        return B

    DA, DB_ = [0, 1, 2, 3], [4, 5, 6, 7]

    def fills(par, nfront):
        n = nfront + max(LPOS - 1, 0)
        wts = [1.0] * n
        if bal and nfront == 24:
            per = [-(-4 // RD), -(-8 // RD), -(-8 // RD)]
            cnt = [4, 8, 8]
            for g in range(3):
                for i in range(8):
                    nr = max(0, min(per[g], cnt[g] - i * per[g]))
                    wts[8 * g + i] = max(0.2, 3.1 - nr)
            for i in range(24, n):
                wts[i] = 2.1
        f = spread(softmax(par)[NE:], wts)
        return f + [[] for _ in range(nfront + 10 - n)]

    def closing(n, nxt_reads, tailfill, extra=()):
        o = ["  s_waitcnt lgkmcnt(0)", "  s_barrier"] + list(extra)
        mf = pvm(1, n - 1, DB_)
        mf = mf[:LPOS] + lm(n & 1) + mf[LPOS:]
        fl = [list(x) for x in tailfill]
        c2 = chk(n & 1)
        if n < NU - 1:
            for i, e in enumerate(spread(softmax((n + 1) & 1)[:NE], [1] * (8 - LPOS - 1))):
                fl[LPOS + 1 + i] += e
        fl[8] = fl[8] + c2
        o += group(mf, nxt_reads, fl)
        return o + br(n & 1)

    def front(n):
        f = fills(n & 1, 24)
        o = group(qkm(0, n + 1, 0), kreads(1, n + 1, 1), f[0:8])
        o += group(qkm(1, n + 1, 1), vreads(0, n - 1, DA), f[8:16])
        o += group(pvm(0, n - 1, DA), vreads(1, n - 1, DB_), f[16:24])
        return o, f[24:34]

    P2 = kreads(0, 0, 0) + kreads(1, 0, 1) + qkm(0, 0, 0, True) + kreads(0, 1, 0) + qkm(1, 0, 1, True) + kreads(1, 1, 1) \
        + qkm(0, 1, 0, True) + qkm(1, 1, 1, True) + ["  s_nop 7"]
    for qb in range(2):
        P2 += maxof(V_M + qb, [Sb(par, kbl, qb) + r for par in range(2) for kbl in range(2) for r in range(4)])
    for qb in range(2):
        P2 += xmax(V_M + qb, V_T0)
    if pre:
        for qb in range(2):
            for par in range(2):
                for kbl in range(2):
                    for r in range(4):
                        s = Sb(par, kbl, qb) + r
                        P2.append(f"  v_sub_f32 v{s}, v{s}, v{V_M+qb}")
            for r in range(4):
                P2.append(f"  v_sub_f32 v{V_NM+4*qb+r}, 0, v{V_M+qb}")
    else:
        for qb in range(2):
            P2.append(f"  v_mul_f32 v{V_M+qb}, s{S_C}, v{V_M+qb}")
    P2 += softmax_plain(0) + lm(0, True) + softmax(1)[:NE]
    nit = (NU - 2 + NSL - 1) // NSL
    P2 += [f"  s_mov_b32 s{S_CNT}, {nit}", "  s_barrier"] + kreads(0, 2, 0)
    P2, pend0 = auto_lgkm(P2)
    if diag == 3:
        P2 += ["  s_mov_b32 s95, 0"]
    P2 += [f"  s_cmp_lg_u32 s{S_W}, 0", "  s_cbranch_scc1 L_mid"] + PA + ["  s_branch L_mid"]

    BODY = []
    nfirst = NU - 1 - NSL
    tf = front(nfirst - 1)[1]
    midx = None
    for n in range(nfirst, NU - 1):
        extra = []
        if diag == 3 and n % 2 == 1:
            extra = ["  s_memrealtime s[92:93]", "  s_memtime s[90:91]", "  s_add_u32 s95, s95, 1", "  s_add_u32 s94, s95, 32", "  s_waitcnt lgkmcnt(0)",
                     "  s_mov_b32 m0, s95", f"  v_writelane_b32 v{V_TR}, s92, m0", "  s_mov_b32 m0, s94", f"  v_writelane_b32 v{V_TR}, s90, m0"]
        if diag == 4 and n == nfirst:
            extra = [f"  s_cmp_lg_u32 s{S_CNT}, {nit - 16 // NSL}", "  s_cbranch_scc1 L_nost", "  s_memtime s[96:97]", "  s_memrealtime s[98:99]",
                     "  s_waitcnt lgkmcnt(0)", "  s_mov_b32 s94, 0", "L_nost:"]
        cl = closing(n - 1, kreads(0, n + 1, 0), tf, extra)
        fr, tf = front(n)
        if n == NU - 2:
            k = max(i for i, l in enumerate(fr) if "v_mfma" in l)
            fr = fr[:k] + [f"  s_sub_u32 s{S_CNT}, s{S_CNT}, 1", f"  s_cmp_lg_u32 s{S_CNT}, 0"] + fr[k:] + ["  s_cbranch_scc1 L_loop"]
        cl, pendc = coarse(ablate(cl), [])
        assert "d" in abl or pendc == pend0
        fr, pendf = coarse(ablate(fr), pendc)
        if n % NSL == 1 % NSL:
            midx = len(BODY)
        BODY.append((cl, fr))

    def fix(par):
        o = ["  s_nop 7"]
        for qb in range(2):
            o += maxof(V_T0 + qb, [Sb(par, kbl, qb) + r for kbl in range(2) for r in range(4)])
        for qb in range(2):
            o += xmax(V_T0 + qb, V_T2)
        for qb in range(2):
            t = V_T0 + qb
            if pre:
                o += [f"  v_max_f32 v{t}, 0, v{t}", f"  v_add_f32 v{V_M+qb}, v{V_M+qb}, v{t}"]
                for p2 in range(2):
                    for kbl in range(2):
                        for r in range(4):
                            s = Sb(p2, kbl, qb) + r
                            o.append(f"  v_sub_f32 v{s}, v{s}, v{t}")
                for r in range(4):
                    o.append(f"  v_sub_f32 v{V_NM+4*qb+r}, 0, v{V_M+qb}")
                o += [f"  v_exp_f32 v{t}, -v{t}"]
            else:
                o += [f"  v_mul_f32 v{t}, s{S_C}, v{t}", f"  v_max_f32 v{t}, v{t}, v{V_M+qb}",
                      f"  v_sub_f32 v{V_T2}, v{V_M+qb}, v{t}", f"  v_mov_b32 v{V_M+qb}, v{t}", f"  v_exp_f32 v{t}, v{V_T2}"]
        o.append("  s_nop 0")
        for qb in range(2):
            o.append(f"  v_mul_f32 v{Lb(par^1,qb)}, v{V_T0+qb}, v{Lb(par^1,qb)}")
            for db in range(8):
                for r in range(4):
                    o.append(f"  v_mul_f32 v{Ob(db,qb)+r}, v{V_T0+qb}, v{Ob(db,qb)+r}")
        return o + softmax_plain(par) + lm(par) + softmax(par ^ 1)[:NE] + ["  s_nop 7"]
    FIX = [fix(0), fix(1)]

    T1 = []
    if diag == 4:
        T1 += ["  s_waitcnt lgkmcnt(0)", "  s_memtime s[90:91]", "  s_memrealtime s[92:93]", "  s_waitcnt lgkmcnt(0)", "  s_sub_u32 s96, s90, s96", "  s_sub_u32 s98, s92, s98"]
    X = []
    if l2:
        X += [f"  v_mov_b32 v{V_T2}, {LDS_MODE}", f"  ds_read_b32 v{V_T3}, v{V_T2}", "  s_waitcnt lgkmcnt(0)",
              f"  v_readfirstlane_b32 s{S_MODE}, v{V_T3}"]
    T1 += X
    T1 += closing(NU - 2, vreads(0, NU - 2, DA), tf)
    f = fills(1, 8)
    T1 += group(pvm(0, NU - 2, DA), vreads(1, NU - 2, DB_), f[0:8])
    T1, pend = auto_lgkm(T1, pendf)
    c2 = closing(NU - 1, [], f[8:18])[2:]
    k = next(i for i, l in enumerate(c2) if l.strip().startswith("v_add_f32"))
    c2 = c2[:k] + ["  s_nop 3"] + c2[k:]
    c2, pend = auto_lgkm(c2, pend)
    assert not pend
    T1 += c2
    ML = V_X
    T1 += [
        f"  v_mov_b32 v{ML}, v{V_M}", f"  v_mov_b32 v{ML+1}, v{Lb(1,0)}",
        f"  v_mov_b32 v{ML+2}, v{V_M+1}", f"  v_mov_b32 v{ML+3}, v{Lb(1,1)}",
        f"  buffer_store_dwordx4 {vr(ML,4)}, v{V_LANE16}, {srd(S_WS)}, s{S_ML} offen {spol}",
    ]
    T2 = []
    stamp(T2)
    T2.append("  s_barrier")
    stamp(T2)

    def ostore(j):
        o = []
        if bf16p:
            b = V_S + 8 * (j - 1)
            for i in range(8):
                o.append(f"  v_cvt_pk_bf16_f32 v{b+i}, v{V_O+16*j+2*i}, v{V_O+16*j+2*i+1}")
                if i & 3 == 3:
                    o.append(f"  buffer_store_dwordx4 {vr(b+(i&4),4)}, v{V_LANE16}, {srd(S_WS)}, s{S_OD+j-1} offen offset:{(i>>2)*1024} {spol}")
        else:
            for i in range(4):
                o.append(f"  buffer_store_dwordx4 {vr(V_O+16*j+4*i,4)}, v{V_LANE16}, {srd(S_WS)}, s{S_OD+j-1} offen offset:{i*1024} {spol}")
        return o
    r0 = vreads(0, NU - 1, [2, 3, 4, 5])
    r1 = vreads(1, NU - 1, [6, 7, 0, 1])
    T2 += r0 + r1[:6]
    mf = pvm(0, NU - 1, [2, 3, 4, 5]) + pvm(1, NU - 1, [6, 7, 0, 1])
    T2 += mf[:2] + r1[6:] + mf[2:12] + ostore(1)[:5] + mf[12:14] + ostore(1)[5:] + mf[14:16] + ostore(2) + ostore(3)
    T2, pend = auto_lgkm(T2)
    assert not pend
    T2 += [f"  v_mov_b32 v{V_T1}, 1", "  s_mov_b64 exec, 1"]
    if l2:
        T2 += [f"  s_cmp_eq_u32 s{S_MODE}, 4", "  s_waitcnt vmcnt(0)", "  s_cbranch_scc0 L_far",
               f"  buffer_store_dword v{V_T1}, off, {srd(S_WS)}, s{S_FO}", "L_farret:"]
        FAR = ["  buffer_wbl2 sc1", "  s_waitcnt vmcnt(0)", f"  buffer_store_dword v{V_T1}, off, {srd(S_WS)}, s{S_FO} sc1", "  s_branch L_farret"]
    else:
        T2 += ["  s_waitcnt vmcnt(0)", f"  buffer_store_dword v{V_T1}, off, {srd(S_WS)}, s{S_FO} sc1"]
    T2 += ["  s_mov_b64 exec, 15"]
    stamp(T2)
    TP = [
        f"  buffer_load_dword v{V_T1}, v{V_FADDR}, {srd(S_WS)}, s{S_F} offen {ppol}",
        "  s_waitcnt vmcnt(0)",
        f"  v_cmp_ne_u32 vcc, 1, v{V_T1}",
        "  s_cbranch_vccz L_got",
    ] + ([f"  s_sleep {slp}"] if slp else []) + ["  s_branch L_poll"]
    T3 = ["  s_mov_b64 exec, -1"]
    if l2:
        T3 += [f"  s_cmp_eq_u32 s{S_MODE}, 4", "  s_cbranch_scc1 L_near", "  buffer_inv sc1", "  s_waitcnt vmcnt(0)", "L_near:"]
    stamp(T3)
    VML = V_FR
    VIN = V_S
    for j in range(1, 4):
        T3.append(f"  buffer_load_dwordx4 {vr(VML+4*(j-1),4)}, v{V_LANE16}, {srd(S_WS)}, s{S_ML+j} offen {lpol}")
    nld = 2 if bf16p else 4
    for j in range(1, 4):
        if j > 1 and not bf16p:
            T3.append(f"  s_add_u32 s{S_OI}, s{S_OI}, {R}")
        if j == 3 and bf16p:
            T3.append(f"  s_add_u32 s{S_OI}, s{S_OI}, {2*R}")
        for i in range(nld):
            off = i * 1024 + (R if (bf16p and j == 2) else 0)
            T3.append(f"  buffer_load_dwordx4 {vr(VIN+4*nld*(j-1)+4*i,4)}, v{V_LANE16}, {srd(S_WS)}, s{S_OI} offen offset:{off} {lpol}")
    G = V_FR + 16
    T3.append(f"  s_waitcnt vmcnt({3*nld})")
    ml = lambda j, qb: (ML if j == 0 else VML + 4 * (j - 1)) + 2 * qb
    for qb in range(2):
        T3 += [f"  v_max3_f32 v{V_T0+qb}, v{ml(0,qb)}, v{ml(1,qb)}, v{ml(2,qb)}"]
    for qb in range(2):
        T3 += [f"  v_max_f32 v{V_T0+qb}, v{V_T0+qb}, v{ml(3,qb)}"]
    for j in range(4):
        for qb in range(2):
            T3.append(f"  v_sub_f32 v{G+4*qb+j}, v{ml(j,qb)}, v{V_T0+qb}")
    for j in range(4):
        for qb in range(2):
            T3.append(f"  v_exp_f32 v{G+4*qb+j}, v{G+4*qb+j}")
    for j in range(4):
        for qb in range(2):
            op = "v_fmac_f32" if j else "v_mul_f32"
            T3.append(f"  {op} v{V_T0+qb}, v{G+4*qb+j}, v{ml(j,qb)+1}")
    T3 += [f"  v_rcp_f32 v{V_T0}, v{V_T0}", f"  v_rcp_f32 v{V_T1}, v{V_T1}", "  s_nop 0"]
    for j in range(4):
        for qb in range(2):
            T3.append(f"  v_mul_f32 v{G+4*qb+j}, v{G+4*qb+j}, v{V_T0+qb}")
    qbof = lambda i: (i >> 2) & 1
    for i in range(16):
        T3.append(f"  v_mul_f32 v{V_O+i}, v{G+4*qbof(i)}, v{V_O+i}")
    for j in range(1, 4):
        T3.append(f"  s_waitcnt vmcnt({(3-j)*nld})")
        if bf16p:
            U = V_O + 16
            for i in range(8):
                src = VIN + 8 * (j - 1) + i
                T3.append(f"  v_lshlrev_b32 v{U+2*i}, 16, v{src}")
                T3.append(f"  v_and_b32 v{U+2*i+1}, 0xffff0000, v{src}")
            for i in range(16):
                T3.append(f"  v_fmac_f32 v{V_O+i}, v{G+4*qbof(i)+j}, v{U+i}")
        else:
            for i in range(16):
                T3.append(f"  v_fmac_f32 v{V_O+i}, v{G+4*qbof(i)+j}, v{VIN+16*(j-1)+i}")
    stamp(T3)
    OV = V_O + 32
    for qb in range(2):
        for e in range(2):
            for h in range(2):
                T3.append(f"  v_cvt_pk_bf16_f32 v{OV+4*qb+2*e+h}, v{Ob(e,qb)+2*h}, v{Ob(e,qb)+2*h+1}")
    T3 += [
        f"  v_permlane16_swap_b32 v{OV}, v{OV+2}",
        f"  v_permlane16_swap_b32 v{OV+1}, v{OV+3}",
        f"  buffer_store_dwordx4 {vr(OV,4)}, v{V_OUTA}, {srd(S_OUT)}, 0 offen {opol}",
        f"  v_permlane16_swap_b32 v{OV+4}, v{OV+6}",
        f"  v_permlane16_swap_b32 v{OV+5}, v{OV+7}",
        f"  buffer_store_dwordx4 {vr(OV+4,4)}, v{V_OUTA}, {srd(S_OUT)}, s{S_T3} offen {opol}",
    ]
    if diag:
        T3.append("  s_waitcnt vmcnt(0)")
        stamp(T3)
        T3 += [f"  s_mov_b32 s{S_WS}, s14", f"  s_mov_b32 s{S_WS+1}, s15", f"  s_mov_b32 s{S_WS+2}, {32<<20}"]
        T3.append("  s_getreg_b32 s4, hwreg(HW_REG_XCC_ID)")
        for k in range(nstamp[0]):
            T3.append(f"  v_mov_b32 v{V_S+k}, s{S_ST+2*k}")
        T3.append(f"  v_mov_b32 v{V_S+15}, s4")
        T3.append(f"  v_mov_b32 v{V_S+11}, 31")
        if diag == 3:
            T3 += [f"  s_lshl_b32 s{S_T0}, s2, 2", f"  s_add_u32 s{S_T0}, s{S_T0}, s{S_W}", f"  s_lshl_b32 s{S_T0}, s{S_T0}, 8",
                   f"  s_add_u32 s{S_T0}, s{S_T0}, {OFF_T + (1 << 20)}", f"  v_lshrrev_b32 v{V_T0}, 2, v{V_LANE16}",
                   f"  buffer_store_dword v{V_TR}, v{V_T0}, {srd(S_WS)}, s{S_T0} offen"]
        if diag == 4:
            T3 += [f"  v_mov_b32 v{V_S+12}, s94", f"  v_mov_b32 v{V_S+13}, s96", f"  v_mov_b32 v{V_S+14}, s98"]
        T3 += [
            f"  s_lshl_b32 s{S_T0}, s2, 2",
            f"  s_add_u32 s{S_T0}, s{S_T0}, s{S_W}",
            f"  s_lshl_b32 s{S_T0}, s{S_T0}, 6",
            f"  s_add_u32 s{S_T0}, s{S_T0}, {OFF_T}",
            "  s_mov_b64 exec, 1",
        ]
        for i in range(4):
            T3.append(f"  buffer_store_dwordx4 {vr(V_S+4*i,4)}, off, {srd(S_WS)}, s{S_T0} offset:{16*i}")
    T3.append("  s_endpgm")

    def inline_fix(lines):
        o = []
        for l in lines:
            o.append(l)
            if l.strip().startswith("s_cbranch_vccnz L_fix"):
                o += FIX[sites[int(l.strip().split("L_fix")[1])]]
        return o
    flat = [l for cl, fr in BODY for l in cl + fr]
    first = BODY[midx][1] + [l for cl, fr in BODY[midx + 1:] for l in cl + fr]
    main = E + P + P2 + first + flat + T1 + T2 + TP + T3
    nbar = sum(l == "  s_barrier" for l in P + P2 + first + flat * (nit - 1) + T1 + T2)
    assert nbar == NU + 1, nbar
    traces["cons_a"] = main
    traces["cons_b"] = inline_fix(main)
    errs = []
    for n, t in traces.items():
        errs += check_hazards(t, n)
    if errs and not abl.strip("L"):
        raise RuntimeError("hazards:\n" + "\n".join(errs))

    out = [HEADER.rstrip(),
           "; 256 workgroups = 64 (batch, kv head) pairs x 4 key splits; wave 0 streams K/V into an LDS ring,",
           "; waves 1-4 each own one query head (32 rows); partial results are exchanged through d_ws.",
           f"; @launch grid=(256,1,1) block=(320,1,1) lds={lds}",
           '.amdgcn_target "amdgcn-amd-amdhsa--gfx950"', ".text", f".globl {NAME}", ".p2align 8",
           f".type {NAME},@function", f"{NAME}:"]
    out += E + LOADER
    out += [".p2align 6", "L_cons:"] + P + P2
    out += [".p2align 6", "L_loop:"]
    for i, (cl, fr) in enumerate(BODY):
        out += cl + (["L_mid:"] if i == midx else []) + fr
    out += T1 + T2 + ["L_poll:"] + TP + ["L_got:"] + T3
    if l2:
        out += ["L_far:"] + FAR
    for k, par in enumerate(sites):
        out += [f"L_fix{k}:", f"  s_call_b64 s[{S_RET}:{S_RET+1}], L_fixfn{par}", f"  s_branch L_ret{k}"]
    for par in range(2):
        out += [f"L_fixfn{par}:"] + FIX[par] + [f"  s_setpc_b64 s[{S_RET}:{S_RET+1}]"]
    out += ["L_end:", "  s_endpgm"]
    out += ['.section .rodata,"a"', ".p2align 6", f".amdhsa_kernel {NAME}",
            f"  .amdhsa_next_free_vgpr {NVGPR}", "  .amdhsa_next_free_sgpr 102",
            f"  .amdhsa_accum_offset {NVGPR}", "  .amdhsa_group_segment_fixed_size 0",
            "  .amdhsa_kernarg_size 48", "  .amdhsa_user_sgpr_count 2",
            "  .amdhsa_user_sgpr_kernarg_segment_ptr 1", "  .amdhsa_system_sgpr_workgroup_id_x 1",
            ".end_amdhsa_kernel"]
    return "\n".join(l.rstrip() for l in out if l is not None) + "\n"


if __name__ == "__main__":
    kw = eval("dict(%s)" % sys.argv[1]) if len(sys.argv) > 1 else {}
    sys.stdout.write(gen(**kw))
```

```python
import struct, sys, math
from asmlib import check_hazards, auto_lgkm

NAME = "standalone__gqa_softmax__sampling_kernel"

HEADER = """; Kernarg layout for this problem (48 bytes, ptrs only, base s[0:1]):
;   offset   0: d_in[0] q  shape=(8, 32, 32, 128) dtype=bfloat16 strides=(262144, 8192, 256, 2) contiguous=True
;   offset   8: d_in[1] k  shape=(8, 8, 8192, 128) dtype=bfloat16 strides=(16777216, 2097152, 256, 2) contiguous=True
;   offset  16: d_in[2] v  shape=(8, 8, 8192, 128) dtype=bfloat16 strides=(16777216, 2097152, 256, 2) contiguous=True
;   offset  24: d_out     shape=(8, 32, 32, 128) dtype=bfloat16 (2 bytes/elem)
"""


def f32(x):
    return "0x%08x" % struct.unpack("<I", struct.pack("<f", x))[0]


V_M = 2
V_T0, V_T1, V_T2, V_T3 = 4, 5, 6, 7
V_LANE16 = 8
V_FADDR = 9
V_OUTA = 10
V_TR = 11
V_KA = 12
V_VA = 16
V_X = 24
V_FR = 32
V_O = 64
V_S = 128
V_P = 160
V_L = 176
V_ONE = 192
V_NM = 196
V_JUNK = 204
V_Q = 208
NVGPR = 240

S_K, S_V, S_Q, S_OUT, S_WS, S_DBG = 16, 20, 24, 28, 32, 36
S_BH, S_SP, S_W = 40, 41, 42
S_MODE = 43
S_C, S_THR = 44, 45
S_CNT = 46
S_T0, S_T1, S_T2, S_T3 = 50, 51, 52, 53
S_OD = 54
S_OI = 57
S_ML = 58
S_F = 62
S_FO = 63
S_DB = 64
S_RET = 66
S_ST = 70

OFF_T = 20 << 20
NU = 64


def vr(base, n):
    return f"v[{base}:{base+n-1}]"


def srd(b):
    return f"s[{b}:{b+3}]"


def cost(l):
    return 2 if l.split()[0].startswith("v_exp") else 1


def spread(fillers, weights):
    nslots = len(weights)
    tot = sum(cost(f) for f in fillers)
    wt = sum(weights)
    out = [[] for _ in range(nslots)]
    acc = k = cw = 0
    for s in range(nslots):
        cw += weights[s]
        tgt = tot * cw / wt
        while k < len(fillers) and acc + cost(fillers[k]) / 2.0 <= tgt + 1e-9:
            out[s].append(fillers[k])
            acc += cost(fillers[k])
            k += 1
    out[-1] += fillers[k:]
    return out


def gen(W=20, gs=4, ramp=(), wend=(), lags=(), vfirst=0, lpol="sc1", ppol="sc1", slp=4, pol="nt", grp="xcd", bf16p=1, THR=2.0 ** 24, diag=0,
        opol="", qpol="", prio=3, abl="", pre=0, LPOS=2, WG=2, RD=4, NSL=4, l2=0, warm=1, bal=1, lds=98304, NE=10, pf=0):
    traces = {}
    NE = min(NE, 4 if pre else 10)
    nstamp = [0]

    def stamp(dst):
        if diag:
            k = nstamp[0]
            nstamp[0] += 1
            dst.append(f"  s_memrealtime s[{S_ST+2*k}:{S_ST+2*k+1}]")
            dst.append("  s_waitcnt lgkmcnt(0)")

    R = 2048 if bf16p else 4096
    GB = 17 if bf16p else 18
    OFF_ML = 48 * R
    OFF_F = OFF_ML + 16384
    VBASE = NSL * 8192
    LDS_MODE = 2 * VBASE
    lds = max(lds, LDS_MODE + 64)
    spol = "" if l2 else "sc1"
    c = math.log2(math.e) / math.sqrt(128.0)
    E = ["  s_cmp_ge_u32 s2, 256", "  s_cbranch_scc1 L_end"]
    if diag == 6:
        E += ["  s_memrealtime s[68:69]"]
    E += [
        "  s_load_dwordx4 s[4:7], s[0:1], 0",
        "  s_load_dwordx4 s[8:11], s[0:1], 16",
        "  s_load_dwordx4 s[12:15], s[0:1], 32",
        "  v_lshrrev_b32 v1, 6, v0",
        "  v_and_b32 v0, 63, v0",
        "  v_readfirstlane_b32 s3, v1",
    ]
    if grp == "xcd":
        E += [
            f"  s_and_b32 s{S_T0}, s2, 7",
            f"  s_bfe_u32 s{S_SP}, s2, {3 | (2 << 16)}",
            f"  s_lshr_b32 s{S_T1}, s2, 5",
            f"  s_lshl_b32 s{S_BH}, s{S_T0}, 3",
            f"  s_add_u32 s{S_BH}, s{S_BH}, s{S_T1}",
        ]
    elif grp == "lo":
        E += [f"  s_lshr_b32 s{S_BH}, s2, 2", f"  s_and_b32 s{S_SP}, s2, 3"]
    E += ["  s_cmp_lg_u32 s3, 0", "  s_cbranch_scc1 L_cons"]

    LD = [
        f"  s_setprio {prio}",
        f"  s_lshl_b32 s{S_T0}, s{S_BH}, 21",
        f"  s_lshl_b32 s{S_T1}, s{S_SP}, 19",
        f"  s_add_u32 s{S_T0}, s{S_T0}, s{S_T1}",
        "  v_lshrrev_b32 v3, 4, v0",
        "  v_and_b32 v4, 15, v0",
        "  v_xor_b32 v5, v3, v4",
        "  v_lshlrev_b32 v5, 4, v5",
        "  v_lshl_add_u32 v10, v3, 8, v5",
        "  v_xor_b32 v11, 64, v10",
        "  v_xor_b32 v12, 0x80, v10",
        "  v_xor_b32 v13, 0xc0, v10",
        "  v_lshlrev_b32 v5, 1, v3",
        "  v_xor_b32 v5, v5, v4",
        "  v_lshlrev_b32 v5, 4, v5",
        "  v_lshl_add_u32 v14, v3, 8, v5",
        "  v_xor_b32 v15, 0x80, v14",
        f"  s_mov_b32 s{S_K+2}, 0x80000",
        f"  s_mov_b32 s{S_K+3}, 0x20000",
        f"  s_mov_b32 s{S_V+2}, 0x80000",
        f"  s_mov_b32 s{S_V+3}, 0x20000",
        "  s_mov_b32 s54, 0",
        "  s_mov_b32 s55, 0",
        "  s_waitcnt lgkmcnt(0)",
        f"  s_add_u32 s{S_K}, s6, s{S_T0}",
        f"  s_addc_u32 s{S_K+1}, s7, 0",
        f"  s_add_u32 s{S_V}, s8, s{S_T0}",
        f"  s_addc_u32 s{S_V+1}, s9, 0",
    ]
    lst = [0]

    def lstamp(dst):
        if diag == 6 and lst[0] < 13 and dst is LD:
            dst += [f"  s_memrealtime s[{70+2*lst[0]}:{71+2*lst[0]}]", "  s_waitcnt lgkmcnt(0)"]
            lst[0] += 1
    lstamp(LD)
    st = dict(pos=0, pend=[], load=True, nbar=0, ku=0, vu=0, nmark=0)

    def part(dst, which, w):
        go, sr = (54, S_K) if which == "K" else (55, S_V)
        u = st["ku" if which == "K" else "vu"]
        needb = max(u - NSL, 1) if which == "K" else u - NSL + 2
        while u >= NSL and st["nbar"] <= needb:
            dst.append(f"  s_waitcnt vmcnt({min(w - gs, st['pos'] - st['pend'][0][0])})")
            lstamp(dst)
            dst.append("  s_barrier")
            lstamp(dst)
            st["pend"].pop(0)
            st["nbar"] += 1
        for g in range(2):
            if which == "K":
                dst.append(f"  s_and_b32 m0, s{go}, {VBASE - 1}")
            else:
                dst.append(f"  s_and_b32 s{S_T2}, s{go}, {VBASE - 1}")
                dst.append(f"  s_or_b32 m0, s{S_T2}, {VBASE}")
            first = True
            for j in range(4):
                x = w - gs
                if j % gs == 0 and st["pos"] > x:
                    dst.append(f"  s_waitcnt vmcnt({x})")
                    first = False
                    while st["pend"] and st["pos"] - st["pend"][0][0] >= max(x, st["pend"][0][1]):
                        lstamp(dst)
                        dst.append("  s_barrier")
                        lstamp(dst)
                        st["pend"].pop(0)
                        st["nbar"] += 1
                if first:
                    dst.append("  s_nop 0")
                    first = False
                assert u < NSL or st["nbar"] > needb, (which, u, st["nbar"])
                vo = 10 + j if which == "K" else 14 + (j & 1)
                if st["load"]:
                    dst.append(f"  buffer_load_dwordx4 v{vo}, {srd(sr)}, s{go} offen offset:{j*1024} {pol} lds")
                st["pos"] += 1
            dst.append(f"  s_add_u32 s{go}, s{go}, 4096")
        st["ku" if which == "K" else "vu"] += 1

    def mark():
        k = st["nmark"]
        st["nmark"] += 1
        st["pend"].append((st["pos"], lags[k] if k < len(lags) else 0))

    def body(dst, w):
        part(dst, "K", w)
        part(dst, "V", w)
        mark()

    def rel():
        return [(st["pos"] - p, l) for p, l in st["pend"]]
    assert W % gs == 0 and 4 <= W <= 64
    rw = lambda i: ramp[i] if i < len(ramp) else W
    if vfirst:
        part(LD, "K", rw(0)); part(LD, "V", rw(0)); part(LD, "K", rw(0)); mark()
        part(LD, "K", rw(1)); mark()
    else:
        part(LD, "K", rw(0)); part(LD, "K", rw(0)); mark()
        part(LD, "K", rw(1)); part(LD, "V", rw(1)); mark()
    nb = 2
    while True:
        body(LD, rw(nb))
        nb += 1
        if nb >= len(ramp) and nb >= len(lags) and nb >= (NSL + 3 if "L" in abl else 9 if diag == 6 else 4):
            save = dict(st, pend=list(st["pend"]))
            r1 = rel()
            body([], W)
            r2 = rel()
            st.update(save)
            if r1 == r2:
                break
    if "L" in abl:
        st["load"] = False
    LD += [
        f"  s_mov_b32 s{S_DBG}, s12", f"  s_mov_b32 s{S_DBG+1}, s13", f"  s_mov_b32 s{S_DBG+2}, 256", f"  s_mov_b32 s{S_DBG+3}, 0x20000",
        f"  s_lshl_b32 s{S_DB}, s{S_BH}, 2",
        f"  v_mov_b32 v20, {LDS_MODE}",
    ]
    nfull_end = max(len(wend) - 2, 0)
    nloop = NU - 1 - nb - nfull_end
    n1 = nloop // 2
    LD += [f"  s_mov_b32 s{S_CNT}, {nloop}"]
    D1 = []
    body(D1, W)
    for _ in range(nloop - 1):
        body([], W)
    D1 += [f"  s_sub_u32 s{S_CNT}, s{S_CNT}, 1",
           f"  s_cmp_eq_u32 s{S_CNT}, {n1}", "  s_cbranch_scc1 L_hs0",
           f"  s_cmp_eq_u32 s{S_CNT}, {n1-4}", "  s_cbranch_scc1 L_hs1",
           f"  s_cmp_lg_u32 s{S_CNT}, 0", "  s_cbranch_scc1 L_ldloop"]
    H0 = [f"  buffer_load_dword v22, off, {srd(S_DBG)}, s{S_DB} sc1", "  s_branch L_ldloop"]
    H1 = ["  v_and_b32 v21, 15, v22", "  v_cmp_ne_u32 vcc, 4, v21", "  s_cbranch_vccz L_hs2",
          f"  buffer_load_dword v22, off, {srd(S_DBG)}, s{S_DB} sc1", "  s_waitcnt vmcnt(0)", "  s_branch L_hs1"]
    H2 = []
    if l2:
        H2 += [f"  s_getreg_b32 s{S_T2}, hwreg(HW_REG_XCC_ID, 0, 3)", f"  s_mul_i32 s{S_T2}, s{S_T2}, 3", f"  s_add_u32 s{S_T2}, s{S_T2}, 4",
               f"  v_bfe_u32 v21, v22, s{S_T2}, 3", "  ds_write_b32 v20, v21", "  s_waitcnt lgkmcnt(0)"]
    H2 += ["  s_branch L_ldloop"]
    D6 = []
    for w_ in wend[:nfull_end]:
        body(D6, w_)
    we = list(wend[-2:]) if len(wend) >= 2 else [W, W]
    part(D6, "V", we[0]); mark()
    part(D6, "V", we[1]); mark()
    assert st["ku"] == NU and st["vu"] == NU, st
    for r, _ in rel():
        D6 += [f"  s_waitcnt vmcnt({r})", "  s_barrier"]
        st["nbar"] += 1
    assert st["nbar"] == NU + 1, st["nbar"]
    if diag == 6:
        D6 = D6[:-1] + ["  s_memrealtime s[96:97]", "  s_barrier", "  s_waitcnt lgkmcnt(0)"]
        D6 += [f"  s_mov_b32 s{S_WS}, s14", f"  s_mov_b32 s{S_WS+1}, s15", f"  s_mov_b32 s{S_WS+2}, {32<<20}", f"  s_mov_b32 s{S_WS+3}, 0x20000"]
        for k in range(15):
            D6.append(f"  v_mov_b32 v{32+k}, s{68+2*k}")
        D6 += [f"  s_lshl_b32 s{S_T0}, s2, 6", f"  s_add_u32 s{S_T0}, s{S_T0}, {OFF_T + (2 << 20)}", "  s_mov_b64 exec, 1"]
        for i in range(4):
            D6.append(f"  buffer_store_dwordx4 {vr(32+4*i,4)}, off, {srd(S_WS)}, s{S_T0} offset:{16*i}")
    D6.append("  s_endpgm")
    traces["loader"] = E + LD + D1 + H0 + D1 + H1 + H1 + H2 + D1 + D6
    LOADER = LD + ["L_ldloop:"] + D1 + D6 + ["L_hs0:"] + H0 + ["L_hs1:"] + H1 + ["L_hs2:"] + H2

    P = []
    stamp(P)
    Qf = lambda qb, ks: V_Q + 4 * (qb * 4 + ks)
    P += [
        f"  s_sub_u32 s{S_W}, s3, 1",
        f"  s_lshl_b32 s{S_DB}, s{S_BH}, 2",
        f"  s_add_u32 s{S_T1}, s{S_DB}, s{S_W}",
        f"  s_lshl_b32 s{S_T2}, s{S_T1}, 13",
        f"  v_and_b32 v{V_T0}, 15, v0",
        f"  v_lshrrev_b32 v{V_T1}, 4, v0",
        f"  v_lshlrev_b32 v{V_T2}, 4, v{V_T1}",
        f"  v_lshl_add_u32 v{V_T3}, v{V_T0}, 8, v{V_T2}",
        f"  s_mov_b32 s{S_Q+2}, 8192",
        f"  s_mov_b32 s{S_Q+3}, 0x20000",
        f"  s_movk_i32 s{S_T3}, 0x1000",
        f"  s_lshl_b32 s{S_T0}, s{S_BH}, {GB}",
        "  s_waitcnt lgkmcnt(0)",
        f"  s_add_u32 s{S_Q}, s4, s{S_T2}",
        f"  s_addc_u32 s{S_Q+1}, s5, 0",
    ]
    for qb in range(2):
        for ks in range(4):
            so = f"s{S_T3}" if qb else "0"
            P.append(f"  buffer_load_dwordx4 {vr(Qf(qb,ks),4)}, v{V_T3}, {srd(S_Q)}, {so} offen offset:{ks*64} {qpol}")
    P += [
        f"  s_add_u32 s{S_WS}, s14, s{S_T0}",
        f"  s_addc_u32 s{S_WS+1}, s15, 0",
        f"  s_mov_b32 s{S_WS+2}, {1 << GB}",
        f"  s_mov_b32 s{S_WS+3}, 0x20000",
        f"  s_add_u32 s{S_OUT}, s10, s{S_T2}",
        f"  s_addc_u32 s{S_OUT+1}, s11, 0",
        f"  s_mov_b32 s{S_OUT+2}, 8192",
        f"  s_mov_b32 s{S_OUT+3}, 0x20000",
        f"  s_lshl_b32 s{S_F}, s{S_W}, 7",
        f"  s_add_u32 s{S_F}, s{S_F}, {OFF_F}",
        f"  s_lshl_b32 s{S_FO}, s{S_SP}, 2",
        f"  s_add_u32 s{S_FO}, s{S_FO}, s{S_F}",
        f"  v_mov_b32 v{V_T2}, 0",
        "  s_mov_b64 exec, 1",
        f"  buffer_store_dword v{V_T2}, off, {srd(S_WS)}, s{S_FO} sc1",
    ]
    if warm:
        P.append(f"  buffer_load_dword v{V_JUNK}, off, {srd(S_OUT)}, 0")
    P += ["  s_mov_b64 exec, -1"]
    P += [
        f"  v_xor_b32 v{V_T2}, v{V_T0}, v{V_T1}",
        f"  v_lshlrev_b32 v{V_T2}, 4, v{V_T2}",
        f"  v_lshl_add_u32 v{V_KA}, v{V_T0}, 8, v{V_T2}",
    ]
    for ks in range(1, 4):
        P.append(f"  v_xor_b32 v{V_KA+ks}, {ks*64}, v{V_KA}")
    P += [
        f"  v_lshrrev_b32 v{V_T2}, 2, v0",
        f"  v_lshlrev_b32 v{V_T3}, 8, v{V_T2}",
        f"  v_and_b32 v{V_T2}, 7, v{V_T2}",
        f"  s_lshl_b32 s{S_T2}, s{S_SP}, 1",
        f"  v_xor_b32 v{V_T2}, s{S_T2}, v{V_T2}",
        f"  v_lshl_add_u32 v{V_T3}, v{V_T2}, 5, v{V_T3}",
        f"  v_and_b32 v{V_T2}, 3, v0",
        f"  v_lshl_add_u32 v{V_T3}, v{V_T2}, 3, v{V_T3}",
        f"  v_lshlrev_b32 v{V_FADDR}, 2, v{V_T2}",
        f"  v_add_u32 v{V_VA}, {VBASE}, v{V_T3}",
    ]
    for db in range(1, 8):
        P.append(f"  v_xor_b32 v{V_VA+db}, {db*32}, v{V_VA}")
    P += [
        f"  v_cmp_eq_u32 vcc, 0, v{V_T2}",
        f"  v_mov_b32 v{V_T3}, 0x3f803f80",
        f"  v_lshlrev_b32 v{V_LANE16}, 4, v0",
        f"  v_cndmask_b32 v{V_ONE}, 0, v{V_T3}, vcc",
        f"  v_cndmask_b32 v{V_ONE+1}, 0, v{V_T3}, vcc",
        f"  v_cndmask_b32 v{V_ONE+2}, 0, v{V_T3}, vcc",
        f"  v_cndmask_b32 v{V_ONE+3}, 0, v{V_T3}, vcc",
        f"  s_mov_b32 s{S_C}, {f32(c)}",
        f"  s_mov_b32 s{S_THR}, {f32(THR)}",
    ]
    for i in range(32):
        P.append(f"  v_mov_b64 v[{V_O+2*i}:{V_O+2*i+1}], 0")
    X = []
    for j in range(4):
        X += [f"  s_xor_b32 s{S_T1}, s{S_SP}, {j}", f"  s_lshl_b32 s{S_T1}, s{S_T1}, 2", f"  s_add_u32 s{S_T1}, s{S_T1}, s{S_W}",
              f"  s_lshl_b32 s{S_ML+j}, s{S_T1}, 10", f"  s_add_u32 s{S_ML+j}, s{S_ML+j}, {OFF_ML}"]
        if j == 0:
            X.append(f"  s_mul_i32 s{S_OI}, s{S_T1}, {3*R}")
        else:
            X += [f"  s_mul_i32 s{S_OD+j-1}, s{S_T1}, {3*R}", f"  s_add_u32 s{S_OD+j-1}, s{S_OD+j-1}, {(j-1)*R}"]
    X += [
        f"  v_and_b32 v{V_T2}, 15, v0", f"  v_lshlrev_b32 v{V_OUTA}, 8, v{V_T2}",
        f"  v_bfe_u32 v{V_T2}, v0, 4, 1", f"  v_lshl_add_u32 v{V_OUTA}, v{V_T2}, 5, v{V_OUTA}",
        f"  v_lshrrev_b32 v{V_T2}, 5, v0", f"  v_lshl_add_u32 v{V_OUTA}, v{V_T2}, 4, v{V_OUTA}",
        f"  s_lshl_b32 s{S_T2}, s{S_SP}, 6", f"  v_add_u32 v{V_OUTA}, s{S_T2}, v{V_OUTA}",
    ]
    if pf:
        X += [f"  s_add_u32 s{S_T1}, s{S_OI}, 4096"]
        for i in range(6):
            X.append(f"  buffer_load_dwordx4 {vr(V_S+4*i,4)}, v{V_LANE16}, {srd(S_WS)}, s{S_OI if i < 4 else S_T1} offen offset:{(i&3)*1024}")
        X.append(f"  buffer_load_dwordx4 {vr(V_S+24,4)}, v{V_LANE16}, {srd(S_WS)}, s{S_ML} offen")
    P += ["  s_barrier"] + X + ["  s_waitcnt vmcnt(0)"]
    if pre:
        for i in range(32):
            q = V_Q + i
            P += [f"  v_lshlrev_b32 v{V_T0}, 16, v{q}", f"  v_and_b32 v{V_T1}, 0xffff0000, v{q}",
                  f"  v_mul_f32 v{V_T0}, s{S_C}, v{V_T0}", f"  v_mul_f32 v{V_T1}, s{S_C}, v{V_T1}",
                  f"  v_cvt_pk_bf16_f32 v{q}, v{V_T0}, v{V_T1}"]
    stamp(P)
    PA = [f"  s_mov_b32 s{S_DBG}, s12", f"  s_mov_b32 s{S_DBG+1}, s13", f"  s_mov_b32 s{S_DBG+2}, 256", f"  s_mov_b32 s{S_DBG+3}, 0x20000"]
    if l2:
        PA += [f"  s_getreg_b32 s{S_T2}, hwreg(HW_REG_XCC_ID, 0, 3)", f"  s_mul_i32 s{S_T2}, s{S_T2}, 3",
               f"  s_lshl_b32 s{S_T2}, 16, s{S_T2}", f"  s_add_u32 s{S_T2}, s{S_T2}, 1", f"  v_mov_b32 v{V_T2}, s{S_T2}"]
    else:
        PA += [f"  v_mov_b32 v{V_T2}, 1"]
    PA += [
        "  s_mov_b64 exec, 1",
        f"  buffer_atomic_add v{V_T2}, off, {srd(S_DBG)}, s{S_DB} sc1",
        "  s_mov_b64 exec, -1",
    ]

    Sb = lambda par, kbl, qb: V_S + 16 * par + 4 * (kbl * 2 + qb)
    Pb = lambda par, qb: V_P + 8 * par + 4 * qb
    Lb = lambda par, qb: V_L + 8 * par + 4 * qb
    Ob = lambda db, qb: V_O + 4 * (db * 2 + qb)
    Fr = lambda half, f: V_FR + 16 * half + 4 * f

    def kreads(half, u, kbl):
        return [f"  ds_read_b128 {vr(Fr(half,ks),4)}, v{V_KA+ks} offset:{(u % NSL)*8192 + kbl*4096}" for ks in range(4)]

    def vreads(half, u, dbs):
        o = []
        for f, db in enumerate(dbs):
            for h in range(2):
                o.append(f"  ds_read_b64_tr_b16 {vr(Fr(half,f)+2*h,2)}, v{V_VA+db} offset:{(u % NSL)*8192 + h*4096}")
        return o

    def qkm(half, u, kbl, first=False):
        o = []
        for qb in range(2):
            for ks in range(4):
                d = vr(Sb(u & 1, kbl, qb), 4)
                c0 = vr(V_NM + 4 * qb, 4) if (pre and not first) else 0
                o.append(f"  v_mfma_f32_16x16x32_bf16 {d}, {vr(Fr(half,ks),4)}, {vr(Qf(qb,ks),4)}, {d if ks else c0}")
        return o

    def pvm(half, u, dbs):
        o = []
        for f, db in enumerate(dbs):
            for qb in range(2):
                d = vr(Ob(db, qb), 4)
                o.append(f"  v_mfma_f32_16x16x32_bf16 {d}, {vr(Fr(half,f),4)}, {vr(Pb(u&1,qb),4)}, {d}")
        return o

    def lm(par, first=False):
        return [f"  v_mfma_f32_16x16x32_bf16 {vr(Lb(par,qb),4)}, {vr(V_ONE,4)}, {vr(Pb(par,qb),4)}, {0 if first else vr(Lb(par^1,qb),4)}"
                for qb in range(2)]

    def softmax(par):
        pairs = [(kbl, qb, h) for kbl in range(2) for qb in range(2) for h in range(2)]
        s3 = [[], [], []]
        for k, (kbl, qb, h) in enumerate(pairs):
            s = Sb(par, kbl, qb) + 2 * h
            x = V_X + 2 * (k & 3)
            if pre:
                s3[0].append([])
                s3[1].append([f"  v_exp_f32 v{x}, v{s}", f"  v_exp_f32 v{x+1}, v{s+1}"])
            else:
                s3[0].append([f"  v_fma_f32 v{x}, v{s}, s{S_C}, -v{V_M+qb}", f"  v_fma_f32 v{x+1}, v{s+1}, s{S_C}, -v{V_M+qb}"])
                s3[1].append([f"  v_exp_f32 v{x}, v{x}", f"  v_exp_f32 v{x+1}, v{x+1}"])
            s3[2].append([f"  v_cvt_pk_bf16_f32 v{Pb(par,qb)+2*kbl+h}, v{x}, v{x+1}"])
        o = []
        for k in range(10):
            for j in range(3):
                if 0 <= k - j < 8:
                    o += s3[j][k - j]
        return o

    def softmax_plain(par):
        sm = softmax(par)
        return sm[:-1] + ["  s_nop 0", sm[-1], "  s_nop 1"]

    def chk(par):
        return [f"  v_add_f32 v{V_T0}, v{Lb(par,0)}, v{Lb(par,1)}", f"  v_cmp_nge_f32 vcc, s{S_THR}, v{V_T0}"]

    sites = []

    def br(par):
        k = len(sites)
        sites.append(par)
        return [f"  s_cbranch_vccnz L_fix{k}", f"L_ret{k}:"]

    def xmax(reg, tmp):
        return [f"  v_mov_b32 v{tmp}, v{reg}", "  s_nop 1", f"  v_permlane16_swap_b32 v{reg}, v{tmp}",
                f"  v_max_f32 v{reg}, v{reg}, v{tmp}",
                f"  v_mov_b32 v{tmp}, v{reg}", "  s_nop 1", f"  v_permlane32_swap_b32 v{reg}, v{tmp}",
                f"  v_max_f32 v{reg}, v{reg}, v{tmp}"]

    def maxof(dst, regs):
        o = [f"  v_max3_f32 v{dst}, v{regs[0]}, v{regs[1]}, v{regs[2]}"]
        k = 3
        while k + 1 < len(regs):
            o.append(f"  v_max3_f32 v{dst}, v{dst}, v{regs[k]}, v{regs[k+1]}")
            k += 2
        if k < len(regs):
            o.append(f"  v_max_f32 v{dst}, v{dst}, v{regs[k]}")
        return o

    def group(mf, reads, fill, rd=None):
        o = []
        rd = rd or RD
        per = -(-len(reads) // rd) if reads else 0
        for i, m in enumerate(mf):
            o.append(m)
            o += reads[i * per:(i + 1) * per]
            o += fill[i]
        return o

    def coarse(lines, pend):
        if WG >= 4:
            return auto_lgkm(lines, pend)
        out = []
        n = 4 // WG
        for l in lines:
            if l.strip().startswith("v_mfma"):
                a = int(l.split(",")[1].split("[")[1].split(":")[0])
                if V_FR <= a < V_FR + 32:
                    f = (a - V_FR) // 4
                    last = V_FR + 4 * ((f // n) * n + n - 1) + 3
                    out.append(f"  v_touch v{last}, v{last}")
            out.append(l)
        out, pend = auto_lgkm(out, pend)
        return [l for l in out if not l.strip().startswith("v_touch")], pend

    def ablate(B):
        if "d" in abl:
            B = [l for l in B if not l.strip().startswith("ds_")]
        if "v" in abl:
            B = [l for l in B if not l.strip().startswith(("v_exp", "v_fma", "v_cvt"))]
        return B

    DA, DB_ = [0, 1, 2, 3], [4, 5, 6, 7]

    def fills(par, nfront):
        n = nfront + max(LPOS - 1, 0)
        wts = [1.0] * n
        if bal and nfront == 24:
            per = [-(-4 // RD), -(-8 // RD), -(-8 // RD)]
            cnt = [4, 8, 8]
            for g in range(3):
                for i in range(8):
                    nr = max(0, min(per[g], cnt[g] - i * per[g]))
                    wts[8 * g + i] = max(0.2, 3.1 - nr)
            for i in range(24, n):
                wts[i] = 2.1
        f = spread(softmax(par)[NE:], wts)
        return f + [[] for _ in range(nfront + 10 - n)]

    def closing(n, nxt_reads, tailfill, extra=()):
        o = ["  s_waitcnt lgkmcnt(0)", "  s_barrier"] + list(extra)
        mf = pvm(1, n - 1, DB_)
        mf = mf[:LPOS] + lm(n & 1) + mf[LPOS:]
        fl = [list(x) for x in tailfill]
        c2 = chk(n & 1)
        if n < NU - 1:
            for i, e in enumerate(spread(softmax((n + 1) & 1)[:NE], [1] * (8 - LPOS - 1))):
                fl[LPOS + 1 + i] += e
        fl[8] = fl[8] + c2
        o += group(mf, nxt_reads, fl)
        return o + br(n & 1)

    def front(n):
        f = fills(n & 1, 24)
        o = group(qkm(0, n + 1, 0), kreads(1, n + 1, 1), f[0:8])
        o += group(qkm(1, n + 1, 1), vreads(0, n - 1, DA), f[8:16])
        o += group(pvm(0, n - 1, DA), vreads(1, n - 1, DB_), f[16:24])
        return o, f[24:34]

    P2 = kreads(0, 0, 0) + kreads(1, 0, 1) + qkm(0, 0, 0, True) + kreads(0, 1, 0) + qkm(1, 0, 1, True) + kreads(1, 1, 1) \
        + qkm(0, 1, 0, True) + qkm(1, 1, 1, True) + ["  s_nop 7"]
    for qb in range(2):
        P2 += maxof(V_M + qb, [Sb(par, kbl, qb) + r for par in range(2) for kbl in range(2) for r in range(4)])
    for qb in range(2):
        P2 += xmax(V_M + qb, V_T0)
    if pre:
        for qb in range(2):
            for par in range(2):
                for kbl in range(2):
                    for r in range(4):
                        s = Sb(par, kbl, qb) + r
                        P2.append(f"  v_sub_f32 v{s}, v{s}, v{V_M+qb}")
            for r in range(4):
                P2.append(f"  v_sub_f32 v{V_NM+4*qb+r}, 0, v{V_M+qb}")
    else:
        for qb in range(2):
            P2.append(f"  v_mul_f32 v{V_M+qb}, s{S_C}, v{V_M+qb}")
    P2 += softmax_plain(0) + lm(0, True) + softmax(1)[:NE]
    nit = (NU - 2 + NSL - 1) // NSL
    P2 += [f"  s_mov_b32 s{S_CNT}, {nit}", "  s_barrier"] + kreads(0, 2, 0)
    P2, pend0 = auto_lgkm(P2)
    if diag == 3:
        P2 += ["  s_mov_b32 s95, 0"]
    P2 += [f"  s_cmp_lg_u32 s{S_W}, 0", "  s_cbranch_scc1 L_mid"] + PA + ["  s_branch L_mid"]

    BODY = []
    nfirst = NU - 1 - NSL
    tf = front(nfirst - 1)[1]
    midx = None
    for n in range(nfirst, NU - 1):
        extra = []
        if diag == 3 and n % 2 == 1:
            extra = ["  s_memrealtime s[92:93]", "  s_memtime s[90:91]", "  s_add_u32 s95, s95, 1", "  s_add_u32 s94, s95, 32", "  s_waitcnt lgkmcnt(0)",
                     "  s_mov_b32 m0, s95", f"  v_writelane_b32 v{V_TR}, s92, m0", "  s_mov_b32 m0, s94", f"  v_writelane_b32 v{V_TR}, s90, m0"]
        if diag == 4 and n == nfirst:
            extra = [f"  s_cmp_lg_u32 s{S_CNT}, {nit - 16 // NSL}", "  s_cbranch_scc1 L_nost", "  s_memtime s[96:97]", "  s_memrealtime s[98:99]",
                     "  s_waitcnt lgkmcnt(0)", "  s_mov_b32 s94, 0", "L_nost:"]
        cl = closing(n - 1, kreads(0, n + 1, 0), tf, extra)
        fr, tf = front(n)
        if n == NU - 2:
            k = max(i for i, l in enumerate(fr) if "v_mfma" in l)
            fr = fr[:k] + [f"  s_sub_u32 s{S_CNT}, s{S_CNT}, 1", f"  s_cmp_lg_u32 s{S_CNT}, 0"] + fr[k:] + ["  s_cbranch_scc1 L_loop"]
        cl, pendc = coarse(ablate(cl), [])
        assert "d" in abl or pendc == pend0
        fr, pendf = coarse(ablate(fr), pendc)
        if n % NSL == 1 % NSL:
            midx = len(BODY)
        BODY.append((cl, fr))

    def fix(par):
        o = ["  s_nop 7"]
        for qb in range(2):
            o += maxof(V_T0 + qb, [Sb(par, kbl, qb) + r for kbl in range(2) for r in range(4)])
        for qb in range(2):
            o += xmax(V_T0 + qb, V_T2)
        for qb in range(2):
            t = V_T0 + qb
            if pre:
                o += [f"  v_max_f32 v{t}, 0, v{t}", f"  v_add_f32 v{V_M+qb}, v{V_M+qb}, v{t}"]
                for p2 in range(2):
                    for kbl in range(2):
                        for r in range(4):
                            s = Sb(p2, kbl, qb) + r
                            o.append(f"  v_sub_f32 v{s}, v{s}, v{t}")
                for r in range(4):
                    o.append(f"  v_sub_f32 v{V_NM+4*qb+r}, 0, v{V_M+qb}")
                o += [f"  v_exp_f32 v{t}, -v{t}"]
            else:
                o += [f"  v_mul_f32 v{t}, s{S_C}, v{t}", f"  v_max_f32 v{t}, v{t}, v{V_M+qb}",
                      f"  v_sub_f32 v{V_T2}, v{V_M+qb}, v{t}", f"  v_mov_b32 v{V_M+qb}, v{t}", f"  v_exp_f32 v{t}, v{V_T2}"]
        o.append("  s_nop 0")
        for qb in range(2):
            o.append(f"  v_mul_f32 v{Lb(par^1,qb)}, v{V_T0+qb}, v{Lb(par^1,qb)}")
            for db in range(8):
                for r in range(4):
                    o.append(f"  v_mul_f32 v{Ob(db,qb)+r}, v{V_T0+qb}, v{Ob(db,qb)+r}")
        return o + softmax_plain(par) + lm(par) + softmax(par ^ 1)[:NE] + ["  s_nop 7"]
    FIX = [fix(0), fix(1)]

    T1 = []
    if diag == 4:
        T1 += ["  s_waitcnt lgkmcnt(0)", "  s_memtime s[90:91]", "  s_memrealtime s[92:93]", "  s_waitcnt lgkmcnt(0)", "  s_sub_u32 s96, s90, s96", "  s_sub_u32 s98, s92, s98"]
    X = []
    if l2:
        X += [f"  v_mov_b32 v{V_T2}, {LDS_MODE}", f"  ds_read_b32 v{V_T3}, v{V_T2}", "  s_waitcnt lgkmcnt(0)",
              f"  v_readfirstlane_b32 s{S_MODE}, v{V_T3}"]
    T1 += X
    T1 += closing(NU - 2, vreads(0, NU - 2, DA), tf)
    f = fills(1, 8)
    T1 += group(pvm(0, NU - 2, DA), vreads(1, NU - 2, DB_), f[0:8])
    T1, pend = auto_lgkm(T1, pendf)
    c2 = closing(NU - 1, [], f[8:18])[2:]
    k = next(i for i, l in enumerate(c2) if l.strip().startswith("v_add_f32"))
    c2 = c2[:k] + ["  s_nop 3"] + c2[k:]
    c2, pend = auto_lgkm(c2, pend)
    assert not pend
    T1 += c2
    ML = V_X
    T1 += [
        f"  v_mov_b32 v{ML}, v{V_M}", f"  v_mov_b32 v{ML+1}, v{Lb(1,0)}",
        f"  v_mov_b32 v{ML+2}, v{V_M+1}", f"  v_mov_b32 v{ML+3}, v{Lb(1,1)}",
        f"  buffer_store_dwordx4 {vr(ML,4)}, v{V_LANE16}, {srd(S_WS)}, s{S_ML} offen {spol}",
    ]
    T2 = []
    stamp(T2)
    T2.append("  s_barrier")
    stamp(T2)

    def ostore(j):
        o = []
        if bf16p:
            b = V_S + 8 * (j - 1)
            for i in range(8):
                o.append(f"  v_cvt_pk_bf16_f32 v{b+i}, v{V_O+16*j+2*i}, v{V_O+16*j+2*i+1}")
                if i & 3 == 3:
                    o.append(f"  buffer_store_dwordx4 {vr(b+(i&4),4)}, v{V_LANE16}, {srd(S_WS)}, s{S_OD+j-1} offen offset:{(i>>2)*1024} {spol}")
        else:
            for i in range(4):
                o.append(f"  buffer_store_dwordx4 {vr(V_O+16*j+4*i,4)}, v{V_LANE16}, {srd(S_WS)}, s{S_OD+j-1} offen offset:{i*1024} {spol}")
        return o
    r0 = vreads(0, NU - 1, [2, 3, 4, 5])
    r1 = vreads(1, NU - 1, [6, 7, 0, 1])
    T2 += r0 + r1[:6]
    mf = pvm(0, NU - 1, [2, 3, 4, 5]) + pvm(1, NU - 1, [6, 7, 0, 1])
    T2 += mf[:2] + r1[6:] + mf[2:12] + ostore(1)[:5] + mf[12:14] + ostore(1)[5:] + mf[14:16] + ostore(2) + ostore(3)
    T2, pend = auto_lgkm(T2)
    assert not pend
    T2 += [f"  v_mov_b32 v{V_T1}, 1", "  s_mov_b64 exec, 1"]
    if l2:
        T2 += [f"  s_cmp_eq_u32 s{S_MODE}, 4", "  s_waitcnt vmcnt(0)", "  s_cbranch_scc0 L_far",
               f"  buffer_store_dword v{V_T1}, off, {srd(S_WS)}, s{S_FO}", "L_farret:"]
        FAR = ["  buffer_wbl2 sc1", "  s_waitcnt vmcnt(0)", f"  buffer_store_dword v{V_T1}, off, {srd(S_WS)}, s{S_FO} sc1", "  s_branch L_farret"]
    else:
        T2 += ["  s_waitcnt vmcnt(0)", f"  buffer_store_dword v{V_T1}, off, {srd(S_WS)}, s{S_FO} sc1"]
    T2 += ["  s_mov_b64 exec, 15"]
    stamp(T2)
    TP = [
        f"  buffer_load_dword v{V_T1}, v{V_FADDR}, {srd(S_WS)}, s{S_F} offen {ppol}",
        "  s_waitcnt vmcnt(0)",
        f"  v_cmp_ne_u32 vcc, 1, v{V_T1}",
        "  s_cbranch_vccz L_got",
    ] + ([f"  s_sleep {slp}"] if slp else []) + ["  s_branch L_poll"]
    T3 = ["  s_mov_b64 exec, -1"]
    if l2:
        T3 += [f"  s_cmp_eq_u32 s{S_MODE}, 4", "  s_cbranch_scc1 L_near", "  buffer_inv sc1", "  s_waitcnt vmcnt(0)", "L_near:"]
    stamp(T3)
    VML = V_FR
    VIN = V_S
    for j in range(1, 4):
        T3.append(f"  buffer_load_dwordx4 {vr(VML+4*(j-1),4)}, v{V_LANE16}, {srd(S_WS)}, s{S_ML+j} offen {lpol}")
    nld = 2 if bf16p else 4
    for j in range(1, 4):
        if j > 1 and not bf16p:
            T3.append(f"  s_add_u32 s{S_OI}, s{S_OI}, {R}")
        if j == 3 and bf16p:
            T3.append(f"  s_add_u32 s{S_OI}, s{S_OI}, {2*R}")
        for i in range(nld):
            off = i * 1024 + (R if (bf16p and j == 2) else 0)
            T3.append(f"  buffer_load_dwordx4 {vr(VIN+4*nld*(j-1)+4*i,4)}, v{V_LANE16}, {srd(S_WS)}, s{S_OI} offen offset:{off} {lpol}")
    G = V_FR + 16
    T3.append(f"  s_waitcnt vmcnt({3*nld})")
    ml = lambda j, qb: (ML if j == 0 else VML + 4 * (j - 1)) + 2 * qb
    for qb in range(2):
        T3 += [f"  v_max3_f32 v{V_T0+qb}, v{ml(0,qb)}, v{ml(1,qb)}, v{ml(2,qb)}"]
    for qb in range(2):
        T3 += [f"  v_max_f32 v{V_T0+qb}, v{V_T0+qb}, v{ml(3,qb)}"]
    for j in range(4):
        for qb in range(2):
            T3.append(f"  v_sub_f32 v{G+4*qb+j}, v{ml(j,qb)}, v{V_T0+qb}")
    for j in range(4):
        for qb in range(2):
            T3.append(f"  v_exp_f32 v{G+4*qb+j}, v{G+4*qb+j}")
    for j in range(4):
        for qb in range(2):
            op = "v_fmac_f32" if j else "v_mul_f32"
            T3.append(f"  {op} v{V_T0+qb}, v{G+4*qb+j}, v{ml(j,qb)+1}")
    T3 += [f"  v_rcp_f32 v{V_T0}, v{V_T0}", f"  v_rcp_f32 v{V_T1}, v{V_T1}", "  s_nop 0"]
    for j in range(4):
        for qb in range(2):
            T3.append(f"  v_mul_f32 v{G+4*qb+j}, v{G+4*qb+j}, v{V_T0+qb}")
    qbof = lambda i: (i >> 2) & 1
    for i in range(16):
        T3.append(f"  v_mul_f32 v{V_O+i}, v{G+4*qbof(i)}, v{V_O+i}")
    for j in range(1, 4):
        T3.append(f"  s_waitcnt vmcnt({(3-j)*nld})")
        if bf16p:
            U = V_O + 16
            for i in range(8):
                src = VIN + 8 * (j - 1) + i
                T3.append(f"  v_lshlrev_b32 v{U+2*i}, 16, v{src}")
                T3.append(f"  v_and_b32 v{U+2*i+1}, 0xffff0000, v{src}")
            for i in range(16):
                T3.append(f"  v_fmac_f32 v{V_O+i}, v{G+4*qbof(i)+j}, v{U+i}")
        else:
            for i in range(16):
                T3.append(f"  v_fmac_f32 v{V_O+i}, v{G+4*qbof(i)+j}, v{VIN+16*(j-1)+i}")
    stamp(T3)
    OV = V_O + 32
    for qb in range(2):
        for e in range(2):
            for h in range(2):
                T3.append(f"  v_cvt_pk_bf16_f32 v{OV+4*qb+2*e+h}, v{Ob(e,qb)+2*h}, v{Ob(e,qb)+2*h+1}")
    T3 += [
        f"  v_permlane16_swap_b32 v{OV}, v{OV+2}",
        f"  v_permlane16_swap_b32 v{OV+1}, v{OV+3}",
        f"  buffer_store_dwordx4 {vr(OV,4)}, v{V_OUTA}, {srd(S_OUT)}, 0 offen {opol}",
        f"  v_permlane16_swap_b32 v{OV+4}, v{OV+6}",
        f"  v_permlane16_swap_b32 v{OV+5}, v{OV+7}",
        f"  buffer_store_dwordx4 {vr(OV+4,4)}, v{V_OUTA}, {srd(S_OUT)}, s{S_T3} offen {opol}",
    ]
    if diag:
        T3.append("  s_waitcnt vmcnt(0)")
        stamp(T3)
        T3 += [f"  s_mov_b32 s{S_WS}, s14", f"  s_mov_b32 s{S_WS+1}, s15", f"  s_mov_b32 s{S_WS+2}, {32<<20}"]
        T3.append("  s_getreg_b32 s4, hwreg(HW_REG_XCC_ID)")
        for k in range(nstamp[0]):
            T3.append(f"  v_mov_b32 v{V_S+k}, s{S_ST+2*k}")
        T3.append(f"  v_mov_b32 v{V_S+15}, s4")
        T3.append(f"  v_mov_b32 v{V_S+11}, 31")
        if diag == 3:
            T3 += [f"  s_lshl_b32 s{S_T0}, s2, 2", f"  s_add_u32 s{S_T0}, s{S_T0}, s{S_W}", f"  s_lshl_b32 s{S_T0}, s{S_T0}, 8",
                   f"  s_add_u32 s{S_T0}, s{S_T0}, {OFF_T + (1 << 20)}", f"  v_lshrrev_b32 v{V_T0}, 2, v{V_LANE16}",
                   f"  buffer_store_dword v{V_TR}, v{V_T0}, {srd(S_WS)}, s{S_T0} offen"]
        if diag == 4:
            T3 += [f"  v_mov_b32 v{V_S+12}, s94", f"  v_mov_b32 v{V_S+13}, s96", f"  v_mov_b32 v{V_S+14}, s98"]
        T3 += [
            f"  s_lshl_b32 s{S_T0}, s2, 2",
            f"  s_add_u32 s{S_T0}, s{S_T0}, s{S_W}",
            f"  s_lshl_b32 s{S_T0}, s{S_T0}, 6",
            f"  s_add_u32 s{S_T0}, s{S_T0}, {OFF_T}",
            "  s_mov_b64 exec, 1",
        ]
        for i in range(4):
            T3.append(f"  buffer_store_dwordx4 {vr(V_S+4*i,4)}, off, {srd(S_WS)}, s{S_T0} offset:{16*i}")
    T3.append("  s_endpgm")

    def inline_fix(lines):
        o = []
        for l in lines:
            o.append(l)
            if l.strip().startswith("s_cbranch_vccnz L_fix"):
                o += FIX[sites[int(l.strip().split("L_fix")[1])]]
        return o
    flat = [l for cl, fr in BODY for l in cl + fr]
    first = BODY[midx][1] + [l for cl, fr in BODY[midx + 1:] for l in cl + fr]
    main = E + P + P2 + first + flat + T1 + T2 + TP + T3
    nbar = sum(l == "  s_barrier" for l in P + P2 + first + flat * (nit - 1) + T1 + T2)
    assert nbar == NU + 1, nbar
    traces["cons_a"] = main
    traces["cons_b"] = inline_fix(main)
    errs = []
    for n, t in traces.items():
        errs += check_hazards(t, n)
    if errs and not abl.strip("L"):
        raise RuntimeError("hazards:\n" + "\n".join(errs))

    out = [HEADER.rstrip(),
           "; 256 workgroups = 64 (batch, kv head) pairs x 4 key splits; wave 0 streams K/V into an LDS ring,",
           "; waves 1-4 each own one query head (32 rows); partial results are exchanged through d_ws.",
           f"; @launch grid=(256,1,1) block=(320,1,1) lds={lds}",
           '.amdgcn_target "amdgcn-amd-amdhsa--gfx950"', ".text", f".globl {NAME}", ".p2align 8",
           f".type {NAME},@function", f"{NAME}:"]
    out += E + LOADER
    out += [".p2align 6", "L_cons:"] + P + P2
    out += [".p2align 6", "L_loop:"]
    for i, (cl, fr) in enumerate(BODY):
        out += cl + (["L_mid:"] if i == midx else []) + fr
    out += T1 + T2 + ["L_poll:"] + TP + ["L_got:"] + T3
    if l2:
        out += ["L_far:"] + FAR
    for k, par in enumerate(sites):
        out += [f"L_fix{k}:", f"  s_call_b64 s[{S_RET}:{S_RET+1}], L_fixfn{par}", f"  s_branch L_ret{k}"]
    for par in range(2):
        out += [f"L_fixfn{par}:"] + FIX[par] + [f"  s_setpc_b64 s[{S_RET}:{S_RET+1}]"]
    out += ["L_end:", "  s_endpgm"]
    out += ['.section .rodata,"a"', ".p2align 6", f".amdhsa_kernel {NAME}",
            f"  .amdhsa_next_free_vgpr {NVGPR}", "  .amdhsa_next_free_sgpr 102",
            f"  .amdhsa_accum_offset {NVGPR}", "  .amdhsa_group_segment_fixed_size 0",
            "  .amdhsa_kernarg_size 48", "  .amdhsa_user_sgpr_count 2",
            "  .amdhsa_user_sgpr_kernarg_segment_ptr 1", "  .amdhsa_system_sgpr_workgroup_id_x 1",
            ".end_amdhsa_kernel"]
    return "\n".join(l.rstrip() for l in out if l is not None) + "\n"


if __name__ == "__main__":
    kw = eval("dict(%s)" % sys.argv[1]) if len(sys.argv) > 1 else {}
    sys.stdout.write(gen(**kw))
```

```python
import struct, sys, math
from asmlib import check_hazards, auto_lgkm

NAME = "standalone__gqa_softmax__sampling_kernel"

HEADER = """; Kernarg layout for this problem (48 bytes, ptrs only, base s[0:1]):
;   offset   0: d_in[0] q  shape=(8, 32, 32, 128) dtype=bfloat16 strides=(262144, 8192, 256, 2) contiguous=True
;   offset   8: d_in[1] k  shape=(8, 8, 8192, 128) dtype=bfloat16 strides=(16777216, 2097152, 256, 2) contiguous=True
;   offset  16: d_in[2] v  shape=(8, 8, 8192, 128) dtype=bfloat16 strides=(16777216, 2097152, 256, 2) contiguous=True
;   offset  24: d_out     shape=(8, 32, 32, 128) dtype=bfloat16 (2 bytes/elem)
"""


def f32(x):
    return "0x%08x" % struct.unpack("<I", struct.pack("<f", x))[0]


V_M = 2
V_T0, V_T1, V_T2, V_T3 = 4, 5, 6, 7
V_LANE16 = 8
V_FADDR = 9
V_OUTA = 10
V_TR = 11
V_KA = 12
V_VA = 16
V_X = 24
V_FR = 32
V_O = 64
V_S = 128
V_P = 160
V_L = 176
V_ONE = 192
V_NM = 196
V_JUNK = 204
V_MLA = 206
V_Q = 208
NVGPR = 240

S_K, S_V, S_Q, S_OUT, S_WS, S_DBG = 16, 20, 24, 28, 32, 36
S_BH, S_SP, S_W = 40, 41, 42
S_MODE = 43
S_C, S_THR = 44, 45
S_CNT = 46
S_T0, S_T1, S_T2, S_T3 = 50, 51, 52, 53
S_OD = 54
S_OI = 57
S_ML = 58
S_F = 62
S_FO = 63
S_DB = 64
S_RET = 66
S_ST = 70

OFF_T = 20 << 20
NU = 64


def vr(base, n):
    return f"v[{base}:{base+n-1}]"


def srd(b):
    return f"s[{b}:{b+3}]"


def cost(l):
    return 2 if l.split()[0].startswith("v_exp") else 1


def spread(fillers, weights):
    nslots = len(weights)
    tot = sum(cost(f) for f in fillers)
    wt = sum(weights)
    out = [[] for _ in range(nslots)]
    acc = k = cw = 0
    for s in range(nslots):
        cw += weights[s]
        tgt = tot * cw / wt
        while k < len(fillers) and acc + cost(fillers[k]) / 2.0 <= tgt + 1e-9:
            out[s].append(fillers[k])
            acc += cost(fillers[k])
            k += 1
    out[-1] += fillers[k:]
    return out


def gen(W=22, gs=2, ramp=(), wend=(), lags=(), vfirst=0, lpol="sc1", ppol="sc1", slp=1, pol="nt", grp="xcd", bf16p=1, THR=2.0 ** 24, diag=0,
        opol="", qpol="", prio=3, abl="", pre=0, LPOS=2, WG=2, RD=4, NSL=4, l2=1, warm=1, bal=1, lds=98304, NE=10, pf=2, il=1, xph=0):
    traces = {}
    NE = min(NE, 4 if pre else 10)
    nstamp = [0]

    def stamp(dst):
        if diag:
            k = nstamp[0]
            nstamp[0] += 1
            dst.append(f"  s_memrealtime s[{S_ST+2*k}:{S_ST+2*k+1}]")
            dst.append("  s_waitcnt lgkmcnt(0)")

    R = 2048 if bf16p else 4096
    GB = 17 if bf16p else 18
    SLAB = 3 * R + 256
    OFF_F = 16 * SLAB
    VBASE = NSL * 8192
    LDS_MODE = 2 * VBASE
    lds = max(lds, LDS_MODE + 64)
    c = math.log2(math.e) / math.sqrt(128.0)
    E = ["  s_cmp_ge_u32 s2, 256", "  s_cbranch_scc1 L_end"]
    if diag == 6:
        E += ["  s_memrealtime s[68:69]"]
    E += [
        "  s_load_dwordx4 s[4:7], s[0:1], 0",
        "  s_load_dwordx4 s[8:11], s[0:1], 16",
        "  s_load_dwordx4 s[12:15], s[0:1], 32",
        "  v_lshrrev_b32 v1, 6, v0",
        "  v_and_b32 v0, 63, v0",
        "  v_readfirstlane_b32 s3, v1",
    ]
    if grp == "xcd":
        E += [
            f"  s_and_b32 s{S_T0}, s2, 7",
            f"  s_bfe_u32 s{S_SP}, s2, {3 | (2 << 16)}",
            f"  s_lshr_b32 s{S_T1}, s2, 5",
            f"  s_lshl_b32 s{S_BH}, s{S_T0}, 3",
            f"  s_add_u32 s{S_BH}, s{S_BH}, s{S_T1}",
        ]
    elif grp == "xcd2":
        E += [
            f"  s_and_b32 s{S_T0}, s2, 7",
            f"  s_bfe_u32 s{S_SP}, s2, {3 | (2 << 16)}",
            f"  s_lshr_b32 s{S_T1}, s2, 5",
            f"  s_lshl_b32 s{S_BH}, s{S_T1}, 3",
            f"  s_add_u32 s{S_BH}, s{S_BH}, s{S_T0}",
        ]
    elif grp == "lo":
        E += [f"  s_lshr_b32 s{S_BH}, s2, 2", f"  s_and_b32 s{S_SP}, s2, 3"]
    E += ["  s_cmp_lg_u32 s3, 0", "  s_cbranch_scc1 L_cons"]

    LD = [
        f"  s_setprio {prio}",
        f"  s_lshl_b32 s{S_T0}, s{S_BH}, 21",
        f"  s_lshl_b32 s{S_T1}, s{S_SP}, {10 if il else 19}",
        f"  s_add_u32 s{S_T0}, s{S_T0}, s{S_T1}",
        "  v_lshrrev_b32 v3, 4, v0",
        "  v_and_b32 v4, 15, v0",
        "  v_xor_b32 v5, v3, v4",
        "  v_lshlrev_b32 v5, 4, v5",
        "  v_lshl_add_u32 v10, v3, 8, v5",
        "  v_xor_b32 v11, 64, v10",
        "  v_xor_b32 v12, 0x80, v10",
        "  v_xor_b32 v13, 0xc0, v10",
        "  v_lshlrev_b32 v5, 1, v3",
        "  v_xor_b32 v5, v5, v4",
        "  v_lshlrev_b32 v5, 4, v5",
        "  v_lshl_add_u32 v14, v3, 8, v5",
        "  v_xor_b32 v15, 0x80, v14",
    ] + ([
        "  v_add_u32 v11, 3072, v11", "  v_add_u32 v12, 6144, v12", "  v_add_u32 v13, 9216, v13",
        "  v_add_u32 v16, 6144, v14", "  v_add_u32 v17, 9216, v15", "  v_add_u32 v15, 3072, v15",
        f"  s_sub_u32 s{S_K+2}, 0x200000, s{S_T1}",
    ] if il else [f"  s_mov_b32 s{S_K+2}, 0x80000"]) + [
        f"  s_mov_b32 s{S_K+3}, 0x20000",
        f"  s_mov_b32 s{S_V+2}, s{S_K+2}",
        f"  s_mov_b32 s{S_V+3}, 0x20000",
        f"  s_lshl_b32 s56, s{S_BH}, 15",
        "  s_mov_b32 s54, 0",
        "  s_mov_b32 s55, 0",
        "  s_waitcnt lgkmcnt(0)",
        f"  s_add_u32 s{S_K}, s6, s{S_T0}",
        f"  s_addc_u32 s{S_K+1}, s7, 0",
        f"  s_add_u32 s{S_V}, s8, s{S_T0}",
        f"  s_addc_u32 s{S_V+1}, s9, 0",
    ]
    lst = [0]

    def lstamp(dst):
        if diag == 6 and lst[0] < 13 and dst is LD:
            dst += [f"  s_memrealtime s[{70+2*lst[0]}:{71+2*lst[0]}]", "  s_waitcnt lgkmcnt(0)"]
            lst[0] += 1
    lstamp(LD)
    st = dict(pos=0, pend=[], load=True, nbar=0, ku=0, vu=0, nmark=0)

    def part(dst, which, w):
        go, sr = (54, S_K) if which == "K" else (55, S_V)
        u = st["ku" if which == "K" else "vu"]
        needb = max(u - NSL, 1) if which == "K" else u - NSL + 2
        while u >= NSL and st["nbar"] <= needb:
            dst.append(f"  s_waitcnt vmcnt({min(w - gs, st['pos'] - st['pend'][0][0])})")
            lstamp(dst)
            dst.append("  s_barrier")
            lstamp(dst)
            st["pend"].pop(0)
            st["nbar"] += 1
        for g in range(2):
            fld = (2 if il else 0) | ((VBASE.bit_length() - 1) << 16)
            if which == "K":
                dst.append(f"  s_bfe_u32 m0, s{go}, {fld}")
            else:
                dst.append(f"  s_bfe_u32 s{S_T2}, s{go}, {fld}")
                dst.append(f"  s_or_b32 m0, s{S_T2}, {VBASE}")
            first = True
            so = go
            if xph:
                dst.append(f"  s_xor_b32 s57, s{go}, s56")
                so = 57
                first = False
            for j in range(4):
                x = w - gs
                if j % gs == 0 and st["pos"] > x:
                    dst.append(f"  s_waitcnt vmcnt({x})")
                    first = False
                    while st["pend"] and st["pos"] - st["pend"][0][0] >= max(x, st["pend"][0][1]):
                        lstamp(dst)
                        dst.append("  s_barrier")
                        lstamp(dst)
                        st["pend"].pop(0)
                        st["nbar"] += 1
                if first:
                    dst.append("  s_nop 0")
                    first = False
                assert u < NSL or st["nbar"] > needb, (which, u, st["nbar"])
                vo = 10 + j if which == "K" else 14 + (j if il else j & 1)
                if st["load"]:
                    dst.append(f"  buffer_load_dwordx4 v{vo}, {srd(sr)}, s{so} offen offset:{j*1024} {pol} lds")
                st["pos"] += 1
            dst.append(f"  s_add_u32 s{go}, s{go}, {16384 if il else 4096}")
        st["ku" if which == "K" else "vu"] += 1

    def mark():
        k = st["nmark"]
        st["nmark"] += 1
        st["pend"].append((st["pos"], lags[k] if k < len(lags) else 0))

    def body(dst, w):
        part(dst, "K", w)
        part(dst, "V", w)
        mark()

    def rel():
        return [(st["pos"] - p, l) for p, l in st["pend"]]
    assert W % gs == 0 and 4 <= W <= 64
    rw = lambda i: ramp[i] if i < len(ramp) else W
    if vfirst:
        part(LD, "K", rw(0)); part(LD, "V", rw(0)); part(LD, "K", rw(0)); mark()
        part(LD, "K", rw(1)); mark()
    else:
        part(LD, "K", rw(0)); part(LD, "K", rw(0)); mark()
        part(LD, "K", rw(1)); part(LD, "V", rw(1)); mark()
    nb = 2
    while True:
        body(LD, rw(nb))
        nb += 1
        if nb >= len(ramp) and nb >= len(lags) and nb >= (NSL + 3 if "L" in abl else 9 if diag == 6 else 4):
            save = dict(st, pend=list(st["pend"]))
            r1 = rel()
            body([], W)
            r2 = rel()
            st.update(save)
            if r1 == r2:
                break
    if "L" in abl:
        st["load"] = False
    LD += [
        f"  s_mov_b32 s{S_DBG}, s12", f"  s_mov_b32 s{S_DBG+1}, s13", f"  s_mov_b32 s{S_DBG+2}, 256", f"  s_mov_b32 s{S_DBG+3}, 0x20000",
        f"  s_lshl_b32 s{S_DB}, s{S_BH}, 2",
        f"  v_mov_b32 v20, {LDS_MODE}",
    ]
    nfull_end = max(len(wend) - 2, 0)
    nloop = NU - 1 - nb - nfull_end
    n1 = nloop // 2
    LD += [f"  s_mov_b32 s{S_CNT}, {nloop}"]
    D1 = []
    body(D1, W)
    for _ in range(nloop - 1):
        body([], W)
    D1 += [f"  s_sub_u32 s{S_CNT}, s{S_CNT}, 1",
           f"  s_cmp_eq_u32 s{S_CNT}, {n1}", "  s_cbranch_scc1 L_hs0",
           f"  s_cmp_eq_u32 s{S_CNT}, {n1-4}", "  s_cbranch_scc1 L_hs1",
           f"  s_cmp_lg_u32 s{S_CNT}, 0", "  s_cbranch_scc1 L_ldloop"]
    H0 = [f"  buffer_load_dword v22, off, {srd(S_DBG)}, s{S_DB} sc1", "  s_branch L_ldloop"]
    H1 = ["  v_and_b32 v21, 15, v22", "  v_cmp_ne_u32 vcc, 4, v21", "  s_cbranch_vccz L_hs2",
          f"  buffer_load_dword v22, off, {srd(S_DBG)}, s{S_DB} sc1", "  s_waitcnt vmcnt(0)", "  s_branch L_hs1"]
    H2 = []
    if l2:
        H2 += [f"  s_getreg_b32 s{S_T2}, hwreg(HW_REG_XCC_ID, 0, 3)", f"  s_mul_i32 s{S_T2}, s{S_T2}, 3", f"  s_add_u32 s{S_T2}, s{S_T2}, 4",
               f"  v_bfe_u32 v21, v22, s{S_T2}, 3", "  ds_write_b32 v20, v21", "  s_waitcnt lgkmcnt(0)"]
    if pf:
        H2 += [f"  s_lshl_b32 s{S_T2}, s{S_BH}, {GB}", f"  s_add_u32 s{S_WS}, s14, s{S_T2}", f"  s_addc_u32 s{S_WS+1}, s15, 0",
               f"  s_mov_b32 s{S_WS+2}, {1 << GB}", f"  s_mov_b32 s{S_WS+3}, 0x20000",
               "  v_and_b32 v21, 3, v0", "  v_lshlrev_b32 v21, 7, v21", f"  s_mov_b32 s{S_T2}, {OFF_F}",
               f"  buffer_load_dword v23, v21, {srd(S_WS)}, s{S_T2} offen"]
    H2 += ["  s_branch L_ldloop"]
    D6 = []
    for w_ in wend[:nfull_end]:
        body(D6, w_)
    we = list(wend[-2:]) if len(wend) >= 2 else [W, W]
    part(D6, "V", we[0]); mark()
    part(D6, "V", we[1]); mark()
    assert st["ku"] == NU and st["vu"] == NU, st
    for r, _ in rel():
        D6 += [f"  s_waitcnt vmcnt({r})", "  s_barrier"]
        st["nbar"] += 1
    assert st["nbar"] == NU + 1, st["nbar"]
    if diag == 6:
        D6 = D6[:-1] + ["  s_memrealtime s[96:97]", "  s_barrier", "  s_waitcnt lgkmcnt(0)"]
        D6 += [f"  s_mov_b32 s{S_WS}, s14", f"  s_mov_b32 s{S_WS+1}, s15", f"  s_mov_b32 s{S_WS+2}, {32<<20}", f"  s_mov_b32 s{S_WS+3}, 0x20000"]
        for k in range(15):
            D6.append(f"  v_mov_b32 v{32+k}, s{68+2*k}")
        D6 += [f"  s_lshl_b32 s{S_T0}, s2, 6", f"  s_add_u32 s{S_T0}, s{S_T0}, {OFF_T + (2 << 20)}", "  s_mov_b64 exec, 1"]
        for i in range(4):
            D6.append(f"  buffer_store_dwordx4 {vr(32+4*i,4)}, off, {srd(S_WS)}, s{S_T0} offset:{16*i}")
    D6.append("  s_endpgm")
    traces["loader"] = E + LD + D1 + H0 + D1 + H1 + H1 + H2 + D1 + D6
    LOADER = LD + ["L_ldloop:"] + D1 + D6 + ["L_hs0:"] + H0 + ["L_hs1:"] + H1 + ["L_hs2:"] + H2

    P = []
    stamp(P)
    Qf = lambda qb, ks: V_Q + 4 * (qb * 4 + ks)
    P += [
        f"  s_sub_u32 s{S_W}, s3, 1",
        f"  s_lshl_b32 s{S_DB}, s{S_BH}, 2",
        f"  s_add_u32 s{S_T1}, s{S_DB}, s{S_W}",
        f"  s_lshl_b32 s{S_T2}, s{S_T1}, 13",
        f"  v_and_b32 v{V_T0}, 15, v0",
        f"  v_lshrrev_b32 v{V_T1}, 4, v0",
        f"  v_lshlrev_b32 v{V_T2}, 4, v{V_T1}",
        f"  v_lshl_add_u32 v{V_T3}, v{V_T0}, 8, v{V_T2}",
        f"  s_mov_b32 s{S_Q+2}, 8192",
        f"  s_mov_b32 s{S_Q+3}, 0x20000",
        f"  s_movk_i32 s{S_T3}, 0x1000",
        f"  s_lshl_b32 s{S_T0}, s{S_BH}, {GB}",
        "  s_waitcnt lgkmcnt(0)",
        f"  s_add_u32 s{S_Q}, s4, s{S_T2}",
        f"  s_addc_u32 s{S_Q+1}, s5, 0",
    ]
    for qb in range(2):
        for ks in range(4):
            so = f"s{S_T3}" if qb else "0"
            P.append(f"  buffer_load_dwordx4 {vr(Qf(qb,ks),4)}, v{V_T3}, {srd(S_Q)}, {so} offen offset:{ks*64} {qpol}")
    P += [
        f"  s_add_u32 s{S_WS}, s14, s{S_T0}",
        f"  s_addc_u32 s{S_WS+1}, s15, 0",
        f"  s_mov_b32 s{S_WS+2}, {1 << GB}",
        f"  s_mov_b32 s{S_WS+3}, 0x20000",
        f"  s_add_u32 s{S_OUT}, s10, s{S_T2}",
        f"  s_addc_u32 s{S_OUT+1}, s11, 0",
        f"  s_mov_b32 s{S_OUT+2}, 8192",
        f"  s_mov_b32 s{S_OUT+3}, 0x20000",
        f"  s_lshl_b32 s{S_F}, s{S_W}, 7",
        f"  s_add_u32 s{S_F}, s{S_F}, {OFF_F}",
        f"  s_lshl_b32 s{S_FO}, s{S_SP}, 2",
        f"  s_add_u32 s{S_FO}, s{S_FO}, s{S_F}",
        f"  v_mov_b32 v{V_T2}, 0",
        "  s_mov_b64 exec, 1",
        f"  buffer_store_dword v{V_T2}, off, {srd(S_WS)}, s{S_FO} sc1",
    ]
    if warm:
        P.append(f"  buffer_load_dword v{V_JUNK}, off, {srd(S_OUT)}, 0")
    P += ["  s_mov_b64 exec, -1",
          f"  s_lshl_b32 s{S_OI}, s{S_SP}, 2", f"  s_add_u32 s{S_OI}, s{S_OI}, s{S_W}", f"  s_mul_i32 s{S_OI}, s{S_OI}, {SLAB}"]
    PF = [f"  v_min_u32 v{V_T2}, {SLAB // 128 - 1}, v0", f"  v_lshlrev_b32 v{V_T2}, 7, v{V_T2}",
          f"  buffer_load_dword v{V_JUNK+1}, v{V_T2}, {srd(S_WS)}, s{S_OI} offen"]
    assert bf16p or not pf
    if pf == 1:
        P += PF
    P += [
        f"  v_xor_b32 v{V_T2}, v{V_T0}, v{V_T1}",
        f"  v_lshlrev_b32 v{V_T2}, 4, v{V_T2}",
        f"  v_lshl_add_u32 v{V_KA}, v{V_T0}, 8, v{V_T2}",
    ]
    for ks in range(1, 4):
        P.append(f"  v_xor_b32 v{V_KA+ks}, {ks*64}, v{V_KA}")
    P += [
        f"  v_lshrrev_b32 v{V_T2}, 2, v0",
        f"  v_lshlrev_b32 v{V_T3}, 8, v{V_T2}",
        f"  v_and_b32 v{V_T2}, 7, v{V_T2}",
        f"  s_lshl_b32 s{S_T2}, s{S_SP}, 1",
        f"  v_xor_b32 v{V_T2}, s{S_T2}, v{V_T2}",
        f"  v_lshl_add_u32 v{V_T3}, v{V_T2}, 5, v{V_T3}",
        f"  v_and_b32 v{V_T2}, 3, v0",
        f"  v_lshl_add_u32 v{V_T3}, v{V_T2}, 3, v{V_T3}",
        f"  v_lshlrev_b32 v{V_FADDR}, 2, v{V_T2}",
        f"  v_add_u32 v{V_VA}, {VBASE}, v{V_T3}",
    ]
    for db in range(1, 8):
        P.append(f"  v_xor_b32 v{V_VA+db}, {db*32}, v{V_VA}")
    P += [
        f"  v_cmp_eq_u32 vcc, 0, v{V_T2}",
        f"  v_mov_b32 v{V_T3}, 0x3f803f80",
        f"  v_lshlrev_b32 v{V_LANE16}, 4, v0",
        f"  v_cndmask_b32 v{V_ONE}, 0, v{V_T3}, vcc",
        f"  v_cndmask_b32 v{V_ONE+1}, 0, v{V_T3}, vcc",
        f"  v_cndmask_b32 v{V_ONE+2}, 0, v{V_T3}, vcc",
        f"  v_cndmask_b32 v{V_ONE+3}, 0, v{V_T3}, vcc",
        f"  s_mov_b32 s{S_C}, {f32(c)}",
        f"  s_mov_b32 s{S_THR}, {f32(THR)}",
    ]
    for i in range(32):
        P.append(f"  v_mov_b64 v[{V_O+2*i}:{V_O+2*i+1}], 0")
    X = []
    for j in range(1, 4):
        X += [f"  s_xor_b32 s{S_T1}, s{S_SP}, {j}", f"  s_lshl_b32 s{S_T1}, s{S_T1}, 2", f"  s_add_u32 s{S_T1}, s{S_T1}, s{S_W}",
              f"  s_mul_i32 s{S_T1}, s{S_T1}, {SLAB}",
              f"  s_add_u32 s{S_ML+j}, s{S_T1}, {3*R}", f"  s_add_u32 s{S_OD+j-1}, s{S_T1}, {(j-1)*R}"]
    X += [f"  s_add_u32 s{S_ML}, s{S_OI}, {3*R}", f"  v_and_b32 v{V_MLA}, 0xf0, v{V_LANE16}"]
    X += [
        f"  v_and_b32 v{V_T2}, 15, v0", f"  v_lshlrev_b32 v{V_OUTA}, 8, v{V_T2}",
        f"  v_bfe_u32 v{V_T2}, v0, 4, 1", f"  v_lshl_add_u32 v{V_OUTA}, v{V_T2}, 5, v{V_OUTA}",
        f"  v_lshrrev_b32 v{V_T2}, 5, v0", f"  v_lshl_add_u32 v{V_OUTA}, v{V_T2}, 4, v{V_OUTA}",
        f"  s_lshl_b32 s{S_T2}, s{S_SP}, 6", f"  v_add_u32 v{V_OUTA}, s{S_T2}, v{V_OUTA}",
    ]
    if pf >= 2:
        P += ["  s_barrier"] + X + PF[:2] + ["  s_waitcnt vmcnt(0)"] + (PF[2:] if pf == 2 else [])
    else:
        P += ["  s_barrier"] + X + [f"  s_waitcnt vmcnt({(1 if warm else 0) + (1 if pf else 0)})"]
    if pre:
        for i in range(32):
            q = V_Q + i
            P += [f"  v_lshlrev_b32 v{V_T0}, 16, v{q}", f"  v_and_b32 v{V_T1}, 0xffff0000, v{q}",
                  f"  v_mul_f32 v{V_T0}, s{S_C}, v{V_T0}", f"  v_mul_f32 v{V_T1}, s{S_C}, v{V_T1}",
                  f"  v_cvt_pk_bf16_f32 v{q}, v{V_T0}, v{V_T1}"]
    stamp(P)
    PA = [f"  s_mov_b32 s{S_DBG}, s12", f"  s_mov_b32 s{S_DBG+1}, s13", f"  s_mov_b32 s{S_DBG+2}, 256", f"  s_mov_b32 s{S_DBG+3}, 0x20000"]
    if l2:
        PA += [f"  s_getreg_b32 s{S_T2}, hwreg(HW_REG_XCC_ID, 0, 3)", f"  s_mul_i32 s{S_T2}, s{S_T2}, 3",
               f"  s_lshl_b32 s{S_T2}, 16, s{S_T2}", f"  s_add_u32 s{S_T2}, s{S_T2}, 1", f"  v_mov_b32 v{V_T2}, s{S_T2}"]
    else:
        PA += [f"  v_mov_b32 v{V_T2}, 1"]
    PA += [
        "  s_mov_b64 exec, 1",
        f"  buffer_atomic_add v{V_T2}, off, {srd(S_DBG)}, s{S_DB} sc1",
        "  s_mov_b64 exec, -1",
    ]

    Sb = lambda par, kbl, qb: V_S + 16 * par + 4 * (kbl * 2 + qb)
    Pb = lambda par, qb: V_P + 8 * par + 4 * qb
    Lb = lambda par, qb: V_L + 8 * par + 4 * qb
    Ob = lambda db, qb: V_O + 4 * (db * 2 + qb)
    Fr = lambda half, f: V_FR + 16 * half + 4 * f

    def kreads(half, u, kbl):
        return [f"  ds_read_b128 {vr(Fr(half,ks),4)}, v{V_KA+ks} offset:{(u % NSL)*8192 + kbl*4096}" for ks in range(4)]

    def vreads(half, u, dbs):
        o = []
        for f, db in enumerate(dbs):
            for h in range(2):
                o.append(f"  ds_read_b64_tr_b16 {vr(Fr(half,f)+2*h,2)}, v{V_VA+db} offset:{(u % NSL)*8192 + h*4096}")
        return o

    def qkm(half, u, kbl, first=False):
        o = []
        for qb in range(2):
            for ks in range(4):
                d = vr(Sb(u & 1, kbl, qb), 4)
                c0 = vr(V_NM + 4 * qb, 4) if (pre and not first) else 0
                o.append(f"  v_mfma_f32_16x16x32_bf16 {d}, {vr(Fr(half,ks),4)}, {vr(Qf(qb,ks),4)}, {d if ks else c0}")
        return o

    def pvm(half, u, dbs):
        o = []
        for f, db in enumerate(dbs):
            for qb in range(2):
                d = vr(Ob(db, qb), 4)
                o.append(f"  v_mfma_f32_16x16x32_bf16 {d}, {vr(Fr(half,f),4)}, {vr(Pb(u&1,qb),4)}, {d}")
        return o

    def lm(par, first=False):
        return [f"  v_mfma_f32_16x16x32_bf16 {vr(Lb(par,qb),4)}, {vr(V_ONE,4)}, {vr(Pb(par,qb),4)}, {0 if first else vr(Lb(par^1,qb),4)}"
                for qb in range(2)]

    def softmax(par):
        pairs = [(kbl, qb, h) for kbl in range(2) for qb in range(2) for h in range(2)]
        s3 = [[], [], []]
        for k, (kbl, qb, h) in enumerate(pairs):
            s = Sb(par, kbl, qb) + 2 * h
            x = V_X + 2 * (k & 3)
            if pre:
                s3[0].append([])
                s3[1].append([f"  v_exp_f32 v{x}, v{s}", f"  v_exp_f32 v{x+1}, v{s+1}"])
            else:
                s3[0].append([f"  v_fma_f32 v{x}, v{s}, s{S_C}, -v{V_M+qb}", f"  v_fma_f32 v{x+1}, v{s+1}, s{S_C}, -v{V_M+qb}"])
                s3[1].append([f"  v_exp_f32 v{x}, v{x}", f"  v_exp_f32 v{x+1}, v{x+1}"])
            s3[2].append([f"  v_cvt_pk_bf16_f32 v{Pb(par,qb)+2*kbl+h}, v{x}, v{x+1}"])
        o = []
        for k in range(10):
            for j in range(3):
                if 0 <= k - j < 8:
                    o += s3[j][k - j]
        return o

    def softmax_plain(par):
        sm = softmax(par)
        return sm[:-1] + ["  s_nop 0", sm[-1], "  s_nop 1"]

    def chk(par):
        return [f"  v_add_f32 v{V_T0}, v{Lb(par,0)}, v{Lb(par,1)}", f"  v_cmp_nge_f32 vcc, s{S_THR}, v{V_T0}"]

    sites = []

    def br(par):
        k = len(sites)
        sites.append(par)
        return [f"  s_cbranch_vccnz L_fix{k}", f"L_ret{k}:"]

    def xmax(reg, tmp):
        return [f"  v_mov_b32 v{tmp}, v{reg}", "  s_nop 1", f"  v_permlane16_swap_b32 v{reg}, v{tmp}",
                f"  v_max_f32 v{reg}, v{reg}, v{tmp}",
                f"  v_mov_b32 v{tmp}, v{reg}", "  s_nop 1", f"  v_permlane32_swap_b32 v{reg}, v{tmp}",
                f"  v_max_f32 v{reg}, v{reg}, v{tmp}"]

    def maxof(dst, regs):
        o = [f"  v_max3_f32 v{dst}, v{regs[0]}, v{regs[1]}, v{regs[2]}"]
        k = 3
        while k + 1 < len(regs):
            o.append(f"  v_max3_f32 v{dst}, v{dst}, v{regs[k]}, v{regs[k+1]}")
            k += 2
        if k < len(regs):
            o.append(f"  v_max_f32 v{dst}, v{dst}, v{regs[k]}")
        return o

    def group(mf, reads, fill, rd=None):
        o = []
        rd = rd or RD
        per = -(-len(reads) // rd) if reads else 0
        for i, m in enumerate(mf):
            o.append(m)
            o += reads[i * per:(i + 1) * per]
            o += fill[i]
        return o

    def coarse(lines, pend):
        if WG >= 4:
            return auto_lgkm(lines, pend)
        out = []
        n = 4 // WG
        for l in lines:
            if l.strip().startswith("v_mfma"):
                a = int(l.split(",")[1].split("[")[1].split(":")[0])
                if V_FR <= a < V_FR + 32:
                    f = (a - V_FR) // 4
                    last = V_FR + 4 * ((f // n) * n + n - 1) + 3
                    out.append(f"  v_touch v{last}, v{last}")
            out.append(l)
        out, pend = auto_lgkm(out, pend)
        return [l for l in out if not l.strip().startswith("v_touch")], pend

    def ablate(B):
        if "d" in abl:
            B = [l for l in B if not l.strip().startswith("ds_")]
        if "v" in abl:
            B = [l for l in B if not l.strip().startswith(("v_exp", "v_fma", "v_cvt"))]
        return B

    DA, DB_ = [0, 1, 2, 3], [4, 5, 6, 7]

    def fills(par, nfront):
        n = nfront + max(LPOS - 1, 0)
        wts = [1.0] * n
        if bal and nfront == 24:
            per = [-(-4 // RD), -(-8 // RD), -(-8 // RD)]
            cnt = [4, 8, 8]
            for g in range(3):
                for i in range(8):
                    nr = max(0, min(per[g], cnt[g] - i * per[g]))
                    wts[8 * g + i] = max(0.2, 3.1 - nr)
            for i in range(24, n):
                wts[i] = 2.1
        f = spread(softmax(par)[NE:], wts)
        return f + [[] for _ in range(nfront + 10 - n)]

    def closing(n, nxt_reads, tailfill, extra=()):
        o = ["  s_waitcnt lgkmcnt(0)", "  s_barrier"] + list(extra)
        mf = pvm(1, n - 1, DB_)
        mf = mf[:LPOS] + lm(n & 1) + mf[LPOS:]
        fl = [list(x) for x in tailfill]
        c2 = chk(n & 1)
        if n < NU - 1:
            for i, e in enumerate(spread(softmax((n + 1) & 1)[:NE], [1] * (8 - LPOS - 1))):
                fl[LPOS + 1 + i] += e
        fl[8] = fl[8] + c2
        o += group(mf, nxt_reads, fl)
        return o + br(n & 1)

    def front(n):
        f = fills(n & 1, 24)
        o = group(qkm(0, n + 1, 0), kreads(1, n + 1, 1), f[0:8])
        o += group(qkm(1, n + 1, 1), vreads(0, n - 1, DA), f[8:16])
        o += group(pvm(0, n - 1, DA), vreads(1, n - 1, DB_), f[16:24])
        return o, f[24:34]

    P2 = kreads(0, 0, 0) + kreads(1, 0, 1) + qkm(0, 0, 0, True) + kreads(0, 1, 0) + qkm(1, 0, 1, True) + kreads(1, 1, 1) \
        + qkm(0, 1, 0, True) + qkm(1, 1, 1, True) + ["  s_nop 7"]
    for qb in range(2):
        P2 += maxof(V_M + qb, [Sb(par, kbl, qb) + r for par in range(2) for kbl in range(2) for r in range(4)])
    for qb in range(2):
        P2 += xmax(V_M + qb, V_T0)
    if pre:
        for qb in range(2):
            for par in range(2):
                for kbl in range(2):
                    for r in range(4):
                        s = Sb(par, kbl, qb) + r
                        P2.append(f"  v_sub_f32 v{s}, v{s}, v{V_M+qb}")
            for r in range(4):
                P2.append(f"  v_sub_f32 v{V_NM+4*qb+r}, 0, v{V_M+qb}")
    else:
        for qb in range(2):
            P2.append(f"  v_mul_f32 v{V_M+qb}, s{S_C}, v{V_M+qb}")
    P2 += softmax_plain(0) + lm(0, True) + softmax(1)[:NE]
    nit = (NU - 2 + NSL - 1) // NSL
    P2 += [f"  s_mov_b32 s{S_CNT}, {nit}"] + (["  s_waitcnt vmcnt(0)"] if pf < 2 else PF[2:] if pf == 3 else []) + ["  s_barrier"] + kreads(0, 2, 0)
    P2, pend0 = auto_lgkm(P2)
    if diag == 3:
        P2 += ["  s_mov_b32 s95, 0"]
    P2 += [f"  s_cmp_lg_u32 s{S_W}, 0", "  s_cbranch_scc1 L_mid"] + PA + ["  s_branch L_mid"]

    BODY = []
    nfirst = NU - 1 - NSL
    tf = front(nfirst - 1)[1]
    midx = None
    for n in range(nfirst, NU - 1):
        extra = []
        if diag == 3 and n % 2 == 1:
            extra = ["  s_memrealtime s[92:93]", "  s_memtime s[90:91]", "  s_add_u32 s95, s95, 1", "  s_add_u32 s94, s95, 32", "  s_waitcnt lgkmcnt(0)",
                     "  s_mov_b32 m0, s95", f"  v_writelane_b32 v{V_TR}, s92, m0", "  s_mov_b32 m0, s94", f"  v_writelane_b32 v{V_TR}, s90, m0"]
        if diag == 4 and n == nfirst:
            extra = [f"  s_cmp_lg_u32 s{S_CNT}, {nit - 16 // NSL}", "  s_cbranch_scc1 L_nost", "  s_memtime s[96:97]", "  s_memrealtime s[98:99]",
                     "  s_waitcnt lgkmcnt(0)", "  s_mov_b32 s94, 0", "L_nost:"]
        cl = closing(n - 1, kreads(0, n + 1, 0), tf, extra)
        fr, tf = front(n)
        if n == NU - 2:
            k = max(i for i, l in enumerate(fr) if "v_mfma" in l)
            fr = fr[:k] + [f"  s_sub_u32 s{S_CNT}, s{S_CNT}, 1", f"  s_cmp_lg_u32 s{S_CNT}, 0"] + fr[k:] + ["  s_cbranch_scc1 L_loop"]
        cl, pendc = coarse(ablate(cl), [])
        assert "d" in abl or pendc == pend0
        fr, pendf = coarse(ablate(fr), pendc)
        if n % NSL == 1 % NSL:
            midx = len(BODY)
        BODY.append((cl, fr))

    def fix(par):
        o = ["  s_nop 7"]
        for qb in range(2):
            o += maxof(V_T0 + qb, [Sb(par, kbl, qb) + r for kbl in range(2) for r in range(4)])
        for qb in range(2):
            o += xmax(V_T0 + qb, V_T2)
        for qb in range(2):
            t = V_T0 + qb
            if pre:
                o += [f"  v_max_f32 v{t}, 0, v{t}", f"  v_add_f32 v{V_M+qb}, v{V_M+qb}, v{t}"]
                for p2 in range(2):
                    for kbl in range(2):
                        for r in range(4):
                            s = Sb(p2, kbl, qb) + r
                            o.append(f"  v_sub_f32 v{s}, v{s}, v{t}")
                for r in range(4):
                    o.append(f"  v_sub_f32 v{V_NM+4*qb+r}, 0, v{V_M+qb}")
                o += [f"  v_exp_f32 v{t}, -v{t}"]
            else:
                o += [f"  v_mul_f32 v{t}, s{S_C}, v{t}", f"  v_max_f32 v{t}, v{t}, v{V_M+qb}",
                      f"  v_sub_f32 v{V_T2}, v{V_M+qb}, v{t}", f"  v_mov_b32 v{V_M+qb}, v{t}", f"  v_exp_f32 v{t}, v{V_T2}"]
        o.append("  s_nop 0")
        for qb in range(2):
            o.append(f"  v_mul_f32 v{Lb(par^1,qb)}, v{V_T0+qb}, v{Lb(par^1,qb)}")
            for db in range(8):
                for r in range(4):
                    o.append(f"  v_mul_f32 v{Ob(db,qb)+r}, v{V_T0+qb}, v{Ob(db,qb)+r}")
        return o + softmax_plain(par) + lm(par) + softmax(par ^ 1)[:NE] + ["  s_nop 7"]
    FIX = [fix(0), fix(1)]

    T1 = []
    if diag == 4:
        T1 += ["  s_waitcnt lgkmcnt(0)", "  s_memtime s[90:91]", "  s_memrealtime s[92:93]", "  s_waitcnt lgkmcnt(0)", "  s_sub_u32 s96, s90, s96", "  s_sub_u32 s98, s92, s98"]
    X = []
    if l2:
        X += [f"  v_mov_b32 v{V_T2}, {LDS_MODE}", f"  ds_read_b32 v{V_T3}, v{V_T2}", "  s_waitcnt lgkmcnt(0)",
              f"  v_readfirstlane_b32 s{S_MODE}, v{V_T3}"]
    T1 += X
    T1 += closing(NU - 2, vreads(0, NU - 2, DA), tf)
    f = fills(1, 8)
    T1 += group(pvm(0, NU - 2, DA), vreads(1, NU - 2, DB_), f[0:8])
    T1, pend = auto_lgkm(T1, pendf)
    c2 = closing(NU - 1, [], f[8:18])[2:]
    k = next(i for i, l in enumerate(c2) if l.strip().startswith("v_add_f32"))
    c2 = c2[:k] + ["  s_nop 3"] + c2[k:]
    c2, pend = auto_lgkm(c2, pend)
    assert not pend
    T1 += c2
    ML = V_X
    T1 += [
        f"  v_mov_b32 v{ML}, v{V_M}", f"  v_mov_b32 v{ML+1}, v{Lb(1,0)}",
        f"  v_mov_b32 v{ML+2}, v{V_M+1}", f"  v_mov_b32 v{ML+3}, v{Lb(1,1)}",
    ]

    def publish(spol):
        def ostore(j):
            o = []
            if bf16p:
                b = V_S + 8 * (j - 1)
                for i in range(8):
                    o.append(f"  v_cvt_pk_bf16_f32 v{b+i}, v{V_O+16*j+2*i}, v{V_O+16*j+2*i+1}")
                    if i & 3 == 3:
                        o.append(f"  buffer_store_dwordx4 {vr(b+(i&4),4)}, v{V_LANE16}, {srd(S_WS)}, s{S_OD+j-1} offen offset:{(i>>2)*1024} {spol}")
            else:
                for i in range(4):
                    o.append(f"  buffer_store_dwordx4 {vr(V_O+16*j+4*i,4)}, v{V_LANE16}, {srd(S_WS)}, s{S_OD+j-1} offen offset:{i*1024} {spol}")
            return o
        nstamp[0] = 2
        o = ["  s_mov_b64 exec, 0xffff", f"  buffer_store_dwordx4 {vr(ML,4)}, v{V_LANE16}, {srd(S_WS)}, s{S_ML} offen {spol}", "  s_mov_b64 exec, -1"]
        stamp(o)
        o.append("  s_barrier")
        stamp(o)
        r0 = vreads(0, NU - 1, [2, 3, 4, 5])
        r1 = vreads(1, NU - 1, [6, 7, 0, 1])
        o += r0 + r1[:6]
        mf = pvm(0, NU - 1, [2, 3, 4, 5]) + pvm(1, NU - 1, [6, 7, 0, 1])
        o += mf[:2] + r1[6:] + mf[2:12] + ostore(1)[:5] + mf[12:14] + ostore(1)[5:] + mf[14:16] + ostore(2) + ostore(3)
        o, pend = auto_lgkm(o)
        assert not pend
        return o + [f"  v_mov_b32 v{V_T1}, 1", "  s_mov_b64 exec, 1", "  s_waitcnt vmcnt(0)",
                    f"  buffer_store_dword v{V_T1}, off, {srd(S_WS)}, s{S_FO} {spol}"]
    if l2:
        T1 += [f"  s_cmp_eq_u32 s{S_MODE}, 4", "  s_cbranch_scc0 L_far"]
        FAR = publish("sc1") + ["  s_branch L_farret"]
        T2 = publish("") + ["L_farret:"]
    else:
        T2 = publish("sc1")
    T2 += ["  s_mov_b64 exec, 15"]
    stamp(T2)
    TP = [
        f"  buffer_load_dword v{V_T1}, v{V_FADDR}, {srd(S_WS)}, s{S_F} offen {ppol}",
        "  s_waitcnt vmcnt(0)",
        f"  v_cmp_ne_u32 vcc, 1, v{V_T1}",
        "  s_cbranch_vccz L_got",
    ] + ([f"  s_sleep {slp}"] if slp else []) + ["  s_branch L_poll"]
    T3 = ["  s_mov_b64 exec, -1"]
    if l2:
        T3 += [f"  s_cmp_eq_u32 s{S_MODE}, 4", "  s_cbranch_scc1 L_near", "  buffer_inv sc1", "  s_waitcnt vmcnt(0)", "L_near:"]
    stamp(T3)
    VML = V_FR
    VIN = V_S
    for j in range(1, 4):
        T3.append(f"  buffer_load_dwordx4 {vr(VML+4*(j-1),4)}, v{V_MLA}, {srd(S_WS)}, s{S_ML+j} offen {lpol}")
    nld = 2 if bf16p else 4
    for j in range(1, 4):
        if j > 1 and not bf16p:
            T3.append(f"  s_add_u32 s{S_OI}, s{S_OI}, {R}")
        if j == 3 and bf16p:
            T3.append(f"  s_add_u32 s{S_OI}, s{S_OI}, {2*R}")
        for i in range(nld):
            off = i * 1024 + (R if (bf16p and j == 2) else 0)
            T3.append(f"  buffer_load_dwordx4 {vr(VIN+4*nld*(j-1)+4*i,4)}, v{V_LANE16}, {srd(S_WS)}, s{S_OI} offen offset:{off} {lpol}")
    G = V_FR + 16
    T3.append(f"  s_waitcnt vmcnt({3*nld})")
    ml = lambda j, qb: (ML if j == 0 else VML + 4 * (j - 1)) + 2 * qb
    for qb in range(2):
        T3 += [f"  v_max3_f32 v{V_T0+qb}, v{ml(0,qb)}, v{ml(1,qb)}, v{ml(2,qb)}"]
    for qb in range(2):
        T3 += [f"  v_max_f32 v{V_T0+qb}, v{V_T0+qb}, v{ml(3,qb)}"]
    for j in range(4):
        for qb in range(2):
            T3.append(f"  v_sub_f32 v{G+4*qb+j}, v{ml(j,qb)}, v{V_T0+qb}")
    for j in range(4):
        for qb in range(2):
            T3.append(f"  v_exp_f32 v{G+4*qb+j}, v{G+4*qb+j}")
    for j in range(4):
        for qb in range(2):
            op = "v_fmac_f32" if j else "v_mul_f32"
            T3.append(f"  {op} v{V_T0+qb}, v{G+4*qb+j}, v{ml(j,qb)+1}")
    T3 += [f"  v_rcp_f32 v{V_T0}, v{V_T0}", f"  v_rcp_f32 v{V_T1}, v{V_T1}", "  s_nop 0"]
    for j in range(4):
        for qb in range(2):
            T3.append(f"  v_mul_f32 v{G+4*qb+j}, v{G+4*qb+j}, v{V_T0+qb}")
    qbof = lambda i: (i >> 2) & 1
    for i in range(16):
        T3.append(f"  v_mul_f32 v{V_O+i}, v{G+4*qbof(i)}, v{V_O+i}")
    for j in range(1, 4):
        T3.append(f"  s_waitcnt vmcnt({(3-j)*nld})")
        if bf16p:
            U = V_O + 16
            for i in range(8):
                src = VIN + 8 * (j - 1) + i
                T3.append(f"  v_lshlrev_b32 v{U+2*i}, 16, v{src}")
                T3.append(f"  v_and_b32 v{U+2*i+1}, 0xffff0000, v{src}")
            for i in range(16):
                T3.append(f"  v_fmac_f32 v{V_O+i}, v{G+4*qbof(i)+j}, v{U+i}")
        else:
            for i in range(16):
                T3.append(f"  v_fmac_f32 v{V_O+i}, v{G+4*qbof(i)+j}, v{VIN+16*(j-1)+i}")
    stamp(T3)
    OV = V_O + 32
    for qb in range(2):
        for e in range(2):
            for h in range(2):
                T3.append(f"  v_cvt_pk_bf16_f32 v{OV+4*qb+2*e+h}, v{Ob(e,qb)+2*h}, v{Ob(e,qb)+2*h+1}")
    T3 += [
        f"  v_permlane16_swap_b32 v{OV}, v{OV+2}",
        f"  v_permlane16_swap_b32 v{OV+1}, v{OV+3}",
        f"  buffer_store_dwordx4 {vr(OV,4)}, v{V_OUTA}, {srd(S_OUT)}, 0 offen {opol}",
        f"  v_permlane16_swap_b32 v{OV+4}, v{OV+6}",
        f"  v_permlane16_swap_b32 v{OV+5}, v{OV+7}",
        f"  buffer_store_dwordx4 {vr(OV+4,4)}, v{V_OUTA}, {srd(S_OUT)}, s{S_T3} offen {opol}",
    ]
    if diag:
        T3.append("  s_waitcnt vmcnt(0)")
        stamp(T3)
        T3 += [f"  s_mov_b32 s{S_WS}, s14", f"  s_mov_b32 s{S_WS+1}, s15", f"  s_mov_b32 s{S_WS+2}, {32<<20}"]
        T3.append("  s_getreg_b32 s4, hwreg(HW_REG_XCC_ID)")
        for k in range(nstamp[0]):
            T3.append(f"  v_mov_b32 v{V_S+k}, s{S_ST+2*k}")
        T3.append(f"  v_mov_b32 v{V_S+15}, s4")
        T3.append(f"  v_mov_b32 v{V_S+11}, 31")
        if diag == 3:
            T3 += [f"  s_lshl_b32 s{S_T0}, s2, 2", f"  s_add_u32 s{S_T0}, s{S_T0}, s{S_W}", f"  s_lshl_b32 s{S_T0}, s{S_T0}, 8",
                   f"  s_add_u32 s{S_T0}, s{S_T0}, {OFF_T + (1 << 20)}", f"  v_lshrrev_b32 v{V_T0}, 2, v{V_LANE16}",
                   f"  buffer_store_dword v{V_TR}, v{V_T0}, {srd(S_WS)}, s{S_T0} offen"]
        if diag == 4:
            T3 += [f"  v_mov_b32 v{V_S+12}, s94", f"  v_mov_b32 v{V_S+13}, s96", f"  v_mov_b32 v{V_S+14}, s98"]
        T3 += [
            f"  s_lshl_b32 s{S_T0}, s2, 2",
            f"  s_add_u32 s{S_T0}, s{S_T0}, s{S_W}",
            f"  s_lshl_b32 s{S_T0}, s{S_T0}, 6",
            f"  s_add_u32 s{S_T0}, s{S_T0}, {OFF_T}",
            "  s_mov_b64 exec, 1",
        ]
        for i in range(4):
            T3.append(f"  buffer_store_dwordx4 {vr(V_S+4*i,4)}, off, {srd(S_WS)}, s{S_T0} offset:{16*i}")
    T3.append("  s_endpgm")

    if "S" in abl:
        T1 = [l for l in T1 if not l.strip().startswith("buffer_store")]
        T2 = [l for l in T2 if not l.strip().startswith("buffer_store_dwordx4")]
    if "F" in abl:
        T2 = [l for l in T2 if not l.strip().startswith("buffer_store_dword ")]
        TP = []
    if "R" in abl:
        T3 = [l for l in T3 if not l.strip().startswith("buffer_load")]

    def inline_fix(lines):
        o = []
        for l in lines:
            o.append(l)
            if l.strip().startswith("s_cbranch_vccnz L_fix"):
                o += FIX[sites[int(l.strip().split("L_fix")[1])]]
        return o
    flat = [l for cl, fr in BODY for l in cl + fr]
    first = BODY[midx][1] + [l for cl, fr in BODY[midx + 1:] for l in cl + fr]
    main = E + P + P2 + first + flat + T1 + T2 + TP + T3
    nbar = sum(l == "  s_barrier" for l in P + P2 + first + flat * (nit - 1) + T1 + T2)
    assert nbar == NU + 1, nbar
    traces["cons_a"] = main
    traces["cons_b"] = inline_fix(main)
    errs = []
    for n, t in traces.items():
        errs += check_hazards(t, n)
    if errs and not abl.strip("L"):
        raise RuntimeError("hazards:\n" + "\n".join(errs))

    out = [HEADER.rstrip(),
           "; 256 workgroups = 64 (batch, kv head) pairs x 4 key splits; wave 0 streams K/V into an LDS ring,",
           "; waves 1-4 each own one query head (32 rows); partial results are exchanged through d_ws.",
           f"; @launch grid=(256,1,1) block=(320,1,1) lds={lds}",
           '.amdgcn_target "amdgcn-amd-amdhsa--gfx950"', ".text", f".globl {NAME}", ".p2align 8",
           f".type {NAME},@function", f"{NAME}:"]
    out += E + LOADER
    out += [".p2align 6", "L_cons:"] + P + P2
    out += [".p2align 6", "L_loop:"]
    for i, (cl, fr) in enumerate(BODY):
        out += cl + (["L_mid:"] if i == midx else []) + fr
    out += T1 + T2 + ["L_poll:"] + TP + ["L_got:"] + T3
    if l2:
        out += ["L_far:"] + FAR
    for k, par in enumerate(sites):
        out += [f"L_fix{k}:", f"  s_call_b64 s[{S_RET}:{S_RET+1}], L_fixfn{par}", f"  s_branch L_ret{k}"]
    for par in range(2):
        out += [f"L_fixfn{par}:"] + FIX[par] + [f"  s_setpc_b64 s[{S_RET}:{S_RET+1}]"]
    out += ["L_end:", "  s_endpgm"]
    out += ['.section .rodata,"a"', ".p2align 6", f".amdhsa_kernel {NAME}",
            f"  .amdhsa_next_free_vgpr {NVGPR}", "  .amdhsa_next_free_sgpr 102",
            f"  .amdhsa_accum_offset {NVGPR}", "  .amdhsa_group_segment_fixed_size 0",
            "  .amdhsa_kernarg_size 48", "  .amdhsa_user_sgpr_count 2",
            "  .amdhsa_user_sgpr_kernarg_segment_ptr 1", "  .amdhsa_system_sgpr_workgroup_id_x 1",
            ".end_amdhsa_kernel"]
    return "\n".join(l.rstrip() for l in out if l is not None) + "\n"


if __name__ == "__main__":
    kw = eval("dict(%s)" % sys.argv[1]) if len(sys.argv) > 1 else {}
    sys.stdout.write(gen(**kw))
```

```python
import struct, sys, math
from asmlib import check_hazards, auto_lgkm

NAME = "standalone__gqa_softmax__sampling_kernel"

HEADER = """; Kernarg layout for this problem (48 bytes, ptrs only, base s[0:1]):
;   offset   0: d_in[0] q  shape=(8, 32, 32, 128) dtype=bfloat16 strides=(262144, 8192, 256, 2) contiguous=True
;   offset   8: d_in[1] k  shape=(8, 8, 8192, 128) dtype=bfloat16 strides=(16777216, 2097152, 256, 2) contiguous=True
;   offset  16: d_in[2] v  shape=(8, 8, 8192, 128) dtype=bfloat16 strides=(16777216, 2097152, 256, 2) contiguous=True
;   offset  24: d_out     shape=(8, 32, 32, 128) dtype=bfloat16 (2 bytes/elem)
"""


def f32(x):
    return "0x%08x" % struct.unpack("<I", struct.pack("<f", x))[0]


V_M = 2
V_T0, V_T1, V_T2, V_T3 = 4, 5, 6, 7
V_LANE16 = 8
V_FADDR = 9
V_OUTA = 10
V_TR = 11
V_KA = 12
V_VA = 16
V_X = 24
V_FR = 32
V_O = 64
V_S = 128
V_P = 160
V_L = 176
V_ONE = 192
V_NM = 196
V_JUNK = 204
V_MLA = 206
V_Q = 208
NVGPR = 240

S_K, S_V, S_Q, S_OUT, S_WS, S_DBG = 16, 20, 24, 28, 32, 36
S_BH, S_SP, S_W = 40, 41, 42
S_MODE = 43
S_C, S_THR = 44, 45
S_CNT = 46
S_T0, S_T1, S_T2, S_T3 = 50, 51, 52, 53
S_OD = 54
S_OI = 57
S_ML = 58
S_F = 62
S_FO = 63
S_DB = 64
S_RET = 66
S_ST = 70

OFF_T = 20 << 20
NU = 64


def vr(base, n):
    return f"v[{base}:{base+n-1}]"


def srd(b):
    return f"s[{b}:{b+3}]"


def cost(l):
    return 2 if l.split()[0].startswith("v_exp") else 1


def spread(fillers, weights):
    nslots = len(weights)
    tot = sum(cost(f) for f in fillers)
    wt = sum(weights)
    out = [[] for _ in range(nslots)]
    acc = k = cw = 0
    for s in range(nslots):
        cw += weights[s]
        tgt = tot * cw / wt
        while k < len(fillers) and acc + cost(fillers[k]) / 2.0 <= tgt + 1e-9:
            out[s].append(fillers[k])
            acc += cost(fillers[k])
            k += 1
    out[-1] += fillers[k:]
    return out


def sched(up, step=1, lo=20, hold=1, dec=1):
    l = [0]
    x = lo
    for d in up:
        x += d
        l.append(x)
    l += [x] * hold
    while x > lo + dec:
        x -= dec
        l += [x] * step
    return tuple(l)


def gen(W=21, gs=1, ramp=(), wend=(), lags=None, vfirst=0, lpol="sc1", ppol="sc1", slp=0, pol="nt", grp="xcd2", bf16p=1, THR=2.0 ** 24, diag=0,
        opol="", qpol="", prio=3, abl="", pre=0, LPOS=2, WG=2, RD=4, NSL=8, l2=1, warm=0, bal=1, lds=98304, NE=10, pf=4, il=1, xph=0, pfpos=0, npol="", cpf=3, qlds=1, fastp=1, pfs=(0, 10, 7, 4, 3, 1)):
    traces = {}
    if lags is None:
        lags = sched((7, 6, 5, 4, 2, 1))
    NE = min(NE, 4 if pre else 10)
    if pre:
        fastp = 0
    nstamp = [0]

    def stamp(dst):
        if diag:
            k = nstamp[0]
            nstamp[0] += 1
            dst.append(f"  s_memrealtime s[{S_ST+2*k}:{S_ST+2*k+1}]")
            dst.append("  s_waitcnt lgkmcnt(0)")

    R = 2048 if bf16p else 4096
    GB = 17 if bf16p else 18
    SLAB = 3 * R + 256
    OFF_F = 16 * SLAB
    VBASE = NSL * 8192
    QBASE = 2 * VBASE if NSL == 4 else VBASE + 32768
    LDS_MODE = 2 * VBASE + (32768 if qlds and NSL == 4 else 0)
    LDS_JUNK = LDS_MODE + 64
    lds = max(lds, LDS_MODE + 64 + 256)
    assert lds <= 163840
    c = math.log2(math.e) / math.sqrt(128.0)
    E = ["  s_cmp_ge_u32 s2, 256", "  s_cbranch_scc1 L_end"]
    if diag == 6:
        E += ["  s_memrealtime s[68:69]"]
    E += [
        "  s_load_dwordx4 s[4:7], s[0:1], 0",
        "  s_load_dwordx4 s[8:11], s[0:1], 16",
        "  s_load_dwordx4 s[12:15], s[0:1], 32",
        "  v_lshrrev_b32 v1, 6, v0",
        "  v_and_b32 v0, 63, v0",
        "  v_readfirstlane_b32 s3, v1",
    ]
    if grp == "xcd":
        E += [
            f"  s_and_b32 s{S_T0}, s2, 7",
            f"  s_bfe_u32 s{S_SP}, s2, {3 | (2 << 16)}",
            f"  s_lshr_b32 s{S_T1}, s2, 5",
            f"  s_lshl_b32 s{S_BH}, s{S_T0}, 3",
            f"  s_add_u32 s{S_BH}, s{S_BH}, s{S_T1}",
        ]
    elif grp == "xcd2":
        E += [
            f"  s_and_b32 s{S_T0}, s2, 7",
            f"  s_bfe_u32 s{S_SP}, s2, {3 | (2 << 16)}",
            f"  s_lshr_b32 s{S_T1}, s2, 5",
            f"  s_lshl_b32 s{S_BH}, s{S_T1}, 3",
            f"  s_add_u32 s{S_BH}, s{S_BH}, s{S_T0}",
        ]
    elif grp == "lo":
        E += [f"  s_lshr_b32 s{S_BH}, s2, 2", f"  s_and_b32 s{S_SP}, s2, 3"]
    E += ["  s_cmp_lg_u32 s3, 0", "  s_cbranch_scc1 L_cons"]

    LD = []
    if cpf:
        LD += ["  s_getpc_b64 s[48:49]", "L_pc:", "  v_lshlrev_b32 v6, 7, v0", "  global_load_dword v8, v6, s[48:49]"]
        for i in range(cpf):
            LD += ["  v_add_u32 v6, 8192, v6", "  v_min_u32 v7, L_end - L_pc, v6", "  global_load_dword v8, v7, s[48:49]"]
    LD += [
        f"  s_setprio {prio}",
        f"  s_lshl_b32 s{S_T0}, s{S_BH}, 21",
        f"  s_lshl_b32 s{S_T1}, s{S_SP}, {10 if il else 19}",
        f"  s_add_u32 s{S_T0}, s{S_T0}, s{S_T1}",
        "  v_lshrrev_b32 v3, 4, v0",
        "  v_and_b32 v4, 15, v0",
        "  v_xor_b32 v5, v3, v4",
        "  v_lshlrev_b32 v5, 4, v5",
        "  v_lshl_add_u32 v10, v3, 8, v5",
        "  v_xor_b32 v11, 64, v10",
        "  v_xor_b32 v12, 0x80, v10",
        "  v_xor_b32 v13, 0xc0, v10",
        "  v_lshlrev_b32 v5, 1, v3",
        "  v_xor_b32 v5, v5, v4",
        "  v_lshlrev_b32 v5, 4, v5",
        "  v_lshl_add_u32 v14, v3, 8, v5",
        "  v_xor_b32 v15, 0x80, v14",
    ] + ([
        "  v_mov_b32 v25, v11", "  v_mov_b32 v26, v12", "  v_mov_b32 v27, v13",
        f"  s_lshl_b32 s{S_T3}, s{S_BH}, 15", f"  s_mov_b32 s{S_Q+2}, 32768", f"  s_mov_b32 s{S_Q+3}, 0x20000",
    ] if qlds else []) + ([
        "  v_add_u32 v11, 3072, v11", "  v_add_u32 v12, 6144, v12", "  v_add_u32 v13, 9216, v13",
        "  v_add_u32 v16, 6144, v14", "  v_add_u32 v17, 9216, v15", "  v_add_u32 v15, 3072, v15",
        f"  s_sub_u32 s{S_K+2}, 0x200000, s{S_T1}",
    ] if il else [f"  s_mov_b32 s{S_K+2}, 0x80000"]) + [
        f"  s_mov_b32 s{S_K+3}, 0x20000",
        f"  s_mov_b32 s{S_V+2}, s{S_K+2}",
        f"  s_mov_b32 s{S_V+3}, 0x20000",
        f"  s_lshl_b32 s56, s{S_BH}, 15",
        "  s_mov_b32 s54, 0",
        "  s_mov_b32 s55, 0",
        "  s_waitcnt lgkmcnt(0)",
    ]
    QD = []
    if qlds:
        QD += [f"  s_add_u32 s{S_Q}, s4, s{S_T3}", f"  s_addc_u32 s{S_Q+1}, s5, 0"]
        for g in range(8):
            QD += [f"  s_mov_b32 m0, {QBASE + g*4096}", f"  s_movk_i32 s{S_T2}, {g*4096}"]
            for j in range(4):
                QD.append(f"  buffer_load_dwordx4 v{10 if j == 0 else 24+j}, {srd(S_Q)}, s{S_T2} offen offset:{j*1024} {qpol} lds")
    if qlds == 1:
        LD += QD
    LD += [
        f"  s_add_u32 s{S_K}, s6, s{S_T0}",
        f"  s_addc_u32 s{S_K+1}, s7, 0",
        f"  s_add_u32 s{S_V}, s8, s{S_T0}",
        f"  s_addc_u32 s{S_V+1}, s9, 0",
    ]
    lst = [0]

    def lstamp(dst):
        if diag == 6 and lst[0] < 13 and dst is LD:
            dst += [f"  s_memrealtime s[{70+2*lst[0]}:{71+2*lst[0]}]", "  s_waitcnt lgkmcnt(0)"]
            lst[0] += 1
    lstamp(LD)
    st = dict(pos=0, pend=[], load=True, nbar=0, ku=0, vu=0, nmark=0, npf=0, i16=0)

    def part(dst, which, w):
        go, sr = (54, S_K) if which == "K" else (55, S_V)
        u = st["ku" if which == "K" else "vu"]
        needb = max(u - NSL, 1) if which == "K" else u - NSL + 2
        if u < NSL:
            needb = 1 if (which == "V" and u >= 4 and qlds) else -1
        while st["nbar"] <= needb:
            dst.append(f"  s_waitcnt vmcnt({min(w - gs, st['pos'] - st['pend'][0][0])})")
            lstamp(dst)
            dst.append("  s_barrier")
            lstamp(dst)
            st["pend"].pop(0)
            st["nbar"] += 1
        for g in range(2):
            fld = (2 if il else 0) | ((VBASE.bit_length() - 1) << 16)
            if which == "K":
                dst.append(f"  s_bfe_u32 m0, s{go}, {fld}")
            else:
                dst.append(f"  s_bfe_u32 s{S_T2}, s{go}, {fld}")
                dst.append(f"  s_or_b32 m0, s{S_T2}, {VBASE}")
            first = True
            so = go
            if xph:
                dst.append(f"  s_xor_b32 s57, s{go}, s56")
                so = 57
                first = False
            for j in range(4):
                x = w - gs

                def win():
                    dst.append(f"  s_waitcnt vmcnt({x})")
                    while st["pend"] and st["pos"] - st["pend"][0][0] >= max(x, st["pend"][0][1]):
                        lstamp(dst)
                        dst.append("  s_barrier")
                        lstamp(dst)
                        st["pend"].pop(0)
                        st["nbar"] += 1
                if pf == 5:
                    k = st["nmark"]
                    n = pfs[k] if k < len(pfs) else 0
                    i16 = st["i16"]
                    for _ in range((i16 + 1) * n // 16 - i16 * n // 16):
                        q = st["npf"]
                        dst += ["  s_mov_b32 s59, m0", f"  s_mov_b32 m0, {LDS_JUNK}"]
                        if st["pos"] > x:
                            win()
                        else:
                            dst.append("  s_nop 0")
                        dst.append(f"  buffer_load_dword v24, {srd(S_WS)}, s58 offen lds")
                        dst += ["  s_mov_b32 m0, s59", "  s_add_u32 s58, s58, 1024"]
                        st["npf"] += 1
                        st["pos"] += 1
                        first = False
                    st["i16"] = (i16 + 1) % 16
                if j % gs == 0 and st["pos"] > x:
                    win()
                    first = False
                if first:
                    dst.append("  s_nop 0")
                    first = False
                assert u < NSL or st["nbar"] > needb, (which, u, st["nbar"])
                vo = 10 + j if which == "K" else 14 + (j if il else j & 1)
                if st["load"]:
                    dst.append(f"  buffer_load_dwordx4 v{vo}, {srd(sr)}, s{so} offen offset:{j*1024} {pol} lds")
                st["pos"] += 1
            dst.append(f"  s_add_u32 s{go}, s{go}, {16384 if il else 4096}")
        st["ku" if which == "K" else "vu"] += 1

    def mark():
        k = st["nmark"]
        st["nmark"] += 1
        st["pend"].append((st["pos"], lags[k] if k < len(lags) else 0))

    def body(dst, w):
        part(dst, "K", w)
        part(dst, "V", w)
        mark()

    def rel():
        return [(st["pos"] - p, l) for p, l in st["pend"]]
    assert W % gs == 0 and 4 <= W <= 64
    rw = lambda i: ramp[i] if i < len(ramp) else W
    WSS = [f"  s_lshl_b32 s{S_T2}, s{S_BH}, {GB}", f"  s_add_u32 s{S_WS}, s14, s{S_T2}", f"  s_addc_u32 s{S_WS+1}, s15, 0",
           f"  s_mov_b32 s{S_WS+2}, {1 << GB}", f"  s_mov_b32 s{S_WS+3}, 0x20000"]
    if pf == 5:
        assert gs == 1 and sum(pfs) * 1024 == 4 * SLAB and not vfirst
        WSS += ["  v_and_b32 v24, 7, v0", "  v_lshlrev_b32 v24, 7, v24", f"  s_mul_i32 s58, s{S_SP}, {4*SLAB}"]
        if pfs[0]:
            LD += WSS
    if vfirst:
        part(LD, "K", rw(0)); part(LD, "V", rw(0)); part(LD, "K", rw(0)); mark()
        part(LD, "K", rw(1)); mark()
    else:
        part(LD, "K", rw(0)); part(LD, "K", rw(0))
        if qlds == 2:
            LD += QD
        if pf == 5 and not pfs[0]:
            LD += WSS
        mark()
        part(LD, "K", rw(1)); part(LD, "V", rw(1)); mark()
    nb = 2
    while True:
        body(LD, rw(nb))
        nb += 1
        if nb >= len(ramp) and nb >= len(lags) and (pf != 5 or nb >= len(pfs)) and nb >= (NSL + 3 if "L" in abl else 9 if diag == 6 else 4):
            save = dict(st, pend=list(st["pend"]))
            r1 = rel()
            body([], W)
            r2 = rel()
            st.update(save)
            if r1 == r2:
                break
    if "L" in abl:
        st["load"] = False
    LD += [
        f"  s_mov_b32 s{S_DBG}, s12", f"  s_mov_b32 s{S_DBG+1}, s13", f"  s_mov_b32 s{S_DBG+2}, 256", f"  s_mov_b32 s{S_DBG+3}, 0x20000",
        f"  s_lshl_b32 s{S_DB}, s{S_BH}, 2",
        f"  v_mov_b32 v20, {LDS_MODE}",
    ]
    nfull_end = max(len(wend) - 2, 0)
    nloop = NU - 1 - nb - nfull_end
    n1 = nloop // 2 if nb < 24 else nloop - 1
    assert n1 - 4 >= 1 and n1 < nloop
    LD += [f"  s_mov_b32 s{S_CNT}, {nloop}"]
    D1 = []
    body(D1, W)
    for _ in range(nloop - 1):
        body([], W)
    D1 += [f"  s_sub_u32 s{S_CNT}, s{S_CNT}, 1",
           f"  s_cmp_eq_u32 s{S_CNT}, {n1}", "  s_cbranch_scc1 L_hs0",
           f"  s_cmp_eq_u32 s{S_CNT}, {n1-4}", "  s_cbranch_scc1 L_hs1",
           f"  s_cmp_lg_u32 s{S_CNT}, 0", "  s_cbranch_scc1 L_ldloop"]
    H0 = [f"  buffer_load_dword v22, off, {srd(S_DBG)}, s{S_DB} sc1", "  s_branch L_ldloop"]
    H1 = ["  v_and_b32 v21, 15, v22", "  v_cmp_ne_u32 vcc, 4, v21", "  s_cbranch_vccz L_hs2",
          f"  buffer_load_dword v22, off, {srd(S_DBG)}, s{S_DB} sc1", "  s_waitcnt vmcnt(0)", "  s_branch L_hs1"]
    H2 = []
    if l2:
        H2 += [f"  s_getreg_b32 s{S_T2}, hwreg(HW_REG_XCC_ID, 0, 3)", f"  s_mul_i32 s{S_T2}, s{S_T2}, 3", f"  s_add_u32 s{S_T2}, s{S_T2}, 4",
               f"  v_bfe_u32 v21, v22, s{S_T2}, 3", "  ds_write_b32 v20, v21", "  s_waitcnt lgkmcnt(0)"]
    if pf:
        if pf != 5:
            LD += WSS
        H2 += ["  v_and_b32 v21, 3, v0", "  v_lshlrev_b32 v21, 7, v21", f"  s_mov_b32 s{S_T2}, {OFF_F}",
               f"  buffer_load_dword v23, v21, {srd(S_WS)}, s{S_T2} offen"]
    H2 += ["  s_branch L_ldloop"]
    D6 = []
    LPF = []
    if pf == 4:
        LPF = [f"  s_mov_b32 m0, {LDS_JUNK}", "  s_nop 0"] + [f"  buffer_load_dword v24, {srd(S_WS)}, s{58+i} offen lds" for i in range(4)]
        LD += [f"  v_min_u32 v24, {SLAB // 128 - 1}, v0", "  v_lshlrev_b32 v24, 7, v24",
               f"  s_mul_i32 s58, s{S_SP}, {4*SLAB}"] + [f"  s_add_u32 s{59+i}, s{58+i}, {SLAB}" for i in range(3)]
    if pfpos >= 2 + nfull_end:
        D6 += LPF
    for i, w_ in enumerate(wend[:nfull_end]):
        body(D6, w_)
        if pfpos == 2 + nfull_end - 1 - i:
            D6 += LPF
    we = list(wend[-2:]) if len(wend) >= 2 else [W, W]
    part(D6, "V", we[0]); mark()
    if pfpos == 1:
        D6 += LPF
    part(D6, "V", we[1]); mark()
    if pfpos == 0:
        D6 += LPF
    assert st["ku"] == NU and st["vu"] == NU, st
    for r, _ in rel():
        D6 += [f"  s_waitcnt vmcnt({r + (4 if LPF and r >= 8 * pfpos and pfpos <= 2 else 0)})", "  s_barrier"]
        st["nbar"] += 1
    assert st["nbar"] == NU + 1, st["nbar"]
    if diag == 6:
        D6 = D6[:-1] + ["  s_memrealtime s[96:97]", "  s_barrier", "  s_waitcnt lgkmcnt(0)"]
        D6 += [f"  s_mov_b32 s{S_WS}, s14", f"  s_mov_b32 s{S_WS+1}, s15", f"  s_mov_b32 s{S_WS+2}, {32<<20}", f"  s_mov_b32 s{S_WS+3}, 0x20000"]
        for k in range(15):
            D6.append(f"  v_mov_b32 v{32+k}, s{68+2*k}")
        D6 += [f"  s_lshl_b32 s{S_T0}, s2, 6", f"  s_add_u32 s{S_T0}, s{S_T0}, {OFF_T + (2 << 20)}", "  s_mov_b64 exec, 1"]
        for i in range(4):
            D6.append(f"  buffer_store_dwordx4 {vr(32+4*i,4)}, off, {srd(S_WS)}, s{S_T0} offset:{16*i}")
    D6.append("  s_endpgm")
    traces["loader"] = E + LD + D1 + H0 + D1 + H1 + H1 + H2 + D1 + D6
    LOADER = LD + ["L_ldloop:"] + D1 + D6 + ["L_hs0:"] + H0 + ["L_hs1:"] + H1 + ["L_hs2:"] + H2

    P = []
    stamp(P)
    Qf = lambda qb, ks: V_Q + 4 * (qb * 4 + ks)
    P += [
        f"  s_sub_u32 s{S_W}, s3, 1",
        f"  s_lshl_b32 s{S_DB}, s{S_BH}, 2",
        f"  s_add_u32 s{S_T1}, s{S_DB}, s{S_W}",
        f"  s_lshl_b32 s{S_T2}, s{S_T1}, 13",
        f"  v_and_b32 v{V_T0}, 15, v0",
        f"  v_lshrrev_b32 v{V_T1}, 4, v0",
        f"  v_lshlrev_b32 v{V_T2}, 4, v{V_T1}",
        f"  v_lshl_add_u32 v{V_T3}, v{V_T0}, 8, v{V_T2}",
        f"  s_mov_b32 s{S_Q+2}, 8192",
        f"  s_mov_b32 s{S_Q+3}, 0x20000",
        f"  s_movk_i32 s{S_T3}, 0x1000",
        f"  s_lshl_b32 s{S_T0}, s{S_BH}, {GB}",
        "  s_waitcnt lgkmcnt(0)",
        f"  s_add_u32 s{S_Q}, s4, s{S_T2}",
        f"  s_addc_u32 s{S_Q+1}, s5, 0",
    ]
    for qb in range(2):
        for ks in range(4):
            so = f"s{S_T3}" if qb else "0"
            if not qlds:
                P.append(f"  buffer_load_dwordx4 {vr(Qf(qb,ks),4)}, v{V_T3}, {srd(S_Q)}, {so} offen offset:{ks*64} {qpol}")
    P += [
        f"  s_add_u32 s{S_WS}, s14, s{S_T0}",
        f"  s_addc_u32 s{S_WS+1}, s15, 0",
        f"  s_mov_b32 s{S_WS+2}, {1 << GB}",
        f"  s_mov_b32 s{S_WS+3}, 0x20000",
        f"  s_add_u32 s{S_OUT}, s10, s{S_T2}",
        f"  s_addc_u32 s{S_OUT+1}, s11, 0",
        f"  s_mov_b32 s{S_OUT+2}, 8192",
        f"  s_mov_b32 s{S_OUT+3}, 0x20000",
        f"  s_lshl_b32 s{S_F}, s{S_W}, 7",
        f"  s_add_u32 s{S_F}, s{S_F}, {OFF_F}",
        f"  s_lshl_b32 s{S_FO}, s{S_SP}, 2",
        f"  s_add_u32 s{S_FO}, s{S_FO}, s{S_F}",
        f"  v_mov_b32 v{V_T2}, 0",
        "  s_mov_b64 exec, 1",
        f"  buffer_store_dword v{V_T2}, off, {srd(S_WS)}, s{S_FO} sc1",
    ]
    if warm:
        P.append(f"  buffer_load_dword v{V_JUNK}, off, {srd(S_OUT)}, 0")
    P += ["  s_mov_b64 exec, -1",
          f"  s_lshl_b32 s{S_OI}, s{S_SP}, 2", f"  s_add_u32 s{S_OI}, s{S_OI}, s{S_W}", f"  s_mul_i32 s{S_OI}, s{S_OI}, {SLAB}"]
    PF = [f"  v_min_u32 v{V_T2}, {SLAB // 128 - 1}, v0", f"  v_lshlrev_b32 v{V_T2}, 7, v{V_T2}",
          f"  buffer_load_dword v{V_JUNK+1}, v{V_T2}, {srd(S_WS)}, s{S_OI} offen"]
    assert bf16p or not pf
    if pf == 1:
        P += PF
    P += [
        f"  v_xor_b32 v{V_T2}, v{V_T0}, v{V_T1}",
        f"  v_lshlrev_b32 v{V_T2}, 4, v{V_T2}",
        f"  v_lshl_add_u32 v{V_KA}, v{V_T0}, 8, v{V_T2}",
    ]
    for ks in range(1, 4):
        P.append(f"  v_xor_b32 v{V_KA+ks}, {ks*64}, v{V_KA}")
    P += [
        f"  v_lshrrev_b32 v{V_T2}, 2, v0",
        f"  v_lshlrev_b32 v{V_T3}, 8, v{V_T2}",
        f"  v_and_b32 v{V_T2}, 7, v{V_T2}",
        f"  s_lshl_b32 s{S_T2}, s{S_SP}, 1",
        f"  v_xor_b32 v{V_T2}, s{S_T2}, v{V_T2}",
        f"  v_lshl_add_u32 v{V_T3}, v{V_T2}, 5, v{V_T3}",
        f"  v_and_b32 v{V_T2}, 3, v0",
        f"  v_lshl_add_u32 v{V_T3}, v{V_T2}, 3, v{V_T3}",
        f"  v_lshlrev_b32 v{V_FADDR}, 2, v{V_T2}",
        f"  v_add_u32 v{V_VA}, {VBASE}, v{V_T3}",
    ]
    for db in range(1, 8):
        P.append(f"  v_xor_b32 v{V_VA+db}, {db*32}, v{V_VA}")
    P += [
        f"  v_cmp_eq_u32 vcc, 0, v{V_T2}",
        f"  v_mov_b32 v{V_T3}, 0x3f803f80",
        f"  v_lshlrev_b32 v{V_LANE16}, 4, v0",
        f"  v_cndmask_b32 v{V_ONE}, 0, v{V_T3}, vcc",
        f"  v_cndmask_b32 v{V_ONE+1}, 0, v{V_T3}, vcc",
        f"  v_cndmask_b32 v{V_ONE+2}, 0, v{V_T3}, vcc",
        f"  v_cndmask_b32 v{V_ONE+3}, 0, v{V_T3}, vcc",
        f"  s_mov_b32 s{S_C}, {f32(c)}",
        f"  s_mov_b32 s{S_THR}, {f32(THR)}",
    ]
    for i in range(32):
        P.append(f"  v_mov_b64 v[{V_O+2*i}:{V_O+2*i+1}], 0")
    X = []
    for j in range(1, 4):
        X += [f"  s_xor_b32 s{S_T1}, s{S_SP}, {j}", f"  s_lshl_b32 s{S_T1}, s{S_T1}, 2", f"  s_add_u32 s{S_T1}, s{S_T1}, s{S_W}",
              f"  s_mul_i32 s{S_T1}, s{S_T1}, {SLAB}",
              f"  s_add_u32 s{S_ML+j}, s{S_T1}, {3*R}", f"  s_add_u32 s{S_OD+j-1}, s{S_T1}, {(j-1)*R}"]
    X += [f"  s_add_u32 s{S_ML}, s{S_OI}, {3*R}", f"  v_and_b32 v{V_MLA}, 0xf0, v{V_LANE16}"]
    X += [
        f"  v_and_b32 v{V_T2}, 15, v0", f"  v_lshlrev_b32 v{V_OUTA}, 8, v{V_T2}",
        f"  v_bfe_u32 v{V_T2}, v0, 4, 1", f"  v_lshl_add_u32 v{V_OUTA}, v{V_T2}, 5, v{V_OUTA}",
        f"  v_lshrrev_b32 v{V_T2}, 5, v0", f"  v_lshl_add_u32 v{V_OUTA}, v{V_T2}, 4, v{V_OUTA}",
        f"  s_lshl_b32 s{S_T2}, s{S_SP}, 6", f"  v_add_u32 v{V_OUTA}, s{S_T2}, v{V_OUTA}",
    ]
    if qlds:
        X += [f"  s_lshl_b32 s{S_T2}, s{S_W}, 13", f"  s_add_u32 s{S_T2}, s{S_T2}, {QBASE}"]
        X += [f"  v_add_u32 v{V_X+ks}, s{S_T2}, v{V_KA+ks}" for ks in range(4)]
        P += X + (PF[:2] if pf in (2, 3) else []) + ["  s_waitcnt vmcnt(0)", "  s_barrier"] + (PF[2:] if pf == 2 else [])
        P += [f"  ds_read_b128 {vr(Qf(qb,ks),4)}, v{V_X+ks} offset:{qb*4096}" for qb in range(2) for ks in range(4)]
        P += ["  s_waitcnt lgkmcnt(0)"]
    elif pf >= 4:
        P += ["  s_barrier"] + X + ["  s_waitcnt vmcnt(0)"]
    elif pf >= 2:
        P += ["  s_barrier"] + X + PF[:2] + ["  s_waitcnt vmcnt(0)"] + (PF[2:] if pf == 2 else [])
    else:
        P += ["  s_barrier"] + X + [f"  s_waitcnt vmcnt({(1 if warm else 0) + (1 if pf else 0)})"]
    if pre:
        for i in range(32):
            q = V_Q + i
            P += [f"  v_lshlrev_b32 v{V_T0}, 16, v{q}", f"  v_and_b32 v{V_T1}, 0xffff0000, v{q}",
                  f"  v_mul_f32 v{V_T0}, s{S_C}, v{V_T0}", f"  v_mul_f32 v{V_T1}, s{S_C}, v{V_T1}",
                  f"  v_cvt_pk_bf16_f32 v{q}, v{V_T0}, v{V_T1}"]
    stamp(P)
    PA = [f"  s_mov_b32 s{S_DBG}, s12", f"  s_mov_b32 s{S_DBG+1}, s13", f"  s_mov_b32 s{S_DBG+2}, 256", f"  s_mov_b32 s{S_DBG+3}, 0x20000"]
    if l2:
        PA += [f"  s_getreg_b32 s{S_T2}, hwreg(HW_REG_XCC_ID, 0, 3)", f"  s_mul_i32 s{S_T2}, s{S_T2}, 3",
               f"  s_lshl_b32 s{S_T2}, 16, s{S_T2}", f"  s_add_u32 s{S_T2}, s{S_T2}, 1", f"  v_mov_b32 v{V_T2}, s{S_T2}"]
    else:
        PA += [f"  v_mov_b32 v{V_T2}, 1"]
    PA += [
        "  s_mov_b64 exec, 1",
        f"  buffer_atomic_add v{V_T2}, off, {srd(S_DBG)}, s{S_DB} sc1",
        "  s_mov_b64 exec, -1",
    ]

    Sb = lambda par, kbl, qb: V_S + 16 * par + 4 * (kbl * 2 + qb)
    Pb = lambda par, qb: V_P + 8 * par + 4 * qb
    Lb = lambda par, qb: V_L + 8 * par + 4 * qb
    Ob = lambda db, qb: V_O + 4 * (db * 2 + qb)
    Fr = lambda half, f: V_FR + 16 * half + 4 * f

    def kreads(half, u, kbl):
        return [f"  ds_read_b128 {vr(Fr(half,ks),4)}, v{V_KA+ks} offset:{(u % NSL)*8192 + kbl*4096}" for ks in range(4)]

    def vreads(half, u, dbs):
        o = []
        for f, db in enumerate(dbs):
            for h in range(2):
                o.append(f"  ds_read_b64_tr_b16 {vr(Fr(half,f)+2*h,2)}, v{V_VA+db} offset:{(u % NSL)*8192 + h*4096}")
        return o

    def qkm(half, u, kbl, first=False):
        o = []
        for qb in range(2):
            for ks in range(4):
                d = vr(Sb(u & 1, kbl, qb), 4)
                c0 = vr(V_NM + 4 * qb, 4) if (pre and not first) else 0
                o.append(f"  v_mfma_f32_16x16x32_bf16 {d}, {vr(Fr(half,ks),4)}, {vr(Qf(qb,ks),4)}, {d if ks else c0}")
        return o

    def pvm(half, u, dbs):
        o = []
        for f, db in enumerate(dbs):
            for qb in range(2):
                d = vr(Ob(db, qb), 4)
                o.append(f"  v_mfma_f32_16x16x32_bf16 {d}, {vr(Fr(half,f),4)}, {vr(Pb(u&1,qb),4)}, {d}")
        return o

    def lm(par, first=False):
        return [f"  v_mfma_f32_16x16x32_bf16 {vr(Lb(par,qb),4)}, {vr(V_ONE,4)}, {vr(Pb(par,qb),4)}, {0 if first else vr(Lb(par^1,qb),4)}"
                for qb in range(2)]

    def softmax(par):
        pairs = [(kbl, qb, h) for kbl in range(2) for qb in range(2) for h in range(2)]
        s3 = [[], [], []]
        for k, (kbl, qb, h) in enumerate(pairs):
            s = Sb(par, kbl, qb) + 2 * h
            x = V_X + 2 * (k & 3)
            if pre:
                s3[0].append([])
                s3[1].append([f"  v_exp_f32 v{x}, v{s}", f"  v_exp_f32 v{x+1}, v{s+1}"])
            else:
                s3[0].append([f"  v_fma_f32 v{x}, v{s}, s{S_C}, -v{V_M+qb}", f"  v_fma_f32 v{x+1}, v{s+1}, s{S_C}, -v{V_M+qb}"])
                s3[1].append([f"  v_exp_f32 v{x}, v{x}", f"  v_exp_f32 v{x+1}, v{x+1}"])
            s3[2].append([f"  v_cvt_pk_bf16_f32 v{Pb(par,qb)+2*kbl+h}, v{x}, v{x+1}"])
        o = []
        for k in range(10):
            for j in range(3):
                if 0 <= k - j < 8:
                    o += s3[j][k - j]
        return o

    def softmax_plain(par):
        sm = softmax(par)
        return sm[:-1] + ["  s_nop 0", sm[-1], "  s_nop 1"]

    def chk(par):
        return [f"  v_add_f32 v{V_T0}, v{Lb(par,0)}, v{Lb(par,1)}", f"  v_cmp_nge_f32 vcc, s{S_THR}, v{V_T0}"]

    sites = []

    def br(par):
        k = len(sites)
        sites.append(par)
        return [f"  s_cbranch_vccnz L_fix{k}", f"L_ret{k}:"]

    def xmax(reg, tmp):
        return [f"  v_mov_b32 v{tmp}, v{reg}", "  s_nop 1", f"  v_permlane16_swap_b32 v{reg}, v{tmp}",
                f"  v_max_f32 v{reg}, v{reg}, v{tmp}",
                f"  v_mov_b32 v{tmp}, v{reg}", "  s_nop 1", f"  v_permlane32_swap_b32 v{reg}, v{tmp}",
                f"  v_max_f32 v{reg}, v{reg}, v{tmp}"]

    def maxof(dst, regs):
        o = [f"  v_max3_f32 v{dst}, v{regs[0]}, v{regs[1]}, v{regs[2]}"]
        k = 3
        while k + 1 < len(regs):
            o.append(f"  v_max3_f32 v{dst}, v{dst}, v{regs[k]}, v{regs[k+1]}")
            k += 2
        if k < len(regs):
            o.append(f"  v_max_f32 v{dst}, v{dst}, v{regs[k]}")
        return o

    def group(mf, reads, fill, rd=None):
        o = []
        rd = rd or RD
        per = -(-len(reads) // rd) if reads else 0
        for i, m in enumerate(mf):
            o.append(m)
            o += reads[i * per:(i + 1) * per]
            o += fill[i]
        return o

    def coarse(lines, pend):
        if WG >= 4:
            return auto_lgkm(lines, pend)
        out = []
        n = 4 // WG
        for l in lines:
            if l.strip().startswith("v_mfma"):
                a = int(l.split(",")[1].split("[")[1].split(":")[0])
                if V_FR <= a < V_FR + 32:
                    f = (a - V_FR) // 4
                    last = V_FR + 4 * ((f // n) * n + n - 1) + 3
                    out.append(f"  v_touch v{last}, v{last}")
            out.append(l)
        out, pend = auto_lgkm(out, pend)
        return [l for l in out if not l.strip().startswith("v_touch")], pend

    def ablate(B):
        if "d" in abl:
            B = [l for l in B if not l.strip().startswith("ds_")]
        if "v" in abl:
            B = [l for l in B if not l.strip().startswith(("v_exp", "v_fma", "v_cvt"))]
        return B

    DA, DB_ = [0, 1, 2, 3], [4, 5, 6, 7]

    def fills(par, nfront):
        n = nfront + max(LPOS - 1, 0)
        wts = [1.0] * n
        if bal and nfront == 24:
            per = [-(-4 // RD), -(-8 // RD), -(-8 // RD)]
            cnt = [4, 8, 8]
            for g in range(3):
                for i in range(8):
                    nr = max(0, min(per[g], cnt[g] - i * per[g]))
                    wts[8 * g + i] = max(0.2, 3.1 - nr)
            for i in range(24, n):
                wts[i] = 2.1
        f = spread(softmax(par)[NE:], wts)
        return f + [[] for _ in range(nfront + 10 - n)]

    def closing(n, nxt_reads, tailfill, extra=()):
        o = ["  s_waitcnt lgkmcnt(0)", "  s_barrier"] + list(extra)
        mf = pvm(1, n - 1, DB_)
        mf = mf[:LPOS] + lm(n & 1) + mf[LPOS:]
        fl = [list(x) for x in tailfill]
        c2 = chk(n & 1)
        if n < NU - 1:
            for i, e in enumerate(spread(softmax((n + 1) & 1)[:NE], [1] * (8 - LPOS - 1))):
                fl[LPOS + 1 + i] += e
        fl[8] = fl[8] + c2
        o += group(mf, nxt_reads, fl)
        return o + br(n & 1)

    def front(n):
        f = fills(n & 1, 24)
        o = group(qkm(0, n + 1, 0), kreads(1, n + 1, 1), f[0:8])
        o += group(qkm(1, n + 1, 1), vreads(0, n - 1, DA), f[8:16])
        o += group(pvm(0, n - 1, DA), vreads(1, n - 1, DB_), f[16:24])
        return o, f[24:34]

    P2 = kreads(0, 0, 0) + kreads(1, 0, 1) + qkm(0, 0, 0, True) + kreads(0, 1, 0) + qkm(1, 0, 1, True) + kreads(1, 1, 1) \
        + qkm(0, 1, 0, True) + qkm(1, 1, 1, True) + ["  s_nop 7"]
    for qb in range(2):
        P2 += maxof(V_M + qb, [Sb(par, kbl, qb) + r for par in range(2) for kbl in range(2) for r in range(4)])
    for qb in range(2):
        P2 += xmax(V_M + qb, V_T0)
    if pre:
        for qb in range(2):
            for par in range(2):
                for kbl in range(2):
                    for r in range(4):
                        s = Sb(par, kbl, qb) + r
                        P2.append(f"  v_sub_f32 v{s}, v{s}, v{V_M+qb}")
            for r in range(4):
                P2.append(f"  v_sub_f32 v{V_NM+4*qb+r}, 0, v{V_M+qb}")
    else:
        for qb in range(2):
            P2.append(f"  v_mul_f32 v{V_M+qb}, s{S_C}, v{V_M+qb}")
    P2 += softmax_plain(0) + lm(0, True) + softmax(1)[:NE]
    if fastp:
        assert not pre
        V = []
        for qb in range(2):
            V += maxof(V_M + qb, [Sb(0, kbl, qb) + r for kbl in range(2) for r in range(4)])
        a, b = xmax(V_M, V_T0), xmax(V_M + 1, V_T1)
        for x, y in zip(a, b):
            V += [x, y] if "s_nop" not in x else ["  s_nop 0"]
        V += [f"  v_mul_f32 v{V_M+qb}, s{S_C}, v{V_M+qb}" for qb in range(2)]
        V += softmax(0)
        fl = [[] for _ in range(4)] + spread(V, [1] * 12)
        fl[3] = ["  s_nop 3"]
        P2 = kreads(0, 0, 0) + kreads(1, 0, 1) + qkm(0, 0, 0, True) + kreads(0, 1, 0) + qkm(1, 0, 1, True) + kreads(1, 1, 1)
        P2 += group(qkm(0, 1, 0, True) + qkm(1, 1, 1, True), [], fl) + ["  s_nop 1"] + lm(0, True) + softmax(1)[:NE]
    nit = (NU - 2 + NSL - 1) // NSL
    P2 += [f"  s_mov_b32 s{S_CNT}, {nit}"] + (["  s_waitcnt vmcnt(0)"] if pf < 2 else PF[2:] if pf == 3 else []) + ["  s_barrier"] + kreads(0, 2, 0)
    P2, pend0 = auto_lgkm(P2)
    if diag in (3, 7):
        P2 += ["  s_mov_b32 s95, 0"]
    P2 += [f"  s_cmp_lg_u32 s{S_W}, 0", "  s_cbranch_scc1 L_mid"] + PA + ["  s_branch L_mid"]

    BODY = []
    nfirst = NU - 1 - NSL
    tf = front(nfirst - 1)[1]
    midx = None
    for n in range(nfirst, NU - 1):
        extra = []
        if (diag == 3 and n % 2 == 1) or diag == 7:
            extra = ["  s_memrealtime s[92:93]", "  s_memtime s[90:91]", "  s_add_u32 s95, s95, 1", "  s_min_u32 s95, s95, 31", "  s_add_u32 s94, s95, 32", "  s_waitcnt lgkmcnt(0)",
                     "  s_mov_b32 m0, s95", f"  v_writelane_b32 v{V_TR}, s92, m0", "  s_mov_b32 m0, s94", f"  v_writelane_b32 v{V_TR}, s90, m0"]
        if diag == 4 and n == nfirst:
            extra = [f"  s_cmp_lg_u32 s{S_CNT}, {nit - 16 // NSL}", "  s_cbranch_scc1 L_nost", "  s_memtime s[96:97]", "  s_memrealtime s[98:99]",
                     "  s_waitcnt lgkmcnt(0)", "  s_mov_b32 s94, 0", "L_nost:"]
        cl = closing(n - 1, kreads(0, n + 1, 0), tf, extra)
        fr, tf = front(n)
        if n == NU - 2:
            k = max(i for i, l in enumerate(fr) if "v_mfma" in l)
            fr = fr[:k] + [f"  s_sub_u32 s{S_CNT}, s{S_CNT}, 1", f"  s_cmp_lg_u32 s{S_CNT}, 0"] + fr[k:] + ["  s_cbranch_scc1 L_loop"]
        cl, pendc = coarse(ablate(cl), [])
        assert "d" in abl or pendc == pend0
        fr, pendf = coarse(ablate(fr), pendc)
        if n % NSL == 1 % NSL:
            midx = len(BODY)
        BODY.append((cl, fr))

    def fix(par):
        o = ["  s_nop 7"]
        for qb in range(2):
            o += maxof(V_T0 + qb, [Sb(par, kbl, qb) + r for kbl in range(2) for r in range(4)])
        for qb in range(2):
            o += xmax(V_T0 + qb, V_T2)
        for qb in range(2):
            t = V_T0 + qb
            if pre:
                o += [f"  v_max_f32 v{t}, 0, v{t}", f"  v_add_f32 v{V_M+qb}, v{V_M+qb}, v{t}"]
                for p2 in range(2):
                    for kbl in range(2):
                        for r in range(4):
                            s = Sb(p2, kbl, qb) + r
                            o.append(f"  v_sub_f32 v{s}, v{s}, v{t}")
                for r in range(4):
                    o.append(f"  v_sub_f32 v{V_NM+4*qb+r}, 0, v{V_M+qb}")
                o += [f"  v_exp_f32 v{t}, -v{t}"]
            else:
                o += [f"  v_mul_f32 v{t}, s{S_C}, v{t}", f"  v_max_f32 v{t}, v{t}, v{V_M+qb}",
                      f"  v_sub_f32 v{V_T2}, v{V_M+qb}, v{t}", f"  v_mov_b32 v{V_M+qb}, v{t}", f"  v_exp_f32 v{t}, v{V_T2}"]
        o.append("  s_nop 0")
        for qb in range(2):
            o.append(f"  v_mul_f32 v{Lb(par^1,qb)}, v{V_T0+qb}, v{Lb(par^1,qb)}")
            for db in range(8):
                for r in range(4):
                    o.append(f"  v_mul_f32 v{Ob(db,qb)+r}, v{V_T0+qb}, v{Ob(db,qb)+r}")
        return o + softmax_plain(par) + lm(par) + softmax(par ^ 1)[:NE] + ["  s_nop 7"]
    FIX = [fix(0), fix(1)]

    T1 = []
    if diag == 4:
        T1 += ["  s_waitcnt lgkmcnt(0)", "  s_memtime s[90:91]", "  s_memrealtime s[92:93]", "  s_waitcnt lgkmcnt(0)", "  s_sub_u32 s96, s90, s96", "  s_sub_u32 s98, s92, s98"]
    X = []
    if l2:
        X += [f"  v_mov_b32 v{V_T2}, {LDS_MODE}", f"  ds_read_b32 v{V_T3}, v{V_T2}", "  s_waitcnt lgkmcnt(0)",
              f"  v_readfirstlane_b32 s{S_MODE}, v{V_T3}"]
    T1 += X
    T1 += closing(NU - 2, vreads(0, NU - 2, DA), tf)
    f = fills(1, 8)
    T1 += group(pvm(0, NU - 2, DA), vreads(1, NU - 2, DB_), f[0:8])
    T1, pend = auto_lgkm(T1, pendf)
    c2 = closing(NU - 1, [], f[8:18])[2:]
    k = next(i for i, l in enumerate(c2) if l.strip().startswith("v_add_f32"))
    c2 = c2[:k] + ["  s_nop 3"] + c2[k:]
    c2, pend = auto_lgkm(c2, pend)
    assert not pend
    T1 += c2
    ML = V_X
    T1 += [
        f"  v_mov_b32 v{ML}, v{V_M}", f"  v_mov_b32 v{ML+1}, v{Lb(1,0)}",
        f"  v_mov_b32 v{ML+2}, v{V_M+1}", f"  v_mov_b32 v{ML+3}, v{Lb(1,1)}",
    ]

    def publish(spol):
        def ostore(j):
            o = []
            if bf16p:
                b = V_S + 8 * (j - 1)
                for i in range(8):
                    o.append(f"  v_cvt_pk_bf16_f32 v{b+i}, v{V_O+16*j+2*i}, v{V_O+16*j+2*i+1}")
                    if i & 3 == 3:
                        o.append(f"  buffer_store_dwordx4 {vr(b+(i&4),4)}, v{V_LANE16}, {srd(S_WS)}, s{S_OD+j-1} offen offset:{(i>>2)*1024} {spol}")
            else:
                for i in range(4):
                    o.append(f"  buffer_store_dwordx4 {vr(V_O+16*j+4*i,4)}, v{V_LANE16}, {srd(S_WS)}, s{S_OD+j-1} offen offset:{i*1024} {spol}")
            return o
        nstamp[0] = 2
        o = ["  s_mov_b64 exec, 0xffff", f"  buffer_store_dwordx4 {vr(ML,4)}, v{V_LANE16}, {srd(S_WS)}, s{S_ML} offen {spol}", "  s_mov_b64 exec, -1"]
        stamp(o)
        o.append("  s_barrier")
        stamp(o)
        r0 = vreads(0, NU - 1, [2, 3, 4, 5])
        r1 = vreads(1, NU - 1, [6, 7, 0, 1])
        o += r0 + r1[:6]
        mf = pvm(0, NU - 1, [2, 3, 4, 5]) + pvm(1, NU - 1, [6, 7, 0, 1])
        o += mf[:2] + r1[6:] + mf[2:12] + ostore(1)[:5] + mf[12:14] + ostore(1)[5:] + mf[14:16] + ostore(2) + ostore(3)
        o, pend = auto_lgkm(o)
        assert not pend
        return o + [f"  v_mov_b32 v{V_T1}, 1", "  s_mov_b64 exec, 1", "  s_waitcnt vmcnt(0)",
                    f"  buffer_store_dword v{V_T1}, off, {srd(S_WS)}, s{S_FO} {spol}"]
    if l2:
        T1 += [f"  s_cmp_eq_u32 s{S_MODE}, 4", "  s_cbranch_scc0 L_far"]
        FAR = publish("sc1") + ["  s_branch L_farret"]
        T2 = publish(npol) + ["L_farret:"]
    else:
        T2 = publish("sc1")
    T2 += ["  s_mov_b64 exec, 15"]
    stamp(T2)
    TP = [
        f"  buffer_load_dword v{V_T1}, v{V_FADDR}, {srd(S_WS)}, s{S_F} offen {ppol}",
        "  s_waitcnt vmcnt(0)",
        f"  v_cmp_ne_u32 vcc, 1, v{V_T1}",
        "  s_cbranch_vccz L_got",
    ] + ([f"  s_sleep {slp}"] if slp else []) + ["  s_branch L_poll"]
    T3 = ["  s_mov_b64 exec, -1"]
    if l2:
        T3 += [f"  s_cmp_eq_u32 s{S_MODE}, 4", "  s_cbranch_scc1 L_near", "  buffer_inv sc1", "  s_waitcnt vmcnt(0)", "L_near:"]
    stamp(T3)
    VML = V_FR
    VIN = V_S
    for j in range(1, 4):
        T3.append(f"  buffer_load_dwordx4 {vr(VML+4*(j-1),4)}, v{V_MLA}, {srd(S_WS)}, s{S_ML+j} offen {lpol}")
    nld = 2 if bf16p else 4
    for j in range(1, 4):
        if j > 1 and not bf16p:
            T3.append(f"  s_add_u32 s{S_OI}, s{S_OI}, {R}")
        if j == 3 and bf16p:
            T3.append(f"  s_add_u32 s{S_OI}, s{S_OI}, {2*R}")
        for i in range(nld):
            off = i * 1024 + (R if (bf16p and j == 2) else 0)
            T3.append(f"  buffer_load_dwordx4 {vr(VIN+4*nld*(j-1)+4*i,4)}, v{V_LANE16}, {srd(S_WS)}, s{S_OI} offen offset:{off} {lpol}")
    G = V_FR + 16
    T3.append(f"  s_waitcnt vmcnt({3*nld})")
    ml = lambda j, qb: (ML if j == 0 else VML + 4 * (j - 1)) + 2 * qb
    for qb in range(2):
        T3 += [f"  v_max3_f32 v{V_T0+qb}, v{ml(0,qb)}, v{ml(1,qb)}, v{ml(2,qb)}"]
    for qb in range(2):
        T3 += [f"  v_max_f32 v{V_T0+qb}, v{V_T0+qb}, v{ml(3,qb)}"]
    for j in range(4):
        for qb in range(2):
            T3.append(f"  v_sub_f32 v{G+4*qb+j}, v{ml(j,qb)}, v{V_T0+qb}")
    for j in range(4):
        for qb in range(2):
            T3.append(f"  v_exp_f32 v{G+4*qb+j}, v{G+4*qb+j}")
    for j in range(4):
        for qb in range(2):
            op = "v_fmac_f32" if j else "v_mul_f32"
            T3.append(f"  {op} v{V_T0+qb}, v{G+4*qb+j}, v{ml(j,qb)+1}")
    T3 += [f"  v_rcp_f32 v{V_T0}, v{V_T0}", f"  v_rcp_f32 v{V_T1}, v{V_T1}", "  s_nop 0"]
    for j in range(4):
        for qb in range(2):
            T3.append(f"  v_mul_f32 v{G+4*qb+j}, v{G+4*qb+j}, v{V_T0+qb}")
    qbof = lambda i: (i >> 2) & 1
    for i in range(16):
        T3.append(f"  v_mul_f32 v{V_O+i}, v{G+4*qbof(i)}, v{V_O+i}")
    for j in range(1, 4):
        T3.append(f"  s_waitcnt vmcnt({(3-j)*nld})")
        if bf16p:
            U = V_O + 16
            for i in range(8):
                src = VIN + 8 * (j - 1) + i
                T3.append(f"  v_lshlrev_b32 v{U+2*i}, 16, v{src}")
                T3.append(f"  v_and_b32 v{U+2*i+1}, 0xffff0000, v{src}")
            for i in range(16):
                T3.append(f"  v_fmac_f32 v{V_O+i}, v{G+4*qbof(i)+j}, v{U+i}")
        else:
            for i in range(16):
                T3.append(f"  v_fmac_f32 v{V_O+i}, v{G+4*qbof(i)+j}, v{VIN+16*(j-1)+i}")
    stamp(T3)
    OV = V_O + 32
    for qb in range(2):
        for e in range(2):
            for h in range(2):
                T3.append(f"  v_cvt_pk_bf16_f32 v{OV+4*qb+2*e+h}, v{Ob(e,qb)+2*h}, v{Ob(e,qb)+2*h+1}")
    T3 += [
        f"  v_permlane16_swap_b32 v{OV}, v{OV+2}",
        f"  v_permlane16_swap_b32 v{OV+1}, v{OV+3}",
        f"  buffer_store_dwordx4 {vr(OV,4)}, v{V_OUTA}, {srd(S_OUT)}, 0 offen {opol}",
        f"  v_permlane16_swap_b32 v{OV+4}, v{OV+6}",
        f"  v_permlane16_swap_b32 v{OV+5}, v{OV+7}",
        f"  buffer_store_dwordx4 {vr(OV+4,4)}, v{V_OUTA}, {srd(S_OUT)}, s{S_T3} offen {opol}",
    ]
    if diag:
        T3.append("  s_waitcnt vmcnt(0)")
        stamp(T3)
        T3 += [f"  s_mov_b32 s{S_WS}, s14", f"  s_mov_b32 s{S_WS+1}, s15", f"  s_mov_b32 s{S_WS+2}, {32<<20}"]
        T3.append("  s_getreg_b32 s4, hwreg(HW_REG_XCC_ID)")
        for k in range(nstamp[0]):
            T3.append(f"  v_mov_b32 v{V_S+k}, s{S_ST+2*k}")
        T3.append(f"  v_mov_b32 v{V_S+15}, s4")
        T3.append(f"  v_mov_b32 v{V_S+11}, 31")
        if diag in (3, 7):
            T3 += [f"  s_lshl_b32 s{S_T0}, s2, 2", f"  s_add_u32 s{S_T0}, s{S_T0}, s{S_W}", f"  s_lshl_b32 s{S_T0}, s{S_T0}, 8",
                   f"  s_add_u32 s{S_T0}, s{S_T0}, {OFF_T + (1 << 20)}", f"  v_lshrrev_b32 v{V_T0}, 2, v{V_LANE16}",
                   f"  buffer_store_dword v{V_TR}, v{V_T0}, {srd(S_WS)}, s{S_T0} offen"]
        if diag == 4:
            T3 += [f"  v_mov_b32 v{V_S+12}, s94", f"  v_mov_b32 v{V_S+13}, s96", f"  v_mov_b32 v{V_S+14}, s98"]
        T3 += [
            f"  s_lshl_b32 s{S_T0}, s2, 2",
            f"  s_add_u32 s{S_T0}, s{S_T0}, s{S_W}",
            f"  s_lshl_b32 s{S_T0}, s{S_T0}, 6",
            f"  s_add_u32 s{S_T0}, s{S_T0}, {OFF_T}",
            "  s_mov_b64 exec, 1",
        ]
        for i in range(4):
            T3.append(f"  buffer_store_dwordx4 {vr(V_S+4*i,4)}, off, {srd(S_WS)}, s{S_T0} offset:{16*i}")
    T3.append("  s_endpgm")

    if "S" in abl:
        T1 = [l for l in T1 if not l.strip().startswith("buffer_store")]
        T2 = [l for l in T2 if not l.strip().startswith("buffer_store_dwordx4")]
    if "F" in abl:
        T2 = [l for l in T2 if not l.strip().startswith("buffer_store_dword ")]
        TP = []
    if "R" in abl:
        T3 = [l for l in T3 if not l.strip().startswith("buffer_load")]

    def inline_fix(lines):
        o = []
        for l in lines:
            o.append(l)
            if l.strip().startswith("s_cbranch_vccnz L_fix"):
                o += FIX[sites[int(l.strip().split("L_fix")[1])]]
        return o
    flat = [l for cl, fr in BODY for l in cl + fr]
    first = BODY[midx][1] + [l for cl, fr in BODY[midx + 1:] for l in cl + fr]
    main = E + P + P2 + first + flat + T1 + T2 + TP + T3
    nbar = sum(l == "  s_barrier" for l in P + P2 + first + flat * (nit - 1) + T1 + T2)
    assert nbar == NU + 1, nbar
    traces["cons_a"] = main
    traces["cons_b"] = inline_fix(main)
    errs = []
    for n, t in traces.items():
        errs += check_hazards(t, n)
    if errs and not abl.strip("L"):
        raise RuntimeError("hazards:\n" + "\n".join(errs))

    out = [HEADER.rstrip(),
           "; 256 workgroups = 64 (batch, kv head) pairs x 4 key splits; wave 0 streams K/V into an LDS ring,",
           "; waves 1-4 each own one query head (32 rows); partial results are exchanged through d_ws.",
           f"; @launch grid=(256,1,1) block=(320,1,1) lds={lds}",
           '.amdgcn_target "amdgcn-amd-amdhsa--gfx950"', ".text", f".globl {NAME}", ".p2align 8",
           f".type {NAME},@function", f"{NAME}:"]
    out += E + LOADER
    out += [".p2align 6", "L_cons:"] + P + P2
    out += [".p2align 6", "L_loop:"]
    for i, (cl, fr) in enumerate(BODY):
        out += cl + (["L_mid:"] if i == midx else []) + fr
    out += T1 + T2 + ["L_poll:"] + TP + ["L_got:"] + T3
    if l2:
        out += ["L_far:"] + FAR
    for k, par in enumerate(sites):
        out += [f"L_fix{k}:", f"  s_call_b64 s[{S_RET}:{S_RET+1}], L_fixfn{par}", f"  s_branch L_ret{k}"]
    for par in range(2):
        out += [f"L_fixfn{par}:"] + FIX[par] + [f"  s_setpc_b64 s[{S_RET}:{S_RET+1}]"]
    out += ["L_end:", "  s_endpgm"]
    out += ['.section .rodata,"a"', ".p2align 6", f".amdhsa_kernel {NAME}",
            f"  .amdhsa_next_free_vgpr {NVGPR}", "  .amdhsa_next_free_sgpr 102",
            f"  .amdhsa_accum_offset {NVGPR}", "  .amdhsa_group_segment_fixed_size 0",
            "  .amdhsa_kernarg_size 48", "  .amdhsa_user_sgpr_count 2",
            "  .amdhsa_user_sgpr_kernarg_segment_ptr 1", "  .amdhsa_system_sgpr_workgroup_id_x 1",
            ".end_amdhsa_kernel"]
    return "\n".join(l.rstrip() for l in out if l is not None) + "\n"


if __name__ == "__main__":
    kw = eval("dict(%s)" % sys.argv[1]) if len(sys.argv) > 1 else {}
    sys.stdout.write(gen(**kw))
```

```python
import struct, sys, math
from asmlib import check_hazards, auto_lgkm

NAME = "standalone__gqa_softmax__sampling_kernel"

HEADER = """; Kernarg layout for this problem (48 bytes, ptrs only, base s[0:1]):
;   offset   0: d_in[0] q  shape=(8, 32, 32, 128) dtype=bfloat16 strides=(262144, 8192, 256, 2) contiguous=True
;   offset   8: d_in[1] k  shape=(8, 8, 8192, 128) dtype=bfloat16 strides=(16777216, 2097152, 256, 2) contiguous=True
;   offset  16: d_in[2] v  shape=(8, 8, 8192, 128) dtype=bfloat16 strides=(16777216, 2097152, 256, 2) contiguous=True
;   offset  24: d_out     shape=(8, 32, 32, 128) dtype=bfloat16 (2 bytes/elem)
"""


def f32(x):
    return "0x%08x" % struct.unpack("<I", struct.pack("<f", x))[0]


V_M = 2
V_T0, V_T1, V_T2, V_T3 = 4, 5, 6, 7
V_LANE16 = 8
V_FADDR = 9
V_OUTA = 10
V_TR = 11
V_KA = 12
V_VA = 16
V_X = 24
V_FR = 32
V_O = 64
V_S = 128
V_P = 160
V_L = 176
V_ONE = 192
V_NM = 196
V_JUNK = 204
V_MLA = 206
V_Q = 208
NVGPR = 240

S_K, S_V, S_Q, S_OUT, S_WS, S_DBG = 16, 20, 24, 28, 32, 36
S_BH, S_SP, S_W = 40, 41, 42
S_MODE = 43
S_C, S_THR = 44, 45
S_CNT = 46
S_T0, S_T1, S_T2, S_T3 = 50, 51, 52, 53
S_OD = 54
S_OI = 57
S_ML = 58
S_F = 62
S_FO = 63
S_DB = 64
S_RET = 66
S_ST = 70

OFF_T = 20 << 20
NU = 64


def vr(base, n):
    return f"v[{base}:{base+n-1}]"


def srd(b):
    return f"s[{b}:{b+3}]"


def cost(l):
    return 2 if l.split()[0].startswith("v_exp") else 1


def spread(fillers, weights):
    nslots = len(weights)
    tot = sum(cost(f) for f in fillers)
    wt = sum(weights)
    out = [[] for _ in range(nslots)]
    acc = k = cw = 0
    for s in range(nslots):
        cw += weights[s]
        tgt = tot * cw / wt
        while k < len(fillers) and acc + cost(fillers[k]) / 2.0 <= tgt + 1e-9:
            out[s].append(fillers[k])
            acc += cost(fillers[k])
            k += 1
    out[-1] += fillers[k:]
    return out


def sched(up, step=1, lo=20, hold=1, dec=1):
    l = [0]
    x = lo
    for d in up:
        x += d
        l.append(x)
    l += [x] * hold
    while x > lo + dec:
        x -= dec
        l += [x] * step
    return tuple(l)


def gen(W=21, gs=1, ramp=(40, 40, 30, 25), wend=(), lags=None, vfirst=0, lpol="sc1", ppol="sc1", slp=0, pol="nt", grp="xcd2", bf16p=1, THR=2.0 ** 24, diag=0,
        opol="", qpol="", prio=3, abl="", pre=0, LPOS=2, WG=2, RD=4, NSL=8, l2=1, warm=0, bal=1, lds=98304, NE=10, pf=4, il=1, xph=0, pfpos=0, npol="", cpf=3, chain=1, snake=0, touch=0, tord=1, hs=3, rpol="", clr=0, late=-1, qlds=1, fastp=1, pfs=(0, 10, 7, 4, 3, 1)):
    traces = {}
    if lags is None:
        lags = sched((10, 7, 6, 4, 2, 1))
    NE = min(NE, 4 if pre else 10)
    if pre:
        fastp = 0
    nstamp = [0]

    def stamp(dst):
        if diag:
            k = nstamp[0]
            nstamp[0] += 1
            dst.append(f"  s_memrealtime s[{S_ST+2*k}:{S_ST+2*k+1}]")
            dst.append("  s_waitcnt lgkmcnt(0)")

    R = 2048 if bf16p else 4096
    GB = 17 if bf16p else 18
    SLAB = 3 * R + 256
    OFF_F = 16 * SLAB
    VBASE = NSL * 8192
    QBASE = 2 * VBASE if NSL == 4 else VBASE + 32768
    LDS_MODE = 2 * VBASE + (32768 if qlds and NSL == 4 else 0)
    LDS_JUNK = LDS_MODE + 64
    lds = max(lds, LDS_MODE + 64 + 256)
    assert lds <= 163840
    c = math.log2(math.e) / math.sqrt(128.0)
    E = ["  s_cmp_ge_u32 s2, 256", "  s_cbranch_scc1 L_end"]
    if diag == 6:
        E += ["  s_memrealtime s[68:69]"]
    E += [
        "  s_load_dwordx4 s[4:7], s[0:1], 0",
        "  s_load_dwordx4 s[8:11], s[0:1], 16",
        "  s_load_dwordx4 s[12:15], s[0:1], 32",
        "  v_lshrrev_b32 v1, 6, v0",
        "  v_and_b32 v0, 63, v0",
        "  v_readfirstlane_b32 s3, v1",
    ]
    if grp == "xcd":
        E += [
            f"  s_and_b32 s{S_T0}, s2, 7",
            f"  s_bfe_u32 s{S_SP}, s2, {3 | (2 << 16)}",
            f"  s_lshr_b32 s{S_T1}, s2, 5",
            f"  s_lshl_b32 s{S_BH}, s{S_T0}, 3",
            f"  s_add_u32 s{S_BH}, s{S_BH}, s{S_T1}",
        ]
    elif grp == "xcd2":
        E += [
            f"  s_and_b32 s{S_T0}, s2, 7",
            f"  s_bfe_u32 s{S_SP}, s2, {3 | (2 << 16)}",
            f"  s_lshr_b32 s{S_T1}, s2, 5",
            f"  s_lshl_b32 s{S_BH}, s{S_T1}, 3",
            f"  s_add_u32 s{S_BH}, s{S_BH}, s{S_T0}",
        ]
    elif grp == "lo":
        E += [f"  s_lshr_b32 s{S_BH}, s2, 2", f"  s_and_b32 s{S_SP}, s2, 3"]
    if late >= 0:
        E += [f"  s_cmp_lg_u32 s{S_SP}, {late}", "  s_cbranch_scc1 L_nolate", "  s_mov_b32 s47, 20", "L_late:", "  s_sleep 100",
              "  s_sub_u32 s47, s47, 1", "  s_cmp_lg_u32 s47, 0", "  s_cbranch_scc1 L_late", "L_nolate:"]
    E += ["  s_cmp_lg_u32 s3, 0", "  s_cbranch_scc1 L_cons"]

    LD = []
    if cpf:
        LD += ["  s_getpc_b64 s[48:49]", "L_pc:", "  v_lshlrev_b32 v6, 7, v0", "  global_load_dword v8, v6, s[48:49]"]
        for i in range(cpf):
            LD += ["  v_add_u32 v6, 8192, v6", "  v_min_u32 v7, L_end - L_pc, v6", "  global_load_dword v8, v7, s[48:49]"]
    LD += [
        f"  s_setprio {prio}",
        f"  s_lshl_b32 s{S_T0}, s{S_BH}, 21",
        f"  s_lshl_b32 s{S_T1}, s{S_SP}, {10 if il else 19}",
        f"  s_add_u32 s{S_T0}, s{S_T0}, s{S_T1}",
        "  v_lshrrev_b32 v3, 4, v0",
        "  v_and_b32 v4, 15, v0",
        "  v_xor_b32 v5, v3, v4",
        "  v_lshlrev_b32 v5, 4, v5",
        "  v_lshl_add_u32 v10, v3, 8, v5",
        "  v_xor_b32 v11, 64, v10",
        "  v_xor_b32 v12, 0x80, v10",
        "  v_xor_b32 v13, 0xc0, v10",
        "  v_lshlrev_b32 v5, 1, v3",
        "  v_xor_b32 v5, v5, v4",
        "  v_lshlrev_b32 v5, 4, v5",
        "  v_lshl_add_u32 v14, v3, 8, v5",
        "  v_xor_b32 v15, 0x80, v14",
    ] + ([
        "  v_mov_b32 v25, v11", "  v_mov_b32 v26, v12", "  v_mov_b32 v27, v13",
        f"  s_lshl_b32 s{S_T3}, s{S_BH}, 15", f"  s_mov_b32 s{S_Q+2}, 32768", f"  s_mov_b32 s{S_Q+3}, 0x20000",
    ] if qlds else []) + ([
        "  v_add_u32 v11, 3072, v11", "  v_add_u32 v12, 6144, v12", "  v_add_u32 v13, 9216, v13",
        "  v_add_u32 v16, 6144, v14", "  v_add_u32 v17, 9216, v15", "  v_add_u32 v15, 3072, v15",
        f"  s_sub_u32 s{S_K+2}, 0x200000, s{S_T1}",
    ] if il else [f"  s_mov_b32 s{S_K+2}, 0x80000"]) + [
        f"  s_mov_b32 s{S_K+3}, 0x20000",
        f"  s_mov_b32 s{S_V+2}, s{S_K+2}",
        f"  s_mov_b32 s{S_V+3}, 0x20000",
        f"  s_lshl_b32 s56, s{S_BH}, 15",
        "  s_mov_b32 s54, 0",
        "  s_mov_b32 s55, 0",
        "  s_waitcnt lgkmcnt(0)",
    ]
    QD = []
    if qlds:
        QD += [f"  s_add_u32 s{S_Q}, s4, s{S_T3}", f"  s_addc_u32 s{S_Q+1}, s5, 0"]
        for g in range(8):
            QD += [f"  s_mov_b32 m0, {QBASE + g*4096}", f"  s_movk_i32 s{S_T2}, {g*4096}"]
            for j in range(4):
                QD.append(f"  buffer_load_dwordx4 v{10 if j == 0 else 24+j}, {srd(S_Q)}, s{S_T2} offen offset:{j*1024} {qpol} lds")
    KV = [
        f"  s_add_u32 s{S_K}, s6, s{S_T0}",
        f"  s_addc_u32 s{S_K+1}, s7, 0",
        f"  s_add_u32 s{S_V}, s8, s{S_T0}",
        f"  s_addc_u32 s{S_V+1}, s9, 0",
    ]
    if touch:
        LD += KV + [f"  s_mov_b32 m0, {LDS_JUNK}", "  s_mov_b64 exec, 1",
                    f"  buffer_load_dword v10, {srd(S_K)}, 0 offen lds", f"  buffer_load_dword v10, {srd(S_V)}, 0 offen lds", "  s_mov_b64 exec, -1"]
        KV = []
    if qlds == 1:
        LD += QD
    LD += KV
    lst = [0]

    def lstamp(dst):
        if diag == 6 and lst[0] < 13 and dst is LD:
            dst += [f"  s_memrealtime s[{70+2*lst[0]}:{71+2*lst[0]}]", "  s_waitcnt lgkmcnt(0)"]
            lst[0] += 1
    lstamp(LD)
    st = dict(pos=0, pend=[], load=True, nbar=0, ku=0, vu=0, nmark=0, npf=0, i16=0)

    def part(dst, which, w):
        go, sr = (54, S_K) if which == "K" else (55, S_V)
        u = st["ku" if which == "K" else "vu"]
        needb = max(u - NSL, 1) if which == "K" else u - NSL + 2
        if u < NSL:
            needb = 1 if (which == "V" and u >= 4 and qlds) else -1
        while st["nbar"] <= needb:
            dst.append(f"  s_waitcnt vmcnt({min(w - gs, st['pos'] - st['pend'][0][0])})")
            lstamp(dst)
            dst.append("  s_barrier")
            lstamp(dst)
            st["pend"].pop(0)
            st["nbar"] += 1
        for g in range(2):
            fld = (2 if il else 0) | ((VBASE.bit_length() - 1) << 16)
            if which == "K":
                dst.append(f"  s_bfe_u32 m0, s{go}, {fld}")
            else:
                dst.append(f"  s_bfe_u32 s{S_T2}, s{go}, {fld}")
                dst.append(f"  s_or_b32 m0, s{S_T2}, {VBASE}")
            first = True
            so = go
            if xph:
                dst.append(f"  s_xor_b32 s57, s{go}, s56")
                so = 57
                first = False
            for j in range(4):
                x = w - gs

                def win():
                    dst.append(f"  s_waitcnt vmcnt({x})")
                    while st["pend"] and st["pos"] - st["pend"][0][0] >= max(x, st["pend"][0][1]):
                        lstamp(dst)
                        dst.append("  s_barrier")
                        lstamp(dst)
                        st["pend"].pop(0)
                        st["nbar"] += 1
                if pf == 5:
                    k = st["nmark"]
                    n = pfs[k] if k < len(pfs) else 0
                    i16 = st["i16"]
                    for _ in range((i16 + 1) * n // 16 - i16 * n // 16):
                        q = st["npf"]
                        dst += ["  s_mov_b32 s59, m0", f"  s_mov_b32 m0, {LDS_JUNK}"]
                        if st["pos"] > x:
                            win()
                        else:
                            dst.append("  s_nop 0")
                        dst.append(f"  buffer_load_dword v24, {srd(S_WS)}, s58 offen lds")
                        dst += ["  s_mov_b32 m0, s59", "  s_add_u32 s58, s58, 1024"]
                        st["npf"] += 1
                        st["pos"] += 1
                        first = False
                    st["i16"] = (i16 + 1) % 16
                if j % gs == 0 and st["pos"] > x:
                    win()
                    first = False
                if first:
                    dst.append("  s_nop 0")
                    first = False
                assert u < NSL or st["nbar"] > needb, (which, u, st["nbar"])
                vo = 10 + j if which == "K" else 14 + (j if il else j & 1)
                if st["load"]:
                    dst.append(f"  buffer_load_dwordx4 v{vo}, {srd(sr)}, s{so} offen offset:{j*1024} {pol} lds")
                st["pos"] += 1
            dst.append(f"  s_add_u32 s{go}, s{go}, {16384 if il else 4096}")
        st["ku" if which == "K" else "vu"] += 1

    def mark():
        k = st["nmark"]
        st["nmark"] += 1
        st["pend"].append((st["pos"], lags[k] if k < len(lags) else 0))

    def body(dst, w):
        part(dst, "K", w)
        part(dst, "V", w)
        mark()

    def rel():
        return [(st["pos"] - p, l) for p, l in st["pend"]]
    assert W % gs == 0 and 4 <= W <= 64
    rw = lambda i: ramp[i] if i < len(ramp) else W
    WSS = [f"  s_lshl_b32 s{S_T2}, s{S_BH}, {GB}", f"  s_add_u32 s{S_WS}, s14, s{S_T2}", f"  s_addc_u32 s{S_WS+1}, s15, 0",
           f"  s_mov_b32 s{S_WS+2}, {1 << GB}", f"  s_mov_b32 s{S_WS+3}, 0x20000"]
    if pf == 5:
        assert gs == 1 and sum(pfs) * 1024 == 4 * SLAB and not vfirst
        WSS += ["  v_and_b32 v24, 7, v0", "  v_lshlrev_b32 v24, 7, v24", f"  s_mul_i32 s58, s{S_SP}, {4*SLAB}"]
        if pfs[0]:
            LD += WSS
    if vfirst:
        part(LD, "K", rw(0)); part(LD, "V", rw(0)); part(LD, "K", rw(0)); mark()
        part(LD, "K", rw(1)); mark()
    else:
        part(LD, "K", rw(0)); part(LD, "K", rw(0))
        if qlds == 2:
            LD += QD
        if pf == 5 and not pfs[0]:
            LD += WSS
        mark()
        part(LD, "K", rw(1)); part(LD, "V", rw(1)); mark()
    nb = 2
    while True:
        body(LD, rw(nb))
        nb += 1
        if nb >= len(ramp) and nb >= len(lags) and (pf != 5 or nb >= len(pfs)) and nb >= (NSL + 3 if "L" in abl else 9 if diag == 6 else 4):
            save = dict(st, pend=list(st["pend"]))
            r1 = rel()
            body([], W)
            r2 = rel()
            st.update(save)
            if r1 == r2:
                break
    if "L" in abl:
        st["load"] = False
    LD += [
        f"  s_mov_b32 s{S_DBG}, s12", f"  s_mov_b32 s{S_DBG+1}, s13", f"  s_mov_b32 s{S_DBG+2}, 256", f"  s_mov_b32 s{S_DBG+3}, 0x20000",
        f"  s_lshl_b32 s{S_DB}, s{S_BH}, 2",
        f"  v_mov_b32 v20, {LDS_MODE}",
    ]
    nfull_end = max(len(wend) - 2, 0)
    nloop = NU - 1 - nb - nfull_end
    n1 = nloop // 2 if nb < 24 else nloop - 1
    assert n1 - 4 >= 1 and n1 < nloop
    LD += [f"  s_mov_b32 s{S_CNT}, {nloop}"]
    D1 = []
    body(D1, W)
    for _ in range(nloop - 1):
        body([], W)
    D1 += [f"  s_sub_u32 s{S_CNT}, s{S_CNT}, 1",
           f"  s_cmp_eq_u32 s{S_CNT}, {n1}", "  s_cbranch_scc1 L_hs0",
           f"  s_cmp_eq_u32 s{S_CNT}, {n1-4}", "  s_cbranch_scc1 L_hs1",
           f"  s_cmp_lg_u32 s{S_CNT}, 0", "  s_cbranch_scc1 L_ldloop"]
    H0 = [f"  buffer_load_dword v22, off, {srd(S_DBG)}, s{S_DB} sc1", "  s_branch L_ldloop"]
    H1 = ["  v_and_b32 v21, 15, v22", "  v_cmp_ne_u32 vcc, 4, v21", "  s_cbranch_vccz L_hs2",
          f"  buffer_load_dword v22, off, {srd(S_DBG)}, s{S_DB} sc1", "  s_waitcnt vmcnt(0)", "  s_branch L_hs1"]
    H2 = []
    HX = []
    if hs:
        H0 = ["  v_mov_b32 v22, 0"] + H0
        chk4 = lambda m, lab: [f"  v_and_b32 v21, {m}, v22", f"  v_cmp_ne_u32 vcc, {m}, v21", f"  s_cbranch_vccz {lab}"]
        hello = lambda bits: [f"  s_getreg_b32 s{S_T2}, hwreg(HW_REG_XCC_ID, 0, 3)", f"  s_or_b32 s{S_T2}, s{S_T2}, {bits}", f"  v_mov_b32 v21, s{S_T2}",
                              f"  s_add_u32 s{S_T2}, s{S_DB}, s{S_SP}", f"  buffer_store_byte v21, off, {srd(S_DBG)}, s{S_T2} sc1"]
        memrd = ["  v_mov_b32 v22, 0", f"  buffer_atomic_or v22, off, {srd(S_DBG)}, s{S_DB} sc0 sc1", "  s_waitcnt vmcnt(0)"]
        H1 = chk4("0x80808080", "L_hs2") + ["  s_mov_b64 exec, 1", "  s_waitcnt vmcnt(0)"] + hello("0x80") + ["L_hs1b:",
              f"  buffer_load_dword v22, off, {srd(S_DBG)}, s{S_DB} sc1", "  s_waitcnt vmcnt(0)"] + chk4("0x80808080", "L_hs2") \
            + memrd + chk4("0x80808080", "L_hs2") + ["  s_branch L_hs1b"]
        H2 += ["  s_mov_b64 exec, 1", "  v_alignbit_b32 v21, v22, v22, 8", "  v_xor_b32 v21, v21, v22", "  v_and_b32 v21, 0x07070707, v21",
               "  v_cmp_ne_u32 vcc, 0, v21", "  v_mov_b32 v21, 4", "  s_cbranch_vccnz L_hsfar", "L_hs3:",
               "  ds_write_b32 v20, v21", "  s_mov_b64 exec, -1", "  s_waitcnt lgkmcnt(0)"]
        HX = ["L_hsfar:", "  s_mov_b64 exec, 15", "  v_lshlrev_b32 v21, 7, v0", "  v_mov_b32 v22, 0",
              f"  s_lshl_b32 s{S_T2}, s{S_SP}, 2", f"  s_add_u32 s{S_T2}, s{S_T2}, {OFF_F}",
              f"  buffer_store_dword v22, v21, {srd(S_WS)}, s{S_T2} offen sc1", "  s_mov_b64 exec, 1", "  s_waitcnt vmcnt(0)"] \
            + hello("0xc0") + ["L_hsfar2:"] + memrd + chk4("0x40404040", "L_hsfar3") + ["  s_branch L_hsfar2",
              "L_hsfar3:", "  v_mov_b32 v21, 0", "  s_branch L_hs3"]
    if "H" in abl:
        H1 = ["  s_branch L_hs2"]
        H2 = ["  v_mov_b32 v21, 4", "  ds_write_b32 v20, v21", "  s_waitcnt lgkmcnt(0)"]
    elif l2 and not hs:
        H2 += [f"  s_getreg_b32 s{S_T2}, hwreg(HW_REG_XCC_ID, 0, 3)", f"  s_mul_i32 s{S_T2}, s{S_T2}, 3", f"  s_add_u32 s{S_T2}, s{S_T2}, 4",
               f"  v_bfe_u32 v21, v22, s{S_T2}, 3", "  ds_write_b32 v20, v21", "  s_waitcnt lgkmcnt(0)"]
    if pf:
        if pf != 5:
            LD += WSS
        H2 += ["  v_and_b32 v21, 3, v0", "  v_lshlrev_b32 v21, 7, v21", f"  s_mov_b32 s{S_T2}, {OFF_F}",
               f"  buffer_load_dword v23, v21, {srd(S_WS)}, s{S_T2} offen"]
    H2 += ["  s_branch L_ldloop"]
    D6 = []
    LPF = []
    if pf == 4:
        LPF = [f"  s_mov_b32 m0, {LDS_JUNK}", "  s_nop 0"] + [f"  buffer_load_dword v24, {srd(S_WS)}, s{58+i} offen lds" for i in range(4)]
        LD += [f"  v_min_u32 v24, {SLAB // 128 - 1}, v0", "  v_lshlrev_b32 v24, 7, v24",
               f"  s_mul_i32 s58, s{S_SP}, {4*SLAB}"] + [f"  s_add_u32 s{59+i}, s{58+i}, {SLAB}" for i in range(3)]
    if pfpos >= 2 + nfull_end:
        D6 += LPF
    for i, w_ in enumerate(wend[:nfull_end]):
        body(D6, w_)
        if pfpos == 2 + nfull_end - 1 - i:
            D6 += LPF
    we = list(wend[-2:]) if len(wend) >= 2 else [W, W]
    part(D6, "V", we[0]); mark()
    if pfpos == 1:
        D6 += LPF
    part(D6, "V", we[1]); mark()
    if pfpos == 0:
        D6 += LPF
    assert st["ku"] == NU and st["vu"] == NU, st
    for r, _ in rel():
        D6 += [f"  s_waitcnt vmcnt({r + (4 if LPF and r >= 8 * pfpos and pfpos <= 2 else 0)})", "  s_barrier"]
        st["nbar"] += 1
    assert st["nbar"] == NU + 1, st["nbar"]
    if diag == 6:
        D6 = D6[:-1] + ["  s_memrealtime s[96:97]", "  s_barrier", "  s_waitcnt lgkmcnt(0)"]
        D6 += [f"  s_mov_b32 s{S_WS}, s14", f"  s_mov_b32 s{S_WS+1}, s15", f"  s_mov_b32 s{S_WS+2}, {32<<20}", f"  s_mov_b32 s{S_WS+3}, 0x20000"]
        for k in range(15):
            D6.append(f"  v_mov_b32 v{32+k}, s{68+2*k}")
        D6 += [f"  s_lshl_b32 s{S_T0}, s2, 6", f"  s_add_u32 s{S_T0}, s{S_T0}, {OFF_T + (2 << 20)}", "  s_mov_b64 exec, 1"]
        for i in range(4):
            D6.append(f"  buffer_store_dwordx4 {vr(32+4*i,4)}, off, {srd(S_WS)}, s{S_T0} offset:{16*i}")
    D6.append("  s_endpgm")
    traces["loader"] = E + LD + D1 + H0 + D1 + H1 + H1 + H2 + HX + H2 + D1 + D6
    LOADER = LD + ["L_ldloop:"] + D1 + D6 + ["L_hs0:"] + H0 + ["L_hs1:"] + H1 + ["L_hs2:"] + H2 + HX

    P = []
    stamp(P)
    Qf = lambda qb, ks: V_Q + 4 * (qb * 4 + ks)
    P += [
        f"  s_sub_u32 s{S_W}, s3, 1",
        f"  s_lshl_b32 s{S_DB}, s{S_BH}, 2",
        f"  s_add_u32 s{S_T1}, s{S_DB}, s{S_W}",
        f"  s_lshl_b32 s{S_T2}, s{S_T1}, 13",
        f"  v_and_b32 v{V_T0}, 15, v0",
        f"  v_lshrrev_b32 v{V_T1}, 4, v0",
        f"  v_lshlrev_b32 v{V_T2}, 4, v{V_T1}",
        f"  v_lshl_add_u32 v{V_T3}, v{V_T0}, 8, v{V_T2}",
        f"  s_mov_b32 s{S_Q+2}, 8192",
        f"  s_mov_b32 s{S_Q+3}, 0x20000",
        f"  s_movk_i32 s{S_T3}, 0x1000",
        f"  s_lshl_b32 s{S_T0}, s{S_BH}, {GB}",
        "  s_waitcnt lgkmcnt(0)",
        f"  s_add_u32 s{S_Q}, s4, s{S_T2}",
        f"  s_addc_u32 s{S_Q+1}, s5, 0",
    ]
    for qb in range(2):
        for ks in range(4):
            so = f"s{S_T3}" if qb else "0"
            if not qlds:
                P.append(f"  buffer_load_dwordx4 {vr(Qf(qb,ks),4)}, v{V_T3}, {srd(S_Q)}, {so} offen offset:{ks*64} {qpol}")
    P += [
        f"  s_add_u32 s{S_WS}, s14, s{S_T0}",
        f"  s_addc_u32 s{S_WS+1}, s15, 0",
        f"  s_mov_b32 s{S_WS+2}, {1 << GB}",
        f"  s_mov_b32 s{S_WS+3}, 0x20000",
        f"  s_add_u32 s{S_OUT}, s10, s{S_T2}",
        f"  s_addc_u32 s{S_OUT+1}, s11, 0",
        f"  s_mov_b32 s{S_OUT+2}, 8192",
        f"  s_mov_b32 s{S_OUT+3}, 0x20000",
        f"  s_lshl_b32 s{S_F}, s{S_W}, 7",
        f"  s_add_u32 s{S_F}, s{S_F}, {OFF_F}",
        f"  s_lshl_b32 s{S_FO}, s{S_SP}, 2",
        f"  s_add_u32 s{S_FO}, s{S_FO}, s{S_F}",
        f"  v_mov_b32 v{V_T2}, 0",
        "  s_mov_b64 exec, 1",
        f"  buffer_store_dword v{V_T2}, off, {srd(S_WS)}, s{S_FO} {rpol}" if "Z" not in abl else "  s_nop 0",
    ]
    if warm:
        P.append(f"  buffer_load_dword v{V_JUNK}, off, {srd(S_OUT)}, 0")
    P += ["  s_mov_b64 exec, -1",
          f"  s_lshl_b32 s{S_OI}, s{S_SP}, 2", f"  s_add_u32 s{S_OI}, s{S_OI}, s{S_W}", f"  s_mul_i32 s{S_OI}, s{S_OI}, {SLAB}"]
    if clr:
        P += [f"  v_lshlrev_b32 v{V_T2}, 4, v0", f"  s_add_u32 s{S_T1}, s{S_OI}, 4096"] + [f"  v_mov_b32 v{V_X+i}, -1" for i in range(4)]
        for i in range(6):
            P.append(f"  buffer_store_dwordx4 {vr(V_X,4)}, v{V_T2}, {srd(S_WS)}, s{S_OI if i < 4 else S_T1} offen offset:{(i&3)*1024}")
        P += ["  s_mov_b64 exec, 0xffff", f"  buffer_store_dwordx4 {vr(V_X,4)}, v{V_T2}, {srd(S_WS)}, s{S_T1} offen offset:2048", "  s_mov_b64 exec, -1", "  s_nop 0"]
    PF = [f"  v_min_u32 v{V_T2}, {SLAB // 128 - 1}, v0", f"  v_lshlrev_b32 v{V_T2}, 7, v{V_T2}",
          f"  buffer_load_dword v{V_JUNK+1}, v{V_T2}, {srd(S_WS)}, s{S_OI} offen"]
    assert bf16p or not pf
    if pf == 1:
        P += PF
    P += [
        f"  v_xor_b32 v{V_T2}, v{V_T0}, v{V_T1}",
        f"  v_lshlrev_b32 v{V_T2}, 4, v{V_T2}",
        f"  v_lshl_add_u32 v{V_KA}, v{V_T0}, 8, v{V_T2}",
    ]
    for ks in range(1, 4):
        P.append(f"  v_xor_b32 v{V_KA+ks}, {ks*64}, v{V_KA}")
    P += [
        f"  v_lshrrev_b32 v{V_T2}, 2, v0",
        f"  v_lshlrev_b32 v{V_T3}, 8, v{V_T2}",
        f"  v_and_b32 v{V_T2}, 7, v{V_T2}",
        f"  s_lshl_b32 s{S_T2}, s{S_SP}, 1",
        f"  v_xor_b32 v{V_T2}, s{S_T2}, v{V_T2}",
        f"  v_lshl_add_u32 v{V_T3}, v{V_T2}, 5, v{V_T3}",
        f"  v_and_b32 v{V_T2}, 3, v0",
        f"  v_lshl_add_u32 v{V_T3}, v{V_T2}, 3, v{V_T3}",
        f"  v_lshlrev_b32 v{V_FADDR}, 2, v{V_T2}",
        f"  v_add_u32 v{V_VA}, {VBASE}, v{V_T3}",
    ]
    for db in range(1, 8):
        P.append(f"  v_xor_b32 v{V_VA+db}, {db*32}, v{V_VA}")
    P += [
        f"  v_cmp_eq_u32 vcc, 0, v{V_T2}",
        f"  v_mov_b32 v{V_T3}, 0x3f803f80",
        f"  v_lshlrev_b32 v{V_LANE16}, 4, v0",
        f"  v_cndmask_b32 v{V_ONE}, 0, v{V_T3}, vcc",
        f"  v_cndmask_b32 v{V_ONE+1}, 0, v{V_T3}, vcc",
        f"  v_cndmask_b32 v{V_ONE+2}, 0, v{V_T3}, vcc",
        f"  v_cndmask_b32 v{V_ONE+3}, 0, v{V_T3}, vcc",
        f"  s_mov_b32 s{S_C}, {f32(c)}",
        f"  s_mov_b32 s{S_THR}, {f32(THR)}",
    ]
    for i in range(32):
        P.append(f"  v_mov_b64 v[{V_O+2*i}:{V_O+2*i+1}], 0")
    X = []
    for j in range(1, 4):
        X += [f"  s_xor_b32 s{S_T1}, s{S_SP}, {j}", f"  s_lshl_b32 s{S_T1}, s{S_T1}, 2", f"  s_add_u32 s{S_T1}, s{S_T1}, s{S_W}",
              f"  s_mul_i32 s{S_T1}, s{S_T1}, {SLAB}",
              f"  s_add_u32 s{S_ML+j}, s{S_T1}, {3*R}", f"  s_add_u32 s{S_OD+j-1}, s{S_T1}, {(j-1)*R}"]
    X += [f"  s_add_u32 s{S_ML}, s{S_OI}, {3*R}", f"  v_and_b32 v{V_MLA}, 0xf0, v{V_LANE16}"]
    X += [
        f"  v_and_b32 v{V_T2}, 15, v0", f"  v_lshlrev_b32 v{V_OUTA}, 8, v{V_T2}",
        f"  v_bfe_u32 v{V_T2}, v0, 4, 1", f"  v_lshl_add_u32 v{V_OUTA}, v{V_T2}, 5, v{V_OUTA}",
        f"  v_lshrrev_b32 v{V_T2}, 5, v0", f"  v_lshl_add_u32 v{V_OUTA}, v{V_T2}, 4, v{V_OUTA}",
        f"  s_lshl_b32 s{S_T2}, s{S_SP}, 6", f"  v_add_u32 v{V_OUTA}, s{S_T2}, v{V_OUTA}",
    ]
    if qlds:
        X += [f"  s_lshl_b32 s{S_T2}, s{S_W}, 13", f"  s_add_u32 s{S_T2}, s{S_T2}, {QBASE}"]
        X += [f"  v_add_u32 v{V_X+ks}, s{S_T2}, v{V_KA+ks}" for ks in range(4)]
        P += X + (PF[:2] if pf in (2, 3) else []) + ["  s_waitcnt vmcnt(0)", "  s_barrier"] + (PF[2:] if pf == 2 else [])
        P += [f"  ds_read_b128 {vr(Qf(qb,ks),4)}, v{V_X+ks} offset:{qb*4096}" for qb in range(2) for ks in range(4)]
        P += ["  s_waitcnt lgkmcnt(0)"]
    elif pf >= 4:
        P += ["  s_barrier"] + X + ["  s_waitcnt vmcnt(0)"]
    elif pf >= 2:
        P += ["  s_barrier"] + X + PF[:2] + ["  s_waitcnt vmcnt(0)"] + (PF[2:] if pf == 2 else [])
    else:
        P += ["  s_barrier"] + X + [f"  s_waitcnt vmcnt({(1 if warm else 0) + (1 if pf else 0)})"]
    if pre:
        for i in range(32):
            q = V_Q + i
            P += [f"  v_lshlrev_b32 v{V_T0}, 16, v{q}", f"  v_and_b32 v{V_T1}, 0xffff0000, v{q}",
                  f"  v_mul_f32 v{V_T0}, s{S_C}, v{V_T0}", f"  v_mul_f32 v{V_T1}, s{S_C}, v{V_T1}",
                  f"  v_cvt_pk_bf16_f32 v{q}, v{V_T0}, v{V_T1}"]
    stamp(P)
    PA = [f"  s_mov_b32 s{S_DBG}, s12", f"  s_mov_b32 s{S_DBG+1}, s13", f"  s_mov_b32 s{S_DBG+2}, 256", f"  s_mov_b32 s{S_DBG+3}, 0x20000"]
    if hs:
        PA += [f"  s_getreg_b32 s{S_T2}, hwreg(HW_REG_XCC_ID, 0, 3)", f"  s_or_b32 s{S_T2}, s{S_T2}, 0x80", f"  v_mov_b32 v{V_T2}, s{S_T2}",
               f"  s_add_u32 s{S_T2}, s{S_DB}, s{S_SP}", "  s_mov_b64 exec, 1",
               f"  buffer_store_byte v{V_T2}, off, {srd(S_DBG)}, s{S_T2} {'sc1' if hs == 1 else ''}", "  s_mov_b64 exec, -1"]
    else:
        if l2:
            PA += [f"  s_getreg_b32 s{S_T2}, hwreg(HW_REG_XCC_ID, 0, 3)", f"  s_mul_i32 s{S_T2}, s{S_T2}, 3",
                   f"  s_lshl_b32 s{S_T2}, 16, s{S_T2}", f"  s_add_u32 s{S_T2}, s{S_T2}, 1", f"  v_mov_b32 v{V_T2}, s{S_T2}"]
        else:
            PA += [f"  v_mov_b32 v{V_T2}, 1"]
        PA += [
            "  s_mov_b64 exec, 1",
            f"  buffer_atomic_add v{V_T2}, off, {srd(S_DBG)}, s{S_DB} sc1",
            "  s_mov_b64 exec, -1",
        ]
    if "H" in abl:
        PA = []

    Sb = lambda par, kbl, qb: V_S + 16 * par + 4 * (kbl * 2 + qb)
    Pb = lambda par, qb: V_P + 8 * par + 4 * qb
    Lb = lambda par, qb: V_L + 8 * par + 4 * qb
    Ob = lambda db, qb: V_O + 4 * (db * 2 + qb)
    Fr = lambda half, f: V_FR + 16 * half + 4 * f

    def kreads(half, u, kbl):
        return [f"  ds_read_b128 {vr(Fr(half,ks),4)}, v{V_KA+ks} offset:{(u % NSL)*8192 + kbl*4096}" for ks in range(4)]

    def vreads(half, u, dbs):
        o = []
        for f, db in enumerate(dbs):
            for h in range(2):
                o.append(f"  ds_read_b64_tr_b16 {vr(Fr(half,f)+2*h,2)}, v{V_VA+db} offset:{(u % NSL)*8192 + h*4096}")
        return o

    def qkm(half, u, kbl, first=False):
        o = []
        for qb, ks in ([(a, b) for a in range(2) for b in range(4)] if chain else [(a, b) for b in range(4) for a in range(2)]):
            if True:
                d = vr(Sb(u & 1, kbl, qb), 4)
                c0 = vr(V_NM + 4 * qb, 4) if (pre and not first) else 0
                o.append(f"  v_mfma_f32_16x16x32_bf16 {d}, {vr(Fr(half,ks),4)}, {vr(Qf(qb,ks),4)}, {d if ks else c0}")
        return o

    def pvm(half, u, dbs):
        o = []
        for f, db in enumerate(dbs):
            for qb in ((0, 1) if (f & 1) == 0 or not snake else (1, 0)):
                d = vr(Ob(db, qb), 4)
                o.append(f"  v_mfma_f32_16x16x32_bf16 {d}, {vr(Fr(half,f),4)}, {vr(Pb(u&1,qb),4)}, {d}")
        return o

    def lm(par, first=False):
        return [f"  v_mfma_f32_16x16x32_bf16 {vr(Lb(par,qb),4)}, {vr(V_ONE,4)}, {vr(Pb(par,qb),4)}, {0 if first else vr(Lb(par^1,qb),4)}"
                for qb in range(2)]

    def softmax(par):
        pairs = [(kbl, qb, h) for kbl in range(2) for qb in range(2) for h in range(2)]
        s3 = [[], [], []]
        for k, (kbl, qb, h) in enumerate(pairs):
            s = Sb(par, kbl, qb) + 2 * h
            x = V_X + 2 * (k & 3)
            if pre:
                s3[0].append([])
                s3[1].append([f"  v_exp_f32 v{x}, v{s}", f"  v_exp_f32 v{x+1}, v{s+1}"])
            else:
                s3[0].append([f"  v_fma_f32 v{x}, v{s}, s{S_C}, -v{V_M+qb}", f"  v_fma_f32 v{x+1}, v{s+1}, s{S_C}, -v{V_M+qb}"])
                s3[1].append([f"  v_exp_f32 v{x}, v{x}", f"  v_exp_f32 v{x+1}, v{x+1}"])
            s3[2].append([f"  v_cvt_pk_bf16_f32 v{Pb(par,qb)+2*kbl+h}, v{x}, v{x+1}"])
        o = []
        for k in range(10):
            for j in range(3):
                if 0 <= k - j < 8:
                    o += s3[j][k - j]
        return o

    def softmax_plain(par):
        sm = softmax(par)
        return sm[:-1] + ["  s_nop 0", sm[-1], "  s_nop 1"]

    def chk(par):
        return [f"  v_add_f32 v{V_T0}, v{Lb(par,0)}, v{Lb(par,1)}", f"  v_cmp_nge_f32 vcc, s{S_THR}, v{V_T0}"]

    sites = []

    def br(par):
        k = len(sites)
        sites.append(par)
        return [f"  s_cbranch_vccnz L_fix{k}", f"L_ret{k}:"]

    def xmax(reg, tmp):
        return [f"  v_mov_b32 v{tmp}, v{reg}", "  s_nop 1", f"  v_permlane16_swap_b32 v{reg}, v{tmp}",
                f"  v_max_f32 v{reg}, v{reg}, v{tmp}",
                f"  v_mov_b32 v{tmp}, v{reg}", "  s_nop 1", f"  v_permlane32_swap_b32 v{reg}, v{tmp}",
                f"  v_max_f32 v{reg}, v{reg}, v{tmp}"]

    def maxof(dst, regs):
        o = [f"  v_max3_f32 v{dst}, v{regs[0]}, v{regs[1]}, v{regs[2]}"]
        k = 3
        while k + 1 < len(regs):
            o.append(f"  v_max3_f32 v{dst}, v{dst}, v{regs[k]}, v{regs[k+1]}")
            k += 2
        if k < len(regs):
            o.append(f"  v_max_f32 v{dst}, v{dst}, v{regs[k]}")
        return o

    def group(mf, reads, fill, rd=None):
        o = []
        rd = rd or RD
        per = -(-len(reads) // rd) if reads else 0
        for i, m in enumerate(mf):
            o.append(m)
            o += reads[i * per:(i + 1) * per]
            o += fill[i]
        return o

    def coarse(lines, pend):
        if WG >= 4:
            return auto_lgkm(lines, pend)
        out = []
        n = 4 // WG
        for l in lines:
            if l.strip().startswith("v_mfma"):
                a = int(l.split(",")[2 if "x" in abl else 1].split("[")[1].split(":")[0])
                if V_FR <= a < V_FR + 32:
                    f = (a - V_FR) // 4
                    last = V_FR + 4 * ((f // n) * n + n - 1) + 3
                    out.append(f"  v_touch v{last}, v{last}")
            out.append(l)
        out, pend = auto_lgkm(out, pend)
        return [l for l in out if not l.strip().startswith("v_touch")], pend

    def ablate(B):
        if "d" in abl:
            B = [l for l in B if not l.strip().startswith("ds_")]
        if "v" in abl:
            B = [l for l in B if not l.strip().startswith(("v_exp", "v_fma", "v_cvt"))]
        if "k" in abl:
            B = [l for l in B if not l.strip().startswith("ds_read_b128")]
        if "t" in abl:
            B = [l for l in B if not l.strip().startswith("ds_read_b64_tr")]
        if "o" in abl:
            B = [l for l in B if f"v[{V_ONE}:" not in l]
        if "q" in abl:
            B = [l for l in B if not (l.strip().startswith("v_mfma") and V_S <= int(l.split("[")[1].split(":")[0]) < V_S + 32)]
        if "p" in abl:
            B = [l for l in B if not (l.strip().startswith("v_mfma") and V_O <= int(l.split("[")[1].split(":")[0]) < V_O + 64)]
        if "x" in abl:
            BB = []
            for l in B:
                if l.strip().startswith("v_mfma"):
                    a = l.split(", ")
                    l = ", ".join([a[0], a[2], a[1], a[3]])
                BB.append(l)
            B = BB
        return B

    DA, DB_ = [0, 1, 2, 3], [4, 5, 6, 7]

    def fills(par, nfront):
        n = nfront + max(LPOS - 1, 0)
        wts = [1.0] * n
        if bal and nfront == 24:
            per = [-(-4 // RD), -(-8 // RD), -(-8 // RD)]
            cnt = [4, 8, 8]
            for g in range(3):
                for i in range(8):
                    nr = max(0, min(per[g], cnt[g] - i * per[g]))
                    wts[8 * g + i] = max(0.2, 3.1 - nr)
            for i in range(24, n):
                wts[i] = 2.1
        f = spread(softmax(par)[NE:], wts)
        return f + [[] for _ in range(nfront + 10 - n)]

    def closing(n, nxt_reads, tailfill, extra=()):
        o = ["  s_waitcnt lgkmcnt(0)", "  s_barrier"] + list(extra)
        mf = pvm(1, n - 1, DB_)
        mf = mf[:LPOS] + lm(n & 1) + mf[LPOS:]
        fl = [list(x) for x in tailfill]
        c2 = chk(n & 1)
        if n < NU - 1:
            for i, e in enumerate(spread(softmax((n + 1) & 1)[:NE], [1] * (8 - LPOS - 1))):
                fl[LPOS + 1 + i] += e
        fl[8] = fl[8] + c2
        o += group(mf, nxt_reads, fl)
        return o + br(n & 1)

    def front(n):
        f = fills(n & 1, 24)
        o = group(qkm(0, n + 1, 0), kreads(1, n + 1, 1), f[0:8])
        o += group(qkm(1, n + 1, 1), vreads(0, n - 1, DA), f[8:16])
        o += group(pvm(0, n - 1, DA), vreads(1, n - 1, DB_), f[16:24])
        return o, f[24:34]

    P2 = kreads(0, 0, 0) + kreads(1, 0, 1) + qkm(0, 0, 0, True) + kreads(0, 1, 0) + qkm(1, 0, 1, True) + kreads(1, 1, 1) \
        + qkm(0, 1, 0, True) + qkm(1, 1, 1, True) + ["  s_nop 7"]
    for qb in range(2):
        P2 += maxof(V_M + qb, [Sb(par, kbl, qb) + r for par in range(2) for kbl in range(2) for r in range(4)])
    for qb in range(2):
        P2 += xmax(V_M + qb, V_T0)
    if pre:
        for qb in range(2):
            for par in range(2):
                for kbl in range(2):
                    for r in range(4):
                        s = Sb(par, kbl, qb) + r
                        P2.append(f"  v_sub_f32 v{s}, v{s}, v{V_M+qb}")
            for r in range(4):
                P2.append(f"  v_sub_f32 v{V_NM+4*qb+r}, 0, v{V_M+qb}")
    else:
        for qb in range(2):
            P2.append(f"  v_mul_f32 v{V_M+qb}, s{S_C}, v{V_M+qb}")
    P2 += softmax_plain(0) + lm(0, True) + softmax(1)[:NE]
    if fastp:
        assert not pre
        V = []
        for qb in range(2):
            V += maxof(V_M + qb, [Sb(0, kbl, qb) + r for kbl in range(2) for r in range(4)])
        a, b = xmax(V_M, V_T0), xmax(V_M + 1, V_T1)
        for x, y in zip(a, b):
            V += [x, y] if "s_nop" not in x else ["  s_nop 0"]
        V += [f"  v_mul_f32 v{V_M+qb}, s{S_C}, v{V_M+qb}" for qb in range(2)]
        V += softmax(0)
        fl = [[] for _ in range(4)] + spread(V, [1] * 12)
        fl[3] = ["  s_nop 3"]
        P2 = kreads(0, 0, 0) + kreads(1, 0, 1) + qkm(0, 0, 0, True) + kreads(0, 1, 0) + qkm(1, 0, 1, True) + kreads(1, 1, 1)
        P2 += group(qkm(0, 1, 0, True) + qkm(1, 1, 1, True), [], fl) + ["  s_nop 1"] + lm(0, True) + softmax(1)[:NE]
    nit = (NU - 2 + NSL - 1) // NSL
    P2 += [f"  s_mov_b32 s{S_CNT}, {nit}"] + (["  s_waitcnt vmcnt(0)"] if pf < 2 else PF[2:] if pf == 3 else []) + ["  s_barrier"] + kreads(0, 2, 0)
    P2, pend0 = auto_lgkm(P2)
    if diag in (3, 7):
        P2 += ["  s_mov_b32 s95, 0"]
    if hs == 3:
        assert qlds and pf >= 4
        k = P.index("  s_barrier") + 1
        P = P[:k] + [f"  s_cmp_lg_u32 s{S_W}, 0", "  s_cbranch_scc1 L_nohello"] + PA + ["L_nohello:"] + P[k:]
        k = P2.index("  s_barrier")
        P2 = P2[:k] + ["  s_waitcnt vmcnt(0)"] + P2[k:] + ["  s_branch L_mid"]
    else:
        P2 += [f"  s_cmp_lg_u32 s{S_W}, 0", "  s_cbranch_scc1 L_mid"] + PA + ["  s_branch L_mid"]

    BODY = []
    nfirst = NU - 1 - NSL
    tf = front(nfirst - 1)[1]
    midx = None
    for n in range(nfirst, NU - 1):
        extra = []
        if (diag == 3 and n % 2 == 1) or diag == 7:
            extra = ["  s_memrealtime s[92:93]", "  s_memtime s[90:91]", "  s_add_u32 s95, s95, 1", "  s_min_u32 s95, s95, 31", "  s_add_u32 s94, s95, 32", "  s_waitcnt lgkmcnt(0)",
                     "  s_mov_b32 m0, s95", f"  v_writelane_b32 v{V_TR}, s92, m0", "  s_mov_b32 m0, s94", f"  v_writelane_b32 v{V_TR}, s90, m0"]
        if diag == 4 and n == nfirst:
            extra = [f"  s_cmp_lg_u32 s{S_CNT}, {nit - 16 // NSL}", "  s_cbranch_scc1 L_nost", "  s_memtime s[96:97]", "  s_memrealtime s[98:99]",
                     "  s_waitcnt lgkmcnt(0)", "  s_mov_b32 s94, 0", "L_nost:"]
        cl = closing(n - 1, kreads(0, n + 1, 0), tf, extra)
        fr, tf = front(n)
        if n == NU - 2:
            k = max(i for i, l in enumerate(fr) if "v_mfma" in l)
            fr = fr[:k] + [f"  s_sub_u32 s{S_CNT}, s{S_CNT}, 1", f"  s_cmp_lg_u32 s{S_CNT}, 0"] + fr[k:] + ["  s_cbranch_scc1 L_loop"]
        cl, pendc = coarse(ablate(cl), [])
        assert abl or pendc == pend0
        if "q" in abl or "p" in abl:
            fr = [x for l in fr for x in ([l, "  s_waitcnt lgkmcnt(6)"] if l.strip().startswith("ds_") else [l])]
        fr, pendf = coarse(ablate(fr), pendc)
        if n % NSL == 1 % NSL:
            midx = len(BODY)
        BODY.append((cl, fr))

    def fix(par):
        o = ["  s_nop 7"]
        for qb in range(2):
            o += maxof(V_T0 + qb, [Sb(par, kbl, qb) + r for kbl in range(2) for r in range(4)])
        for qb in range(2):
            o += xmax(V_T0 + qb, V_T2)
        for qb in range(2):
            t = V_T0 + qb
            if pre:
                o += [f"  v_max_f32 v{t}, 0, v{t}", f"  v_add_f32 v{V_M+qb}, v{V_M+qb}, v{t}"]
                for p2 in range(2):
                    for kbl in range(2):
                        for r in range(4):
                            s = Sb(p2, kbl, qb) + r
                            o.append(f"  v_sub_f32 v{s}, v{s}, v{t}")
                for r in range(4):
                    o.append(f"  v_sub_f32 v{V_NM+4*qb+r}, 0, v{V_M+qb}")
                o += [f"  v_exp_f32 v{t}, -v{t}"]
            else:
                o += [f"  v_mul_f32 v{t}, s{S_C}, v{t}", f"  v_max_f32 v{t}, v{t}, v{V_M+qb}",
                      f"  v_sub_f32 v{V_T2}, v{V_M+qb}, v{t}", f"  v_mov_b32 v{V_M+qb}, v{t}", f"  v_exp_f32 v{t}, v{V_T2}"]
        o.append("  s_nop 0")
        for qb in range(2):
            o.append(f"  v_mul_f32 v{Lb(par^1,qb)}, v{V_T0+qb}, v{Lb(par^1,qb)}")
            for db in range(8):
                for r in range(4):
                    o.append(f"  v_mul_f32 v{Ob(db,qb)+r}, v{V_T0+qb}, v{Ob(db,qb)+r}")
        return o + softmax_plain(par) + lm(par) + softmax(par ^ 1)[:NE] + ["  s_nop 7"]
    FIX = [fix(0), fix(1)]

    T1 = []
    if diag == 4:
        T1 += ["  s_waitcnt lgkmcnt(0)", "  s_memtime s[90:91]", "  s_memrealtime s[92:93]", "  s_waitcnt lgkmcnt(0)", "  s_sub_u32 s96, s90, s96", "  s_sub_u32 s98, s92, s98"]
    X = []
    if l2:
        X += [f"  v_mov_b32 v{V_T2}, {LDS_MODE}", f"  ds_read_b32 v{V_T3}, v{V_T2}", "  s_waitcnt lgkmcnt(0)",
              f"  v_readfirstlane_b32 s{S_MODE}, v{V_T3}"]
    T1 += X
    T1 += closing(NU - 2, vreads(0, NU - 2, DA), tf)
    f = fills(1, 8)
    T1 += group(pvm(0, NU - 2, DA), vreads(1, NU - 2, DB_), f[0:8])
    T1, pend = auto_lgkm(T1, pendf)
    c2 = closing(NU - 1, [], f[8:18])[2:]
    k = next(i for i, l in enumerate(c2) if l.strip().startswith("v_add_f32"))
    c2 = c2[:k] + ["  s_nop 3"] + c2[k:]
    c2, pend = auto_lgkm(c2, pend)
    assert not pend
    T1 += c2
    ML = V_X
    T1 += [
        f"  v_mov_b32 v{ML}, v{V_M}", f"  v_mov_b32 v{ML+1}, v{Lb(1,0)}",
        f"  v_mov_b32 v{ML+2}, v{V_M+1}", f"  v_mov_b32 v{ML+3}, v{Lb(1,1)}",
    ]

    def publish(spol):
        def ostore(j):
            o = []
            if bf16p:
                b = V_S + 8 * (j - 1)
                for i in range(8):
                    o.append(f"  v_cvt_pk_bf16_f32 v{b+i}, v{V_O+16*j+2*i}, v{V_O+16*j+2*i+1}")
                    if i & 3 == 3:
                        o.append(f"  buffer_store_dwordx4 {vr(b+(i&4),4)}, v{V_LANE16}, {srd(S_WS)}, s{S_OD+j-1} offen offset:{(i>>2)*1024} {spol}")
            else:
                for i in range(4):
                    o.append(f"  buffer_store_dwordx4 {vr(V_O+16*j+4*i,4)}, v{V_LANE16}, {srd(S_WS)}, s{S_OD+j-1} offen offset:{i*1024} {spol}")
            return o
        nstamp[0] = 2
        o = ["  s_mov_b64 exec, 0xffff", f"  buffer_store_dwordx4 {vr(ML,4)}, v{V_LANE16}, {srd(S_WS)}, s{S_ML} offen {spol}", "  s_mov_b64 exec, -1"]
        stamp(o)
        o.append("  s_barrier")
        stamp(o)
        r0 = vreads(0, NU - 1, [2, 3, 4, 5])
        r1 = vreads(1, NU - 1, [6, 7, 0, 1])
        o += r0 + r1[:6]
        mf = pvm(0, NU - 1, [2, 3, 4, 5]) + pvm(1, NU - 1, [6, 7, 0, 1])
        if tord == 0:
            o += mf[:2] + r1[6:] + mf[2:12] + ostore(1)[:5] + mf[12:14] + ostore(1)[5:] + mf[14:16] + ostore(2) + ostore(3)
        else:
            st_ = ostore(1) + ostore(2) + ostore(3)
            o += mf[:2] + r1[6:] + mf[2:8]
            k = 0
            for i, n in zip(range(8, 16), (2, 3, 2, 3, 5, 5, 5, 5)):
                o += [mf[i]] + st_[k:k + n]
                k += n
        o, pend = auto_lgkm(o)
        assert not pend
        return o + [f"  v_mov_b32 v{V_T1}, 1", "  s_mov_b64 exec, 1", "  s_waitcnt vmcnt(0)",
                    f"  buffer_store_dword v{V_T1}, off, {srd(S_WS)}, s{S_FO} {spol}"]
    if l2:
        T1 += [f"  s_cmp_eq_u32 s{S_MODE}, 4", "  s_cbranch_scc0 L_far"]
        FAR = publish("sc1") + ["  s_branch L_farret"]
        T2 = publish(npol) + ["L_farret:"]
    else:
        T2 = publish("sc1")
    T2 += ["  s_mov_b64 exec, 15"]
    stamp(T2)
    TP = [
        f"  buffer_load_dword v{V_T1}, v{V_FADDR}, {srd(S_WS)}, s{S_F} offen {ppol}",
        "  s_waitcnt vmcnt(0)",
        f"  v_cmp_ne_u32 vcc, 1, v{V_T1}",
        "  s_cbranch_vccz L_got",
    ] + ([f"  s_sleep {slp}"] if slp else []) + ["  s_branch L_poll"]
    T3 = ["  s_mov_b64 exec, -1"]
    if l2:
        T3 += [f"  s_cmp_eq_u32 s{S_MODE}, 4", "  s_cbranch_scc1 L_near", "  buffer_inv sc1", "  s_waitcnt vmcnt(0)", "L_near:"]
    stamp(T3)
    VML = V_FR
    VIN = V_S
    for j in range(1, 4):
        T3.append(f"  buffer_load_dwordx4 {vr(VML+4*(j-1),4)}, v{V_MLA}, {srd(S_WS)}, s{S_ML+j} offen {lpol}")
    nld = 2 if bf16p else 4
    for j in range(1, 4):
        if j > 1 and not bf16p:
            T3.append(f"  s_add_u32 s{S_OI}, s{S_OI}, {R}")
        if j == 3 and bf16p:
            T3.append(f"  s_add_u32 s{S_OI}, s{S_OI}, {2*R}")
        for i in range(nld):
            off = i * 1024 + (R if (bf16p and j == 2) else 0)
            T3.append(f"  buffer_load_dwordx4 {vr(VIN+4*nld*(j-1)+4*i,4)}, v{V_LANE16}, {srd(S_WS)}, s{S_OI} offen offset:{off} {lpol}")
    G = V_FR + 16
    T3.append(f"  s_waitcnt vmcnt({3*nld})")
    ml = lambda j, qb: (ML if j == 0 else VML + 4 * (j - 1)) + 2 * qb
    for qb in range(2):
        T3 += [f"  v_max3_f32 v{V_T0+qb}, v{ml(0,qb)}, v{ml(1,qb)}, v{ml(2,qb)}"]
    for qb in range(2):
        T3 += [f"  v_max_f32 v{V_T0+qb}, v{V_T0+qb}, v{ml(3,qb)}"]
    for j in range(4):
        for qb in range(2):
            T3.append(f"  v_sub_f32 v{G+4*qb+j}, v{ml(j,qb)}, v{V_T0+qb}")
    for j in range(4):
        for qb in range(2):
            T3.append(f"  v_exp_f32 v{G+4*qb+j}, v{G+4*qb+j}")
    for j in range(4):
        for qb in range(2):
            op = "v_fmac_f32" if j else "v_mul_f32"
            T3.append(f"  {op} v{V_T0+qb}, v{G+4*qb+j}, v{ml(j,qb)+1}")
    T3 += [f"  v_rcp_f32 v{V_T0}, v{V_T0}", f"  v_rcp_f32 v{V_T1}, v{V_T1}", "  s_nop 0"]
    for j in range(4):
        for qb in range(2):
            T3.append(f"  v_mul_f32 v{G+4*qb+j}, v{G+4*qb+j}, v{V_T0+qb}")
    qbof = lambda i: (i >> 2) & 1
    for i in range(16):
        T3.append(f"  v_mul_f32 v{V_O+i}, v{G+4*qbof(i)}, v{V_O+i}")
    for j in range(1, 4):
        T3.append(f"  s_waitcnt vmcnt({(3-j)*nld})")
        if bf16p:
            U = V_O + 16
            for i in range(8):
                src = VIN + 8 * (j - 1) + i
                T3.append(f"  v_lshlrev_b32 v{U+2*i}, 16, v{src}")
                T3.append(f"  v_and_b32 v{U+2*i+1}, 0xffff0000, v{src}")
            for i in range(16):
                T3.append(f"  v_fmac_f32 v{V_O+i}, v{G+4*qbof(i)+j}, v{U+i}")
        else:
            for i in range(16):
                T3.append(f"  v_fmac_f32 v{V_O+i}, v{G+4*qbof(i)+j}, v{VIN+16*(j-1)+i}")
    stamp(T3)
    OV = V_O + 32
    for qb in range(2):
        for e in range(2):
            for h in range(2):
                T3.append(f"  v_cvt_pk_bf16_f32 v{OV+4*qb+2*e+h}, v{Ob(e,qb)+2*h}, v{Ob(e,qb)+2*h+1}")
    T3 += [
        f"  v_permlane16_swap_b32 v{OV}, v{OV+2}",
        f"  v_permlane16_swap_b32 v{OV+1}, v{OV+3}",
        f"  buffer_store_dwordx4 {vr(OV,4)}, v{V_OUTA}, {srd(S_OUT)}, 0 offen {opol}",
        f"  v_permlane16_swap_b32 v{OV+4}, v{OV+6}",
        f"  v_permlane16_swap_b32 v{OV+5}, v{OV+7}",
        f"  buffer_store_dwordx4 {vr(OV+4,4)}, v{V_OUTA}, {srd(S_OUT)}, s{S_T3} offen {opol}",
    ]
    if diag:
        T3.append("  s_waitcnt vmcnt(0)")
        stamp(T3)
        T3 += [f"  s_mov_b32 s{S_WS}, s14", f"  s_mov_b32 s{S_WS+1}, s15", f"  s_mov_b32 s{S_WS+2}, {32<<20}"]
        T3.append("  s_getreg_b32 s4, hwreg(HW_REG_XCC_ID)")
        for k in range(nstamp[0]):
            T3.append(f"  v_mov_b32 v{V_S+k}, s{S_ST+2*k}")
        T3.append(f"  v_mov_b32 v{V_S+15}, s4")
        T3.append(f"  v_mov_b32 v{V_S+11}, 31")
        if diag in (3, 7):
            T3 += [f"  s_lshl_b32 s{S_T0}, s2, 2", f"  s_add_u32 s{S_T0}, s{S_T0}, s{S_W}", f"  s_lshl_b32 s{S_T0}, s{S_T0}, 8",
                   f"  s_add_u32 s{S_T0}, s{S_T0}, {OFF_T + (1 << 20)}", f"  v_lshrrev_b32 v{V_T0}, 2, v{V_LANE16}",
                   f"  buffer_store_dword v{V_TR}, v{V_T0}, {srd(S_WS)}, s{S_T0} offen"]
        if diag == 4:
            T3 += [f"  v_mov_b32 v{V_S+12}, s94", f"  v_mov_b32 v{V_S+13}, s96", f"  v_mov_b32 v{V_S+14}, s98"]
        T3 += [
            f"  s_lshl_b32 s{S_T0}, s2, 2",
            f"  s_add_u32 s{S_T0}, s{S_T0}, s{S_W}",
            f"  s_lshl_b32 s{S_T0}, s{S_T0}, 6",
            f"  s_add_u32 s{S_T0}, s{S_T0}, {OFF_T}",
            "  s_mov_b64 exec, 1",
        ]
        for i in range(4):
            T3.append(f"  buffer_store_dwordx4 {vr(V_S+4*i,4)}, off, {srd(S_WS)}, s{S_T0} offset:{16*i}")
    T3.append("  s_endpgm")

    if "S" in abl:
        T1 = [l for l in T1 if not l.strip().startswith("buffer_store")]
        T2 = [l for l in T2 if not l.strip().startswith("buffer_store_dwordx4")]
    if "F" in abl:
        T2 = [l for l in T2 if not l.strip().startswith("buffer_store_dword ")]
        TP = []
    if "R" in abl:
        T3 = [l for l in T3 if not l.strip().startswith("buffer_load")]

    def inline_fix(lines):
        o = []
        for l in lines:
            o.append(l)
            if l.strip().startswith("s_cbranch_vccnz L_fix"):
                o += FIX[sites[int(l.strip().split("L_fix")[1])]]
        return o
    flat = [l for cl, fr in BODY for l in cl + fr]
    first = BODY[midx][1] + [l for cl, fr in BODY[midx + 1:] for l in cl + fr]
    main = E + P + P2 + first + flat + T1 + T2 + TP + T3
    nbar = sum(l == "  s_barrier" for l in P + P2 + first + flat * (nit - 1) + T1 + T2)
    assert nbar == NU + 1, nbar
    traces["cons_a"] = main
    traces["cons_b"] = inline_fix(main)
    errs = []
    for n, t in traces.items():
        errs += check_hazards(t, n)
    if errs and not abl.strip("L"):
        raise RuntimeError("hazards:\n" + "\n".join(errs))

    out = [HEADER.rstrip(),
           "; 256 workgroups = 64 (batch, kv head) pairs x 4 key splits; wave 0 streams K/V into an LDS ring,",
           "; waves 1-4 each own one query head (32 rows); partial results are exchanged through d_ws.",
           f"; @launch grid=(256,1,1) block=(320,1,1) lds={lds}",
           '.amdgcn_target "amdgcn-amd-amdhsa--gfx950"', ".text", f".globl {NAME}", ".p2align 8",
           f".type {NAME},@function", f"{NAME}:"]
    out += E + LOADER
    out += [".p2align 6", "L_cons:"] + P + P2
    out += [".p2align 6", "L_loop:"]
    for i, (cl, fr) in enumerate(BODY):
        out += cl + (["L_mid:"] if i == midx else []) + fr
    out += T1 + T2 + ["L_poll:"] + TP + ["L_got:"] + T3
    if l2:
        out += ["L_far:"] + FAR
    for k, par in enumerate(sites):
        out += [f"L_fix{k}:", f"  s_call_b64 s[{S_RET}:{S_RET+1}], L_fixfn{par}", f"  s_branch L_ret{k}"]
    for par in range(2):
        out += [f"L_fixfn{par}:"] + FIX[par] + [f"  s_setpc_b64 s[{S_RET}:{S_RET+1}]"]
    out += ["L_end:", "  s_endpgm"]
    out += ['.section .rodata,"a"', ".p2align 6", f".amdhsa_kernel {NAME}",
            f"  .amdhsa_next_free_vgpr {NVGPR}", "  .amdhsa_next_free_sgpr 102",
            f"  .amdhsa_accum_offset {NVGPR}", "  .amdhsa_group_segment_fixed_size 0",
            "  .amdhsa_kernarg_size 48", "  .amdhsa_user_sgpr_count 2",
            "  .amdhsa_user_sgpr_kernarg_segment_ptr 1", "  .amdhsa_system_sgpr_workgroup_id_x 1",
            ".end_amdhsa_kernel"]
    return "\n".join(l.rstrip() for l in out if l is not None) + "\n"


if __name__ == "__main__":
    kw = eval("dict(%s)" % sys.argv[1]) if len(sys.argv) > 1 else {}
    sys.stdout.write(gen(**kw))
```

```python
import re

TRANS = ("v_exp_f32", "v_log_f32", "v_rcp_f32", "v_rsq_f32", "v_sqrt_f32")


def regs_of(tok):
    tok = tok.strip()
    tok = tok.lstrip("-")
    m = re.fullmatch(r"abs\((.*)\)", tok)
    if m:
        tok = m.group(1)
    m = re.fullmatch(r"([vsa])(\d+)", tok)
    if m:
        return {(m.group(1), int(m.group(2)))}
    m = re.fullmatch(r"([vsa])\[(\d+):(\d+)\]", tok)
    if m:
        return {(m.group(1), i) for i in range(int(m.group(2)), int(m.group(3)) + 1)}
    if tok in ("vcc", "vcc_lo"):
        return {("s", "vcc")}
    if tok == "m0":
        return {("s", "m0")}
    if tok == "exec":
        return {("s", "exec")}
    return set()


class Ins:
    def __init__(self, text):
        self.text = text
        t = text.split(";")[0].strip()
        self.label = t.endswith(":")
        self.op = t.split()[0] if t else ""
        if self.op.endswith("_e64"):
            t = t.replace("_e64", "", 1)
            self.op = self.op[:-4]
        t = re.sub(r"\s(op_sel|op_sel_hi|neg_lo|neg_hi):\[[^\]]*\]", "", t)
        rest = t[len(self.op):].strip()
        ops = [o.strip() for o in rest.split(",")] if rest else []
        self.mods = ""
        if ops:
            parts = ops[-1].split()
            ops[-1] = parts[0]
            self.mods = " ".join(parts[1:])
        self.ops = ops
        op = self.op
        self.w = set()
        self.r = set()
        self.kind = "other"
        self.A = self.B = self.C = set()
        if self.label or not op or op.startswith("."):
            self.kind = "none"
            return
        R = [regs_of(o) for o in ops]
        if op.startswith("v_mfma"):
            self.kind = "mfma"
            self.w = R[0]
            self.A, self.B, self.C = R[1], R[2], R[3]
            self.r = R[1] | R[2] | R[3]
        elif op.startswith("v_permlane"):
            self.kind = "valu"
            self.w = R[0] | R[1]
            self.r = R[0] | R[1]
        elif op.startswith("v_"):
            self.kind = "valu"
            self.w = R[0]
            self.r = set().union(*R[1:]) if len(R) > 1 else set()
            if op.startswith("v_fmac") or op.startswith("v_pk_fmac"):
                self.r |= R[0]
            if op.startswith("v_add_co") or op.startswith("v_addc_co"):
                self.w |= R[1]
        elif op.startswith("ds_read"):
            self.kind = "ds"
            self.w = R[0]
            self.r = R[1]
        elif op.startswith("ds_write"):
            self.kind = "ds"
            self.r = set().union(*R)
        elif op.startswith("ds_"):
            self.kind = "ds"
            self.w = R[0]
            self.r = set().union(*R)
        elif op.startswith("buffer_load") or op.startswith("global_load"):
            self.kind = "vmem"
            if "lds" in self.mods.split() or op.startswith("global_load_lds"):
                self.r = set().union(*R) | {("s", "m0")}
                self.dma = True
            else:
                self.w = R[0]
                self.r = set().union(*R[1:])
        elif op.startswith("buffer_store") or op.startswith("global_store") or "atomic" in op:
            self.kind = "vmem"
            self.r = set().union(*R)
            if "atomic" in op and "sc0" in self.mods.split():
                self.w = R[0]
        elif op.startswith("s_"):
            self.kind = "salu"
            if op.startswith("s_cmp") or op in ("s_waitcnt", "s_barrier", "s_nop", "s_endpgm", "s_setprio", "s_sleep") or op.startswith("s_cbranch") or op == "s_branch":
                self.r = set().union(*R) if R else set()
            else:
                self.w = R[0] if R else set()
                self.r = set().union(*R[1:]) if len(R) > 1 else set()

    def states(self):
        if self.kind == "none":
            return 0
        if self.op == "s_nop":
            return int(self.ops[0], 0) + 1
        return 1


def vg(s):
    return {x for x in s if x[0] in "va"}


def sg(s):
    return {x for x in s if x[0] == "s"}


def check_hazards(lines, name=""):
    ins = [Ins(l) for l in lines]
    ins = [i for i in ins if i.kind != "none"]
    errs = []
    for j, c in enumerate(ins):
        dist = 0
        for i in range(j - 1, -1, -1):
            p = ins[i]
            need = 0
            why = ""
            if p.kind == "valu":
                wv = vg(p.w)
                ws = sg(p.w)
                if c.kind == "mfma" and wv & c.r:
                    need, why = 2, "valu->mfma"
                if c.op.startswith("v_permlane") and wv & c.r:
                    need, why = max(need, 2), "valu->permlane"
                if c.op in ("v_readfirstlane_b32", "v_readlane_b32") and wv & c.r:
                    need, why = max(need, 1), "valu->readlane"
                if p.op.startswith(TRANS) and c.kind == "valu" and not c.op.startswith(TRANS) and wv & c.r:
                    need, why = max(need, 1), "trans->valu"
                if p.op.startswith(TRANS) and c.kind in ("vmem", "ds", "mfma") and wv & c.r:
                    need, why = max(need, 2), "trans->mem"
                if ws:
                    if c.kind == "valu" and ws & c.r:
                        need, why = max(need, 2), "valu sgpr->valu"
                    if c.kind == "vmem" and ws & c.r:
                        need, why = max(need, 5), "valu sgpr->vmem"
                    if c.kind == "salu" and ws & c.r:
                        need, why = max(need, 1), "valu sgpr->salu(pad)"
            if p.kind == "mfma":
                big = "32x32" in p.op
                n_use, n_c, n_war = (12, 10, 7) if big else (8, 6, 3)
                if c.kind == "mfma":
                    if p.w & (c.A | c.B):
                        need, why = n_use, "mfma D->A/B"
                    elif p.w & c.C and p.w != c.C:
                        need, why = n_c, "mfma D->C partial"
                    elif p.w & c.w and p.w != c.w:
                        need, why = n_use, "mfma D->D partial"
                    elif p.w & c.w and not (p.w & c.C):
                        need, why = n_use, "mfma D->D waw (conservative)"
                elif c.kind in ("valu", "ds", "vmem"):
                    if p.w & (c.r | c.w):
                        need, why = n_use, "mfma D->use"
                    elif c.kind == "valu" and p.C & c.w:
                        need, why = n_war, "mfma C war"
            if p.kind == "vmem" and ("store" in p.op or "atomic" in p.op) and ("x4" in p.op or "x3" in p.op):
                data = regs_of(p.ops[0]) if p.op.startswith("buffer") else regs_of(p.ops[1])
                if data & c.w:
                    need, why = max(need, 2), "store data war"
            if p.kind == "salu" and ("s", "m0") in p.w and c.kind == "vmem" and ("s", "m0") in c.r:
                need, why = max(need, 1), "m0->dma"
            if p.kind == "salu" and ("s", "exec") in p.w and False:
                pass
            if need > dist:
                errs.append(f"[{name}] {why}: need {need} have {dist}: '{p.text.strip()}' -> '{c.text.strip()}'")
            dist += p.states()
            if dist >= 20:
                break
    return errs


def auto_lgkm(lines, pending=None):
    out = []
    q = list(pending or [])
    for l in lines:
        c = Ins(l)
        if c.kind == "none":
            out.append(l)
            continue
        if c.op == "s_waitcnt":
            m = re.search(r"lgkmcnt\((\d+)\)", l)
            if m:
                n = int(m.group(1))
                q = q[len(q) - n:] if n < len(q) else q
                if n == 0:
                    q = []
            out.append(l)
            continue
        touched = c.r | c.w
        last = -1
        for k, s in enumerate(q):
            if s & touched:
                last = k
        if last >= 0:
            n = len(q) - 1 - last
            assert n <= 15
            out.append(f"  s_waitcnt lgkmcnt({n})")
            q = q[last + 1:]
        if c.kind == "ds":
            q.append(set(c.w))
            assert len(q) <= 15, "too many outstanding ds ops"
        out.append(l)
    return out, q


E32 = ("v_exp_f32", "v_mul_f32", "v_add_f32", "v_sub_f32", "v_max_f32", "v_mov_b32", "v_rcp_f32", "v_lshlrev_b32", "v_cmp_nge_f32")


def isize(l):
    t = l.strip()
    if not t or t.endswith(":") or t.startswith("."):
        return 0
    op = t.split()[0]
    if op.startswith("s_"):
        return 8 if re.search(r", (0x[0-9a-f]+|\d{3,})$", t) and not op.startswith(("s_waitcnt", "s_cbranch", "s_branch", "s_nop", "s_movk")) else 4
    if op in E32:
        return 8 if ("0x" in t or "-v" in t) else 4
    return 8


def align8(lines, phase=0, want_end=0):
    INF = 10 ** 9
    best = {phase: (0, [])}
    for l in lines:
        sz = isize(l)
        op = l.split()[0] if l.strip() else ""
        nxt = {}
        for ph, (c, ch) in best.items():
            opts = [(sz, l)]
            if sz == 4 and op in E32:
                opts.append((8, l.replace(op, op + "_e64", 1)))
            for z, t in opts:
                cc = c + (100 if (z == 8 and ph) else 0) + (1 if t is not l else 0)
                p2 = (ph + z) % 8
                if p2 not in nxt or cc < nxt[p2][0]:
                    nxt[p2] = (cc, ch + [t])
        best = nxt
    k = want_end if want_end in best else min(best, key=lambda p: best[p][0])
    return best[k][1], best[k][0] // 100, k
```

```python
import struct, sys, math
from asmlib import check_hazards, auto_lgkm, align8

NAME = "standalone__gqa_softmax__sampling_kernel"

HEADER = """; Kernarg layout for this problem (48 bytes, ptrs only, base s[0:1]):
;   offset   0: d_in[0] q  shape=(8, 32, 32, 128) dtype=bfloat16 strides=(262144, 8192, 256, 2) contiguous=True
;   offset   8: d_in[1] k  shape=(8, 8, 8192, 128) dtype=bfloat16 strides=(16777216, 2097152, 256, 2) contiguous=True
;   offset  16: d_in[2] v  shape=(8, 8, 8192, 128) dtype=bfloat16 strides=(16777216, 2097152, 256, 2) contiguous=True
;   offset  24: d_out     shape=(8, 32, 32, 128) dtype=bfloat16 (2 bytes/elem)
"""


def f32(x):
    return "0x%08x" % struct.unpack("<I", struct.pack("<f", x))[0]


V_M = 2
V_T0, V_T1, V_T2, V_T3 = 4, 5, 6, 7
V_LANE16 = 8
V_FADDR = 9
V_OUTA = 10
V_TR = 11
V_KA = 12
V_VA = 16
V_X = 24
V_FR = 32
V_O = 64
V_S = 128
V_P = 160
V_L = 176
V_ONE = 192
V_NM = 196
V_JUNK = 204
V_MLA = 206
V_Q = 208
NVGPR = 240

S_K, S_V, S_Q, S_OUT, S_WS, S_DBG = 16, 20, 24, 28, 32, 36
S_BH, S_SP, S_W = 40, 41, 42
S_MODE = 43
S_C, S_THR = 44, 45
S_CNT = 46
S_T0, S_T1, S_T2, S_T3 = 50, 51, 52, 53
S_OD = 54
S_OI = 57
S_ML = 58
S_F = 62
S_FO = 63
S_DB = 64
S_RET = 66
S_ST = 70

OFF_T = 20 << 20
NU = 64


def vr(base, n):
    return f"v[{base}:{base+n-1}]"


def srd(b):
    return f"s[{b}:{b+3}]"


def cost(l):
    return 2 if l.split()[0].startswith("v_exp") else 1


def spread(fillers, weights):
    nslots = len(weights)
    tot = sum(cost(f) for f in fillers)
    wt = sum(weights)
    out = [[] for _ in range(nslots)]
    acc = k = cw = 0
    for s in range(nslots):
        cw += weights[s]
        tgt = tot * cw / wt
        while k < len(fillers) and acc + cost(fillers[k]) / 2.0 <= tgt + 1e-9:
            out[s].append(fillers[k])
            acc += cost(fillers[k])
            k += 1
    out[-1] += fillers[k:]
    return out


def sched(up, step=1, lo=20, hold=1, dec=1):
    l = [0]
    x = lo
    for d in up:
        x += d
        l.append(x)
    l += [x] * hold
    while x > lo + dec:
        x -= dec
        l += [x] * step
    return tuple(l)


def gen(W=21, gs=1, ramp=(), wend=(), lags=None, vfirst=0, lpol="sc1", ppol="sc1", slp=0, pol="nt", grp="xcd2", bf16p=1, THR=2.0 ** 24, diag=0,
        opol="", qpol="", prio=3, abl="", pre=1, pk=0, al=1, LPOS=2, WG=1, RD=4, NSL=8, l2=1, warm=0, bal=1, lds=98304, NE=10, pf=4, il=1, xph=0, pfpos=0, npol="", cpf=3, chain=1, pvo=0, bq=1, touch=0, tord=1, hs=3, rpol="", clr=0, late=-1, rot=0, xw=(7, 15, 5, 17, 22, 5, 13, 6), qlds=1, fastp=1, pfs=(0, 10, 7, 4, 3, 1)):
    traces = {}
    if lags is None:
        lags = sched((7, 6, 5, 4, 2, 1))
    NE = min(NE, 4 if pre == 1 else 7 if pk else 10)
    nstamp = [0]

    def stamp(dst):
        if diag:
            k = nstamp[0]
            nstamp[0] += 1
            dst.append(f"  s_memrealtime s[{S_ST+2*k}:{S_ST+2*k+1}]")
            dst.append("  s_waitcnt lgkmcnt(0)")

    R = 2048 if bf16p else 4096
    GB = 17 if bf16p else 18
    SLAB = 3 * R + 256
    OFF_F = 16 * SLAB
    VBASE = NSL * 8192
    QBASE = 2 * VBASE if NSL == 4 else VBASE + 32768
    LDS_MODE = 2 * VBASE + (32768 if qlds and NSL == 4 else 0)
    LDS_JUNK = LDS_MODE + 64
    lds = max(lds, LDS_MODE + 64 + 256)
    assert lds <= 163840
    c = math.log2(math.e) / math.sqrt(128.0)
    E = ["  s_cmp_ge_u32 s2, 256", "  s_cbranch_scc1 L_end"]
    if diag == 6:
        E += ["  s_memrealtime s[68:69]"]
    E += [
        "  s_load_dwordx4 s[4:7], s[0:1], 0",
        "  s_load_dwordx4 s[8:11], s[0:1], 16",
        "  s_load_dwordx4 s[12:15], s[0:1], 32",
        "  v_lshrrev_b32 v1, 6, v0",
        "  v_and_b32 v0, 63, v0",
        "  v_readfirstlane_b32 s3, v1",
    ]
    if grp == "xcd":
        E += [
            f"  s_and_b32 s{S_T0}, s2, 7",
            f"  s_bfe_u32 s{S_SP}, s2, {3 | (2 << 16)}",
            f"  s_lshr_b32 s{S_T1}, s2, 5",
            f"  s_lshl_b32 s{S_BH}, s{S_T0}, 3",
            f"  s_add_u32 s{S_BH}, s{S_BH}, s{S_T1}",
        ]
    elif grp == "xcd2":
        E += ([f"  s_add_u32 s{S_T0}, s2, {rot}", f"  s_and_b32 s{S_T0}, s{S_T0}, 7"] if rot else [f"  s_and_b32 s{S_T0}, s2, 7"]) + [
            f"  s_bfe_u32 s{S_SP}, s2, {3 | (2 << 16)}",
            f"  s_lshr_b32 s{S_T1}, s2, 5",
            f"  s_lshl_b32 s{S_BH}, s{S_T1}, 3",
            f"  s_add_u32 s{S_BH}, s{S_BH}, s{S_T0}",
        ]
    elif grp == "lo":
        E += [f"  s_lshr_b32 s{S_BH}, s2, 2", f"  s_and_b32 s{S_SP}, s2, 3"]
    if late >= 0:
        E += [f"  s_cmp_lg_u32 s{S_SP}, {late}", "  s_cbranch_scc1 L_nolate", "  s_mov_b32 s47, 20", "L_late:", "  s_sleep 100",
              "  s_sub_u32 s47, s47, 1", "  s_cmp_lg_u32 s47, 0", "  s_cbranch_scc1 L_late", "L_nolate:"]
    E += ["  s_cmp_lg_u32 s3, 0", "  s_cbranch_scc1 L_cons"]

    LD = []
    if cpf:
        LD += ["  s_getpc_b64 s[48:49]", "L_pc:", "  v_lshlrev_b32 v6, 7, v0", "  global_load_dword v8, v6, s[48:49]"]
        for i in range(cpf):
            LD += ["  v_add_u32 v6, 8192, v6", "  v_min_u32 v7, L_end - L_pc, v6", "  global_load_dword v8, v7, s[48:49]"]
    LD += [
        f"  s_setprio {prio}",
        f"  s_lshl_b32 s{S_T0}, s{S_BH}, 21",
        f"  s_lshl_b32 s{S_T1}, s{S_SP}, {10 if il else 19}",
        f"  s_add_u32 s{S_T0}, s{S_T0}, s{S_T1}",
        "  v_lshrrev_b32 v3, 4, v0",
        "  v_and_b32 v4, 15, v0",
        "  v_xor_b32 v5, v3, v4",
        "  v_lshlrev_b32 v5, 4, v5",
        "  v_lshl_add_u32 v10, v3, 8, v5",
        "  v_xor_b32 v11, 64, v10",
        "  v_xor_b32 v12, 0x80, v10",
        "  v_xor_b32 v13, 0xc0, v10",
        "  v_lshlrev_b32 v5, 1, v3",
        "  v_xor_b32 v5, v5, v4",
        "  v_lshlrev_b32 v5, 4, v5",
        "  v_lshl_add_u32 v14, v3, 8, v5",
        "  v_xor_b32 v15, 0x80, v14",
    ] + ([
        "  v_mov_b32 v25, v11", "  v_mov_b32 v26, v12", "  v_mov_b32 v27, v13",
        f"  s_lshl_b32 s{S_T3}, s{S_BH}, 15", f"  s_mov_b32 s{S_Q+2}, 32768", f"  s_mov_b32 s{S_Q+3}, 0x20000",
    ] if qlds else []) + ([
        "  v_add_u32 v11, 3072, v11", "  v_add_u32 v12, 6144, v12", "  v_add_u32 v13, 9216, v13",
        "  v_add_u32 v16, 6144, v14", "  v_add_u32 v17, 9216, v15", "  v_add_u32 v15, 3072, v15",
        f"  s_sub_u32 s{S_K+2}, 0x200000, s{S_T1}",
    ] if il else [f"  s_mov_b32 s{S_K+2}, 0x80000"]) + [
        f"  s_mov_b32 s{S_K+3}, 0x20000",
        f"  s_mov_b32 s{S_V+2}, s{S_K+2}",
        f"  s_mov_b32 s{S_V+3}, 0x20000",
        f"  s_lshl_b32 s56, s{S_BH}, 15",
        "  s_mov_b32 s54, 0",
        "  s_mov_b32 s55, 0",
        "  s_waitcnt lgkmcnt(0)",
    ]
    QD = []
    if qlds:
        QD += [f"  s_add_u32 s{S_Q}, s4, s{S_T3}", f"  s_addc_u32 s{S_Q+1}, s5, 0"]
        for g in range(8):
            QD += [f"  s_mov_b32 m0, {QBASE + g*4096}", f"  s_movk_i32 s{S_T2}, {g*4096}"]
            for j in range(4):
                QD.append(f"  buffer_load_dwordx4 v{10 if j == 0 else 24+j}, {srd(S_Q)}, s{S_T2} offen offset:{j*1024} {qpol} lds")
    KV = [
        f"  s_add_u32 s{S_K}, s6, s{S_T0}",
        f"  s_addc_u32 s{S_K+1}, s7, 0",
        f"  s_add_u32 s{S_V}, s8, s{S_T0}",
        f"  s_addc_u32 s{S_V+1}, s9, 0",
    ]
    if touch:
        LD += KV + [f"  s_mov_b32 m0, {LDS_JUNK}", "  s_mov_b64 exec, 1",
                    f"  buffer_load_dword v10, {srd(S_K)}, 0 offen lds", f"  buffer_load_dword v10, {srd(S_V)}, 0 offen lds", "  s_mov_b64 exec, -1"]
        KV = []
    if qlds == 1:
        LD += QD
    LD += KV
    lst = [0]

    def lstamp(dst):
        if diag == 6 and lst[0] < 13 and dst is LD:
            dst += [f"  s_memrealtime s[{70+2*lst[0]}:{71+2*lst[0]}]", "  s_waitcnt lgkmcnt(0)"]
            lst[0] += 1
    lstamp(LD)
    st = dict(pos=0, pend=[], load=True, nbar=0, ku=0, vu=0, nmark=0, npf=0, i16=0)

    def part(dst, which, w):
        go, sr = (54, S_K) if which == "K" else (55, S_V)
        u = st["ku" if which == "K" else "vu"]
        needb = max(u - NSL, 1) if which == "K" else u - NSL + 2
        if u < NSL:
            needb = 1 if (which == "V" and u >= 4 and qlds) else -1
        while st["nbar"] <= needb:
            dst.append(f"  s_waitcnt vmcnt({min(w - gs, st['pos'] - st['pend'][0][0])})")
            lstamp(dst)
            dst.append("  s_barrier")
            lstamp(dst)
            st["pend"].pop(0)
            st["nbar"] += 1
        for g in range(2):
            fld = (2 if il else 0) | ((VBASE.bit_length() - 1) << 16)
            if which == "K":
                dst.append(f"  s_bfe_u32 m0, s{go}, {fld}")
            else:
                dst.append(f"  s_bfe_u32 s{S_T2}, s{go}, {fld}")
                dst.append(f"  s_or_b32 m0, s{S_T2}, {VBASE}")
            first = True
            so = go
            if xph:
                dst.append(f"  s_xor_b32 s57, s{go}, s56")
                so = 57
                first = False
            for j in range(4):
                x = w - gs

                def win():
                    if bq and not st.get("bq"):
                        st["bq"] = 1
                        dst.extend([f"  s_waitcnt vmcnt({st['pos']})", "  s_barrier"])
                    dst.append(f"  s_waitcnt vmcnt({x})")
                    while st["pend"] and st["pos"] - st["pend"][0][0] >= max(x, st["pend"][0][1]):
                        lstamp(dst)
                        dst.append("  s_barrier")
                        lstamp(dst)
                        st["pend"].pop(0)
                        st["nbar"] += 1
                if pf == 5:
                    k = st["nmark"]
                    n = pfs[k] if k < len(pfs) else 0
                    i16 = st["i16"]
                    for _ in range((i16 + 1) * n // 16 - i16 * n // 16):
                        q = st["npf"]
                        dst += ["  s_mov_b32 s59, m0", f"  s_mov_b32 m0, {LDS_JUNK}"]
                        if st["pos"] > x:
                            win()
                        else:
                            dst.append("  s_nop 0")
                        dst.append(f"  buffer_load_dword v24, {srd(S_WS)}, s58 offen lds")
                        dst += ["  s_mov_b32 m0, s59", "  s_add_u32 s58, s58, 1024"]
                        st["npf"] += 1
                        st["pos"] += 1
                        first = False
                    st["i16"] = (i16 + 1) % 16
                if j % gs == 0 and st["pos"] > x:
                    win()
                    first = False
                if first:
                    dst.append("  s_nop 0")
                    first = False
                assert u < NSL or st["nbar"] > needb, (which, u, st["nbar"])
                vo = 10 + j if which == "K" else 14 + (j if il else j & 1)
                if st["load"]:
                    dst.append(f"  buffer_load_dwordx4 v{vo}, {srd(sr)}, s{so} offen offset:{j*1024} {pol} lds")
                st["pos"] += 1
            dst.append(f"  s_add_u32 s{go}, s{go}, {16384 if il else 4096}")
        st["ku" if which == "K" else "vu"] += 1

    def mark():
        k = st["nmark"]
        st["nmark"] += 1
        st["pend"].append((st["pos"], lags[k] if k < len(lags) else (W if xw and st["ku"] < NU else 0)))

    def body(dst, w):
        part(dst, "K", w)
        part(dst, "V", w)
        mark()

    def rel():
        return [(st["pos"] - p, l) for p, l in st["pend"]]
    assert W % gs == 0 and 4 <= W <= 64
    rw = lambda i: ramp[i] if i < len(ramp) else W
    WSS = [f"  s_lshl_b32 s{S_T2}, s{S_BH}, {GB}", f"  s_add_u32 s{S_WS}, s14, s{S_T2}", f"  s_addc_u32 s{S_WS+1}, s15, 0",
           f"  s_mov_b32 s{S_WS+2}, {1 << GB}", f"  s_mov_b32 s{S_WS+3}, 0x20000"]
    if pf == 5:
        assert gs == 1 and sum(pfs) * 1024 == 4 * SLAB and not vfirst
        WSS += ["  v_and_b32 v24, 7, v0", "  v_lshlrev_b32 v24, 7, v24", f"  s_mul_i32 s58, s{S_SP}, {4*SLAB}"]
        if pfs[0]:
            LD += WSS
    if vfirst:
        part(LD, "K", rw(0)); part(LD, "V", rw(0)); part(LD, "K", rw(0)); mark()
        part(LD, "K", rw(1)); mark()
    else:
        part(LD, "K", rw(0)); part(LD, "K", rw(0))
        if qlds == 2:
            LD += QD
        if pf == 5 and not pfs[0]:
            LD += WSS
        mark()
        part(LD, "K", rw(1)); part(LD, "V", rw(1)); mark()
    nb = 2
    while True:
        body(LD, rw(nb))
        nb += 1
        if nb >= len(ramp) and nb >= len(lags) and (pf != 5 or nb >= len(pfs)) and nb >= (NSL + 3 if "L" in abl else 9 if diag == 6 else 4):
            save = dict(st, pend=list(st["pend"]))
            r1 = rel()
            body([], W)
            r2 = rel()
            st.update(save)
            if r1 == r2:
                break
    if "L" in abl:
        st["load"] = False
    LD += [
        f"  s_mov_b32 s{S_DBG}, s12", f"  s_mov_b32 s{S_DBG+1}, s13", f"  s_mov_b32 s{S_DBG+2}, 256", f"  s_mov_b32 s{S_DBG+3}, 0x20000",
        f"  s_lshl_b32 s{S_DB}, s{S_BH}, 2",
        f"  v_mov_b32 v20, {LDS_MODE}",
    ]
    nfull_end = max(len(wend) - 2, 0)
    nloop = NU - 1 - nb - nfull_end
    n1 = nloop // 2 if nb < 24 else nloop - 1
    assert n1 - 4 >= 1 and n1 < nloop
    LD += [f"  s_mov_b32 s{S_CNT}, {nloop}"]
    D1 = []
    DA_ = []
    if xw:
        assert gs == 1
        xw = [min(n, nloop) for n in xw]
        tab = sum((nloop - n) << (8 * i) for i, n in enumerate(xw))
        LD += [f"  s_getreg_b32 s62, hwreg(HW_REG_XCC_ID, 0, 3)", f"  s_mov_b32 s66, {tab & 0xffffffff}", f"  s_mov_b32 s67, {tab >> 32}",
               "  s_lshl_b32 s63, s62, 3", "  s_lshr_b64 s[66:67], s[66:67], s63", "  s_and_b32 s63, s66, 0xff", "  s_and_b32 s62, s62, 1"]
        D1 += [f"  s_cmp_gt_u32 s{S_CNT}, s63", "  s_cbranch_scc1 L_alt"]
        DA_ += ["L_alt:", "  s_cmp_lg_u32 s62, 0", "  s_cbranch_scc1 L_altlo"]
        for lab, w_ in (("", W + 1), ("L_altlo:", W - 1)):
            save = dict(st, pend=list(st["pend"]))
            r1 = rel()
            DA_ += [lab]
            body(DA_, w_)
            assert rel() == r1
            DA_ += ["  s_branch L_ldnext"]
            st.update(save)
    body(D1, W)
    for _ in range(nloop - 1):
        body([], W)
    D1 += ["L_ldnext:"]
    D1 += [f"  s_sub_u32 s{S_CNT}, s{S_CNT}, 1",
           f"  s_cmp_eq_u32 s{S_CNT}, {n1}", "  s_cbranch_scc1 L_hs0",
           f"  s_cmp_eq_u32 s{S_CNT}, {n1-4}", "  s_cbranch_scc1 L_hs1",
           f"  s_cmp_lg_u32 s{S_CNT}, 0", "  s_cbranch_scc1 L_ldloop"]
    H0 = [f"  buffer_load_dword v22, off, {srd(S_DBG)}, s{S_DB} sc1", "  s_branch L_ldloop"]
    H1 = ["  v_and_b32 v21, 15, v22", "  v_cmp_ne_u32 vcc, 4, v21", "  s_cbranch_vccz L_hs2",
          f"  buffer_load_dword v22, off, {srd(S_DBG)}, s{S_DB} sc1", "  s_waitcnt vmcnt(0)", "  s_branch L_hs1"]
    H2 = []
    HX = []
    if hs:
        H0 = ["  v_mov_b32 v22, 0"] + H0
        chk4 = lambda m, lab: [f"  v_and_b32 v21, {m}, v22", f"  v_cmp_ne_u32 vcc, {m}, v21", f"  s_cbranch_vccz {lab}"]
        hello = lambda bits: [f"  s_getreg_b32 s{S_T2}, hwreg(HW_REG_XCC_ID, 0, 3)", f"  s_or_b32 s{S_T2}, s{S_T2}, {bits}", f"  v_mov_b32 v21, s{S_T2}",
                              f"  s_add_u32 s{S_T2}, s{S_DB}, s{S_SP}", f"  buffer_store_byte v21, off, {srd(S_DBG)}, s{S_T2} sc1"]
        memrd = ["  v_mov_b32 v22, 0", f"  buffer_atomic_or v22, off, {srd(S_DBG)}, s{S_DB} sc0 sc1", "  s_waitcnt vmcnt(0)"]
        H1 = chk4("0x80808080", "L_hs2") + ["  s_mov_b64 exec, 1", "  s_waitcnt vmcnt(0)"] + hello("0x80") + ["L_hs1b:",
              f"  buffer_load_dword v22, off, {srd(S_DBG)}, s{S_DB} sc1", "  s_waitcnt vmcnt(0)"] + chk4("0x80808080", "L_hs2") \
            + memrd + chk4("0x80808080", "L_hs2") + ["  s_branch L_hs1b"]
        H2 += ["  s_mov_b64 exec, 1", "  v_alignbit_b32 v21, v22, v22, 8", "  v_xor_b32 v21, v21, v22", "  v_and_b32 v21, 0x07070707, v21",
               "  v_cmp_ne_u32 vcc, 0, v21", "  v_mov_b32 v21, 4", "  s_cbranch_vccnz L_hsfar", "L_hs3:",
               "  ds_write_b32 v20, v21", "  s_mov_b64 exec, -1", "  s_waitcnt lgkmcnt(0)"]
        HX = ["L_hsfar:", "  s_mov_b64 exec, 15", "  v_lshlrev_b32 v21, 7, v0", "  v_mov_b32 v22, 0",
              f"  s_lshl_b32 s{S_T2}, s{S_SP}, 2", f"  s_add_u32 s{S_T2}, s{S_T2}, {OFF_F}",
              f"  buffer_store_dword v22, v21, {srd(S_WS)}, s{S_T2} offen sc1", "  s_mov_b64 exec, 1", "  s_waitcnt vmcnt(0)"] \
            + hello("0xc0") + ["L_hsfar2:"] + memrd + chk4("0x40404040", "L_hsfar3") + ["  s_branch L_hsfar2",
              "L_hsfar3:", "  v_mov_b32 v21, 0", "  s_branch L_hs3"]
    if "H" in abl:
        H1 = ["  s_branch L_hs2"]
        H2 = ["  v_mov_b32 v21, 4", "  ds_write_b32 v20, v21", "  s_waitcnt lgkmcnt(0)"]
    elif l2 and not hs:
        H2 += [f"  s_getreg_b32 s{S_T2}, hwreg(HW_REG_XCC_ID, 0, 3)", f"  s_mul_i32 s{S_T2}, s{S_T2}, 3", f"  s_add_u32 s{S_T2}, s{S_T2}, 4",
               f"  v_bfe_u32 v21, v22, s{S_T2}, 3", "  ds_write_b32 v20, v21", "  s_waitcnt lgkmcnt(0)"]
    if pf:
        if pf != 5:
            LD += WSS
        H2 += ["  v_and_b32 v21, 3, v0", "  v_lshlrev_b32 v21, 7, v21", f"  s_mov_b32 s{S_T2}, {OFF_F}",
               f"  buffer_load_dword v23, v21, {srd(S_WS)}, s{S_T2} offen"]
    H2 += ["  s_branch L_ldloop"]
    D6 = []
    LPF = []
    if pf == 4:
        LPF = [f"  s_mov_b32 m0, {LDS_JUNK}", "  s_nop 0"] + [f"  buffer_load_dword v24, {srd(S_WS)}, s{58+i} offen lds" for i in range(4)]
        LD += [f"  v_min_u32 v24, {SLAB // 128 - 1}, v0", "  v_lshlrev_b32 v24, 7, v24",
               f"  s_mul_i32 s58, s{S_SP}, {4*SLAB}"] + [f"  s_add_u32 s{59+i}, s{58+i}, {SLAB}" for i in range(3)]
    if pfpos >= 2 + nfull_end:
        D6 += LPF
    for i, w_ in enumerate(wend[:nfull_end]):
        body(D6, w_)
        if pfpos == 2 + nfull_end - 1 - i:
            D6 += LPF
    we = list(wend[-2:]) if len(wend) >= 2 else [W, W]
    part(D6, "V", we[0]); mark()
    if pfpos == 1:
        D6 += LPF
    part(D6, "V", we[1]); mark()
    if pfpos == 0:
        D6 += LPF
    assert st["ku"] == NU and st["vu"] == NU, st
    for r, _ in rel():
        D6 += [f"  s_waitcnt vmcnt({r + (4 if LPF and r >= 8 * pfpos and pfpos <= 2 else 0)})", "  s_barrier"]
        st["nbar"] += 1
    assert st["nbar"] == NU + 1, st["nbar"]
    if diag == 6:
        D6 = D6[:-1] + ["  s_memrealtime s[96:97]", "  s_barrier", "  s_waitcnt lgkmcnt(0)"]
        D6 += [f"  s_mov_b32 s{S_WS}, s14", f"  s_mov_b32 s{S_WS+1}, s15", f"  s_mov_b32 s{S_WS+2}, {32<<20}", f"  s_mov_b32 s{S_WS+3}, 0x20000"]
        for k in range(15):
            D6.append(f"  v_mov_b32 v{32+k}, s{68+2*k}")
        D6 += [f"  s_lshl_b32 s{S_T0}, s2, 6", f"  s_add_u32 s{S_T0}, s{S_T0}, {OFF_T + (2 << 20)}", "  s_mov_b64 exec, 1"]
        for i in range(4):
            D6.append(f"  buffer_store_dwordx4 {vr(32+4*i,4)}, off, {srd(S_WS)}, s{S_T0} offset:{16*i}")
    D6.append("  s_endpgm")
    if "E" in abl or "B" in abl:
        k = LD.index(next(l for l in LD if l.startswith("  s_bfe_u32 m0")))
        LD = LD[:k]
        st.update(pos=0, pend=[], load=True, nbar=99, ku=0, vu=0, nmark=0)
        for wh in "KKKKKKKKVVVV":
            part(LD, wh, 40)
        LD += [f"  v_mov_b32 v20, {LDS_MODE}", "  v_mov_b32 v21, 4", "  ds_write_b32 v20, v21", "  s_waitcnt vmcnt(0) lgkmcnt(0)", "  s_barrier", "  s_barrier", "  s_endpgm"]
        D1 = D6 = ["  s_endpgm"]
        H0 = H1 = H2 = HX = DA_ = []
    traces["loader"] = E + LD + D1 + H0 + D1 + H1 + H1 + H2 + HX + H2 + DA_ + D1 + D6
    LOADER = LD + ["L_ldloop:"] + D1 + D6 + ["L_hs0:"] + H0 + ["L_hs1:"] + H1 + ["L_hs2:"] + H2 + HX + DA_

    P = []
    stamp(P)
    Qf = lambda qb, ks: V_Q + 4 * (qb * 4 + ks)
    P += [
        f"  s_sub_u32 s{S_W}, s3, 1",
        f"  s_lshl_b32 s{S_DB}, s{S_BH}, 2",
        f"  s_add_u32 s{S_T1}, s{S_DB}, s{S_W}",
        f"  s_lshl_b32 s{S_T2}, s{S_T1}, 13",
        f"  v_and_b32 v{V_T0}, 15, v0",
        f"  v_lshrrev_b32 v{V_T1}, 4, v0",
        f"  v_lshlrev_b32 v{V_T2}, 4, v{V_T1}",
        f"  v_lshl_add_u32 v{V_T3}, v{V_T0}, 8, v{V_T2}",
        f"  s_mov_b32 s{S_Q+2}, 8192",
        f"  s_mov_b32 s{S_Q+3}, 0x20000",
        f"  s_movk_i32 s{S_T3}, 0x1000",
        f"  s_lshl_b32 s{S_T0}, s{S_BH}, {GB}",
        "  s_waitcnt lgkmcnt(0)",
        f"  s_add_u32 s{S_Q}, s4, s{S_T2}",
        f"  s_addc_u32 s{S_Q+1}, s5, 0",
    ]
    for qb in range(2):
        for ks in range(4):
            so = f"s{S_T3}" if qb else "0"
            if not qlds:
                P.append(f"  buffer_load_dwordx4 {vr(Qf(qb,ks),4)}, v{V_T3}, {srd(S_Q)}, {so} offen offset:{ks*64} {qpol}")
    P += [
        f"  s_add_u32 s{S_WS}, s14, s{S_T0}",
        f"  s_addc_u32 s{S_WS+1}, s15, 0",
        f"  s_mov_b32 s{S_WS+2}, {1 << GB}",
        f"  s_mov_b32 s{S_WS+3}, 0x20000",
        f"  s_add_u32 s{S_OUT}, s10, s{S_T2}",
        f"  s_addc_u32 s{S_OUT+1}, s11, 0",
        f"  s_mov_b32 s{S_OUT+2}, 8192",
        f"  s_mov_b32 s{S_OUT+3}, 0x20000",
        f"  s_lshl_b32 s{S_F}, s{S_W}, 7",
        f"  s_add_u32 s{S_F}, s{S_F}, {OFF_F}",
        f"  s_lshl_b32 s{S_FO}, s{S_SP}, 2",
        f"  s_add_u32 s{S_FO}, s{S_FO}, s{S_F}",
        f"  v_mov_b32 v{V_T2}, 0",
        "  s_mov_b64 exec, 1",
        f"  buffer_store_dword v{V_T2}, off, {srd(S_WS)}, s{S_FO} {rpol}" if "Z" not in abl else "  s_nop 0",
    ]
    if warm:
        P.append(f"  buffer_load_dword v{V_JUNK}, off, {srd(S_OUT)}, 0")
    P += ["  s_mov_b64 exec, -1",
          f"  s_lshl_b32 s{S_OI}, s{S_SP}, 2", f"  s_add_u32 s{S_OI}, s{S_OI}, s{S_W}", f"  s_mul_i32 s{S_OI}, s{S_OI}, {SLAB}"]
    if clr:
        P += [f"  v_lshlrev_b32 v{V_T2}, 4, v0", f"  s_add_u32 s{S_T1}, s{S_OI}, 4096"] + [f"  v_mov_b32 v{V_X+i}, -1" for i in range(4)]
        for i in range(6):
            P.append(f"  buffer_store_dwordx4 {vr(V_X,4)}, v{V_T2}, {srd(S_WS)}, s{S_OI if i < 4 else S_T1} offen offset:{(i&3)*1024}")
        P += ["  s_mov_b64 exec, 0xffff", f"  buffer_store_dwordx4 {vr(V_X,4)}, v{V_T2}, {srd(S_WS)}, s{S_T1} offen offset:2048", "  s_mov_b64 exec, -1", "  s_nop 0"]
    PF = [f"  v_min_u32 v{V_T2}, {SLAB // 128 - 1}, v0", f"  v_lshlrev_b32 v{V_T2}, 7, v{V_T2}",
          f"  buffer_load_dword v{V_JUNK+1}, v{V_T2}, {srd(S_WS)}, s{S_OI} offen"]
    assert bf16p or not pf
    if pf == 1:
        P += PF
    P += [
        f"  v_xor_b32 v{V_T2}, v{V_T0}, v{V_T1}",
        f"  v_lshlrev_b32 v{V_T2}, 4, v{V_T2}",
        f"  v_lshl_add_u32 v{V_KA}, v{V_T0}, 8, v{V_T2}",
    ]
    for ks in range(1, 4):
        P.append(f"  v_xor_b32 v{V_KA+ks}, {ks*64}, v{V_KA}")
    P += [
        f"  v_lshrrev_b32 v{V_T2}, 2, v0",
        f"  v_lshlrev_b32 v{V_T3}, 8, v{V_T2}",
        f"  v_and_b32 v{V_T2}, 7, v{V_T2}",
        f"  s_lshl_b32 s{S_T2}, s{S_SP}, 1",
        f"  v_xor_b32 v{V_T2}, s{S_T2}, v{V_T2}",
        f"  v_lshl_add_u32 v{V_T3}, v{V_T2}, 5, v{V_T3}",
        f"  v_and_b32 v{V_T2}, 3, v0",
        f"  v_lshl_add_u32 v{V_T3}, v{V_T2}, 3, v{V_T3}",
        f"  v_lshlrev_b32 v{V_FADDR}, 2, v{V_T2}",
        f"  v_add_u32 v{V_VA}, {VBASE}, v{V_T3}",
    ]
    for db in range(1, 8):
        P.append(f"  v_xor_b32 v{V_VA+db}, {db*32}, v{V_VA}")
    P += [
        f"  v_cmp_eq_u32 vcc, 0, v{V_T2}",
        f"  v_mov_b32 v{V_T3}, 0x3f803f80",
        f"  v_lshlrev_b32 v{V_LANE16}, 4, v0",
        f"  v_cndmask_b32 v{V_ONE}, 0, v{V_T3}, vcc",
        f"  v_cndmask_b32 v{V_ONE+1}, 0, v{V_T3}, vcc",
        f"  v_cndmask_b32 v{V_ONE+2}, 0, v{V_T3}, vcc",
        f"  v_cndmask_b32 v{V_ONE+3}, 0, v{V_T3}, vcc",
        f"  s_mov_b32 s{S_C}, {f32(c)}",
        f"  s_mov_b32 s{S_THR}, {f32(THR)}",
    ]
    for i in range(32):
        P.append(f"  v_mov_b64 v[{V_O+2*i}:{V_O+2*i+1}], 0")
    X = []
    for j in range(1, 4):
        X += [f"  s_xor_b32 s{S_T1}, s{S_SP}, {j}", f"  s_lshl_b32 s{S_T1}, s{S_T1}, 2", f"  s_add_u32 s{S_T1}, s{S_T1}, s{S_W}",
              f"  s_mul_i32 s{S_T1}, s{S_T1}, {SLAB}",
              f"  s_add_u32 s{S_ML+j}, s{S_T1}, {3*R}", f"  s_add_u32 s{S_OD+j-1}, s{S_T1}, {(j-1)*R}"]
    X += [f"  s_add_u32 s{S_ML}, s{S_OI}, {3*R}", f"  v_and_b32 v{V_MLA}, 0xf0, v{V_LANE16}"]
    X += [
        f"  v_and_b32 v{V_T2}, 15, v0", f"  v_lshlrev_b32 v{V_OUTA}, 8, v{V_T2}",
        f"  v_bfe_u32 v{V_T2}, v0, 4, 1", f"  v_lshl_add_u32 v{V_OUTA}, v{V_T2}, 5, v{V_OUTA}",
        f"  v_lshrrev_b32 v{V_T2}, 5, v0", f"  v_lshl_add_u32 v{V_OUTA}, v{V_T2}, 4, v{V_OUTA}",
        f"  s_lshl_b32 s{S_T2}, s{S_SP}, 6", f"  v_add_u32 v{V_OUTA}, s{S_T2}, v{V_OUTA}",
    ]
    if qlds:
        X += [f"  s_lshl_b32 s{S_T2}, s{S_W}, 13", f"  s_add_u32 s{S_T2}, s{S_T2}, {QBASE}"]
        X += [f"  v_add_u32 v{V_X+ks}, s{S_T2}, v{V_KA+ks}" for ks in range(4)]
        P += X + (PF[:2] if pf in (2, 3) else []) + ["  s_waitcnt vmcnt(0)", "  s_barrier"] + (PF[2:] if pf == 2 else [])
        P += [f"  ds_read_b128 {vr(Qf(qb,ks),4)}, v{V_X+ks} offset:{qb*4096}" for qb in range(2) for ks in range(4)]
        P += ["  s_waitcnt lgkmcnt(0)"]
    elif pf >= 4:
        P += ["  s_barrier"] + X + ["  s_waitcnt vmcnt(0)"]
    elif pf >= 2:
        P += ["  s_barrier"] + X + PF[:2] + ["  s_waitcnt vmcnt(0)"] + (PF[2:] if pf == 2 else [])
    else:
        P += ["  s_barrier"] + X + [f"  s_waitcnt vmcnt({(1 if warm else 0) + (1 if pf else 0)})"]
    if pre == 1:
        P += [f"  v_mov_b32 v{V_T2}, s{S_C}"]
        for i in range(33):
            q = V_Q + i
            t = V_S + 2 * (i & 3)
            if i < 32:
                P += [f"  v_lshlrev_b32 v{t}, 16, v{q}", f"  v_and_b32 v{t+1}, 0xffff0000, v{q}",
                      f"  v_pk_mul_f32 v[{t}:{t+1}], v[{t}:{t+1}], v[{V_T2}:{V_T2+1}] op_sel_hi:[1,0]"]
            if i:
                t = V_S + 2 * ((i - 1) & 3)
                P += [f"  v_cvt_pk_bf16_f32 v{q-1}, v{t}, v{t+1}"]
    if bq:
        assert qlds == 1
        P += ["  s_barrier"]
    stamp(P)
    PA = [f"  s_mov_b32 s{S_DBG}, s12", f"  s_mov_b32 s{S_DBG+1}, s13", f"  s_mov_b32 s{S_DBG+2}, 256", f"  s_mov_b32 s{S_DBG+3}, 0x20000"]
    if hs:
        PA += [f"  s_getreg_b32 s{S_T2}, hwreg(HW_REG_XCC_ID, 0, 3)", f"  s_or_b32 s{S_T2}, s{S_T2}, 0x80", f"  v_mov_b32 v{V_T2}, s{S_T2}",
               f"  s_add_u32 s{S_T2}, s{S_DB}, s{S_SP}", "  s_mov_b64 exec, 1",
               f"  buffer_store_byte v{V_T2}, off, {srd(S_DBG)}, s{S_T2} {'sc1' if hs == 1 else ''}", "  s_mov_b64 exec, -1"]
    else:
        if l2:
            PA += [f"  s_getreg_b32 s{S_T2}, hwreg(HW_REG_XCC_ID, 0, 3)", f"  s_mul_i32 s{S_T2}, s{S_T2}, 3",
                   f"  s_lshl_b32 s{S_T2}, 16, s{S_T2}", f"  s_add_u32 s{S_T2}, s{S_T2}, 1", f"  v_mov_b32 v{V_T2}, s{S_T2}"]
        else:
            PA += [f"  v_mov_b32 v{V_T2}, 1"]
        PA += [
            "  s_mov_b64 exec, 1",
            f"  buffer_atomic_add v{V_T2}, off, {srd(S_DBG)}, s{S_DB} sc1",
            "  s_mov_b64 exec, -1",
        ]
    if "H" in abl:
        PA = []

    Sb = lambda par, kbl, qb: V_S + 16 * par + 4 * (kbl * 2 + qb)
    Pb = lambda par, qb: V_P + 8 * par + 4 * qb
    Lb = lambda par, qb: V_L + 8 * par + 4 * qb
    Ob = lambda db, qb: V_O + 4 * (db * 2 + qb)
    Fr = lambda half, f: V_FR + 16 * half + 4 * f

    def kreads(half, u, kbl):
        return [f"  ds_read_b128 {vr(Fr(half,ks),4)}, v{V_KA+ks} offset:{(u % NSL)*8192 + kbl*4096}" for ks in range(4)]

    def vreads(half, u, dbs):
        o = []
        for f, db in enumerate(dbs):
            for h in range(2):
                o.append(f"  ds_read_b64_tr_b16 {vr(Fr(half,f)+2*h,2)}, v{V_VA+db} offset:{(u % NSL)*8192 + h*4096}")
        return o

    def qkm(half, u, kbl, first=False):
        o = []
        for qb, ks in {1: [(a, b) for a in range(2) for b in range(4)], 0: [(a, b) for b in range(4) for a in range(2)], 2: [(0, 0), (0, 1), (0, 2), (0, 3), (1, 3), (1, 2), (1, 1), (1, 0)]}[chain]:
            if True:
                d = vr(Sb(u & 1, kbl, qb), 4)
                c0 = vr(V_NM + 4 * qb, 4) if (pre and not first) else 0
                o.append(f"  v_mfma_f32_16x16x32_bf16 {d}, {vr(Fr(half,ks),4)}, {vr(Qf(qb,ks),4)}, {d if ks != (3 if chain == 2 and qb else 0) else c0}")
        return o

    def pvm(half, u, dbs, order=None):
        o = []
        order = pvo if order is None else order
        seq = {0: [(f, qb) for f in range(4) for qb in range(2)],
               1: [(f, qb) for qb in range(2) for f in range(4)],
               2: [(f, (f + i) & 1) for i in range(2) for f in range(4)]}[order]
        for f, qb in seq:
            d = vr(Ob(dbs[f], qb), 4)
            o.append(f"  v_mfma_f32_16x16x32_bf16 {d}, {vr(Fr(half,f),4)}, {vr(Pb(u&1,qb),4)}, {d}")
        return o

    def lm(par, first=False):
        return [f"  v_mfma_f32_16x16x32_bf16 {vr(Lb(par,qb),4)}, {vr(V_ONE,4)}, {vr(Pb(par,qb),4)}, {0 if first else vr(Lb(par^1,qb),4)}"
                for qb in range(2)]

    def softmax(par):
        pairs = [(kbl, qb, h) for kbl in range(2) for qb in range(2) for h in range(2)]
        s3 = [[], [], []]
        for k, (kbl, qb, h) in enumerate(pairs):
            s = Sb(par, kbl, qb) + 2 * h
            x = V_X + 2 * (k & 3)
            if pre == 1:
                s3[0].append([])
                s3[1].append([f"  v_exp_f32 v{x}, v{s}", f"  v_exp_f32 v{x+1}, v{s+1}"])
            else:
                if pre == 2 and pk:
                    s3[0].append([f"  v_pk_mul_f32 v[{x}:{x+1}], v[{s}:{s+1}], s[{S_C}:{S_C+1}] op_sel_hi:[1,0]"])
                elif pre == 2:
                    s3[0].append([f"  v_mul_f32 v{x}, s{S_C}, v{s}", f"  v_mul_f32 v{x+1}, s{S_C}, v{s+1}"])
                elif pk:
                    s3[0].append([f"  v_pk_fma_f32 v[{x}:{x+1}], v[{s}:{s+1}], s[{S_C}:{S_C+1}], v[{V_M}:{V_M+1}] op_sel:[0,0,{qb}] op_sel_hi:[1,0,{qb}] neg_lo:[0,0,1] neg_hi:[0,0,1]"])
                else:
                    s3[0].append([f"  v_fma_f32 v{x}, v{s}, s{S_C}, -v{V_M+qb}", f"  v_fma_f32 v{x+1}, v{s+1}, s{S_C}, -v{V_M+qb}"])
                s3[1].append([f"  v_exp_f32 v{x}, v{x}", f"  v_exp_f32 v{x+1}, v{x+1}"])
            s3[2].append([f"  v_cvt_pk_bf16_f32 v{Pb(par,qb)+2*kbl+h}, v{x}, v{x+1}"])
        o = []
        for k in range(10):
            for j in range(3):
                if 0 <= k - j < 8:
                    o += s3[j][k - j]
        return o

    def softmax_plain(par):
        sm = softmax(par)
        return sm[:-1] + ["  s_nop 0", sm[-1], "  s_nop 1"]

    def chk(par):
        return [f"  v_add_f32 v{V_T0}, v{Lb(par,0)}, v{Lb(par,1)}", f"  v_cmp_nge_f32 vcc, s{S_THR}, v{V_T0}"]

    sites = []

    def br(par):
        k = len(sites)
        sites.append(par)
        return [f"  s_cbranch_vccnz L_fix{k}", f"L_ret{k}:"]

    def xmax(reg, tmp):
        return [f"  v_mov_b32 v{tmp}, v{reg}", "  s_nop 1", f"  v_permlane16_swap_b32 v{reg}, v{tmp}",
                f"  v_max_f32 v{reg}, v{reg}, v{tmp}",
                f"  v_mov_b32 v{tmp}, v{reg}", "  s_nop 1", f"  v_permlane32_swap_b32 v{reg}, v{tmp}",
                f"  v_max_f32 v{reg}, v{reg}, v{tmp}"]

    def maxof(dst, regs):
        o = [f"  v_max3_f32 v{dst}, v{regs[0]}, v{regs[1]}, v{regs[2]}"]
        k = 3
        while k + 1 < len(regs):
            o.append(f"  v_max3_f32 v{dst}, v{dst}, v{regs[k]}, v{regs[k+1]}")
            k += 2
        if k < len(regs):
            o.append(f"  v_max_f32 v{dst}, v{dst}, v{regs[k]}")
        return o

    def group(mf, reads, fill, rd=None):
        o = []
        rd = rd or RD
        per = -(-len(reads) // rd) if reads else 0
        for i, m in enumerate(mf):
            o.append(m)
            o += reads[i * per:(i + 1) * per]
            o += fill[i]
        return o

    def coarse(lines, pend):
        if WG >= 4:
            return auto_lgkm(lines, pend)
        out = []
        n = 4 // WG
        for l in lines:
            if l.strip().startswith("v_mfma"):
                a = int(l.split(",")[2 if "x" in abl else 1].split("[")[1].split(":")[0])
                if V_FR <= a < V_FR + 32:
                    f = (a - V_FR) // 4
                    last = V_FR + 4 * ((f // n) * n + n - 1) + 3
                    out.append(f"  v_touch v{last}, v{last}")
            out.append(l)
        out, pend = auto_lgkm(out, pend)
        return [l for l in out if not l.strip().startswith("v_touch")], pend

    def ablate(B):
        if "d" in abl:
            B = [l for l in B if not l.strip().startswith("ds_")]
        if "v" in abl:
            B = [l for l in B if not l.strip().startswith(("v_exp", "v_fma", "v_cvt"))]
        if "B" in abl:
            B = [l for l in B if l.strip() != "s_barrier"]
        if "k" in abl:
            B = [l for l in B if not l.strip().startswith("ds_read_b128")]
        if "t" in abl:
            B = [l for l in B if not l.strip().startswith("ds_read_b64_tr")]
        if "o" in abl:
            B = [l for l in B if f"v[{V_ONE}:" not in l]
        if "q" in abl:
            B = [l for l in B if not (l.strip().startswith("v_mfma") and V_S <= int(l.split("[")[1].split(":")[0]) < V_S + 32)]
        if "p" in abl:
            B = [l for l in B if not (l.strip().startswith("v_mfma") and V_O <= int(l.split("[")[1].split(":")[0]) < V_O + 64)]
        if "x" in abl:
            BB = []
            for l in B:
                if l.strip().startswith("v_mfma"):
                    a = l.split(", ")
                    l = ", ".join([a[0], a[2], a[1], a[3]])
                BB.append(l)
            B = BB
        return B

    DA, DB_ = [0, 1, 2, 3], [4, 5, 6, 7]

    def fills(par, nfront):
        n = nfront + max(LPOS - 1, 0)
        wts = [1.0] * n
        if bal and nfront == 24:
            per = [-(-4 // RD), -(-8 // RD), -(-8 // RD)]
            cnt = [4, 8, 8]
            for g in range(3):
                for i in range(8):
                    nr = max(0, min(per[g], cnt[g] - i * per[g]))
                    wts[8 * g + i] = max(0.2, 3.1 - nr)
            for i in range(24, n):
                wts[i] = 2.1
        f = spread(softmax(par)[NE:], wts)
        return f + [[] for _ in range(nfront + 10 - n)]

    def closing(n, nxt_reads, tailfill, extra=()):
        o = ["  s_waitcnt lgkmcnt(0)", "  s_barrier"] + list(extra)
        mf = pvm(1, n - 1, DB_)
        mf = mf[:LPOS] + lm(n & 1) + mf[LPOS:]
        fl = [list(x) for x in tailfill]
        c2 = chk(n & 1)
        if n < NU - 1:
            for i, e in enumerate(spread(softmax((n + 1) & 1)[:NE], [1] * (8 - LPOS - 1))):
                fl[LPOS + 1 + i] += e
        fl[8] = fl[8] + c2
        o += group(mf, nxt_reads, fl)
        return o + br(n & 1)

    def front(n):
        f = fills(n & 1, 24)
        o = group(qkm(0, n + 1, 0), kreads(1, n + 1, 1), f[0:8])
        o += group(qkm(1, n + 1, 1), vreads(0, n - 1, DA), f[8:16])
        o += group(pvm(0, n - 1, DA), vreads(1, n - 1, DB_), f[16:24])
        return o, f[24:34]

    P2 = kreads(0, 0, 0) + kreads(1, 0, 1) + qkm(0, 0, 0, True) + kreads(0, 1, 0) + qkm(1, 0, 1, True) + kreads(1, 1, 1) \
        + qkm(0, 1, 0, True) + qkm(1, 1, 1, True) + ["  s_nop 7"]
    for qb in range(2):
        P2 += maxof(V_M + qb, [Sb(par, kbl, qb) + r for par in range(2) for kbl in range(2) for r in range(4)])
    for qb in range(2):
        P2 += xmax(V_M + qb, V_T0)
    if pre:
        for qb in range(2):
            for par in range(2):
                for kbl in range(2):
                    for r in range(4):
                        s = Sb(par, kbl, qb) + r
                        P2.append(f"  v_sub_f32 v{s}, v{s}, v{V_M+qb}")
            for r in range(4):
                P2.append(f"  v_sub_f32 v{V_NM+4*qb+r}, 0, v{V_M+qb}")
    else:
        for qb in range(2):
            P2.append(f"  v_mul_f32 v{V_M+qb}, s{S_C}, v{V_M+qb}")
    P2 += softmax_plain(0) + lm(0, True) + softmax(1)[:NE]
    if fastp:
        V = []
        for qb in range(2):
            V += maxof(V_M + qb, [Sb(0, kbl, qb) + r for kbl in range(2) for r in range(4)])
        a, b = xmax(V_M, V_T0), xmax(V_M + 1, V_T1)
        for x, y in zip(a, b):
            V += [x, y] if "s_nop" not in x else ["  s_nop 0"]
        subm = lambda par: [f"  v_sub_f32 v{Sb(par,kbl,qb)+r}, v{Sb(par,kbl,qb)+r}, v{V_M+qb}" for kbl in range(2) for qb in range(2) for r in range(4)]
        if pre:
            V += subm(0)
        else:
            V += [f"  v_mul_f32 v{V_M+qb}, s{S_C}, v{V_M+qb}" for qb in range(2)]
        V += softmax(0)
        fl = [[] for _ in range(4)] + spread(V, [1] * 12)
        fl[3] = ["  s_nop 3"]
        P2 = kreads(0, 0, 0) + kreads(1, 0, 1) + qkm(0, 0, 0, True) + kreads(0, 1, 0) + qkm(1, 0, 1, True) + kreads(1, 1, 1)
        P2 += group(qkm(0, 1, 0, True) + qkm(1, 1, 1, True), [], fl) + ["  s_nop 1"] + lm(0, True)
        if pre:
            P2 += [f"  v_sub_f32 v{V_NM+4*qb+r}, 0, v{V_M+qb}" for qb in range(2) for r in range(4)] + subm(1)
        P2 += softmax(1)[:NE]
    nit = (NU - 2 + NSL - 1) // NSL
    P2 += [f"  s_mov_b32 s{S_CNT}, {nit}"] + (["  s_waitcnt vmcnt(0)"] if pf < 2 else PF[2:] if pf == 3 else []) + ["  s_barrier"] + kreads(0, 2, 0)
    P2, pend0 = auto_lgkm(P2)
    if diag in (3, 7):
        P2 += ["  s_mov_b32 s95, 0"]
    if hs == 3:
        assert qlds and pf >= 4
        k = P.index("  s_barrier") + 1
        P = P[:k] + [f"  s_cmp_lg_u32 s{S_W}, 0", "  s_cbranch_scc1 L_nohello"] + PA + ["L_nohello:"] + P[k:]
        k = P2.index("  s_barrier")
        P2 = P2[:k] + ["  s_waitcnt vmcnt(0)"] + P2[k:] + ["  s_branch L_mid"]
    else:
        P2 += [f"  s_cmp_lg_u32 s{S_W}, 0", "  s_cbranch_scc1 L_mid"] + PA + ["  s_branch L_mid"]

    BODY = []
    nfirst = NU - 1 - NSL
    tf = front(nfirst - 1)[1]
    midx = None
    for n in range(nfirst, NU - 1):
        extra = []
        if (diag == 3 and n % 2 == 1) or diag == 7:
            extra = ["  s_memrealtime s[92:93]", "  s_memtime s[90:91]", "  s_add_u32 s95, s95, 1", "  s_min_u32 s95, s95, 31", "  s_add_u32 s94, s95, 32", "  s_waitcnt lgkmcnt(0)",
                     "  s_mov_b32 m0, s95", f"  v_writelane_b32 v{V_TR}, s92, m0", "  s_mov_b32 m0, s94", f"  v_writelane_b32 v{V_TR}, s90, m0"]
        if diag == 4 and n == nfirst:
            extra = [f"  s_cmp_lg_u32 s{S_CNT}, {nit - 16 // NSL}", "  s_cbranch_scc1 L_nost", "  s_memtime s[96:97]", "  s_memrealtime s[98:99]",
                     "  s_waitcnt lgkmcnt(0)", "  s_mov_b32 s94, 0", "L_nost:"]
        cl = closing(n - 1, kreads(0, n + 1, 0), tf, extra)
        fr, tf = front(n)
        if n == NU - 2:
            k = max(i for i, l in enumerate(fr) if "v_mfma" in l)
            fr = fr[:k] + [f"  s_sub_u32 s{S_CNT}, s{S_CNT}, 1", f"  s_cmp_lg_u32 s{S_CNT}, 0"] + fr[k:] + ["  s_cbranch_scc1 L_loop"]
        cl, pendc = coarse(ablate(cl), [])
        assert abl or pendc == pend0
        if "q" in abl or "p" in abl:
            fr = [x for l in fr for x in ([l, "  s_waitcnt lgkmcnt(6)"] if l.strip().startswith("ds_") else [l])]
        fr, pendf = coarse(ablate(fr), pendc)
        if n % NSL == 1 % NSL:
            midx = len(BODY)
        BODY.append((cl, fr))

    def fix(par):
        o = ["  s_nop 7"]
        for qb in range(2):
            o += maxof(V_T0 + qb, [Sb(par, kbl, qb) + r for kbl in range(2) for r in range(4)])
        for qb in range(2):
            o += xmax(V_T0 + qb, V_T2)
        for qb in range(2):
            t = V_T0 + qb
            if pre:
                o += [f"  v_max_f32 v{t}, 0, v{t}", f"  v_add_f32 v{V_M+qb}, v{V_M+qb}, v{t}"]
                for p2 in range(2):
                    for kbl in range(2):
                        for r in range(4):
                            s = Sb(p2, kbl, qb) + r
                            o.append(f"  v_sub_f32 v{s}, v{s}, v{t}")
                for r in range(4):
                    o.append(f"  v_sub_f32 v{V_NM+4*qb+r}, 0, v{V_M+qb}")
                if pre == 2:
                    o += [f"  v_mul_f32 v{t}, s{S_C}, v{t}"]
                o += [f"  v_exp_f32 v{t}, -v{t}"]
            else:
                o += [f"  v_mul_f32 v{t}, s{S_C}, v{t}", f"  v_max_f32 v{t}, v{t}, v{V_M+qb}",
                      f"  v_sub_f32 v{V_T2}, v{V_M+qb}, v{t}", f"  v_mov_b32 v{V_M+qb}, v{t}", f"  v_exp_f32 v{t}, v{V_T2}"]
        o.append("  s_nop 0")
        for qb in range(2):
            o.append(f"  v_mul_f32 v{Lb(par^1,qb)}, v{V_T0+qb}, v{Lb(par^1,qb)}")
            for db in range(8):
                for r in range(4):
                    o.append(f"  v_mul_f32 v{Ob(db,qb)+r}, v{V_T0+qb}, v{Ob(db,qb)+r}")
        return o + softmax_plain(par) + lm(par) + softmax(par ^ 1)[:NE] + ["  s_nop 7"]
    FIX = [fix(0), fix(1)]

    T1 = []
    if diag == 4:
        T1 += ["  s_waitcnt lgkmcnt(0)", "  s_memtime s[90:91]", "  s_memrealtime s[92:93]", "  s_waitcnt lgkmcnt(0)", "  s_sub_u32 s96, s90, s96", "  s_sub_u32 s98, s92, s98"]
    X = []
    if l2:
        X += [f"  v_mov_b32 v{V_T2}, {LDS_MODE}", f"  ds_read_b32 v{V_T3}, v{V_T2}", "  s_waitcnt lgkmcnt(0)",
              f"  v_readfirstlane_b32 s{S_MODE}, v{V_T3}"]
    T1 += X
    T1 += closing(NU - 2, vreads(0, NU - 2, DA), tf)
    f = fills(1, 8)
    T1 += group(pvm(0, NU - 2, DA), vreads(1, NU - 2, DB_), f[0:8])
    T1, pend = auto_lgkm(T1, pendf)
    c2 = closing(NU - 1, [], f[8:18])[2:]
    k = next(i for i, l in enumerate(c2) if l.strip().startswith("v_add_f32"))
    c2 = c2[:k] + ["  s_nop 3"] + c2[k:]
    c2, pend = auto_lgkm(c2, pend)
    assert not pend
    T1 += c2
    ML = V_X
    T1 += [
        f"  v_mov_b32 v{ML}, v{V_M}" if pre != 2 else f"  v_mul_f32 v{ML}, s{S_C}, v{V_M}",
        f"  v_mov_b32 v{ML+1}, v{V_M+1}" if pre != 2 else f"  v_mul_f32 v{ML+1}, s{S_C}, v{V_M+1}",
        f"  v_mov_b32 v{ML+2}, v{Lb(1,0)}", f"  v_mov_b32 v{ML+3}, v{Lb(1,1)}",
    ]

    def publish(spol):
        def ostore(j):
            o = []
            if bf16p:
                b = V_S + 8 * (j - 1)
                for i in range(8):
                    o.append(f"  v_cvt_pk_bf16_f32 v{b+i}, v{V_O+16*j+2*i}, v{V_O+16*j+2*i+1}")
                    if i & 3 == 3:
                        o.append(f"  buffer_store_dwordx4 {vr(b+(i&4),4)}, v{V_LANE16}, {srd(S_WS)}, s{S_OD+j-1} offen offset:{(i>>2)*1024} {spol}")
            else:
                for i in range(4):
                    o.append(f"  buffer_store_dwordx4 {vr(V_O+16*j+4*i,4)}, v{V_LANE16}, {srd(S_WS)}, s{S_OD+j-1} offen offset:{i*1024} {spol}")
            return o
        nstamp[0] = 2
        o = ["  s_mov_b64 exec, 0xffff", f"  buffer_store_dwordx4 {vr(ML,4)}, v{V_LANE16}, {srd(S_WS)}, s{S_ML} offen {spol}", "  s_mov_b64 exec, -1"]
        stamp(o)
        o.append("  s_barrier")
        stamp(o)
        r0 = vreads(0, NU - 1, [2, 3, 4, 5])
        r1 = vreads(1, NU - 1, [6, 7, 0, 1])
        o += r0 + r1[:6]
        mf = pvm(0, NU - 1, [2, 3, 4, 5], 0) + pvm(1, NU - 1, [6, 7, 0, 1], 0)
        if tord == 0:
            o += mf[:2] + r1[6:] + mf[2:12] + ostore(1)[:5] + mf[12:14] + ostore(1)[5:] + mf[14:16] + ostore(2) + ostore(3)
        else:
            st_ = ostore(1) + ostore(2) + ostore(3)
            o += mf[:2] + r1[6:] + mf[2:8]
            k = 0
            for i, n in zip(range(8, 16), (2, 3, 2, 3, 5, 5, 5, 5)):
                o += [mf[i]] + st_[k:k + n]
                k += n
        o, pend = auto_lgkm(o)
        assert not pend
        return o + [f"  v_mov_b32 v{V_T1}, 1", "  s_mov_b64 exec, 1", "  s_waitcnt vmcnt(0)",
                    f"  buffer_store_dword v{V_T1}, off, {srd(S_WS)}, s{S_FO} {spol}"]
    if l2:
        T1 += [f"  s_cmp_eq_u32 s{S_MODE}, 4", "  s_cbranch_scc0 L_far"]
        FAR = publish("sc1") + ["  s_branch L_farret"]
        T2 = publish(npol) + ["L_farret:"]
    else:
        T2 = publish("sc1")
    T2 += ["  s_mov_b64 exec, 15"]
    stamp(T2)
    TP = [
        f"  buffer_load_dword v{V_T1}, v{V_FADDR}, {srd(S_WS)}, s{S_F} offen {ppol}",
        "  s_waitcnt vmcnt(0)",
        f"  v_cmp_ne_u32 vcc, 1, v{V_T1}",
        "  s_cbranch_vccz L_got",
    ] + ([f"  s_sleep {slp}"] if slp else []) + ["  s_branch L_poll"]
    T3 = ["  s_mov_b64 exec, -1"]
    if l2:
        T3 += [f"  s_cmp_eq_u32 s{S_MODE}, 4", "  s_cbranch_scc1 L_near", "  buffer_inv sc1", "  s_waitcnt vmcnt(0)", "L_near:"]
    stamp(T3)
    VML = V_FR
    VIN = V_S
    for j in range(1, 4):
        T3.append(f"  buffer_load_dwordx4 {vr(VML+4*(j-1),4)}, v{V_MLA}, {srd(S_WS)}, s{S_ML+j} offen {lpol}")
    nld = 2 if bf16p else 4
    for j in range(1, 4):
        if j > 1 and not bf16p:
            T3.append(f"  s_add_u32 s{S_OI}, s{S_OI}, {R}")
        if j == 3 and bf16p:
            T3.append(f"  s_add_u32 s{S_OI}, s{S_OI}, {2*R}")
        for i in range(nld):
            off = i * 1024 + (R if (bf16p and j == 2) else 0)
            T3.append(f"  buffer_load_dwordx4 {vr(VIN+4*nld*(j-1)+4*i,4)}, v{V_LANE16}, {srd(S_WS)}, s{S_OI} offen offset:{off} {lpol}")
    G = V_FR + 16
    p2 = lambda r: f"v[{r}:{r+1}]"
    ml = lambda j: ML if j == 0 else VML + 4 * (j - 1)
    WT = []
    for qb in range(2):
        WT += [f"  v_max3_f32 v{V_T0+qb}, v{ml(0)+qb}, v{ml(1)+qb}, v{ml(2)+qb}"]
    for qb in range(2):
        WT += [f"  v_max_f32 v{V_T0+qb}, v{V_T0+qb}, v{ml(3)+qb}"]
    for j in range(4):
        WT.append(f"  v_pk_add_f32 {p2(G+2*j)}, {p2(ml(j))}, {p2(V_T0)} neg_lo:[0,1] neg_hi:[0,1]")
    for j in range(8):
        WT.append(f"  v_exp_f32 v{G+j}, v{G+j}")
    WT.append(f"  v_pk_mul_f32 {p2(V_T0)}, {p2(G)}, {p2(ml(0)+2)}")
    for j in range(1, 4):
        WT.append(f"  v_pk_fma_f32 {p2(V_T0)}, {p2(G+2*j)}, {p2(ml(j)+2)}, {p2(V_T0)}")
    WT += [f"  v_rcp_f32 v{V_T0}, v{V_T0}", f"  v_rcp_f32 v{V_T1}, v{V_T1}", "  s_nop 0"]
    for j in range(4):
        WT.append(f"  v_pk_mul_f32 {p2(G+2*j)}, {p2(G+2*j)}, {p2(V_T0)}")
    UP = []
    U = V_O + 16 if bf16p else VIN
    if bf16p:
        for i in range(24):
            if i % 4 == 0:
                UP.append(f"  s_waitcnt vmcnt({5 - i // 4})")
            UP += [f"  v_lshlrev_b32 v{U+2*i}, 16, v{VIN+i}", f"  v_and_b32 v{U+2*i+1}, 0xffff0000, v{VIN+i}"]
    else:
        UP.append("  s_waitcnt vmcnt(0)")
    T3.append(f"  s_waitcnt vmcnt({3*nld})")
    T3 += WT[:16]
    k = 0
    for w_ in WT[16:]:
        T3 += UP[k:k + 2] + ([w_] if "s_nop" not in w_ or k >= len(UP) else [])
        k += 2
    T3 += UP[k:]
    sel = lambda i, n: " op_sel:[0,%d%s] op_sel_hi:[1,%d%s]" % ((i >> 2) & 1, ",0" * n, (i >> 2) & 1, ",1" * n)
    for i in range(0, 16, 2):
        T3.append(f"  v_pk_mul_f32 {p2(V_O+i)}, {p2(V_O+i)}, {p2(G)}" + sel(i, 0))
    for j in range(1, 4):
        for i in range(0, 16, 2):
            T3.append(f"  v_pk_fma_f32 {p2(V_O+i)}, {p2(U+16*(j-1)+i)}, {p2(G+2*j)}, {p2(V_O+i)}" + sel(i, 1))
    stamp(T3)
    OV = V_FR
    for qb in range(2):
        for e in range(2):
            for h in range(2):
                T3.append(f"  v_cvt_pk_bf16_f32 v{OV+4*qb+2*e+h}, v{Ob(e,qb)+2*h}, v{Ob(e,qb)+2*h+1}")
    T3 += [
        f"  v_permlane16_swap_b32 v{OV}, v{OV+2}",
        f"  v_permlane16_swap_b32 v{OV+1}, v{OV+3}",
        f"  buffer_store_dwordx4 {vr(OV,4)}, v{V_OUTA}, {srd(S_OUT)}, 0 offen {opol}",
        f"  v_permlane16_swap_b32 v{OV+4}, v{OV+6}",
        f"  v_permlane16_swap_b32 v{OV+5}, v{OV+7}",
        f"  buffer_store_dwordx4 {vr(OV+4,4)}, v{V_OUTA}, {srd(S_OUT)}, s{S_T3} offen {opol}",
    ]
    if diag:
        T3.append("  s_waitcnt vmcnt(0)")
        stamp(T3)
        T3 += [f"  s_mov_b32 s{S_WS}, s14", f"  s_mov_b32 s{S_WS+1}, s15", f"  s_mov_b32 s{S_WS+2}, {32<<20}"]
        T3.append("  s_getreg_b32 s4, hwreg(HW_REG_XCC_ID)")
        for k in range(nstamp[0]):
            T3.append(f"  v_mov_b32 v{V_S+k}, s{S_ST+2*k}")
        T3.append(f"  v_mov_b32 v{V_S+15}, s4")
        T3.append(f"  v_mov_b32 v{V_S+11}, 31")
        if diag in (3, 7):
            T3 += [f"  s_lshl_b32 s{S_T0}, s2, 2", f"  s_add_u32 s{S_T0}, s{S_T0}, s{S_W}", f"  s_lshl_b32 s{S_T0}, s{S_T0}, 8",
                   f"  s_add_u32 s{S_T0}, s{S_T0}, {OFF_T + (1 << 20)}", f"  v_lshrrev_b32 v{V_T0}, 2, v{V_LANE16}",
                   f"  buffer_store_dword v{V_TR}, v{V_T0}, {srd(S_WS)}, s{S_T0} offen"]
        if diag == 4:
            T3 += [f"  v_mov_b32 v{V_S+12}, s94", f"  v_mov_b32 v{V_S+13}, s96", f"  v_mov_b32 v{V_S+14}, s98"]
        T3 += [
            f"  s_lshl_b32 s{S_T0}, s2, 2",
            f"  s_add_u32 s{S_T0}, s{S_T0}, s{S_W}",
            f"  s_lshl_b32 s{S_T0}, s{S_T0}, 6",
            f"  s_add_u32 s{S_T0}, s{S_T0}, {OFF_T}",
            "  s_mov_b64 exec, 1",
        ]
        for i in range(4):
            T3.append(f"  buffer_store_dwordx4 {vr(V_S+4*i,4)}, off, {srd(S_WS)}, s{S_T0} offset:{16*i}")
    T3.append("  s_endpgm")

    if "S" in abl:
        T1 = [l for l in T1 if not l.strip().startswith("buffer_store")]
        T2 = [l for l in T2 if not l.strip().startswith("buffer_store_dwordx4")]
    if "F" in abl:
        T2 = [l for l in T2 if not l.strip().startswith("buffer_store_dword ")]
        TP = []
    if "R" in abl:
        T3 = [l for l in T3 if not l.strip().startswith("buffer_load")]

    def inline_fix(lines):
        o = []
        for l in lines:
            o.append(l)
            if l.strip().startswith("s_cbranch_vccnz L_fix"):
                o += FIX[sites[int(l.strip().split("L_fix")[1])]]
        return o
    flat = [l for cl, fr in BODY for l in cl + fr]
    first = BODY[midx][1] + [l for cl, fr in BODY[midx + 1:] for l in cl + fr]
    main = E + P + P2 + first + flat + T1 + T2 + TP + T3
    nbar = sum(l == "  s_barrier" for l in P + P2 + first + flat * (nit - 1) + T1 + T2)
    assert nbar == NU + 1 + bq or abl, nbar
    traces["cons_a"] = main
    traces["cons_b"] = inline_fix(main)
    errs = []
    for n, t in traces.items():
        errs += check_hazards(t, n)
    if errs and not abl.strip("L"):
        raise RuntimeError("hazards:\n" + "\n".join(errs))

    out = [HEADER.rstrip(),
           "; 256 workgroups = 64 (batch, kv head) pairs x 4 key splits; wave 0 streams K/V into an LDS ring,",
           "; waves 1-4 each own one query head (32 rows); partial results are exchanged through d_ws.",
           f"; @launch grid=(256,1,1) block=(320,1,1) lds={lds}",
           '.amdgcn_target "amdgcn-amd-amdhsa--gfx950"', ".text", f".globl {NAME}", ".p2align 8",
           f".type {NAME},@function", f"{NAME}:"]
    out += E + LOADER
    out += [".p2align 6", "L_cons:"] + P + P2
    out += [".p2align 6", "L_loop:"]
    loop = []
    for i, (cl, fr) in enumerate(BODY):
        loop += cl + (["L_mid:"] if i == midx else []) + fr
    if al == 1:
        loop, nmis, ph = align8(loop)
    if al == 2:
        loop, nmis, ph = align8(loop)
        loop = ["  s_nop 0"] + loop
    out += loop
    out += T1 + T2 + ["L_poll:"] + TP + ["L_got:"] + T3
    if l2:
        out += ["L_far:"] + FAR
    for k, par in enumerate(sites):
        out += [f"L_fix{k}:", f"  s_call_b64 s[{S_RET}:{S_RET+1}], L_fixfn{par}", f"  s_branch L_ret{k}"]
    for par in range(2):
        out += [f"L_fixfn{par}:"] + FIX[par] + [f"  s_setpc_b64 s[{S_RET}:{S_RET+1}]"]
    out += ["L_end:", "  s_endpgm"]
    out += ['.section .rodata,"a"', ".p2align 6", f".amdhsa_kernel {NAME}",
            f"  .amdhsa_next_free_vgpr {NVGPR}", "  .amdhsa_next_free_sgpr 102",
            f"  .amdhsa_accum_offset {NVGPR}", "  .amdhsa_group_segment_fixed_size 0",
            "  .amdhsa_kernarg_size 48", "  .amdhsa_user_sgpr_count 2",
            "  .amdhsa_user_sgpr_kernarg_segment_ptr 1", "  .amdhsa_system_sgpr_workgroup_id_x 1",
            ".end_amdhsa_kernel"]
    return "\n".join(l.rstrip() for l in out if l is not None) + "\n"


if __name__ == "__main__":
    kw = eval("dict(%s)" % sys.argv[1]) if len(sys.argv) > 1 else {}
    sys.stdout.write(gen(**kw))
```

```python
import struct, sys, math
from asmlib import check_hazards, auto_lgkm, align8

NAME = "standalone__gqa_softmax__sampling_kernel"

HEADER = """; Kernarg layout for this problem (48 bytes, ptrs only, base s[0:1]):
;   offset   0: d_in[0] q  shape=(8, 32, 32, 128) dtype=bfloat16 strides=(262144, 8192, 256, 2) contiguous=True
;   offset   8: d_in[1] k  shape=(8, 8, 8192, 128) dtype=bfloat16 strides=(16777216, 2097152, 256, 2) contiguous=True
;   offset  16: d_in[2] v  shape=(8, 8, 8192, 128) dtype=bfloat16 strides=(16777216, 2097152, 256, 2) contiguous=True
;   offset  24: d_out     shape=(8, 32, 32, 128) dtype=bfloat16 (2 bytes/elem)
"""


def f32(x):
    return "0x%08x" % struct.unpack("<I", struct.pack("<f", x))[0]


V_M = 2
V_T0, V_T1, V_T2, V_T3 = 4, 5, 6, 7
V_LANE16 = 8
V_FADDR = 9
V_OUTA = 10
V_TR = 11
V_KA = 12
V_VA = 16
V_X = 24
V_FR = 32
V_O = 64
V_S = 128
V_P = 160
V_L = 176
V_ONE = 192
V_NM = 196
V_JUNK = 204
V_MLA = 206
V_Q = 208
NVGPR = 240

S_K, S_V, S_Q, S_OUT, S_WS, S_DBG = 16, 20, 24, 28, 32, 36
S_BH, S_SP, S_W = 40, 41, 42
S_MODE = 43
S_C, S_THR = 44, 45
S_CNT = 46
S_T0, S_T1, S_T2, S_T3 = 50, 51, 52, 53
S_OD = 54
S_OI = 57
S_ML = 58
S_F = 62
S_FO = 63
S_DB = 64
S_RET = 66
S_ST = 70

OFF_PR = 0x1c000
PR_STRIDE = (1 << 20) + 256
OFF_T = 20 << 20
NU = 64


def vr(base, n):
    return f"v[{base}:{base+n-1}]"


def srd(b):
    return f"s[{b}:{b+3}]"


def cost(l):
    return 2 if l.split()[0].startswith("v_exp") else 1


def spread(fillers, weights):
    nslots = len(weights)
    tot = sum(cost(f) for f in fillers)
    wt = sum(weights)
    out = [[] for _ in range(nslots)]
    acc = k = cw = 0
    for s in range(nslots):
        cw += weights[s]
        tgt = tot * cw / wt
        while k < len(fillers) and acc + cost(fillers[k]) / 2.0 <= tgt + 1e-9:
            out[s].append(fillers[k])
            acc += cost(fillers[k])
            k += 1
    out[-1] += fillers[k:]
    return out


def sched(up, step=1, lo=20, hold=1, dec=1):
    l = [0]
    x = lo
    for d in up:
        x += d
        l.append(x)
    l += [x] * hold
    while x > lo + dec:
        x -= dec
        l += [x] * step
    return tuple(l)


def gen(W=22, up=(8, 6, 5, 4, 2, 1), hold=1, stg=3, rk=1, nlv=1, th=(14, 26), bias=(1, -3, 0, -3, 4, -1, 2, -2), hsn=3, wsl=1, lw=0, plp="nt", pfp="", hpol="sc1", psp="", psh=2, lpol="sc1", ppol="sc1", slp=0, pol="nt", grp="xcd2", bf16p=1, THR=2.0 ** 24, diag=0,
        opol="", qpol="", prio=3, abl="", pre=1, pk=0, al=1, LPOS=2, WG=1, RD=4, NSL=8, l2=1, warm=0, bal=1, lds=98304, NE=10, pf=4, il=1, xph=0, pfpos=0, npol="", cpf=2, chain=1, pvo=0, bq=1, probe=0, shs=0, pfw=16, pfn=4, touch=2, tiny=1, tord=1, hs=3, rpol="", clr=0, late=-1, rot=0, xw=(7, 15, 5, 17, 22, 5, 13, 6), qlds=1, fastp=1, pfs=(0, 10, 7, 4, 3, 1)):
    traces = {}
    NE = min(NE, 4 if pre == 1 else 7 if pk else 10)
    nstamp = [0]

    def stamp(dst):
        if diag:
            k = nstamp[0]
            nstamp[0] += 1
            dst.append(f"  s_memrealtime s[{S_ST+2*k}:{S_ST+2*k+1}]")
            dst.append("  s_waitcnt lgkmcnt(0)")

    R = 2048 if bf16p else 4096
    GB = 17 if bf16p else 18
    SLAB = 3 * R + 256
    OFF_F = 16 * SLAB
    VBASE = NSL * 8192
    QBASE = 2 * VBASE if NSL == 4 else VBASE + 32768
    LDS_MODE = 2 * VBASE + (32768 if qlds and NSL == 4 else 0)
    LDS_JUNK = LDS_MODE + 64
    lds = max(lds, LDS_MODE + 64 + 256)
    assert lds <= 163840
    c = math.log2(math.e) / math.sqrt(128.0)
    blk = lambda d, t: [f"  s_and_b32 s{d}, s{S_BH}, 7", f"  s_lshl_b32 s{d}, s{d}, {GB+3}", f"  s_lshr_b32 s{t}, s{S_BH}, 3",
                        f"  s_lshl_b32 s{t}, s{t}, {GB}", f"  s_add_u32 s{d}, s{d}, s{t}"] if (wsl and grp != "xcd") else [f"  s_lshl_b32 s{d}, s{S_BH}, {GB}"]
    E = ["  s_cmp_ge_u32 s2, 256", "  s_cbranch_scc1 L_end"]
    if diag == 6:
        E += ["  s_memrealtime s[68:69]"]
    E += [
        "  s_load_dwordx4 s[4:7], s[0:1], 0",
        "  s_load_dwordx4 s[8:11], s[0:1], 16",
        "  s_load_dwordx4 s[12:15], s[0:1], 32",
        "  v_lshrrev_b32 v1, 6, v0",
        "  v_and_b32 v0, 63, v0",
        "  v_readfirstlane_b32 s3, v1",
    ]
    if grp == "xcd":
        E += [
            f"  s_and_b32 s{S_T0}, s2, 7",
            f"  s_bfe_u32 s{S_SP}, s2, {3 | (2 << 16)}",
            f"  s_lshr_b32 s{S_T1}, s2, 5",
            f"  s_lshl_b32 s{S_BH}, s{S_T0}, 3",
            f"  s_add_u32 s{S_BH}, s{S_BH}, s{S_T1}",
        ]
    elif grp == "xcd2":
        E += ([f"  s_add_u32 s{S_T0}, s2, {rot}", f"  s_and_b32 s{S_T0}, s{S_T0}, 7"] if rot else [f"  s_and_b32 s{S_T0}, s2, 7"]) + [
            f"  s_bfe_u32 s{S_SP}, s2, {3 | (2 << 16)}",
            f"  s_lshr_b32 s{S_T1}, s2, 5",
            f"  s_lshl_b32 s{S_BH}, s{S_T1}, 3",
            f"  s_add_u32 s{S_BH}, s{S_BH}, s{S_T0}",
        ]
    elif grp == "lo":
        E += [f"  s_lshr_b32 s{S_BH}, s2, 2", f"  s_and_b32 s{S_SP}, s2, 3"]
    if late >= 0:
        E += [f"  s_cmp_lg_u32 s{S_SP}, {late}", "  s_cbranch_scc1 L_nolate", "  s_mov_b32 s47, 20", "L_late:", "  s_sleep 100",
              "  s_sub_u32 s47, s47, 1", "  s_cmp_lg_u32 s47, 0", "  s_cbranch_scc1 L_late", "L_nolate:"]
    E += ["  s_cmp_lg_u32 s3, 0", "  s_cbranch_scc1 L_cons"]

    LD = []
    if cpf:
        LD += ["  s_getpc_b64 s[48:49]", "L_pc:", "  v_lshlrev_b32 v5, 7, v0", "  v_mov_b32 v9, s49"]
        for i in range(cpf + 1):
            LD += (["  v_add_u32 v5, 8192, v5"] if i else []) + ["  v_min_u32 v6, L_end - L_pc, v5", "  v_add_co_u32 v6, vcc, s48, v6", "  s_nop 1",
                   "  v_addc_co_u32 v7, vcc, 0, v9, vcc", "  global_load_dword v8, v[6:7], off"]
    LD += [
        f"  s_setprio {prio}",
        f"  s_lshl_b32 s{S_T0}, s{S_BH}, 21",
        f"  s_lshl_b32 s{S_T1}, s{S_SP}, {10 if il else 19}",
        f"  s_add_u32 s{S_T0}, s{S_T0}, s{S_T1}",
        "  v_lshrrev_b32 v3, 4, v0",
        "  v_and_b32 v4, 15, v0",
        "  v_xor_b32 v5, v3, v4",
        "  v_lshlrev_b32 v5, 4, v5",
        "  v_lshl_add_u32 v10, v3, 8, v5",
        "  v_xor_b32 v11, 64, v10",
        "  v_xor_b32 v12, 0x80, v10",
        "  v_xor_b32 v13, 0xc0, v10",
        "  v_lshlrev_b32 v5, 1, v3",
        "  v_xor_b32 v5, v5, v4",
        "  v_lshlrev_b32 v5, 4, v5",
        "  v_lshl_add_u32 v14, v3, 8, v5",
        "  v_xor_b32 v15, 0x80, v14",
    ] + ([
        "  v_mov_b32 v25, v11", "  v_mov_b32 v26, v12", "  v_mov_b32 v27, v13",
        f"  s_lshl_b32 s{S_T3}, s{S_BH}, 15", f"  s_mov_b32 s{S_Q+2}, 32768", f"  s_mov_b32 s{S_Q+3}, 0x20000",
    ] if qlds else []) + ([
        "  v_add_u32 v11, 3072, v11", "  v_add_u32 v12, 6144, v12", "  v_add_u32 v13, 9216, v13",
        "  v_add_u32 v16, 6144, v14", "  v_add_u32 v17, 9216, v15", "  v_add_u32 v15, 3072, v15",
        f"  s_sub_u32 s{S_K+2}, 0x200000, s{S_T1}",
    ] if il else [f"  s_mov_b32 s{S_K+2}, 0x80000"]) + [
        f"  s_mov_b32 s{S_K+3}, 0x20000",
        f"  s_mov_b32 s{S_V+2}, s{S_K+2}",
        f"  s_mov_b32 s{S_V+3}, 0x20000",
        f"  s_lshl_b32 s56, s{S_BH}, 15",
        "  s_mov_b32 s54, 0",
        "  s_mov_b32 s55, 0",
        "  s_waitcnt lgkmcnt(0)",
    ]
    QD = []
    if qlds:
        QD += [f"  s_add_u32 s{S_Q}, s4, s{S_T3}", f"  s_addc_u32 s{S_Q+1}, s5, 0"]
        for g in range(8):
            QD += [f"  s_mov_b32 m0, {QBASE + g*4096}", f"  s_movk_i32 s{S_T2}, {g*4096}"]
            for j in range(4):
                QD.append(f"  buffer_load_dwordx4 v{10 if j == 0 else 24+j}, {srd(S_Q)}, s{S_T2} offen offset:{j*1024} {qpol} lds")
    KV = [
        f"  s_add_u32 s{S_K}, s6, s{S_T0}",
        f"  s_addc_u32 s{S_K+1}, s7, 0",
        f"  s_add_u32 s{S_V}, s8, s{S_T0}",
        f"  s_addc_u32 s{S_V+1}, s9, 0",
    ]
    for i in range(probe):
        LD += [f"  s_lshl_b32 s47, s{S_BH}, 21", f"  s_add_u32 s47, s47, {(64 + 128 * i) << 20}", "  v_mov_b32 v30, s47",
               "  global_load_dword v31, v30, s[14:15]", "  s_waitcnt vmcnt(0)"]
    if touch:
        LD += KV + [f"  s_mov_b32 m0, {LDS_JUNK}", "  s_mov_b64 exec, 1",
                    f"  buffer_load_dword v10, {srd(S_K)}, 0 offen lds", f"  buffer_load_dword v10, {srd(S_V)}, 0 offen lds"]
        if touch == 2:
            LD += [f"  v_mov_b32 v30, s{S_T3}", "  global_load_lds_dword v30, s[10:11]"]
        LD += ["  s_mov_b64 exec, -1"]
        KV = []
    if qlds == 1:
        LD += QD
    LD += KV
    S_CD, S_B, S_TAB, S_PF, S_N, S_BE, S_RK, S_SLOT, S_MASK, S_PR, S_TH = 56, 57, 58, 60, 61, 62, 63, 65, 66, 68, 72
    LV = list(range(-nlv, nlv + 1)) if rk else [0]
    NX = 2 if rk else 0
    lo = W - 1 + max(LV) + NX
    assert 16 < lo < 32
    fld = 2 | ((VBASE.bit_length() - 1) << 16)
    stubs = []

    def dma(which, j):
        go, sr = (54, S_K) if which == "K" else (55, S_V)
        return f"  buffer_load_dwordx4 v{(10 if which == 'K' else 14) + j}, {srd(sr)}, s{go} offen offset:{j*1024} {pol} lds"

    def part(dst, which, before, after=lambda: []):
        go = 54 if which == "K" else 55
        for g in range(2):
            dst += [f"  s_bfe_u32 m0, s{go}, {fld}"] if which == "K" else [f"  s_bfe_u32 s{S_T2}, s{go}, {fld}", f"  s_or_b32 m0, s{S_T2}, {VBASE}"]
            for j in range(4):
                w_ = before()
                dst += (w_ or (["  s_nop 0"] if j == 0 else [])) + [dma(which, j)] + after()
            dst.append(f"  s_add_u32 s{go}, s{go}, 16384")

    st = dict(pos=0, pend=[])

    def static():
        o = []
        x = W - 1
        if st["pos"] == W:
            o += [f"  s_waitcnt vmcnt({W})", "  s_barrier"]
        if st["pos"] > x:
            o.append(f"  s_waitcnt vmcnt({x})")
            while st["pend"] and st["pos"] - st["pend"][0] >= x:
                o.append("  s_barrier")
                st["pend"].pop(0)
        st["pos"] += 1
        return o
    part(LD, "K", static); part(LD, "K", static)
    st["pend"].append(16)
    setup = [
        f"  s_mov_b32 s{S_DBG}, s12", f"  s_mov_b32 s{S_DBG+1}, s13", f"  s_mov_b32 s{S_DBG+2}, 256", f"  s_mov_b32 s{S_DBG+3}, 0x20000",
        f"  s_lshl_b32 s{S_DB}, s{S_BH}, 2", f"  v_mov_b32 v20, {LDS_MODE}",
    ] + blk(S_T2, S_T1) + [f"  s_add_u32 s{S_WS}, s14, s{S_T2}", f"  s_addc_u32 s{S_WS+1}, s15, 0",
        f"  s_mov_b32 s{S_WS+2}, {1 << GB}", f"  s_mov_b32 s{S_WS+3}, 0x20000",
        f"  v_and_b32 v24, {8*pfn-1}, v0", "  v_lshlrev_b32 v24, 7, v24", f"  s_mul_i32 s{S_PF}, s{S_SP}, {4*SLAB}",
    ]
    lag1 = W - 1 + up[0]
    tabv = [d + 1 for d in up[1:]] + [1] * hold
    assert len(tabv) <= 16 and max(tabv) <= 15 and lag1 >= lo
    bend = len(tabv) + (W - 1 + sum(up)) - lo
    tab = sum(v << (4 * i) for i, v in enumerate(tabv))
    setup += [f"  s_mul_i32 s{S_T2}, s{S_SP}, {stg}", f"  s_add_u32 s{S_CD}, s{S_T2}, {32 + lag1 - 48}", f"  s_add_u32 s{S_BE}, s{S_T2}, {bend}",
              f"  s_mov_b32 s{S_B}, 0", f"  s_mov_b32 s{S_TAB}, {tab & 0xffffffff}", f"  s_mov_b32 s{S_TAB+1}, {tab >> 32}",
              f"  s_mov_b32 s{S_N}, 0"]
    for sp in range(4):
        cd, nb_, t_, done = sp * stg + 32 + lag1 - 48, 0, tab, 0
        for p in range(48, 16 * 63):
            u = p // 16
            need = (u + 1 - NSL) if p % 16 < 8 else (u - 1 - NSL + 2)
            assert done >= need, (sp, p)
            if cd == 0:
                done += 1
                assert p - 16 * (done + 1) >= lo, (sp, p, done)
                nb_ += 1
                cd = (t_ & 15) + 14 + (1 if nb_ > bend + sp * stg else 0)
                t_ >>= 4
                last = p - 16 * (done + 1)
            else:
                cd -= 1
        assert done == 60 and last == lo, (sp, done, last)
    if rk:
        setup += [f"  s_add_u32 s{S_PR}, s14, {OFF_PR}", f"  s_addc_u32 s{S_PR+1}, s15, 0", f"  s_mov_b32 s{S_PR+2}, {8*PR_STRIDE}", f"  s_mov_b32 s{S_PR+3}, 0x20000",
                  f"  s_and_b32 s{S_T2}, s2, 7", f"  s_mul_i32 s{S_T1}, s{S_T2}, {PR_STRIDE}",
                  "  v_and_b32 v28, 31, v0", f"  v_lshl_add_u32 v29, v28, {psh}, s{S_T1}",
                  ] + (["  v_lshrrev_b32 v5, 2, v28", "  v_lshlrev_b32 v5, 5, v5", "  v_and_b32 v28, 3, v28", "  v_add_u32 v28, v28, v5"] if grp != "xcd" else []) + [
                  f"  s_lshl_b32 s{S_T2}, s{S_T2}, {2 if grp != 'xcd' else 5}", f"  v_add_u32 v28, s{S_T2}, v28",
                  f"  s_lshr_b32 s{S_SLOT}, s2, 3", f"  s_lshl_b32 s{S_SLOT}, s{S_SLOT}, {psh}", f"  s_add_u32 s{S_SLOT}, s{S_SLOT}, s{S_T1}",
                  "  v_mov_b32 v30, 0", "  v_mov_b32 v23, 0"]
        setup += [f"  s_movk_i32 s{S_TH+i}, {-1000 if i < nlv else 1000}" for i in range(2 * nlv)]
    LD += setup
    for _ in range(2):
        part(LD, "K", static); part(LD, "V", static)
    assert not st["pend"] and st["pos"] == 48

    def passes(lv):
        o = []
        k = [0]

        def before():
            x = W - 1 + lv
            k[0] += 1
            return [f"  s_waitcnt vmcnt({x + (NX if k[0] - 1 < x else 0)})"]

        def after():
            i = len(stubs)
            stubs.append(i)
            return [f"  s_sub_u32 s{S_CD}, s{S_CD}, 1", f"  s_cbranch_scc1 L_bar{i}", f"L_barret{i}:"]
        for _ in range(2):
            part(o, "K", before, after); part(o, "V", before, after)
        return o + [f"  s_cmp_lg_u32 s{S_N}, 30", "  s_cbranch_scc1 L_ldloop"]
    STUB = ["  s_barrier", f"  s_and_b32 s{S_CD}, s{S_TAB}, 15", f"  s_lshr_b64 s[{S_TAB}:{S_TAB+1}], s[{S_TAB}:{S_TAB+1}], 4",
            f"  s_add_u32 s{S_B}, s{S_B}, 1", f"  s_cmp_gt_u32 s{S_B}, s{S_BE}", f"  s_addc_u32 s{S_CD}, s{S_CD}, 14"]
    D0 = []
    if rk:
        D0 += [f"  v_cmp_le_u32 vcc, s{S_N}, v30", f"  s_add_u32 s{S_N}, s{S_N}, 1", f"  v_mov_b32 v31, s{S_N}",
               f"  s_bcnt1_i32_b32 s{S_RK}, vcc_lo",
               f"  buffer_load_dword v30, v29, {srd(S_PR)}, 0 offen {plp}", "  s_mov_b64 exec, 1",
               f"  buffer_store_dword v31, off, {srd(S_PR)}, s{S_SLOT} {psp}", "  s_mov_b64 exec, -1"]
        if "1" in abl:
            D0[-2] = D0[-4].replace("v30", "v31", 1)
        if "2" in abl:
            D0[-4] = D0[-2]
    else:
        D0 += [f"  s_add_u32 s{S_N}, s{S_N}, 1"]
    D0 += [f"  s_cmp_eq_u32 s{S_N}, {hsn}", "  s_cbranch_scc1 L_hs0", f"  s_cmp_eq_u32 s{S_N}, {hsn+2}", "  s_cbranch_scc1 L_hs1", "L_go:"]
    for i in range(nlv if rk else 0):
        D0 += [f"  s_cmp_lt_i32 s{S_RK}, s{S_TH+i}", f"  s_cbranch_scc1 L_lv{i}",
               f"  s_cmp_ge_i32 s{S_RK}, s{S_TH+2*nlv-1-i}", f"  s_cbranch_scc1 L_lv{2*nlv-i}"]
    D1 = passes(0)
    DA_ = []
    for i, lv in enumerate(LV):
        if lv:
            DA_ += [f"L_lv{i}:"] + passes(lv) + ["  s_branch L_ldtail"]
    if tiny:
        DA_ += [".p2align 6", "L_barfn:"] + STUB + ["  s_setpc_b64 s[76:77]"]
    for i in stubs:
        DA_ += [f"L_bar{i}:"] + (["  s_call_b64 s[76:77], L_barfn"] if tiny else STUB) + [f"  s_branch L_barret{i}"]
    H0 = ["  v_mov_b32 v22, 0", f"  buffer_load_dword v22, off, {srd(S_DBG)}, s{S_DB} {hpol}"]
    if rk:
        H0 += [f"  buffer_load_ubyte v23, v28, {srd(S_DBG)}, 0 offen {hpol}"]
    H0 += ["  s_branch L_go"]
    chk4 = lambda m, lab: [f"  v_and_b32 v21, {m}, v22", f"  v_cmp_ne_u32 vcc, {m}, v21", f"  s_cbranch_vccz {lab}"]
    hello = lambda bits: [f"  s_getreg_b32 s{S_T2}, hwreg(HW_REG_XCC_ID, 0, 3)", f"  s_or_b32 s{S_T2}, s{S_T2}, {bits}", f"  v_mov_b32 v21, s{S_T2}",
                          f"  s_add_u32 s{S_T2}, s{S_DB}, s{S_SP}", f"  buffer_store_byte v21, off, {srd(S_DBG)}, s{S_T2} sc1"]
    memrd = ["  v_mov_b32 v22, 0", f"  buffer_atomic_or v22, off, {srd(S_DBG)}, s{S_DB} sc0 sc1", "  s_waitcnt vmcnt(0)"]
    H1 = []
    if rk:
        bt = sum(((bias[i] + 8) & 15) << (4 * i) for i in range(8))
        H1 += [f"  s_getreg_b32 s{S_T2}, hwreg(HW_REG_XCC_ID, 0, 3)", f"  s_or_b32 s{S_T1}, s{S_T2}, 0x80",
               f"  v_cmp_ne_u32 vcc, s{S_T1}, v23", "  s_cbranch_vccnz L_nork",
               f"  s_lshl_b32 s{S_T2}, s{S_T2}, 2", f"  s_lshr_b32 s{S_T2}, {bt}, s{S_T2}", f"  s_and_b32 s{S_T2}, s{S_T2}, 15"]
        H1 += [f"  s_sub_i32 s{S_TH+i}, {th[i] + 8}, s{S_T2}" for i in range(2 * nlv)] + ["L_nork:"]
    H1 += chk4("0x80808080", "L_hs2") + ["  s_mov_b64 exec, 1", f"  s_add_u32 s{S_T2}, s{S_DB}, s{S_SP}", "L_hs1a:",
           f"  buffer_load_ubyte v21, off, {srd(S_DBG)}, s{S_T2} sc1", "  s_waitcnt vmcnt(0)", "  v_cmp_eq_u32 vcc, 0, v21", "  s_cbranch_vccnz L_hs1a"] + hello("0x80") + ["L_hs1b:",
           f"  buffer_load_dword v22, off, {srd(S_DBG)}, s{S_DB} sc1", "  s_waitcnt vmcnt(0)"] + chk4("0x80808080", "L_hs2") \
        + memrd + chk4("0x80808080", "L_hs2") + ["  s_branch L_hs1b"]
    H2 = ["  s_mov_b64 exec, 1", "  v_alignbit_b32 v21, v22, v22, 8", "  v_xor_b32 v21, v21, v22", "  v_and_b32 v21, 0x07070707, v21",
          "  v_cmp_ne_u32 vcc, 0, v21", "  v_mov_b32 v21, 4", "  s_cbranch_vccnz L_hsfar", "L_hs3:",
          "  ds_write_b32 v20, v21", "  s_mov_b64 exec, -1", "  s_waitcnt lgkmcnt(0)",
          "  v_and_b32 v21, 3, v0", "  v_lshlrev_b32 v21, 7, v21", f"  s_mov_b32 s{S_T2}, {OFF_F}",
          f"  buffer_load_dword v23, v21, {srd(S_WS)}, s{S_T2} offen", "  s_branch L_go"]
    HX = ["L_hsfar:", "  s_mov_b64 exec, 15", "  v_lshlrev_b32 v21, 7, v0", "  v_mov_b32 v22, 0",
          f"  s_lshl_b32 s{S_T2}, s{S_SP}, 2", f"  s_add_u32 s{S_T2}, s{S_T2}, {OFF_F}",
          f"  buffer_store_dword v22, v21, {srd(S_WS)}, s{S_T2} offen sc1", "  s_mov_b64 exec, 1", "  s_waitcnt vmcnt(0)"] \
        + hello("0xc0") + ["L_hsfar2:"] + memrd + chk4("0x40404040", "L_hsfar3") + ["  s_branch L_hsfar2",
          "L_hsfar3:", "  v_mov_b32 v21, 0", "  s_branch L_hs3"]
    D6 = []
    st.update(pos=16 * 63, pend=[16 * 62, 16 * 63])
    part(D6, "V", static); st["pend"].append(st["pos"])
    part(D6, "V", static); st["pend"].append(st["pos"])
    D6 += [f"  s_mov_b32 m0, {LDS_JUNK}"]
    for q in range(-(-25 // pfn)):
        while st["pend"] and st["pos"] - st["pend"][0] >= pfw - 1:
            D6 += [f"  s_waitcnt vmcnt({st['pos'] - st['pend'].pop(0)})", "  s_barrier"]
        D6 += [f"  s_waitcnt vmcnt({pfw-1})", f"  buffer_load_dword v24, {srd(S_WS)}, s{S_PF} offen {pfp} lds", f"  s_add_u32 s{S_PF}, s{S_PF}, {1024*pfn}"]
        st["pos"] += 1
    for e_ in st["pend"]:
        D6 += [f"  s_waitcnt vmcnt({st['pos'] - e_})", "  s_barrier"]
    D6.append("  s_endpgm")
    assert sum(l == "  s_barrier" for l in LD + D6) + 60 == NU + 2
    traces["loader"] = E + LD + D0 + H0 + D1 + D0 + H1 + H1 + H2 + HX + H2 + DA_ + D0 + D1 + D6
    LOADER = LD + ["L_ldloop:"] + D0 + D1 + ["L_ldtail:"] + D6 + ["L_hs0:"] + H0 + ["L_hs1:"] + H1 + ["L_hs2:"] + H2 + HX + DA_

    P = []
    stamp(P)
    Qf = lambda qb, ks: V_Q + 4 * (qb * 4 + ks)
    P += [
        f"  s_sub_u32 s{S_W}, s3, 1",
        f"  s_lshl_b32 s{S_DB}, s{S_BH}, 2",
        f"  s_add_u32 s{S_T1}, s{S_DB}, s{S_W}",
        f"  s_lshl_b32 s{S_T2}, s{S_T1}, 13",
        f"  v_and_b32 v{V_T0}, 15, v0",
        f"  v_lshrrev_b32 v{V_T1}, 4, v0",
        f"  v_lshlrev_b32 v{V_T2}, 4, v{V_T1}",
        f"  v_lshl_add_u32 v{V_T3}, v{V_T0}, 8, v{V_T2}",
        f"  s_mov_b32 s{S_Q+2}, 8192",
        f"  s_mov_b32 s{S_Q+3}, 0x20000",
        f"  s_movk_i32 s{S_T3}, 0x1000",
    ] + blk(S_T0, S_T1) + [
        "  s_waitcnt lgkmcnt(0)",
        f"  s_add_u32 s{S_Q}, s4, s{S_T2}",
        f"  s_addc_u32 s{S_Q+1}, s5, 0",
    ]
    for qb in range(2):
        for ks in range(4):
            so = f"s{S_T3}" if qb else "0"
            if not qlds:
                P.append(f"  buffer_load_dwordx4 {vr(Qf(qb,ks),4)}, v{V_T3}, {srd(S_Q)}, {so} offen offset:{ks*64} {qpol}")
    P += [
        f"  s_add_u32 s{S_WS}, s14, s{S_T0}",
        f"  s_addc_u32 s{S_WS+1}, s15, 0",
        f"  s_mov_b32 s{S_WS+2}, {1 << GB}",
        f"  s_mov_b32 s{S_WS+3}, 0x20000",
        f"  s_add_u32 s{S_OUT}, s10, s{S_T2}",
        f"  s_addc_u32 s{S_OUT+1}, s11, 0",
        f"  s_mov_b32 s{S_OUT+2}, 8192",
        f"  s_mov_b32 s{S_OUT+3}, 0x20000",
        f"  s_lshl_b32 s{S_F}, s{S_W}, 7",
        f"  s_add_u32 s{S_F}, s{S_F}, {OFF_F}",
        f"  s_lshl_b32 s{S_FO}, s{S_SP}, 2",
        f"  s_add_u32 s{S_FO}, s{S_FO}, s{S_F}",
        f"  v_mov_b32 v{V_T2}, 0",
        "  s_mov_b64 exec, 1",
        f"  buffer_store_dword v{V_T2}, off, {srd(S_WS)}, s{S_FO} {rpol}" if "Z" not in abl else "  s_nop 0",
    ]
    if rk:
        P += [f"  s_add_u32 s{S_Q}, s14, {OFF_PR}", f"  s_addc_u32 s{S_Q+1}, s15, 0", f"  s_mov_b32 s{S_Q+2}, {8*PR_STRIDE}",
              f"  s_and_b32 s{S_T1}, s2, 7", f"  s_mul_i32 s{S_T1}, s{S_T1}, {PR_STRIDE}", f"  s_lshr_b32 s{S_T0}, s2, 3",
              f"  s_lshl_b32 s{S_T0}, s{S_T0}, {psh}", f"  s_add_u32 s{S_T1}, s{S_T1}, s{S_T0}",
              f"  buffer_store_dword v{V_T2}, off, {srd(S_Q)}, s{S_T1}"]
    if warm:
        P.append(f"  buffer_load_dword v{V_JUNK}, off, {srd(S_OUT)}, 0")
    P += ["  s_mov_b64 exec, -1",
          f"  s_lshl_b32 s{S_OI}, s{S_SP}, 2", f"  s_add_u32 s{S_OI}, s{S_OI}, s{S_W}", f"  s_mul_i32 s{S_OI}, s{S_OI}, {SLAB}"]
    if clr:
        P += [f"  v_lshlrev_b32 v{V_T2}, 4, v0", f"  s_add_u32 s{S_T1}, s{S_OI}, 4096"] + [f"  v_mov_b32 v{V_X+i}, -1" for i in range(4)]
        for i in range(6):
            P.append(f"  buffer_store_dwordx4 {vr(V_X,4)}, v{V_T2}, {srd(S_WS)}, s{S_OI if i < 4 else S_T1} offen offset:{(i&3)*1024}")
        P += ["  s_mov_b64 exec, 0xffff", f"  buffer_store_dwordx4 {vr(V_X,4)}, v{V_T2}, {srd(S_WS)}, s{S_T1} offen offset:2048", "  s_mov_b64 exec, -1", "  s_nop 0"]
    PF = [f"  v_min_u32 v{V_T2}, {SLAB // 128 - 1}, v0", f"  v_lshlrev_b32 v{V_T2}, 7, v{V_T2}",
          f"  buffer_load_dword v{V_JUNK+1}, v{V_T2}, {srd(S_WS)}, s{S_OI} offen"]
    assert bf16p or not pf
    if pf == 1:
        P += PF
    P += [
        f"  v_xor_b32 v{V_T2}, v{V_T0}, v{V_T1}",
        f"  v_lshlrev_b32 v{V_T2}, 4, v{V_T2}",
        f"  v_lshl_add_u32 v{V_KA}, v{V_T0}, 8, v{V_T2}",
    ]
    for ks in range(1, 4):
        P.append(f"  v_xor_b32 v{V_KA+ks}, {ks*64}, v{V_KA}")
    P += [
        f"  v_lshrrev_b32 v{V_T2}, 2, v0",
        f"  v_lshlrev_b32 v{V_T3}, 8, v{V_T2}",
        f"  v_and_b32 v{V_T2}, 7, v{V_T2}",
        f"  s_lshl_b32 s{S_T2}, s{S_SP}, 1",
        f"  v_xor_b32 v{V_T2}, s{S_T2}, v{V_T2}",
        f"  v_lshl_add_u32 v{V_T3}, v{V_T2}, 5, v{V_T3}",
        f"  v_and_b32 v{V_T2}, 3, v0",
        f"  v_lshl_add_u32 v{V_T3}, v{V_T2}, 3, v{V_T3}",
        f"  v_lshlrev_b32 v{V_FADDR}, 2, v{V_T2}",
        f"  v_add_u32 v{V_VA}, {VBASE}, v{V_T3}",
    ]
    for db in range(1, 8):
        P.append(f"  v_xor_b32 v{V_VA+db}, {db*32}, v{V_VA}")
    P += [
        f"  v_cmp_eq_u32 vcc, 0, v{V_T2}",
        f"  v_mov_b32 v{V_T3}, 0x3f803f80",
        f"  v_lshlrev_b32 v{V_LANE16}, 4, v0",
        f"  v_cndmask_b32 v{V_ONE}, 0, v{V_T3}, vcc",
        f"  v_cndmask_b32 v{V_ONE+1}, 0, v{V_T3}, vcc",
        f"  v_cndmask_b32 v{V_ONE+2}, 0, v{V_T3}, vcc",
        f"  v_cndmask_b32 v{V_ONE+3}, 0, v{V_T3}, vcc",
        f"  s_mov_b32 s{S_C}, {f32(c)}",
        f"  s_mov_b32 s{S_THR}, {f32(THR)}",
    ]
    for i in range(32):
        P.append(f"  v_mov_b64 v[{V_O+2*i}:{V_O+2*i+1}], 0")
    X = []
    for j in range(1, 4):
        X += [f"  s_xor_b32 s{S_T1}, s{S_SP}, {j}", f"  s_lshl_b32 s{S_T1}, s{S_T1}, 2", f"  s_add_u32 s{S_T1}, s{S_T1}, s{S_W}",
              f"  s_mul_i32 s{S_T1}, s{S_T1}, {SLAB}",
              f"  s_add_u32 s{S_ML+j}, s{S_T1}, {3*R}", f"  s_add_u32 s{S_OD+j-1}, s{S_T1}, {(j-1)*R}"]
    X += [f"  s_add_u32 s{S_ML}, s{S_OI}, {3*R}", f"  v_and_b32 v{V_MLA}, 0xf0, v{V_LANE16}"]
    X += [
        f"  v_and_b32 v{V_T2}, 15, v0", f"  v_lshlrev_b32 v{V_OUTA}, 8, v{V_T2}",
        f"  v_bfe_u32 v{V_T2}, v0, 4, 1", f"  v_lshl_add_u32 v{V_OUTA}, v{V_T2}, 5, v{V_OUTA}",
        f"  v_lshrrev_b32 v{V_T2}, 5, v0", f"  v_lshl_add_u32 v{V_OUTA}, v{V_T2}, 4, v{V_OUTA}",
        f"  s_lshl_b32 s{S_T2}, s{S_SP}, 6", f"  v_add_u32 v{V_OUTA}, s{S_T2}, v{V_OUTA}",
    ]
    if qlds:
        X += [f"  s_lshl_b32 s{S_T2}, s{S_W}, 13", f"  s_add_u32 s{S_T2}, s{S_T2}, {QBASE}"]
        X += [f"  v_add_u32 v{V_X+ks}, s{S_T2}, v{V_KA+ks}" for ks in range(4)]
        P += X + (PF[:2] if pf in (2, 3) else []) + ["  s_waitcnt vmcnt(0)", "  s_barrier"] + (PF[2:] if pf == 2 else [])
        P += [f"  ds_read_b128 {vr(Qf(qb,ks),4)}, v{V_X+ks} offset:{qb*4096}" for qb in range(2) for ks in range(4)]
        P += ["  s_waitcnt lgkmcnt(0)"]
    elif pf >= 4:
        P += ["  s_barrier"] + X + ["  s_waitcnt vmcnt(0)"]
    elif pf >= 2:
        P += ["  s_barrier"] + X + PF[:2] + ["  s_waitcnt vmcnt(0)"] + (PF[2:] if pf == 2 else [])
    else:
        P += ["  s_barrier"] + X + [f"  s_waitcnt vmcnt({(1 if warm else 0) + (1 if pf else 0)})"]
    if pre == 1:
        P += [f"  v_mov_b32 v{V_T2}, s{S_C}"]
        for i in range(33):
            q = V_Q + i
            t = V_S + 2 * (i & 3)
            if i < 32:
                P += [f"  v_lshlrev_b32 v{t}, 16, v{q}", f"  v_and_b32 v{t+1}, 0xffff0000, v{q}",
                      f"  v_pk_mul_f32 v[{t}:{t+1}], v[{t}:{t+1}], v[{V_T2}:{V_T2+1}] op_sel_hi:[1,0]"]
            if i:
                t = V_S + 2 * ((i - 1) & 3)
                P += [f"  v_cvt_pk_bf16_f32 v{q-1}, v{t}, v{t+1}"]
    if bq:
        assert qlds == 1
        P += ["  s_barrier"]
    stamp(P)
    PA = [f"  s_mov_b32 s{S_DBG}, s12", f"  s_mov_b32 s{S_DBG+1}, s13", f"  s_mov_b32 s{S_DBG+2}, 256", f"  s_mov_b32 s{S_DBG+3}, 0x20000"]
    if hs:
        PA += [f"  s_getreg_b32 s{S_T2}, hwreg(HW_REG_XCC_ID, 0, 3)", f"  s_or_b32 s{S_T2}, s{S_T2}, 0x80", f"  v_mov_b32 v{V_T2}, s{S_T2}",
               f"  s_add_u32 s{S_T2}, s{S_DB}, s{S_SP}", "  s_mov_b64 exec, 1",
               f"  buffer_store_byte v{V_T2}, off, {srd(S_DBG)}, s{S_T2} {'sc1' if hs == 1 else ''}", "  s_mov_b64 exec, -1"]
    else:
        if l2:
            PA += [f"  s_getreg_b32 s{S_T2}, hwreg(HW_REG_XCC_ID, 0, 3)", f"  s_mul_i32 s{S_T2}, s{S_T2}, 3",
                   f"  s_lshl_b32 s{S_T2}, 16, s{S_T2}", f"  s_add_u32 s{S_T2}, s{S_T2}, 1", f"  v_mov_b32 v{V_T2}, s{S_T2}"]
        else:
            PA += [f"  v_mov_b32 v{V_T2}, 1"]
        PA += [
            "  s_mov_b64 exec, 1",
            f"  buffer_atomic_add v{V_T2}, off, {srd(S_DBG)}, s{S_DB} sc1",
            "  s_mov_b64 exec, -1",
        ]
    if "H" in abl:
        PA = []

    Sb = lambda par, kbl, qb: V_S + 16 * par + 4 * (kbl * 2 + qb)
    Pb = lambda par, qb: V_P + 8 * par + 4 * qb
    Lb = lambda par, qb: V_L + 8 * par + 4 * qb
    Ob = lambda db, qb: V_O + 4 * (db * 2 + qb)
    Fr = lambda half, f: V_FR + 16 * half + 4 * f

    def kreads(half, u, kbl):
        return [f"  ds_read_b128 {vr(Fr(half,ks),4)}, v{V_KA+ks} offset:{(u % NSL)*8192 + kbl*4096}" for ks in range(4)]

    def vreads(half, u, dbs):
        o = []
        for f, db in enumerate(dbs):
            for h in range(2):
                o.append(f"  ds_read_b64_tr_b16 {vr(Fr(half,f)+2*h,2)}, v{V_VA+db} offset:{(u % NSL)*8192 + h*4096}")
        return o

    def qkm(half, u, kbl, first=False):
        o = []
        for qb, ks in {1: [(a, b) for a in range(2) for b in range(4)], 0: [(a, b) for b in range(4) for a in range(2)], 2: [(0, 0), (0, 1), (0, 2), (0, 3), (1, 3), (1, 2), (1, 1), (1, 0)]}[chain]:
            if True:
                d = vr(Sb(u & 1, kbl, qb), 4)
                c0 = vr(V_NM + 4 * qb, 4) if (pre and not first) else 0
                o.append(f"  v_mfma_f32_16x16x32_bf16 {d}, {vr(Fr(half,ks),4)}, {vr(Qf(qb,ks),4)}, {d if ks != (3 if chain == 2 and qb else 0) else c0}")
        return o

    def pvm(half, u, dbs, order=None):
        o = []
        order = pvo if order is None else order
        seq = {0: [(f, qb) for f in range(4) for qb in range(2)],
               1: [(f, qb) for qb in range(2) for f in range(4)],
               2: [(f, (f + i) & 1) for i in range(2) for f in range(4)]}[order]
        for f, qb in seq:
            d = vr(Ob(dbs[f], qb), 4)
            o.append(f"  v_mfma_f32_16x16x32_bf16 {d}, {vr(Fr(half,f),4)}, {vr(Pb(u&1,qb),4)}, {d}")
        return o

    def lm(par, first=False):
        return [f"  v_mfma_f32_16x16x32_bf16 {vr(Lb(par,qb),4)}, {vr(V_ONE,4)}, {vr(Pb(par,qb),4)}, {0 if first else vr(Lb(par^1,qb),4)}"
                for qb in range(2)]

    def softmax(par):
        pairs = [(kbl, qb, h) for kbl in range(2) for qb in range(2) for h in range(2)]
        s3 = [[], [], []]
        for k, (kbl, qb, h) in enumerate(pairs):
            s = Sb(par, kbl, qb) + 2 * h
            x = V_X + 2 * (k & 3)
            if pre == 1:
                s3[0].append([])
                s3[1].append([f"  v_exp_f32 v{x}, v{s}", f"  v_exp_f32 v{x+1}, v{s+1}"])
            else:
                if pre == 2 and pk:
                    s3[0].append([f"  v_pk_mul_f32 v[{x}:{x+1}], v[{s}:{s+1}], s[{S_C}:{S_C+1}] op_sel_hi:[1,0]"])
                elif pre == 2:
                    s3[0].append([f"  v_mul_f32 v{x}, s{S_C}, v{s}", f"  v_mul_f32 v{x+1}, s{S_C}, v{s+1}"])
                elif pk:
                    s3[0].append([f"  v_pk_fma_f32 v[{x}:{x+1}], v[{s}:{s+1}], s[{S_C}:{S_C+1}], v[{V_M}:{V_M+1}] op_sel:[0,0,{qb}] op_sel_hi:[1,0,{qb}] neg_lo:[0,0,1] neg_hi:[0,0,1]"])
                else:
                    s3[0].append([f"  v_fma_f32 v{x}, v{s}, s{S_C}, -v{V_M+qb}", f"  v_fma_f32 v{x+1}, v{s+1}, s{S_C}, -v{V_M+qb}"])
                s3[1].append([f"  v_exp_f32 v{x}, v{x}", f"  v_exp_f32 v{x+1}, v{x+1}"])
            s3[2].append([f"  v_cvt_pk_bf16_f32 v{Pb(par,qb)+2*kbl+h}, v{x}, v{x+1}"])
        o = []
        for k in range(10):
            for j in range(3):
                if 0 <= k - j < 8:
                    o += s3[j][k - j]
        return o

    def softmax_plain(par):
        sm = softmax(par)
        return sm[:-1] + ["  s_nop 0", sm[-1], "  s_nop 1"]

    def chk(par):
        return [f"  v_add_f32 v{V_T0}, v{Lb(par,0)}, v{Lb(par,1)}", f"  v_cmp_nge_f32 vcc, s{S_THR}, v{V_T0}"]

    sites = []

    def br(par):
        k = len(sites)
        sites.append(par)
        return [f"  s_cbranch_vccnz L_fix{k}", f"L_ret{k}:"]

    def xmax(reg, tmp):
        return [f"  v_mov_b32 v{tmp}, v{reg}", "  s_nop 1", f"  v_permlane16_swap_b32 v{reg}, v{tmp}",
                f"  v_max_f32 v{reg}, v{reg}, v{tmp}",
                f"  v_mov_b32 v{tmp}, v{reg}", "  s_nop 1", f"  v_permlane32_swap_b32 v{reg}, v{tmp}",
                f"  v_max_f32 v{reg}, v{reg}, v{tmp}"]

    def maxof(dst, regs):
        o = [f"  v_max3_f32 v{dst}, v{regs[0]}, v{regs[1]}, v{regs[2]}"]
        k = 3
        while k + 1 < len(regs):
            o.append(f"  v_max3_f32 v{dst}, v{dst}, v{regs[k]}, v{regs[k+1]}")
            k += 2
        if k < len(regs):
            o.append(f"  v_max_f32 v{dst}, v{dst}, v{regs[k]}")
        return o

    def group(mf, reads, fill, rd=None):
        o = []
        rd = rd or RD
        per = -(-len(reads) // rd) if reads else 0
        for i, m in enumerate(mf):
            o.append(m)
            o += reads[i * per:(i + 1) * per]
            o += fill[i]
        return o

    def coarse(lines, pend):
        if WG >= 4:
            return auto_lgkm(lines, pend)
        out = []
        n = 4 // WG
        for l in lines:
            if l.strip().startswith("v_mfma"):
                a = int(l.split(",")[2 if "x" in abl else 1].split("[")[1].split(":")[0])
                if V_FR <= a < V_FR + 32:
                    f = (a - V_FR) // 4
                    last = V_FR + 4 * ((f // n) * n + n - 1) + 3
                    out.append(f"  v_touch v{last}, v{last}")
            out.append(l)
        out, pend = auto_lgkm(out, pend)
        return [l for l in out if not l.strip().startswith("v_touch")], pend

    def ablate(B):
        if "d" in abl:
            B = [l for l in B if not l.strip().startswith("ds_")]
        if "v" in abl:
            B = [l for l in B if not l.strip().startswith(("v_exp", "v_fma", "v_cvt"))]
        if "B" in abl:
            B = [l for l in B if l.strip() != "s_barrier"]
        if "k" in abl:
            B = [l for l in B if not l.strip().startswith("ds_read_b128")]
        if "t" in abl:
            B = [l for l in B if not l.strip().startswith("ds_read_b64_tr")]
        if "o" in abl:
            B = [l for l in B if f"v[{V_ONE}:" not in l]
        if "q" in abl:
            B = [l for l in B if not (l.strip().startswith("v_mfma") and V_S <= int(l.split("[")[1].split(":")[0]) < V_S + 32)]
        if "p" in abl:
            B = [l for l in B if not (l.strip().startswith("v_mfma") and V_O <= int(l.split("[")[1].split(":")[0]) < V_O + 64)]
        if "x" in abl:
            BB = []
            for l in B:
                if l.strip().startswith("v_mfma"):
                    a = l.split(", ")
                    l = ", ".join([a[0], a[2], a[1], a[3]])
                BB.append(l)
            B = BB
        return B

    DA, DB_ = [0, 1, 2, 3], [4, 5, 6, 7]

    def fills(par, nfront):
        n = nfront + max(LPOS - 1, 0)
        wts = [1.0] * n
        if bal and nfront == 24:
            per = [-(-4 // RD), -(-8 // RD), -(-8 // RD)]
            cnt = [4, 8, 8]
            for g in range(3):
                for i in range(8):
                    nr = max(0, min(per[g], cnt[g] - i * per[g]))
                    wts[8 * g + i] = max(0.2, 3.1 - nr)
            for i in range(24, n):
                wts[i] = 2.1
        f = spread(softmax(par)[NE:], wts)
        return f + [[] for _ in range(nfront + 10 - n)]

    def closing(n, nxt_reads, tailfill, extra=()):
        o = ["  s_waitcnt lgkmcnt(0)", "  s_barrier"] + list(extra)
        mf = pvm(1, n - 1, DB_)
        mf = mf[:LPOS] + lm(n & 1) + mf[LPOS:]
        fl = [list(x) for x in tailfill]
        c2 = chk(n & 1)
        if n < NU - 1:
            for i, e in enumerate(spread(softmax((n + 1) & 1)[:NE], [1] * (8 - LPOS - 1))):
                fl[LPOS + 1 + i] += e
        fl[8] = fl[8] + c2
        o += group(mf, nxt_reads, fl)
        return o + br(n & 1)

    def front(n):
        f = fills(n & 1, 24)
        o = group(qkm(0, n + 1, 0), kreads(1, n + 1, 1), f[0:8])
        o += group(qkm(1, n + 1, 1), vreads(0, n - 1, DA), f[8:16])
        o += group(pvm(0, n - 1, DA), vreads(1, n - 1, DB_), f[16:24])
        return o, f[24:34]

    P2 = kreads(0, 0, 0) + kreads(1, 0, 1) + qkm(0, 0, 0, True) + kreads(0, 1, 0) + qkm(1, 0, 1, True) + kreads(1, 1, 1) \
        + qkm(0, 1, 0, True) + qkm(1, 1, 1, True) + ["  s_nop 7"]
    for qb in range(2):
        P2 += maxof(V_M + qb, [Sb(par, kbl, qb) + r for par in range(2) for kbl in range(2) for r in range(4)])
    for qb in range(2):
        P2 += xmax(V_M + qb, V_T0)
    if pre:
        for qb in range(2):
            for par in range(2):
                for kbl in range(2):
                    for r in range(4):
                        s = Sb(par, kbl, qb) + r
                        P2.append(f"  v_sub_f32 v{s}, v{s}, v{V_M+qb}")
            for r in range(4):
                P2.append(f"  v_sub_f32 v{V_NM+4*qb+r}, 0, v{V_M+qb}")
    else:
        for qb in range(2):
            P2.append(f"  v_mul_f32 v{V_M+qb}, s{S_C}, v{V_M+qb}")
    P2 += softmax_plain(0) + lm(0, True) + softmax(1)[:NE]
    if fastp:
        V = []
        for qb in range(2):
            V += maxof(V_M + qb, [Sb(0, kbl, qb) + r for kbl in range(2) for r in range(4)])
        a, b = xmax(V_M, V_T0), xmax(V_M + 1, V_T1)
        for x, y in zip(a, b):
            V += [x, y] if "s_nop" not in x else ["  s_nop 0"]
        subm = lambda par: [f"  v_sub_f32 v{Sb(par,kbl,qb)+r}, v{Sb(par,kbl,qb)+r}, v{V_M+qb}" for kbl in range(2) for qb in range(2) for r in range(4)]
        if pre:
            V += subm(0)
        else:
            V += [f"  v_mul_f32 v{V_M+qb}, s{S_C}, v{V_M+qb}" for qb in range(2)]
        V += softmax(0)
        fl = [[] for _ in range(4)] + spread(V, [1] * 12)
        fl[3] = ["  s_nop 3"]
        P2 = kreads(0, 0, 0) + kreads(1, 0, 1) + qkm(0, 0, 0, True) + kreads(0, 1, 0) + qkm(1, 0, 1, True) + kreads(1, 1, 1)
        P2 += group(qkm(0, 1, 0, True) + qkm(1, 1, 1, True), [], fl) + ["  s_nop 1"] + lm(0, True)
        if pre:
            P2 += [f"  v_sub_f32 v{V_NM+4*qb+r}, 0, v{V_M+qb}" for qb in range(2) for r in range(4)] + subm(1)
        P2 += softmax(1)[:NE]
    nit = (NU - 2 + NSL - 1) // NSL
    P2 += [f"  s_mov_b32 s{S_CNT}, {nit}"] + (["  s_waitcnt vmcnt(0)"] if pf < 2 else PF[2:] if pf == 3 else []) + ["  s_barrier"] + kreads(0, 2, 0)
    P2, pend0 = auto_lgkm(P2)
    if diag in (3, 7):
        P2 += ["  s_mov_b32 s95, 0"]
    if hs == 3:
        assert qlds and pf >= 4
        k = P.index("  s_barrier") + 1
        if lw == 2:
            assert P[k - 2] == "  s_waitcnt vmcnt(0)"
            del P[k - 2]
            i0 = P.index(f"  v_mov_b32 v{V_T2}, 0")
            i1 = P.index("  s_mov_b64 exec, -1") + 1
            clears = P[i0:i1]
            del P[i0:i1]
            k = P.index("  s_barrier") + 1
            P[k:k] = clears
            if touch == 3:
                P[k + 2:k + 2] = [f"  buffer_load_dword v{V_JUNK}, off, {srd(S_OUT)}, 0"]
            k = P2.index("  s_barrier")
            P2 = P2[:k] + ["  s_waitcnt vmcnt(0)"] + P2[k:] + [f"  s_cmp_lg_u32 s{S_W}, 0", "  s_cbranch_scc1 L_mid"] + PA + ["  s_branch L_mid"]
    if hs == 3 and lw != 2:
        if lw:
            assert P[k - 2] == "  s_waitcnt vmcnt(0)"
            del P[k - 2]
            k = len(P) - 1 - P[::-1].index("  s_barrier")
            P.insert(k, "  s_waitcnt vmcnt(0)")
            k += 2
            j = P.index("  s_mov_b64 exec, -1")
            P[j:j] = PA[:4] + [f"  buffer_load_dword v{V_JUNK}, off, {srd(S_DBG)}, s{S_DB}"]
            PA = PA[4:]
            k += 5
        P = P[:k] + [f"  s_cmp_lg_u32 s{S_W}, 0", "  s_cbranch_scc1 L_nohello"] + PA + ["L_nohello:"] + P[k:]
        k = P2.index("  s_barrier")
        P2 = P2[:k] + ["  s_waitcnt vmcnt(0)"] + P2[k:] + ["  s_branch L_mid"]


    BODY = []
    nfirst = NU - 1 - NSL
    tf = front(nfirst - 1)[1]
    midx = None
    for n in range(nfirst, NU - 1):
        extra = []
        if (diag == 3 and n % 2 == 1) or diag == 7:
            extra = ["  s_memrealtime s[92:93]", "  s_memtime s[90:91]", "  s_add_u32 s95, s95, 1", "  s_min_u32 s95, s95, 31", "  s_add_u32 s94, s95, 32", "  s_waitcnt lgkmcnt(0)",
                     "  s_mov_b32 m0, s95", f"  v_writelane_b32 v{V_TR}, s92, m0", "  s_mov_b32 m0, s94", f"  v_writelane_b32 v{V_TR}, s90, m0"]
        if diag == 4 and n == nfirst:
            extra = [f"  s_cmp_lg_u32 s{S_CNT}, {nit - 16 // NSL}", "  s_cbranch_scc1 L_nost", "  s_memtime s[96:97]", "  s_memrealtime s[98:99]",
                     "  s_waitcnt lgkmcnt(0)", "  s_mov_b32 s94, 0", "L_nost:"]
        cl = closing(n - 1, kreads(0, n + 1, 0), tf, extra)
        fr, tf = front(n)
        if n == NU - 2:
            k = max(i for i, l in enumerate(fr) if "v_mfma" in l)
            fr = fr[:k] + [f"  s_sub_u32 s{S_CNT}, s{S_CNT}, 1", f"  s_cmp_lg_u32 s{S_CNT}, 0"] + fr[k:] + ["  s_cbranch_scc1 L_loop"]
        cl, pendc = coarse(ablate(cl), [])
        assert abl or pendc == pend0
        if "q" in abl or "p" in abl:
            fr = [x for l in fr for x in ([l, "  s_waitcnt lgkmcnt(6)"] if l.strip().startswith("ds_") else [l])]
        fr, pendf = coarse(ablate(fr), pendc)
        if n % NSL == 1 % NSL:
            midx = len(BODY)
        BODY.append((cl, fr))

    def fix(par):
        o = ["  s_nop 7"]
        for qb in range(2):
            o += maxof(V_T0 + qb, [Sb(par, kbl, qb) + r for kbl in range(2) for r in range(4)])
        for qb in range(2):
            o += xmax(V_T0 + qb, V_T2)
        for qb in range(2):
            t = V_T0 + qb
            if pre:
                o += [f"  v_max_f32 v{t}, 0, v{t}", f"  v_add_f32 v{V_M+qb}, v{V_M+qb}, v{t}"]
                for p2 in range(2):
                    for kbl in range(2):
                        for r in range(4):
                            s = Sb(p2, kbl, qb) + r
                            o.append(f"  v_sub_f32 v{s}, v{s}, v{t}")
                for r in range(4):
                    o.append(f"  v_sub_f32 v{V_NM+4*qb+r}, 0, v{V_M+qb}")
                if pre == 2:
                    o += [f"  v_mul_f32 v{t}, s{S_C}, v{t}"]
                o += [f"  v_exp_f32 v{t}, -v{t}"]
            else:
                o += [f"  v_mul_f32 v{t}, s{S_C}, v{t}", f"  v_max_f32 v{t}, v{t}, v{V_M+qb}",
                      f"  v_sub_f32 v{V_T2}, v{V_M+qb}, v{t}", f"  v_mov_b32 v{V_M+qb}, v{t}", f"  v_exp_f32 v{t}, v{V_T2}"]
        o.append("  s_nop 0")
        for qb in range(2):
            o.append(f"  v_mul_f32 v{Lb(par^1,qb)}, v{V_T0+qb}, v{Lb(par^1,qb)}")
            for db in range(8):
                for r in range(4):
                    o.append(f"  v_mul_f32 v{Ob(db,qb)+r}, v{V_T0+qb}, v{Ob(db,qb)+r}")
        return o + softmax_plain(par) + lm(par) + softmax(par ^ 1)[:NE] + ["  s_nop 7"]
    FIX = [fix(0), fix(1)]

    T1 = []
    if diag == 4:
        T1 += ["  s_waitcnt lgkmcnt(0)", "  s_memtime s[90:91]", "  s_memrealtime s[92:93]", "  s_waitcnt lgkmcnt(0)", "  s_sub_u32 s96, s90, s96", "  s_sub_u32 s98, s92, s98"]
    X = []
    if l2:
        X += [f"  v_mov_b32 v{V_T2}, {LDS_MODE}", f"  ds_read_b32 v{V_T3}, v{V_T2}", "  s_waitcnt lgkmcnt(0)",
              f"  v_readfirstlane_b32 s{S_MODE}, v{V_T3}"]
    T1 += X
    T1 += closing(NU - 2, vreads(0, NU - 2, DA), tf)
    f = fills(1, 8)
    T1 += group(pvm(0, NU - 2, DA), vreads(1, NU - 2, DB_), f[0:8])
    T1, pend = auto_lgkm(T1, pendf)
    c2 = closing(NU - 1, [], f[8:18])[2:]
    k = next(i for i, l in enumerate(c2) if l.strip().startswith("v_add_f32"))
    c2 = c2[:k] + ["  s_nop 3"] + c2[k:]
    c2, pend = auto_lgkm(c2, pend)
    assert not pend
    T1 += c2
    ML = V_X
    T1 += [
        f"  v_mov_b32 v{ML}, v{V_M}" if pre != 2 else f"  v_mul_f32 v{ML}, s{S_C}, v{V_M}",
        f"  v_mov_b32 v{ML+1}, v{V_M+1}" if pre != 2 else f"  v_mul_f32 v{ML+1}, s{S_C}, v{V_M+1}",
        f"  v_mov_b32 v{ML+2}, v{Lb(1,0)}", f"  v_mov_b32 v{ML+3}, v{Lb(1,1)}",
    ]

    def publish(spol):
        def ostore(j):
            o = []
            if bf16p:
                b = V_S + 8 * (j - 1)
                for i in range(8):
                    o.append(f"  v_cvt_pk_bf16_f32 v{b+i}, v{V_O+16*j+2*i}, v{V_O+16*j+2*i+1}")
                    if i & 3 == 3:
                        o.append(f"  buffer_store_dwordx4 {vr(b+(i&4),4)}, v{V_LANE16}, {srd(S_WS)}, s{S_OD+j-1} offen offset:{(i>>2)*1024} {spol}")
            else:
                for i in range(4):
                    o.append(f"  buffer_store_dwordx4 {vr(V_O+16*j+4*i,4)}, v{V_LANE16}, {srd(S_WS)}, s{S_OD+j-1} offen offset:{i*1024} {spol}")
            return o
        nstamp[0] = 2
        o = ["  s_mov_b64 exec, 0xffff", f"  buffer_store_dwordx4 {vr(ML,4)}, v{V_LANE16}, {srd(S_WS)}, s{S_ML} offen {spol}", "  s_mov_b64 exec, -1"]
        stamp(o)
        o.append("  s_barrier")
        stamp(o)
        r0 = vreads(0, NU - 1, [2, 3, 4, 5])
        r1 = vreads(1, NU - 1, [6, 7, 0, 1])
        o += r0 + r1[:6]
        mf = pvm(0, NU - 1, [2, 3, 4, 5], 0) + pvm(1, NU - 1, [6, 7, 0, 1], 0)
        if tord == 0:
            o += mf[:2] + r1[6:] + mf[2:12] + ostore(1)[:5] + mf[12:14] + ostore(1)[5:] + mf[14:16] + ostore(2) + ostore(3)
        else:
            st_ = ostore(1) + ostore(2) + ostore(3)
            o += mf[:2] + r1[6:] + mf[2:8]
            k = 0
            for i, n in zip(range(8, 16), (2, 3, 2, 3, 5, 5, 5, 5)):
                o += [mf[i]] + st_[k:k + n]
                k += n
        o, pend = auto_lgkm(o)
        assert not pend
        return o + [f"  v_mov_b32 v{V_T1}, 1", "  s_mov_b64 exec, 1", "  s_waitcnt vmcnt(0)",
                    f"  buffer_store_dword v{V_T1}, off, {srd(S_WS)}, s{S_FO} {spol}"]
    if l2:
        T1 += [f"  s_cmp_eq_u32 s{S_MODE}, 4", "  s_cbranch_scc0 L_far"]
        FAR = publish("sc1") + ["  s_branch L_farret"]
        T2 = publish(npol) + ["L_farret:"]
    else:
        T2 = publish("sc1")
    T2 += ["  s_mov_b64 exec, 15"]
    stamp(T2)
    TP = [
        f"  buffer_load_dword v{V_T1}, v{V_FADDR}, {srd(S_WS)}, s{S_F} offen {ppol}",
        "  s_waitcnt vmcnt(0)",
        f"  v_cmp_ne_u32 vcc, 1, v{V_T1}",
        "  s_cbranch_vccz L_got",
    ] + ([f"  s_sleep {slp}"] if slp else []) + ["  s_branch L_poll"]
    T3 = ["  s_mov_b64 exec, -1"]
    if l2:
        T3 += [f"  s_cmp_eq_u32 s{S_MODE}, 4", "  s_cbranch_scc1 L_near", "  buffer_inv sc1", "  s_waitcnt vmcnt(0)", "L_near:"]
    stamp(T3)
    VML = V_FR
    VIN = V_S
    for j in range(1, 4):
        T3.append(f"  buffer_load_dwordx4 {vr(VML+4*(j-1),4)}, v{V_MLA}, {srd(S_WS)}, s{S_ML+j} offen {lpol}")
    nld = 2 if bf16p else 4
    for j in range(1, 4):
        if j > 1 and not bf16p:
            T3.append(f"  s_add_u32 s{S_OI}, s{S_OI}, {R}")
        if j == 3 and bf16p:
            T3.append(f"  s_add_u32 s{S_OI}, s{S_OI}, {2*R}")
        for i in range(nld):
            off = i * 1024 + (R if (bf16p and j == 2) else 0)
            T3.append(f"  buffer_load_dwordx4 {vr(VIN+4*nld*(j-1)+4*i,4)}, v{V_LANE16}, {srd(S_WS)}, s{S_OI} offen offset:{off} {lpol}")
    G = V_FR + 16
    p2 = lambda r: f"v[{r}:{r+1}]"
    ml = lambda j: ML if j == 0 else VML + 4 * (j - 1)
    WT = []
    for qb in range(2):
        WT += [f"  v_max3_f32 v{V_T0+qb}, v{ml(0)+qb}, v{ml(1)+qb}, v{ml(2)+qb}"]
    for qb in range(2):
        WT += [f"  v_max_f32 v{V_T0+qb}, v{V_T0+qb}, v{ml(3)+qb}"]
    for j in range(4):
        WT.append(f"  v_pk_add_f32 {p2(G+2*j)}, {p2(ml(j))}, {p2(V_T0)} neg_lo:[0,1] neg_hi:[0,1]")
    for j in range(8):
        WT.append(f"  v_exp_f32 v{G+j}, v{G+j}")
    WT.append(f"  v_pk_mul_f32 {p2(V_T0)}, {p2(G)}, {p2(ml(0)+2)}")
    for j in range(1, 4):
        WT.append(f"  v_pk_fma_f32 {p2(V_T0)}, {p2(G+2*j)}, {p2(ml(j)+2)}, {p2(V_T0)}")
    WT += [f"  v_rcp_f32 v{V_T0}, v{V_T0}", f"  v_rcp_f32 v{V_T1}, v{V_T1}", "  s_nop 0"]
    for j in range(4):
        WT.append(f"  v_pk_mul_f32 {p2(G+2*j)}, {p2(G+2*j)}, {p2(V_T0)}")
    UP = []
    U = V_O + 16 if bf16p else VIN
    if bf16p:
        for i in range(24):
            if i % 4 == 0:
                UP.append(f"  s_waitcnt vmcnt({5 - i // 4})")
            UP += [f"  v_lshlrev_b32 v{U+2*i}, 16, v{VIN+i}", f"  v_and_b32 v{U+2*i+1}, 0xffff0000, v{VIN+i}"]
    else:
        UP.append("  s_waitcnt vmcnt(0)")
    T3.append(f"  s_waitcnt vmcnt({3*nld})")
    T3 += WT[:16]
    k = 0
    for w_ in WT[16:]:
        T3 += UP[k:k + 2] + ([w_] if "s_nop" not in w_ or k >= len(UP) else [])
        k += 2
    T3 += UP[k:]
    sel = lambda i, n: " op_sel:[0,%d%s] op_sel_hi:[1,%d%s]" % ((i >> 2) & 1, ",0" * n, (i >> 2) & 1, ",1" * n)
    for i in range(0, 16, 2):
        T3.append(f"  v_pk_mul_f32 {p2(V_O+i)}, {p2(V_O+i)}, {p2(G)}" + sel(i, 0))
    for j in range(1, 4):
        for i in range(0, 16, 2):
            T3.append(f"  v_pk_fma_f32 {p2(V_O+i)}, {p2(U+16*(j-1)+i)}, {p2(G+2*j)}, {p2(V_O+i)}" + sel(i, 1))
    stamp(T3)
    OV = V_FR
    for qb in range(2):
        for e in range(2):
            for h in range(2):
                T3.append(f"  v_cvt_pk_bf16_f32 v{OV+4*qb+2*e+h}, v{Ob(e,qb)+2*h}, v{Ob(e,qb)+2*h+1}")
    T3 += [
        f"  v_permlane16_swap_b32 v{OV}, v{OV+2}",
        f"  v_permlane16_swap_b32 v{OV+1}, v{OV+3}",
        f"  buffer_store_dwordx4 {vr(OV,4)}, v{V_OUTA}, {srd(S_OUT)}, 0 offen {opol}",
        f"  v_permlane16_swap_b32 v{OV+4}, v{OV+6}",
        f"  v_permlane16_swap_b32 v{OV+5}, v{OV+7}",
        f"  buffer_store_dwordx4 {vr(OV+4,4)}, v{V_OUTA}, {srd(S_OUT)}, s{S_T3} offen {opol}",
    ]
    if diag:
        T3.append("  s_waitcnt vmcnt(0)")
        stamp(T3)
        T3 += [f"  s_mov_b32 s{S_WS}, s14", f"  s_mov_b32 s{S_WS+1}, s15", f"  s_mov_b32 s{S_WS+2}, {32<<20}"]
        T3.append("  s_getreg_b32 s4, hwreg(HW_REG_XCC_ID)")
        for k in range(nstamp[0]):
            T3.append(f"  v_mov_b32 v{V_S+k}, s{S_ST+2*k}")
        T3.append(f"  v_mov_b32 v{V_S+15}, s4")
        T3.append(f"  v_mov_b32 v{V_S+11}, 31")
        if diag in (3, 7):
            T3 += [f"  s_lshl_b32 s{S_T0}, s2, 2", f"  s_add_u32 s{S_T0}, s{S_T0}, s{S_W}", f"  s_lshl_b32 s{S_T0}, s{S_T0}, 8",
                   f"  s_add_u32 s{S_T0}, s{S_T0}, {OFF_T + (1 << 20)}", f"  v_lshrrev_b32 v{V_T0}, 2, v{V_LANE16}",
                   f"  buffer_store_dword v{V_TR}, v{V_T0}, {srd(S_WS)}, s{S_T0} offen"]
        if diag == 4:
            T3 += [f"  v_mov_b32 v{V_S+12}, s94", f"  v_mov_b32 v{V_S+13}, s96", f"  v_mov_b32 v{V_S+14}, s98"]
        T3 += [
            f"  s_lshl_b32 s{S_T0}, s2, 2",
            f"  s_add_u32 s{S_T0}, s{S_T0}, s{S_W}",
            f"  s_lshl_b32 s{S_T0}, s{S_T0}, 6",
            f"  s_add_u32 s{S_T0}, s{S_T0}, {OFF_T}",
            "  s_mov_b64 exec, 1",
        ]
        for i in range(4):
            T3.append(f"  buffer_store_dwordx4 {vr(V_S+4*i,4)}, off, {srd(S_WS)}, s{S_T0} offset:{16*i}")
    T3.append("  s_endpgm")

    if "S" in abl:
        T1 = [l for l in T1 if not l.strip().startswith("buffer_store")]
        T2 = [l for l in T2 if not l.strip().startswith("buffer_store_dwordx4")]
    if "F" in abl:
        T2 = [l for l in T2 if not l.strip().startswith("buffer_store_dword ")]
        TP = []
    if "R" in abl:
        T3 = [l for l in T3 if not l.strip().startswith("buffer_load")]

    def inline_fix(lines):
        o = []
        for l in lines:
            o.append(l)
            if l.strip().startswith("s_cbranch_vccnz L_fix"):
                o += FIX[sites[int(l.strip().split("L_fix")[1])]]
        return o
    flat = [l for cl, fr in BODY for l in cl + fr]
    first = BODY[midx][1] + [l for cl, fr in BODY[midx + 1:] for l in cl + fr]
    main = E + P + P2 + first + flat + T1 + T2 + TP + T3
    nbar = sum(l == "  s_barrier" for l in P + P2 + first + flat * (nit - 1) + T1 + T2)
    assert nbar == NU + 1 + bq or abl, nbar
    traces["cons_a"] = main
    traces["cons_b"] = inline_fix(main)
    errs = []
    for n, t in traces.items():
        errs += check_hazards(t, n)
    if errs and not abl.strip("L"):
        raise RuntimeError("hazards:\n" + "\n".join(errs))

    out = [HEADER.rstrip(),
           "; 256 workgroups = 64 (batch, kv head) pairs x 4 key splits; wave 0 streams K/V into an LDS ring,",
           "; waves 1-4 each own one query head (32 rows); partial results are exchanged through d_ws.",
           f"; @launch grid=(256,1,1) block=(320,1,1) lds={lds}",
           '.amdgcn_target "amdgcn-amd-amdhsa--gfx950"', ".text", f".globl {NAME}", ".p2align 8",
           f".type {NAME},@function", f"{NAME}:"]
    out += E + LOADER
    out += [".p2align 6", "L_cons:"] + P + P2
    out += [".p2align 6", "L_loop:"]
    loop = []
    for i, (cl, fr) in enumerate(BODY):
        loop += cl + (["L_mid:"] if i == midx else []) + fr
    if al == 1:
        loop, nmis, ph = align8(loop)
    if al == 2:
        loop, nmis, ph = align8(loop)
        loop = ["  s_nop 0"] + loop
    out += loop
    out += T1 + T2 + ["L_poll:"] + TP + ["L_got:"] + T3
    if l2:
        out += ["L_far:"] + FAR
    for k, par in enumerate(sites):
        out += [f"L_fix{k}:", f"  s_call_b64 s[{S_RET}:{S_RET+1}], L_fixfn{par}", f"  s_branch L_ret{k}"]
    for par in range(2):
        out += [f"L_fixfn{par}:"] + FIX[par] + [f"  s_setpc_b64 s[{S_RET}:{S_RET+1}]"]
    out += ["L_end:", "  s_endpgm"]
    out += ['.section .rodata,"a"', ".p2align 6", f".amdhsa_kernel {NAME}",
            f"  .amdhsa_next_free_vgpr {NVGPR}", "  .amdhsa_next_free_sgpr 102",
            f"  .amdhsa_accum_offset {NVGPR}", "  .amdhsa_group_segment_fixed_size 0",
            "  .amdhsa_kernarg_size 48", "  .amdhsa_user_sgpr_count 2",
            "  .amdhsa_user_sgpr_kernarg_segment_ptr 1", "  .amdhsa_system_sgpr_workgroup_id_x 1",
            ".end_amdhsa_kernel"]
    return "\n".join(l.rstrip() for l in out if l is not None) + "\n"


if __name__ == "__main__":
    kw = eval("dict(%s)" % sys.argv[1]) if len(sys.argv) > 1 else {}
    sys.stdout.write(gen(**kw))
```

```python
import struct, sys, math
from asmlib import check_hazards, auto_lgkm, align8

NAME = "standalone__gqa_softmax__sampling_kernel"

HEADER = """; Kernarg layout for this problem (48 bytes, ptrs only, base s[0:1]):
;   offset   0: d_in[0] q  shape=(8, 32, 32, 128) dtype=bfloat16 strides=(262144, 8192, 256, 2) contiguous=True
;   offset   8: d_in[1] k  shape=(8, 8, 8192, 128) dtype=bfloat16 strides=(16777216, 2097152, 256, 2) contiguous=True
;   offset  16: d_in[2] v  shape=(8, 8, 8192, 128) dtype=bfloat16 strides=(16777216, 2097152, 256, 2) contiguous=True
;   offset  24: d_out     shape=(8, 32, 32, 128) dtype=bfloat16 (2 bytes/elem)
"""


def f32(x):
    return "0x%08x" % struct.unpack("<I", struct.pack("<f", x))[0]


V_M = 2
V_T0, V_T1, V_T2, V_T3 = 4, 5, 6, 7
V_LANE16 = 8
V_FADDR = 9
V_OUTA = 10
V_TR = 11
V_KA = 12
V_VA = 16
V_X = 24
V_FR = 32
V_O = 64
V_S = 128
V_P = 160
V_L = 176
V_ONE = 192
V_NM = 196
V_JUNK = 204
V_MLA = 206
V_Q = 208
NVGPR = 240

S_K, S_V, S_Q, S_OUT, S_WS, S_DBG = 16, 20, 24, 28, 32, 36
S_BH, S_SP, S_W = 40, 41, 42
S_MODE = 43
S_C, S_THR = 44, 45
S_CNT = 46
S_T0, S_T1, S_T2, S_T3 = 50, 51, 52, 53
S_OD = 54
S_OI = 57
S_ML = 58
S_F = 62
S_FO = 63
S_DB = 64
S_RET = 66
S_ST = 70

OFF_PR = 0x1c000
PR_STRIDE = (1 << 20) + 256
OFF_T = 20 << 20
NU = 64


def vr(base, n):
    return f"v[{base}:{base+n-1}]"


def srd(b):
    return f"s[{b}:{b+3}]"


def cost(l):
    return 2 if l.split()[0].startswith("v_exp") else 1


def spread(fillers, weights):
    nslots = len(weights)
    tot = sum(cost(f) for f in fillers)
    wt = sum(weights)
    out = [[] for _ in range(nslots)]
    acc = k = cw = 0
    for s in range(nslots):
        cw += weights[s]
        tgt = tot * cw / wt
        while k < len(fillers) and acc + cost(fillers[k]) / 2.0 <= tgt + 1e-9:
            out[s].append(fillers[k])
            acc += cost(fillers[k])
            k += 1
    out[-1] += fillers[k:]
    return out


def sched(up, step=1, lo=20, hold=1, dec=1):
    l = [0]
    x = lo
    for d in up:
        x += d
        l.append(x)
    l += [x] * hold
    while x > lo + dec:
        x -= dec
        l += [x] * step
    return tuple(l)


def gen(W=22, up=(8, 6, 5, 4, 2, 1), hold=1, stg=3, rk=1, nlv=1, th=(14, 26), bias=(-1, -7, -3, -8, 7, 5, 2, -4), hsn=3, wsl=1, lw=0, plp="nt", pfp="", hpol="sc1", psp="", psh=2, lpol="sc1", ppol="sc1", slp=0, pol="nt", grp="xcd2", bf16p=1, THR=2.0 ** 24, diag=0,
        opol="", qpol="", prio=3, abl="", pre=1, pk=0, al=1, LPOS=2, WG=1, RD=4, NSL=8, l2=1, warm=0, bal=1, lds=98304, NE=10, pf=4, il=1, xph=0, pfpos=0, npol="", cpf=2, chain=1, pvo=0, bq=1, probe=0, shs=0, pfw=16, pfn=4, touch=2, tiny=1, cmp=1, npl=0, tord=1, hs=3, rpol="", clr=0, late=-1, rot=0, xw=(7, 15, 5, 17, 22, 5, 13, 6), qlds=1, fastp=1, pfs=(0, 10, 7, 4, 3, 1)):
    traces = {}
    NE = min(NE, 4 if pre == 1 else 7 if pk else 10)
    nstamp = [0]

    def stamp(dst):
        if diag:
            k = nstamp[0]
            nstamp[0] += 1
            dst.append(f"  s_memrealtime s[{S_ST+2*k}:{S_ST+2*k+1}]")
            dst.append("  s_waitcnt lgkmcnt(0)")

    R = 2048 if bf16p else 4096
    GB = 17 if bf16p else 18
    SLAB = 3 * R + 256
    OFF_F = 16 * SLAB
    VBASE = NSL * 8192
    QBASE = 2 * VBASE if NSL == 4 else VBASE + 32768
    LDS_MODE = 2 * VBASE + (32768 if qlds and NSL == 4 else 0)
    LDS_JUNK = LDS_MODE + 64
    lds = max(lds, LDS_MODE + 64 + 256)
    assert lds <= 163840
    c = math.log2(math.e) / math.sqrt(128.0)
    blk = lambda d, t: [f"  s_and_b32 s{d}, s{S_BH}, 7", f"  s_lshl_b32 s{d}, s{d}, {GB+3}", f"  s_lshr_b32 s{t}, s{S_BH}, 3",
                        f"  s_lshl_b32 s{t}, s{t}, {GB}", f"  s_add_u32 s{d}, s{d}, s{t}"] if (wsl and grp != "xcd") else [f"  s_lshl_b32 s{d}, s{S_BH}, {GB}"]
    E = ["  s_cmp_ge_u32 s2, 256", "  s_cbranch_scc1 L_end"]
    if diag == 6:
        E += ["  s_memrealtime s[68:69]"]
    E += [
        "  s_load_dwordx4 s[4:7], s[0:1], 0",
        "  s_load_dwordx4 s[8:11], s[0:1], 16",
        "  s_load_dwordx4 s[12:15], s[0:1], 32",
        "  v_lshrrev_b32 v1, 6, v0",
        "  v_and_b32 v0, 63, v0",
        "  v_readfirstlane_b32 s3, v1",
    ]
    if grp == "xcd":
        E += [
            f"  s_and_b32 s{S_T0}, s2, 7",
            f"  s_bfe_u32 s{S_SP}, s2, {3 | (2 << 16)}",
            f"  s_lshr_b32 s{S_T1}, s2, 5",
            f"  s_lshl_b32 s{S_BH}, s{S_T0}, 3",
            f"  s_add_u32 s{S_BH}, s{S_BH}, s{S_T1}",
        ]
    elif grp == "xcd2":
        E += ([f"  s_add_u32 s{S_T0}, s2, {rot}", f"  s_and_b32 s{S_T0}, s{S_T0}, 7"] if rot else [f"  s_and_b32 s{S_T0}, s2, 7"]) + [
            f"  s_bfe_u32 s{S_SP}, s2, {3 | (2 << 16)}",
            f"  s_lshr_b32 s{S_T1}, s2, 5",
            f"  s_lshl_b32 s{S_BH}, s{S_T1}, 3",
            f"  s_add_u32 s{S_BH}, s{S_BH}, s{S_T0}",
        ]
    elif grp == "lo":
        E += [f"  s_lshr_b32 s{S_BH}, s2, 2", f"  s_and_b32 s{S_SP}, s2, 3"]
    if late >= 0:
        E += [f"  s_cmp_lg_u32 s{S_SP}, {late}", "  s_cbranch_scc1 L_nolate", "  s_mov_b32 s47, 20", "L_late:", "  s_sleep 100",
              "  s_sub_u32 s47, s47, 1", "  s_cmp_lg_u32 s47, 0", "  s_cbranch_scc1 L_late", "L_nolate:"]
    E += ["  s_cmp_lg_u32 s3, 0", "  s_cbranch_scc1 L_cons"]

    LD = []
    if cpf:
        LD += ["  s_getpc_b64 s[48:49]", "L_pc:", "  v_lshlrev_b32 v5, 7, v0", "  v_mov_b32 v9, s49"]
        for i in range(cpf + 1):
            LD += (["  v_add_u32 v5, 8192, v5"] if i else []) + ["  v_min_u32 v6, L_end - L_pc, v5", "  v_add_co_u32 v6, vcc, s48, v6", "  s_nop 1",
                   "  v_addc_co_u32 v7, vcc, 0, v9, vcc", "  global_load_dword v8, v[6:7], off"]
    LD += [
        f"  s_setprio {prio}",
        f"  s_lshl_b32 s{S_T0}, s{S_BH}, 21",
        f"  s_lshl_b32 s{S_T1}, s{S_SP}, {10 if il else 19}",
        f"  s_add_u32 s{S_T0}, s{S_T0}, s{S_T1}",
        "  v_lshrrev_b32 v3, 4, v0",
        "  v_and_b32 v4, 15, v0",
        "  v_xor_b32 v5, v3, v4",
        "  v_lshlrev_b32 v5, 4, v5",
        "  v_lshl_add_u32 v10, v3, 8, v5",
        "  v_xor_b32 v11, 64, v10",
        "  v_xor_b32 v12, 0x80, v10",
        "  v_xor_b32 v13, 0xc0, v10",
        "  v_lshlrev_b32 v5, 1, v3",
        "  v_xor_b32 v5, v5, v4",
        "  v_lshlrev_b32 v5, 4, v5",
        "  v_lshl_add_u32 v14, v3, 8, v5",
        "  v_xor_b32 v15, 0x80, v14",
    ] + ([
        "  v_mov_b32 v25, v11", "  v_mov_b32 v26, v12", "  v_mov_b32 v27, v13",
        f"  s_lshl_b32 s{S_T3}, s{S_BH}, 15", f"  s_mov_b32 s{S_Q+2}, 32768", f"  s_mov_b32 s{S_Q+3}, 0x20000",
    ] if qlds else []) + ([
        "  v_add_u32 v11, 3072, v11", "  v_add_u32 v12, 6144, v12", "  v_add_u32 v13, 9216, v13",
        "  v_add_u32 v16, 6144, v14", "  v_add_u32 v17, 9216, v15", "  v_add_u32 v15, 3072, v15",
        f"  s_sub_u32 s{S_K+2}, 0x200000, s{S_T1}",
    ] if il else [f"  s_mov_b32 s{S_K+2}, 0x80000"]) + [
        f"  s_mov_b32 s{S_K+3}, 0x20000",
        f"  s_mov_b32 s{S_V+2}, s{S_K+2}",
        f"  s_mov_b32 s{S_V+3}, 0x20000",
        f"  s_lshl_b32 s56, s{S_BH}, 15",
        "  s_mov_b32 s54, 0",
        "  s_mov_b32 s55, 0",
        "  s_waitcnt lgkmcnt(0)",
    ]
    QD = []
    if qlds:
        QD += [f"  s_add_u32 s{S_Q}, s4, s{S_T3}", f"  s_addc_u32 s{S_Q+1}, s5, 0"]
        for g in range(8):
            QD += [f"  s_mov_b32 m0, {QBASE + g*4096}", f"  s_movk_i32 s{S_T2}, {g*4096}"]
            for j in range(4):
                QD.append(f"  buffer_load_dwordx4 v{10 if j == 0 else 24+j}, {srd(S_Q)}, s{S_T2} offen offset:{j*1024} {qpol} lds")
    KV = [
        f"  s_add_u32 s{S_K}, s6, s{S_T0}",
        f"  s_addc_u32 s{S_K+1}, s7, 0",
        f"  s_add_u32 s{S_V}, s8, s{S_T0}",
        f"  s_addc_u32 s{S_V+1}, s9, 0",
    ]
    for i in range(probe):
        LD += [f"  s_lshl_b32 s47, s{S_BH}, 21", f"  s_add_u32 s47, s47, {(64 + 128 * i) << 20}", "  v_mov_b32 v30, s47",
               "  global_load_dword v31, v30, s[14:15]", "  s_waitcnt vmcnt(0)"]
    if touch:
        LD += KV + [f"  s_mov_b32 m0, {LDS_JUNK}", "  s_mov_b64 exec, 1",
                    f"  buffer_load_dword v10, {srd(S_K)}, 0 offen lds", f"  buffer_load_dword v10, {srd(S_V)}, 0 offen lds"]
        if touch == 2:
            LD += [f"  v_mov_b32 v30, s{S_T3}", "  global_load_lds_dword v30, s[10:11]"]
        LD += ["  s_mov_b64 exec, -1"]
        KV = []
    if qlds == 1:
        LD += QD
    LD += KV
    LATE = []
    if cmp:
        LD = ["  s_getpc_b64 s[48:49]", "L_pc:", "  v_lshlrev_b32 v4, 7, v0", "  v_mov_b32 v5, 0"]
        for i in range(cpf + 1):
            LD += ([f"  v_add_u32 v4, 8192, v4"] if i else []) + (["  v_min_u32 v4, L_end - L_pc, v4"] if i == cpf else []) + \
                ["  v_lshl_add_u64 v[6:7], v[4:5], 0, s[48:49]", "  global_load_dword v8, v[6:7], off"]
        LD += [
            f"  s_setprio {prio}",
            f"  s_lshl_b32 s{S_T0}, s{S_BH}, 21", f"  s_lshl_b32 s{S_T1}, s{S_SP}, 10", f"  s_add_u32 s{S_T0}, s{S_T0}, s{S_T1}",
            "  v_lshrrev_b32 v3, 4, v0", "  v_and_b32 v4, 15, v0",
            "  v_xor_b32 v5, v3, v4", "  v_lshlrev_b32 v5, 4, v5", "  v_lshl_add_u32 v10, v3, 8, v5",
            "  v_xor_b32 v11, 64, v10", "  v_xor_b32 v12, 0x80, v10", "  v_xor_b32 v13, 64, v12",
            f"  s_lshl_b32 s{S_T3}, s{S_BH}, 15", f"  s_mov_b32 s{S_Q+2}, 32768", f"  s_mov_b32 s{S_Q+3}, 0x20000",
            f"  s_sub_u32 s{S_K+2}, 0x200000, s{S_T1}", f"  s_mov_b32 s{S_K+3}, s{S_Q+3}",
            f"  s_mov_b64 s[{S_V+2}:{S_V+3}], s[{S_K+2}:{S_K+3}]", "  s_mov_b64 s[54:55], 0",
            f"  v_mov_b32 v30, s{S_T3}", f"  s_mov_b32 m0, {LDS_JUNK}", "  s_mov_b64 exec, 1",
            "  s_waitcnt lgkmcnt(0)",
            f"  s_add_u32 s{S_K}, s6, s{S_T0}", f"  s_addc_u32 s{S_K+1}, s7, 0", f"  buffer_load_dword v10, {srd(S_K)}, 0 offen lds",
            f"  s_add_u32 s{S_V}, s8, s{S_T0}", f"  s_addc_u32 s{S_V+1}, s9, 0", f"  buffer_load_dword v10, {srd(S_V)}, 0 offen lds",
            "  global_load_lds_dword v30, s[10:11]", "  s_mov_b64 exec, -1",
            f"  s_add_u32 s{S_Q}, s4, s{S_T3}", f"  s_addc_u32 s{S_Q+1}, s5, 0",
            "L_q:", f"  s_add_u32 m0, s54, {QBASE}", "  s_nop 0"]
        LD += [f"  buffer_load_dwordx4 v{10+j}, {srd(S_Q)}, s54 offen offset:{j*1024} {qpol} lds" for j in range(4)]
        LD += ["  s_addk_i32 s54, 0x1000", f"  s_cmp_lg_u32 s54, s{S_Q+2}", "  s_cbranch_scc1 L_q",
               "  s_mov_b32 s54, 0", "  v_add_u32 v11, 3072, v11", "  v_add_u32 v12, 6144, v12", "  v_add_u32 v13, 9216, v13"]
        LATE = ["  v_lshlrev_b32 v5, 1, v3", "  v_xor_b32 v5, v5, v4", "  v_lshlrev_b32 v5, 4, v5", "  v_lshl_add_u32 v14, v3, 8, v5",
                "  v_xor_b32 v15, 0x80, v14", "  v_add_u32 v16, 6144, v14", "  v_add_u32 v17, 9216, v15", "  v_add_u32 v15, 3072, v15"]
    S_CD, S_B, S_TAB, S_PF, S_N, S_BE, S_RK, S_SLOT, S_MASK, S_PR, S_TH = 56, 57, 58, 60, 61, 62, 63, 65, 66, 68, 72
    LV = list(range(-nlv, nlv + 1)) if rk else [0]
    NX = 2 if rk else 0
    lo = W - 1 + max(LV) + NX
    assert 16 < lo < 32
    fld = 2 | ((VBASE.bit_length() - 1) << 16)
    stubs = []

    def dma(which, j):
        go, sr = (54, S_K) if which == "K" else (55, S_V)
        return f"  buffer_load_dwordx4 v{(10 if which == 'K' else 14) + j}, {srd(sr)}, s{go} offen offset:{j*1024} {pol} lds"

    def part(dst, which, before, after=lambda: [], ng=2):
        go = 54 if which == "K" else 55
        for g in range(ng):
            dst += [f"  s_bfe_u32 m0, s{go}, {fld}"] if which == "K" else [f"  s_bfe_u32 s{S_T2}, s{go}, {fld}", f"  s_or_b32 m0, s{S_T2}, {VBASE}"]
            for j in range(4):
                w_ = before()
                dst += (w_ or (["  s_nop 0"] if j == 0 else [])) + [dma(which, j)] + after()
            dst.append(f"  s_add_u32 s{go}, s{go}, 16384")

    st = dict(pos=0, pend=[])

    def static():
        o = []
        x = W - 1
        if st["pos"] == W:
            o += [f"  s_waitcnt vmcnt({W})", "  s_barrier"]
        if st["pos"] > x:
            o.append(f"  s_waitcnt vmcnt({x})")
            while st["pend"] and st["pos"] - st["pend"][0] >= x:
                o.append("  s_barrier")
                st["pend"].pop(0)
        st["pos"] += 1
        return o
    if cmp:
        LD += ["L_k:", "  s_lshr_b32 m0, s54, 2", "  s_nop 0"] + [dma("K", j) for j in range(4)] + \
              ["  s_addk_i32 s54, 0x4000", f"  s_cmp_lg_u32 s54, {5*16384}", "  s_cbranch_scc1 L_k"]
        st["pos"] = 20
        assert W >= 21
    else:
        part(LD, "K", static); part(LD, "K", static)
    st["pend"].append(16)
    setup = [
        f"  s_mov_b32 s{S_DBG}, s12", f"  s_mov_b32 s{S_DBG+1}, s13", f"  s_mov_b32 s{S_DBG+2}, 256", f"  s_mov_b32 s{S_DBG+3}, 0x20000",
        f"  s_lshl_b32 s{S_DB}, s{S_BH}, 2", f"  v_mov_b32 v20, {LDS_MODE}",
    ] + blk(S_T2, S_T1) + [f"  s_add_u32 s{S_WS}, s14, s{S_T2}", f"  s_addc_u32 s{S_WS+1}, s15, 0",
        f"  s_mov_b32 s{S_WS+2}, {1 << GB}", f"  s_mov_b32 s{S_WS+3}, 0x20000",
        f"  v_and_b32 v24, {8*pfn-1}, v0", "  v_lshlrev_b32 v24, 7, v24", f"  s_mul_i32 s{S_PF}, s{S_SP}, {4*SLAB}",
    ]
    lag1 = W - 1 + up[0]
    tabv = [d + 1 for d in up[1:]] + [1] * hold
    assert len(tabv) <= 16 and max(tabv) <= 15 and lag1 >= lo
    bend = len(tabv) + (W - 1 + sum(up)) - lo
    tab = sum(v << (4 * i) for i, v in enumerate(tabv))
    setup += [f"  s_mul_i32 s{S_T2}, s{S_SP}, {stg}", f"  s_add_u32 s{S_CD}, s{S_T2}, {32 + lag1 - 48}", f"  s_add_u32 s{S_BE}, s{S_T2}, {bend}",
              f"  s_mov_b32 s{S_B}, 0", f"  s_mov_b32 s{S_TAB}, {tab & 0xffffffff}", f"  s_mov_b32 s{S_TAB+1}, {tab >> 32}",
              f"  s_mov_b32 s{S_N}, 0"]
    for sp in range(4):
        cd, nb_, t_, done = sp * stg + 32 + lag1 - 48, 0, tab, 0
        for p in range(48, 16 * 63):
            u = p // 16
            need = (u + 1 - NSL) if p % 16 < 8 else (u - 1 - NSL + 2)
            assert done >= need, (sp, p)
            if cd == 0:
                done += 1
                assert p - 16 * (done + 1) >= lo, (sp, p, done)
                nb_ += 1
                cd = (t_ & 15) + 14 + (1 if nb_ > bend + sp * stg else 0)
                t_ >>= 4
                last = p - 16 * (done + 1)
            else:
                cd -= 1
        assert done == 60 and last == lo, (sp, done, last)
    if rk:
        setup += [f"  s_add_u32 s{S_PR}, s14, {OFF_PR}", f"  s_addc_u32 s{S_PR+1}, s15, 0", f"  s_mov_b32 s{S_PR+2}, {8*PR_STRIDE}", f"  s_mov_b32 s{S_PR+3}, 0x20000",
                  f"  s_and_b32 s{S_T2}, s2, 7", f"  s_mul_i32 s{S_T1}, s{S_T2}, {PR_STRIDE}",
                  "  v_and_b32 v28, 31, v0", f"  v_lshl_add_u32 v29, v28, {psh}, s{S_T1}",
                  ] + (["  v_lshrrev_b32 v5, 2, v28", "  v_lshlrev_b32 v5, 5, v5", "  v_and_b32 v28, 3, v28", "  v_add_u32 v28, v28, v5"] if grp != "xcd" else []) + [
                  f"  s_lshl_b32 s{S_T2}, s{S_T2}, {2 if grp != 'xcd' else 5}", f"  v_add_u32 v28, s{S_T2}, v28",
                  f"  s_lshr_b32 s{S_SLOT}, s2, 3", f"  s_lshl_b32 s{S_SLOT}, s{S_SLOT}, {psh}", f"  s_add_u32 s{S_SLOT}, s{S_SLOT}, s{S_T1}",
                  "  v_mov_b32 v30, 0", "  v_mov_b32 v23, 0"]
        setup += [f"  s_movk_i32 s{S_TH+i}, {-1000 if i < nlv else 1000}" for i in range(2 * nlv)]
    if cmp:
        rest = []
        part(rest, "K", static, ng=1)
        k = rest.index(f"  s_waitcnt vmcnt({W})")
        LD += rest[:k] + LATE + setup + rest[k:]
        part(LD, "V", static); part(LD, "K", static); part(LD, "V", static)
    else:
        LD += setup
        for _ in range(2):
            part(LD, "K", static); part(LD, "V", static)
    assert not st["pend"] and st["pos"] == 48

    def passes(lv):
        o = []
        k = [0]

        def before():
            x = W - 1 + lv
            k[0] += 1
            return [f"  s_waitcnt vmcnt({x + (NX if k[0] - 1 < x else 0)})"]

        def after():
            i = len(stubs)
            stubs.append(i)
            return [f"  s_sub_u32 s{S_CD}, s{S_CD}, 1", f"  s_cbranch_scc1 L_bar{i}", f"L_barret{i}:"]
        for _ in range(2):
            part(o, "K", before, after); part(o, "V", before, after)
        return o + [f"  s_cmp_lg_u32 s{S_N}, 30", "  s_cbranch_scc1 L_ldloop"]
    STUB = ["  s_barrier", f"  s_and_b32 s{S_CD}, s{S_TAB}, 15", f"  s_lshr_b64 s[{S_TAB}:{S_TAB+1}], s[{S_TAB}:{S_TAB+1}], 4",
            f"  s_add_u32 s{S_B}, s{S_B}, 1", f"  s_cmp_gt_u32 s{S_B}, s{S_BE}", f"  s_addc_u32 s{S_CD}, s{S_CD}, 14"]
    D0 = []
    if rk:
        D0 += [f"  v_cmp_le_u32 vcc, s{S_N}, v30", f"  s_add_u32 s{S_N}, s{S_N}, 1", f"  v_mov_b32 v31, s{S_N}",
               f"  s_bcnt1_i32_b32 s{S_RK}, vcc_lo",
               f"  buffer_load_dword v30, v29, {srd(S_PR)}, 0 offen {plp}", "  s_mov_b64 exec, 1",
               f"  buffer_store_dword v31, off, {srd(S_PR)}, s{S_SLOT} {psp}", "  s_mov_b64 exec, -1"]
        if "1" in abl:
            D0[-2] = D0[-4].replace("v30", "v31", 1)
        if "2" in abl:
            D0[-4] = D0[-2]
    else:
        D0 += [f"  s_add_u32 s{S_N}, s{S_N}, 1"]
    D0 += [f"  s_cmp_eq_u32 s{S_N}, {hsn}", "  s_cbranch_scc1 L_hs0", f"  s_cmp_eq_u32 s{S_N}, {hsn+2}", "  s_cbranch_scc1 L_hs1", "L_go:"]
    for i in range(nlv if rk else 0):
        D0 += [f"  s_cmp_lt_i32 s{S_RK}, s{S_TH+i}", f"  s_cbranch_scc1 L_lv{i}",
               f"  s_cmp_ge_i32 s{S_RK}, s{S_TH+2*nlv-1-i}", f"  s_cbranch_scc1 L_lv{2*nlv-i}"]
    D1 = passes(0)
    DA_ = []
    for i, lv in enumerate(LV):
        if lv:
            DA_ += [f"L_lv{i}:"] + passes(lv) + ["  s_branch L_ldtail"]
    if tiny:
        DA_ += [".p2align 6", "L_barfn:"] + STUB + ["  s_setpc_b64 s[76:77]"]
    for i in stubs:
        DA_ += [f"L_bar{i}:"] + (["  s_call_b64 s[76:77], L_barfn"] if tiny else STUB) + [f"  s_branch L_barret{i}"]
    H0 = ["  v_mov_b32 v22, 0", f"  buffer_load_dword v22, off, {srd(S_DBG)}, s{S_DB} {hpol}"]
    if rk:
        H0 += [f"  buffer_load_ubyte v23, v28, {srd(S_DBG)}, 0 offen {hpol}"]
    H0 += ["  s_branch L_go"]
    chk4 = lambda m, lab: [f"  v_and_b32 v21, {m}, v22", f"  v_cmp_ne_u32 vcc, {m}, v21", f"  s_cbranch_vccz {lab}"]
    hello = lambda bits: [f"  s_getreg_b32 s{S_T2}, hwreg(HW_REG_XCC_ID, 0, 3)", f"  s_or_b32 s{S_T2}, s{S_T2}, {bits}", f"  v_mov_b32 v21, s{S_T2}",
                          f"  s_add_u32 s{S_T2}, s{S_DB}, s{S_SP}", f"  buffer_store_byte v21, off, {srd(S_DBG)}, s{S_T2} sc1"]
    memrd = ["  v_mov_b32 v22, 0", f"  buffer_atomic_or v22, off, {srd(S_DBG)}, s{S_DB} sc0 sc1", "  s_waitcnt vmcnt(0)"]
    H1 = []
    if rk:
        bt = sum(((bias[i] + 8) & 15) << (4 * i) for i in range(8))
        H1 += [f"  s_getreg_b32 s{S_T2}, hwreg(HW_REG_XCC_ID, 0, 3)", f"  s_or_b32 s{S_T1}, s{S_T2}, 0x80",
               f"  v_cmp_ne_u32 vcc, s{S_T1}, v23", "  s_cbranch_vccnz L_nork",
               f"  s_lshl_b32 s{S_T2}, s{S_T2}, 2", f"  s_lshr_b32 s{S_T2}, {bt}, s{S_T2}", f"  s_and_b32 s{S_T2}, s{S_T2}, 15"]
        H1 += [f"  s_sub_i32 s{S_TH+i}, {th[i] + 8}, s{S_T2}" for i in range(2 * nlv)] + ["L_nork:"]
    H1 += chk4("0x80808080", "L_hs2") + ["  s_mov_b64 exec, 1", f"  s_add_u32 s{S_T2}, s{S_DB}, s{S_SP}", "L_hs1a:",
           f"  buffer_load_ubyte v21, off, {srd(S_DBG)}, s{S_T2} sc1", "  s_waitcnt vmcnt(0)", "  v_cmp_eq_u32 vcc, 0, v21", "  s_cbranch_vccnz L_hs1a"] + hello("0x80") + ["L_hs1b:",
           f"  buffer_load_dword v22, off, {srd(S_DBG)}, s{S_DB} sc1", "  s_waitcnt vmcnt(0)"] + chk4("0x80808080", "L_hs2") \
        + memrd + chk4("0x80808080", "L_hs2") + ["  s_branch L_hs1b"]
    H2 = ["  s_mov_b64 exec, 1", "  v_alignbit_b32 v21, v22, v22, 8", "  v_xor_b32 v21, v21, v22", "  v_and_b32 v21, 0x07070707, v21",
          "  v_cmp_ne_u32 vcc, 0, v21", "  v_mov_b32 v21, 4", "  s_cbranch_vccnz L_hsfar", "L_hs3:",
          "  ds_write_b32 v20, v21", "  s_mov_b64 exec, -1", "  s_waitcnt lgkmcnt(0)",
          "  v_and_b32 v21, 3, v0", "  v_lshlrev_b32 v21, 7, v21", f"  s_mov_b32 s{S_T2}, {OFF_F}",
          f"  buffer_load_dword v23, v21, {srd(S_WS)}, s{S_T2} offen", "  s_branch L_go"]
    HX = ["L_hsfar:", "  s_mov_b64 exec, 15", "  v_lshlrev_b32 v21, 7, v0", "  v_mov_b32 v22, 0",
          f"  s_lshl_b32 s{S_T2}, s{S_SP}, 2", f"  s_add_u32 s{S_T2}, s{S_T2}, {OFF_F}",
          f"  buffer_store_dword v22, v21, {srd(S_WS)}, s{S_T2} offen sc1", "  s_mov_b64 exec, 1", "  s_waitcnt vmcnt(0)"] \
        + hello("0xc0") + ["L_hsfar2:"] + memrd + chk4("0x40404040", "L_hsfar3") + ["  s_branch L_hsfar2",
          "L_hsfar3:", "  v_mov_b32 v21, 0", "  s_branch L_hs3"]
    D6 = []
    st.update(pos=16 * 63, pend=[16 * 62, 16 * 63])
    part(D6, "V", static); st["pend"].append(st["pos"])
    part(D6, "V", static); st["pend"].append(st["pos"])
    D6 += [f"  s_mov_b32 m0, {LDS_JUNK}"]
    for q in range(-(-25 // pfn)):
        while st["pend"] and st["pos"] - st["pend"][0] >= pfw - 1:
            D6 += [f"  s_waitcnt vmcnt({st['pos'] - st['pend'].pop(0)})", "  s_barrier"]
        D6 += [f"  s_waitcnt vmcnt({pfw-1})", f"  buffer_load_dword v24, {srd(S_WS)}, s{S_PF} offen {pfp} lds", f"  s_add_u32 s{S_PF}, s{S_PF}, {1024*pfn}"]
        st["pos"] += 1
    for e_ in st["pend"]:
        D6 += [f"  s_waitcnt vmcnt({st['pos'] - e_})", "  s_barrier"]
    D6.append("  s_endpgm")
    assert sum(l == "  s_barrier" for l in LD + D6) + 60 == NU + 2
    traces["loader"] = E + LD + D0 + H0 + D1 + D0 + H1 + H1 + H2 + HX + H2 + DA_ + D0 + D1 + D6
    LOADER = LD + ["L_ldloop:"] + D0 + D1 + ["L_ldtail:"] + D6 + ["L_hs0:"] + H0 + ["L_hs1:"] + H1 + ["L_hs2:"] + H2 + HX + DA_

    P = []
    stamp(P)
    Qf = lambda qb, ks: V_Q + 4 * (qb * 4 + ks)
    P += [
        f"  s_sub_u32 s{S_W}, s3, 1",
        f"  s_lshl_b32 s{S_DB}, s{S_BH}, 2",
        f"  s_add_u32 s{S_T1}, s{S_DB}, s{S_W}",
        f"  s_lshl_b32 s{S_T2}, s{S_T1}, 13",
        f"  v_and_b32 v{V_T0}, 15, v0",
        f"  v_lshrrev_b32 v{V_T1}, 4, v0",
        f"  v_lshlrev_b32 v{V_T2}, 4, v{V_T1}",
        f"  v_lshl_add_u32 v{V_T3}, v{V_T0}, 8, v{V_T2}",
        f"  s_mov_b32 s{S_Q+2}, 8192",
        f"  s_mov_b32 s{S_Q+3}, 0x20000",
        f"  s_movk_i32 s{S_T3}, 0x1000",
    ] + blk(S_T0, S_T1) + [
        "  s_waitcnt lgkmcnt(0)",
        f"  s_add_u32 s{S_Q}, s4, s{S_T2}",
        f"  s_addc_u32 s{S_Q+1}, s5, 0",
    ]
    for qb in range(2):
        for ks in range(4):
            so = f"s{S_T3}" if qb else "0"
            if not qlds:
                P.append(f"  buffer_load_dwordx4 {vr(Qf(qb,ks),4)}, v{V_T3}, {srd(S_Q)}, {so} offen offset:{ks*64} {qpol}")
    P += [
        f"  s_add_u32 s{S_WS}, s14, s{S_T0}",
        f"  s_addc_u32 s{S_WS+1}, s15, 0",
        f"  s_mov_b32 s{S_WS+2}, {1 << GB}",
        f"  s_mov_b32 s{S_WS+3}, 0x20000",
        f"  s_add_u32 s{S_OUT}, s10, s{S_T2}",
        f"  s_addc_u32 s{S_OUT+1}, s11, 0",
        f"  s_mov_b32 s{S_OUT+2}, 8192",
        f"  s_mov_b32 s{S_OUT+3}, 0x20000",
        f"  s_lshl_b32 s{S_F}, s{S_W}, 7",
        f"  s_add_u32 s{S_F}, s{S_F}, {OFF_F}",
        f"  s_lshl_b32 s{S_FO}, s{S_SP}, 2",
        f"  s_add_u32 s{S_FO}, s{S_FO}, s{S_F}",
        f"  v_mov_b32 v{V_T2}, 0",
        "  s_mov_b64 exec, 1",
        f"  buffer_store_dword v{V_T2}, off, {srd(S_WS)}, s{S_FO} {rpol}" if "Z" not in abl else "  s_nop 0",
    ]
    if rk:
        P += [f"  s_add_u32 s{S_Q}, s14, {OFF_PR}", f"  s_addc_u32 s{S_Q+1}, s15, 0", f"  s_mov_b32 s{S_Q+2}, {8*PR_STRIDE}",
              f"  s_and_b32 s{S_T1}, s2, 7", f"  s_mul_i32 s{S_T1}, s{S_T1}, {PR_STRIDE}", f"  s_lshr_b32 s{S_T0}, s2, 3",
              f"  s_lshl_b32 s{S_T0}, s{S_T0}, {psh}", f"  s_add_u32 s{S_T1}, s{S_T1}, s{S_T0}",
              f"  buffer_store_dword v{V_T2}, off, {srd(S_Q)}, s{S_T1}"]
    if warm:
        P.append(f"  buffer_load_dword v{V_JUNK}, off, {srd(S_OUT)}, 0")
    P += ["  s_mov_b64 exec, -1",
          f"  s_lshl_b32 s{S_OI}, s{S_SP}, 2", f"  s_add_u32 s{S_OI}, s{S_OI}, s{S_W}", f"  s_mul_i32 s{S_OI}, s{S_OI}, {SLAB}"]
    if clr:
        P += [f"  v_lshlrev_b32 v{V_T2}, 4, v0", f"  s_add_u32 s{S_T1}, s{S_OI}, 4096"] + [f"  v_mov_b32 v{V_X+i}, -1" for i in range(4)]
        for i in range(6):
            P.append(f"  buffer_store_dwordx4 {vr(V_X,4)}, v{V_T2}, {srd(S_WS)}, s{S_OI if i < 4 else S_T1} offen offset:{(i&3)*1024}")
        P += ["  s_mov_b64 exec, 0xffff", f"  buffer_store_dwordx4 {vr(V_X,4)}, v{V_T2}, {srd(S_WS)}, s{S_T1} offen offset:2048", "  s_mov_b64 exec, -1", "  s_nop 0"]
    PF = [f"  v_min_u32 v{V_T2}, {SLAB // 128 - 1}, v0", f"  v_lshlrev_b32 v{V_T2}, 7, v{V_T2}",
          f"  buffer_load_dword v{V_JUNK+1}, v{V_T2}, {srd(S_WS)}, s{S_OI} offen"]
    assert bf16p or not pf
    if pf == 1:
        P += PF
    P += [
        f"  v_xor_b32 v{V_T2}, v{V_T0}, v{V_T1}",
        f"  v_lshlrev_b32 v{V_T2}, 4, v{V_T2}",
        f"  v_lshl_add_u32 v{V_KA}, v{V_T0}, 8, v{V_T2}",
    ]
    for ks in range(1, 4):
        P.append(f"  v_xor_b32 v{V_KA+ks}, {ks*64}, v{V_KA}")
    P += [
        f"  v_lshrrev_b32 v{V_T2}, 2, v0",
        f"  v_lshlrev_b32 v{V_T3}, 8, v{V_T2}",
        f"  v_and_b32 v{V_T2}, 7, v{V_T2}",
        f"  s_lshl_b32 s{S_T2}, s{S_SP}, 1",
        f"  v_xor_b32 v{V_T2}, s{S_T2}, v{V_T2}",
        f"  v_lshl_add_u32 v{V_T3}, v{V_T2}, 5, v{V_T3}",
        f"  v_and_b32 v{V_T2}, 3, v0",
        f"  v_lshl_add_u32 v{V_T3}, v{V_T2}, 3, v{V_T3}",
        f"  v_lshlrev_b32 v{V_FADDR}, 2, v{V_T2}",
        f"  v_add_u32 v{V_VA}, {VBASE}, v{V_T3}",
    ]
    for db in range(1, 8):
        P.append(f"  v_xor_b32 v{V_VA+db}, {db*32}, v{V_VA}")
    P += [
        f"  v_cmp_eq_u32 vcc, 0, v{V_T2}",
        f"  v_mov_b32 v{V_T3}, 0x3f803f80",
        f"  v_lshlrev_b32 v{V_LANE16}, 4, v0",
        f"  v_cndmask_b32 v{V_ONE}, 0, v{V_T3}, vcc",
        f"  v_cndmask_b32 v{V_ONE+1}, 0, v{V_T3}, vcc",
        f"  v_cndmask_b32 v{V_ONE+2}, 0, v{V_T3}, vcc",
        f"  v_cndmask_b32 v{V_ONE+3}, 0, v{V_T3}, vcc",
        f"  s_mov_b32 s{S_C}, {f32(c)}",
        f"  s_mov_b32 s{S_THR}, {f32(THR)}",
    ]
    for i in range(32):
        P.append(f"  v_mov_b64 v[{V_O+2*i}:{V_O+2*i+1}], 0")
    X = []
    for j in range(1, 4):
        X += [f"  s_xor_b32 s{S_T1}, s{S_SP}, {j}", f"  s_lshl_b32 s{S_T1}, s{S_T1}, 2", f"  s_add_u32 s{S_T1}, s{S_T1}, s{S_W}",
              f"  s_mul_i32 s{S_T1}, s{S_T1}, {SLAB}",
              f"  s_add_u32 s{S_ML+j}, s{S_T1}, {3*R}", f"  s_add_u32 s{S_OD+j-1}, s{S_T1}, {(j-1)*R}"]
    X += [f"  s_add_u32 s{S_ML}, s{S_OI}, {3*R}", f"  v_and_b32 v{V_MLA}, 0xf0, v{V_LANE16}"]
    X += [
        f"  v_and_b32 v{V_T2}, 15, v0", f"  v_lshlrev_b32 v{V_OUTA}, 8, v{V_T2}",
        f"  v_bfe_u32 v{V_T2}, v0, 4, 1", f"  v_lshl_add_u32 v{V_OUTA}, v{V_T2}, 5, v{V_OUTA}",
        f"  v_lshrrev_b32 v{V_T2}, 5, v0", f"  v_lshl_add_u32 v{V_OUTA}, v{V_T2}, 4, v{V_OUTA}",
        f"  s_lshl_b32 s{S_T2}, s{S_SP}, 6", f"  v_add_u32 v{V_OUTA}, s{S_T2}, v{V_OUTA}",
    ]
    if qlds:
        X += [f"  s_lshl_b32 s{S_T2}, s{S_W}, 13", f"  s_add_u32 s{S_T2}, s{S_T2}, {QBASE}"]
        X += [f"  v_add_u32 v{V_X+ks}, s{S_T2}, v{V_KA+ks}" for ks in range(4)]
        P += X + (PF[:2] if pf in (2, 3) else []) + ["  s_waitcnt vmcnt(0)", "  s_barrier"] + (PF[2:] if pf == 2 else [])
        P += [f"  ds_read_b128 {vr(Qf(qb,ks),4)}, v{V_X+ks} offset:{qb*4096}" for qb in range(2) for ks in range(4)]
        P += ["  s_waitcnt lgkmcnt(0)"]
    elif pf >= 4:
        P += ["  s_barrier"] + X + ["  s_waitcnt vmcnt(0)"]
    elif pf >= 2:
        P += ["  s_barrier"] + X + PF[:2] + ["  s_waitcnt vmcnt(0)"] + (PF[2:] if pf == 2 else [])
    else:
        P += ["  s_barrier"] + X + [f"  s_waitcnt vmcnt({(1 if warm else 0) + (1 if pf else 0)})"]
    if pre == 1:
        P += [f"  v_mov_b32 v{V_T2}, s{S_C}"]
        for i in range(33):
            q = V_Q + i
            t = V_S + 2 * (i & 3)
            if i < 32:
                P += [f"  v_lshlrev_b32 v{t}, 16, v{q}", f"  v_and_b32 v{t+1}, 0xffff0000, v{q}",
                      f"  v_pk_mul_f32 v[{t}:{t+1}], v[{t}:{t+1}], v[{V_T2}:{V_T2+1}] op_sel_hi:[1,0]"]
            if i:
                t = V_S + 2 * ((i - 1) & 3)
                P += [f"  v_cvt_pk_bf16_f32 v{q-1}, v{t}, v{t+1}"]
    if bq:
        assert qlds == 1
        P += ["  s_barrier"]
    stamp(P)
    PA = [f"  s_mov_b32 s{S_DBG}, s12", f"  s_mov_b32 s{S_DBG+1}, s13", f"  s_mov_b32 s{S_DBG+2}, 256", f"  s_mov_b32 s{S_DBG+3}, 0x20000"]
    if hs:
        PA += [f"  s_getreg_b32 s{S_T2}, hwreg(HW_REG_XCC_ID, 0, 3)", f"  s_or_b32 s{S_T2}, s{S_T2}, 0x80", f"  v_mov_b32 v{V_T2}, s{S_T2}",
               f"  s_add_u32 s{S_T2}, s{S_DB}, s{S_SP}", "  s_mov_b64 exec, 1",
               f"  buffer_store_byte v{V_T2}, off, {srd(S_DBG)}, s{S_T2} {'sc1' if hs == 1 else ''}", "  s_mov_b64 exec, -1"]
    else:
        if l2:
            PA += [f"  s_getreg_b32 s{S_T2}, hwreg(HW_REG_XCC_ID, 0, 3)", f"  s_mul_i32 s{S_T2}, s{S_T2}, 3",
                   f"  s_lshl_b32 s{S_T2}, 16, s{S_T2}", f"  s_add_u32 s{S_T2}, s{S_T2}, 1", f"  v_mov_b32 v{V_T2}, s{S_T2}"]
        else:
            PA += [f"  v_mov_b32 v{V_T2}, 1"]
        PA += [
            "  s_mov_b64 exec, 1",
            f"  buffer_atomic_add v{V_T2}, off, {srd(S_DBG)}, s{S_DB} sc1",
            "  s_mov_b64 exec, -1",
        ]
    if "H" in abl:
        PA = []

    Sb = lambda par, kbl, qb: V_S + 16 * par + 4 * (kbl * 2 + qb)
    Pb = lambda par, qb: V_P + 8 * par + 4 * qb
    Lb = lambda par, qb: V_L + 8 * par + 4 * qb
    Ob = lambda db, qb: V_O + 4 * (db * 2 + qb)
    Fr = lambda half, f: V_FR + 16 * half + 4 * f

    def kreads(half, u, kbl):
        return [f"  ds_read_b128 {vr(Fr(half,ks),4)}, v{V_KA+ks} offset:{(u % NSL)*8192 + kbl*4096}" for ks in range(4)]

    def vreads(half, u, dbs):
        o = []
        for f, db in enumerate(dbs):
            for h in range(2):
                o.append(f"  ds_read_b64_tr_b16 {vr(Fr(half,f)+2*h,2)}, v{V_VA+db} offset:{(u % NSL)*8192 + h*4096}")
        return o

    def qkm(half, u, kbl, first=False):
        o = []
        for qb, ks in {1: [(a, b) for a in range(2) for b in range(4)], 0: [(a, b) for b in range(4) for a in range(2)], 2: [(0, 0), (0, 1), (0, 2), (0, 3), (1, 3), (1, 2), (1, 1), (1, 0)]}[chain]:
            if True:
                d = vr(Sb(u & 1, kbl, qb), 4)
                c0 = vr(V_NM + 4 * qb, 4) if (pre and not first) else 0
                o.append(f"  v_mfma_f32_16x16x32_bf16 {d}, {vr(Fr(half,ks),4)}, {vr(Qf(qb,ks),4)}, {d if ks != (3 if chain == 2 and qb else 0) else c0}")
        return o

    def pvm(half, u, dbs, order=None):
        o = []
        order = pvo if order is None else order
        seq = {0: [(f, qb) for f in range(4) for qb in range(2)],
               1: [(f, qb) for qb in range(2) for f in range(4)],
               2: [(f, (f + i) & 1) for i in range(2) for f in range(4)]}[order]
        for f, qb in seq:
            d = vr(Ob(dbs[f], qb), 4)
            o.append(f"  v_mfma_f32_16x16x32_bf16 {d}, {vr(Fr(half,f),4)}, {vr(Pb(u&1,qb),4)}, {d}")
        return o

    def lm(par, first=False):
        return [f"  v_mfma_f32_16x16x32_bf16 {vr(Lb(par,qb),4)}, {vr(V_ONE,4)}, {vr(Pb(par,qb),4)}, {0 if first else vr(Lb(par^1,qb),4)}"
                for qb in range(2)]

    def softmax(par):
        pairs = [(kbl, qb, h) for kbl in range(2) for qb in range(2) for h in range(2)]
        s3 = [[], [], []]
        for k, (kbl, qb, h) in enumerate(pairs):
            s = Sb(par, kbl, qb) + 2 * h
            x = V_X + 2 * (k & 3)
            if pre == 1:
                s3[0].append([])
                s3[1].append([f"  v_exp_f32 v{x}, v{s}", f"  v_exp_f32 v{x+1}, v{s+1}"])
            else:
                if pre == 2 and pk:
                    s3[0].append([f"  v_pk_mul_f32 v[{x}:{x+1}], v[{s}:{s+1}], s[{S_C}:{S_C+1}] op_sel_hi:[1,0]"])
                elif pre == 2:
                    s3[0].append([f"  v_mul_f32 v{x}, s{S_C}, v{s}", f"  v_mul_f32 v{x+1}, s{S_C}, v{s+1}"])
                elif pk:
                    s3[0].append([f"  v_pk_fma_f32 v[{x}:{x+1}], v[{s}:{s+1}], s[{S_C}:{S_C+1}], v[{V_M}:{V_M+1}] op_sel:[0,0,{qb}] op_sel_hi:[1,0,{qb}] neg_lo:[0,0,1] neg_hi:[0,0,1]"])
                else:
                    s3[0].append([f"  v_fma_f32 v{x}, v{s}, s{S_C}, -v{V_M+qb}", f"  v_fma_f32 v{x+1}, v{s+1}, s{S_C}, -v{V_M+qb}"])
                s3[1].append([f"  v_exp_f32 v{x}, v{x}", f"  v_exp_f32 v{x+1}, v{x+1}"])
            s3[2].append([f"  v_cvt_pk_bf16_f32 v{Pb(par,qb)+2*kbl+h}, v{x}, v{x+1}"])
        o = []
        for k in range(10):
            for j in range(3):
                if 0 <= k - j < 8:
                    o += s3[j][k - j]
        return o

    def softmax_plain(par):
        sm = softmax(par)
        return sm[:-1] + ["  s_nop 0", sm[-1], "  s_nop 1"]

    def chk(par):
        return [f"  v_add_f32 v{V_T0}, v{Lb(par,0)}, v{Lb(par,1)}", f"  v_cmp_nge_f32 vcc, s{S_THR}, v{V_T0}"]

    sites = []

    def br(par):
        k = len(sites)
        sites.append(par)
        return [f"  s_cbranch_vccnz L_fix{k}", f"L_ret{k}:"]

    def xmax(reg, tmp):
        return [f"  v_mov_b32 v{tmp}, v{reg}", "  s_nop 1", f"  v_permlane16_swap_b32 v{reg}, v{tmp}",
                f"  v_max_f32 v{reg}, v{reg}, v{tmp}",
                f"  v_mov_b32 v{tmp}, v{reg}", "  s_nop 1", f"  v_permlane32_swap_b32 v{reg}, v{tmp}",
                f"  v_max_f32 v{reg}, v{reg}, v{tmp}"]

    def maxof(dst, regs):
        o = [f"  v_max3_f32 v{dst}, v{regs[0]}, v{regs[1]}, v{regs[2]}"]
        k = 3
        while k + 1 < len(regs):
            o.append(f"  v_max3_f32 v{dst}, v{dst}, v{regs[k]}, v{regs[k+1]}")
            k += 2
        if k < len(regs):
            o.append(f"  v_max_f32 v{dst}, v{dst}, v{regs[k]}")
        return o

    def group(mf, reads, fill, rd=None):
        o = []
        rd = rd or RD
        per = -(-len(reads) // rd) if reads else 0
        for i, m in enumerate(mf):
            o.append(m)
            o += reads[i * per:(i + 1) * per]
            o += fill[i]
        return o

    def coarse(lines, pend):
        if WG >= 4:
            return auto_lgkm(lines, pend)
        out = []
        n = 4 // WG
        for l in lines:
            if l.strip().startswith("v_mfma"):
                a = int(l.split(",")[2 if "x" in abl else 1].split("[")[1].split(":")[0])
                if V_FR <= a < V_FR + 32:
                    f = (a - V_FR) // 4
                    last = V_FR + 4 * ((f // n) * n + n - 1) + 3
                    out.append(f"  v_touch v{last}, v{last}")
            out.append(l)
        out, pend = auto_lgkm(out, pend)
        return [l for l in out if not l.strip().startswith("v_touch")], pend

    def ablate(B):
        if "d" in abl:
            B = [l for l in B if not l.strip().startswith("ds_")]
        if "v" in abl:
            B = [l for l in B if not l.strip().startswith(("v_exp", "v_fma", "v_cvt"))]
        if "B" in abl:
            B = [l for l in B if l.strip() != "s_barrier"]
        if "k" in abl:
            B = [l for l in B if not l.strip().startswith("ds_read_b128")]
        if "t" in abl:
            B = [l for l in B if not l.strip().startswith("ds_read_b64_tr")]
        if "o" in abl:
            B = [l for l in B if f"v[{V_ONE}:" not in l]
        if "q" in abl:
            B = [l for l in B if not (l.strip().startswith("v_mfma") and V_S <= int(l.split("[")[1].split(":")[0]) < V_S + 32)]
        if "p" in abl:
            B = [l for l in B if not (l.strip().startswith("v_mfma") and V_O <= int(l.split("[")[1].split(":")[0]) < V_O + 64)]
        if "x" in abl:
            BB = []
            for l in B:
                if l.strip().startswith("v_mfma"):
                    a = l.split(", ")
                    l = ", ".join([a[0], a[2], a[1], a[3]])
                BB.append(l)
            B = BB
        return B

    DA, DB_ = [0, 1, 2, 3], [4, 5, 6, 7]

    def fills(par, nfront):
        n = nfront + max(LPOS - 1, 0)
        wts = [1.0] * n
        if bal and nfront == 24:
            per = [-(-4 // RD), -(-8 // RD), -(-8 // RD)]
            cnt = [4, 8, 8]
            for g in range(3):
                for i in range(8):
                    nr = max(0, min(per[g], cnt[g] - i * per[g]))
                    wts[8 * g + i] = max(0.2, 3.1 - nr)
            for i in range(24, n):
                wts[i] = 2.1
        f = spread(softmax(par)[NE:], wts)
        return f + [[] for _ in range(nfront + 10 - n)]

    def closing(n, nxt_reads, tailfill, extra=()):
        o = ["  s_waitcnt lgkmcnt(0)", "  s_barrier"] + list(extra)
        mf = pvm(1, n - 1, DB_)
        mf = mf[:LPOS] + lm(n & 1) + mf[LPOS:]
        fl = [list(x) for x in tailfill]
        c2 = chk(n & 1)
        if n < NU - 1:
            for i, e in enumerate(spread(softmax((n + 1) & 1)[:NE], [1] * (8 - LPOS - 1))):
                fl[LPOS + 1 + i] += e
        fl[8] = fl[8] + c2
        o += group(mf, nxt_reads, fl)
        return o + br(n & 1)

    def front(n):
        f = fills(n & 1, 24)
        o = group(qkm(0, n + 1, 0), kreads(1, n + 1, 1), f[0:8])
        o += group(qkm(1, n + 1, 1), vreads(0, n - 1, DA), f[8:16])
        o += group(pvm(0, n - 1, DA), vreads(1, n - 1, DB_), f[16:24])
        return o, f[24:34]

    P2 = kreads(0, 0, 0) + kreads(1, 0, 1) + qkm(0, 0, 0, True) + kreads(0, 1, 0) + qkm(1, 0, 1, True) + kreads(1, 1, 1) \
        + qkm(0, 1, 0, True) + qkm(1, 1, 1, True) + ["  s_nop 7"]
    for qb in range(2):
        P2 += maxof(V_M + qb, [Sb(par, kbl, qb) + r for par in range(2) for kbl in range(2) for r in range(4)])
    for qb in range(2):
        P2 += xmax(V_M + qb, V_T0)
    if pre:
        for qb in range(2):
            for par in range(2):
                for kbl in range(2):
                    for r in range(4):
                        s = Sb(par, kbl, qb) + r
                        P2.append(f"  v_sub_f32 v{s}, v{s}, v{V_M+qb}")
            for r in range(4):
                P2.append(f"  v_sub_f32 v{V_NM+4*qb+r}, 0, v{V_M+qb}")
    else:
        for qb in range(2):
            P2.append(f"  v_mul_f32 v{V_M+qb}, s{S_C}, v{V_M+qb}")
    P2 += softmax_plain(0) + lm(0, True) + softmax(1)[:NE]
    if fastp:
        V = []
        for qb in range(2):
            V += maxof(V_M + qb, [Sb(0, kbl, qb) + r for kbl in range(2) for r in range(4)])
        a, b = xmax(V_M, V_T0), xmax(V_M + 1, V_T1)
        for x, y in zip(a, b):
            V += [x, y] if "s_nop" not in x else ["  s_nop 0"]
        subm = lambda par: [f"  v_sub_f32 v{Sb(par,kbl,qb)+r}, v{Sb(par,kbl,qb)+r}, v{V_M+qb}" for kbl in range(2) for qb in range(2) for r in range(4)]
        if pre:
            V += subm(0)
        else:
            V += [f"  v_mul_f32 v{V_M+qb}, s{S_C}, v{V_M+qb}" for qb in range(2)]
        V += softmax(0)
        fl = [[] for _ in range(4)] + spread(V, [1] * 12)
        fl[3] = ["  s_nop 3"]
        P2 = kreads(0, 0, 0) + kreads(1, 0, 1) + qkm(0, 0, 0, True) + kreads(0, 1, 0) + qkm(1, 0, 1, True) + kreads(1, 1, 1)
        P2 += group(qkm(0, 1, 0, True) + qkm(1, 1, 1, True), [], fl) + ["  s_nop 1"] + lm(0, True)
        if pre:
            P2 += [f"  v_sub_f32 v{V_NM+4*qb+r}, 0, v{V_M+qb}" for qb in range(2) for r in range(4)] + subm(1)
        P2 += softmax(1)[:NE]
    nit = (NU - 2 + NSL - 1) // NSL
    P2 += [f"  s_mov_b32 s{S_CNT}, {nit}"] + (["  s_waitcnt vmcnt(0)"] if pf < 2 else PF[2:] if pf == 3 else []) + ["  s_barrier"] + kreads(0, 2, 0)
    P2, pend0 = auto_lgkm(P2)
    if diag in (3, 7):
        P2 += ["  s_mov_b32 s95, 0"]
    if hs == 3:
        assert qlds and pf >= 4
        k = P.index("  s_barrier") + 1
        if lw == 2:
            assert P[k - 2] == "  s_waitcnt vmcnt(0)"
            del P[k - 2]
            i0 = P.index(f"  v_mov_b32 v{V_T2}, 0")
            i1 = P.index("  s_mov_b64 exec, -1") + 1
            clears = P[i0:i1]
            del P[i0:i1]
            k = P.index("  s_barrier") + 1
            P[k:k] = clears
            if touch == 3:
                P[k + 2:k + 2] = [f"  buffer_load_dword v{V_JUNK}, off, {srd(S_OUT)}, 0"]
            k = P2.index("  s_barrier")
            P2 = P2[:k] + ["  s_waitcnt vmcnt(0)"] + P2[k:] + [f"  s_cmp_lg_u32 s{S_W}, 0", "  s_cbranch_scc1 L_mid"] + PA + ["  s_branch L_mid"]
    if hs == 3 and lw != 2:
        if lw:
            assert P[k - 2] == "  s_waitcnt vmcnt(0)"
            del P[k - 2]
            k = len(P) - 1 - P[::-1].index("  s_barrier")
            P.insert(k, "  s_waitcnt vmcnt(0)")
            k += 2
            j = P.index("  s_mov_b64 exec, -1")
            P[j:j] = PA[:4] + [f"  buffer_load_dword v{V_JUNK}, off, {srd(S_DBG)}, s{S_DB}"]
            PA = PA[4:]
            k += 5
        P = P[:k] + [f"  s_cmp_lg_u32 s{S_W}, 0", "  s_cbranch_scc1 L_nohello"] + PA + ["L_nohello:"] + P[k:]
        k = P2.index("  s_barrier")
        P2 = P2[:k] + ["  s_waitcnt vmcnt(0)"] + P2[k:] + ["  s_branch L_mid"]


    BODY = []
    nfirst = NU - 1 - NSL
    tf = front(nfirst - 1)[1]
    midx = None
    for n in range(nfirst, NU - 1):
        extra = []
        if (diag == 3 and n % 2 == 1) or diag == 7:
            extra = ["  s_memrealtime s[92:93]", "  s_memtime s[90:91]", "  s_add_u32 s95, s95, 1", "  s_min_u32 s95, s95, 31", "  s_add_u32 s94, s95, 32", "  s_waitcnt lgkmcnt(0)",
                     "  s_mov_b32 m0, s95", f"  v_writelane_b32 v{V_TR}, s92, m0", "  s_mov_b32 m0, s94", f"  v_writelane_b32 v{V_TR}, s90, m0"]
        if diag == 4 and n == nfirst:
            extra = [f"  s_cmp_lg_u32 s{S_CNT}, {nit - 16 // NSL}", "  s_cbranch_scc1 L_nost", "  s_memtime s[96:97]", "  s_memrealtime s[98:99]",
                     "  s_waitcnt lgkmcnt(0)", "  s_mov_b32 s94, 0", "L_nost:"]
        cl = closing(n - 1, kreads(0, n + 1, 0), tf, extra)
        fr, tf = front(n)
        if n == NU - 2:
            k = max(i for i, l in enumerate(fr) if "v_mfma" in l)
            fr = fr[:k] + [f"  s_sub_u32 s{S_CNT}, s{S_CNT}, 1", f"  s_cmp_lg_u32 s{S_CNT}, 0"] + fr[k:] + ["  s_cbranch_scc1 L_loop"]
        cl, pendc = coarse(ablate(cl), [])
        assert abl or pendc == pend0
        if "q" in abl or "p" in abl:
            fr = [x for l in fr for x in ([l, "  s_waitcnt lgkmcnt(6)"] if l.strip().startswith("ds_") else [l])]
        fr, pendf = coarse(ablate(fr), pendc)
        if n % NSL == 1 % NSL:
            midx = len(BODY)
        BODY.append((cl, fr))

    def fix(par):
        o = ["  s_nop 7"]
        for qb in range(2):
            o += maxof(V_T0 + qb, [Sb(par, kbl, qb) + r for kbl in range(2) for r in range(4)])
        for qb in range(2):
            o += xmax(V_T0 + qb, V_T2)
        for qb in range(2):
            t = V_T0 + qb
            if pre:
                o += [f"  v_max_f32 v{t}, 0, v{t}", f"  v_add_f32 v{V_M+qb}, v{V_M+qb}, v{t}"]
                for p2 in range(2):
                    for kbl in range(2):
                        for r in range(4):
                            s = Sb(p2, kbl, qb) + r
                            o.append(f"  v_sub_f32 v{s}, v{s}, v{t}")
                for r in range(4):
                    o.append(f"  v_sub_f32 v{V_NM+4*qb+r}, 0, v{V_M+qb}")
                if pre == 2:
                    o += [f"  v_mul_f32 v{t}, s{S_C}, v{t}"]
                o += [f"  v_exp_f32 v{t}, -v{t}"]
            else:
                o += [f"  v_mul_f32 v{t}, s{S_C}, v{t}", f"  v_max_f32 v{t}, v{t}, v{V_M+qb}",
                      f"  v_sub_f32 v{V_T2}, v{V_M+qb}, v{t}", f"  v_mov_b32 v{V_M+qb}, v{t}", f"  v_exp_f32 v{t}, v{V_T2}"]
        o.append("  s_nop 0")
        for qb in range(2):
            o.append(f"  v_mul_f32 v{Lb(par^1,qb)}, v{V_T0+qb}, v{Lb(par^1,qb)}")
            for db in range(8):
                for r in range(4):
                    o.append(f"  v_mul_f32 v{Ob(db,qb)+r}, v{V_T0+qb}, v{Ob(db,qb)+r}")
        return o + softmax_plain(par) + lm(par) + softmax(par ^ 1)[:NE] + ["  s_nop 7"]
    FIX = [fix(0), fix(1)]

    T1 = []
    if diag == 4:
        T1 += ["  s_waitcnt lgkmcnt(0)", "  s_memtime s[90:91]", "  s_memrealtime s[92:93]", "  s_waitcnt lgkmcnt(0)", "  s_sub_u32 s96, s90, s96", "  s_sub_u32 s98, s92, s98"]
    X = []
    if l2:
        X += [f"  v_mov_b32 v{V_T2}, {LDS_MODE}", f"  ds_read_b32 v{V_T3}, v{V_T2}", "  s_waitcnt lgkmcnt(0)",
              f"  v_readfirstlane_b32 s{S_MODE}, v{V_T3}"]
    T1 += X
    T1 += closing(NU - 2, vreads(0, NU - 2, DA), tf)
    f = fills(1, 8)
    T1 += group(pvm(0, NU - 2, DA), vreads(1, NU - 2, DB_), f[0:8])
    T1, pend = auto_lgkm(T1, pendf)
    c2 = closing(NU - 1, [], f[8:18])[2:]
    k = next(i for i, l in enumerate(c2) if l.strip().startswith("v_add_f32"))
    c2 = c2[:k] + ["  s_nop 3"] + c2[k:]
    c2, pend = auto_lgkm(c2, pend)
    assert not pend
    T1 += c2
    ML = V_X
    T1 += [
        f"  v_mov_b32 v{ML}, v{V_M}" if pre != 2 else f"  v_mul_f32 v{ML}, s{S_C}, v{V_M}",
        f"  v_mov_b32 v{ML+1}, v{V_M+1}" if pre != 2 else f"  v_mul_f32 v{ML+1}, s{S_C}, v{V_M+1}",
        f"  v_mov_b32 v{ML+2}, v{Lb(1,0)}", f"  v_mov_b32 v{ML+3}, v{Lb(1,1)}",
    ]

    def publish(spol):
        def ostore(j):
            o = []
            if bf16p:
                b = V_S + 8 * (j - 1)
                for i in range(8):
                    o.append(f"  v_cvt_pk_bf16_f32 v{b+i}, v{V_O+16*j+2*i}, v{V_O+16*j+2*i+1}")
                    if i & 3 == 3:
                        o.append(f"  buffer_store_dwordx4 {vr(b+(i&4),4)}, v{V_LANE16}, {srd(S_WS)}, s{S_OD+j-1} offen offset:{(i>>2)*1024} {spol}")
            else:
                for i in range(4):
                    o.append(f"  buffer_store_dwordx4 {vr(V_O+16*j+4*i,4)}, v{V_LANE16}, {srd(S_WS)}, s{S_OD+j-1} offen offset:{i*1024} {spol}")
            return o
        nstamp[0] = 2
        o = ["  s_mov_b64 exec, 0xffff", f"  buffer_store_dwordx4 {vr(ML,4)}, v{V_LANE16}, {srd(S_WS)}, s{S_ML} offen {spol}", "  s_mov_b64 exec, -1"]
        stamp(o)
        o.append("  s_barrier")
        stamp(o)
        r0 = vreads(0, NU - 1, [2, 3, 4, 5])
        r1 = vreads(1, NU - 1, [6, 7, 0, 1])
        o += r0 + r1[:6]
        mf = pvm(0, NU - 1, [2, 3, 4, 5], 0) + pvm(1, NU - 1, [6, 7, 0, 1], 0)
        if tord == 0:
            o += mf[:2] + r1[6:] + mf[2:12] + ostore(1)[:5] + mf[12:14] + ostore(1)[5:] + mf[14:16] + ostore(2) + ostore(3)
        else:
            st_ = ostore(1) + ostore(2) + ostore(3)
            o += mf[:2] + r1[6:] + mf[2:8]
            k = 0
            for i, n in zip(range(8, 16), (2, 3, 2, 3, 5, 5, 5, 5)):
                o += [mf[i]] + st_[k:k + n]
                k += n
        o, pend = auto_lgkm(o)
        assert not pend
        return o + [f"  v_mov_b32 v{V_T1}, 1", "  s_mov_b64 exec, 1", "  s_waitcnt vmcnt(0)",
                    f"  buffer_store_dword v{V_T1}, off, {srd(S_WS)}, s{S_FO} {spol}"]
    if l2:
        T1 += [f"  s_cmp_eq_u32 s{S_MODE}, 4", "  s_cbranch_scc0 L_far"]
        poll = lambda p: [f"  buffer_load_dword v{V_T1}, v{V_FADDR}, {srd(S_WS)}, s{S_F} offen {p}", "  s_waitcnt vmcnt(0)",
                          f"  v_cmp_ne_u32 vcc, 1, v{V_T1}"]
        FAR = publish("sc1") + ["  s_mov_b64 exec, 15"]
        stamp(FAR)
        FAR += ["L_fpoll:"] + poll("sc1") + ["  s_cbranch_vccnz L_fpoll", "  buffer_inv sc1", "  s_waitcnt vmcnt(0)", "  s_branch L_got"]
        T2 = publish(npol)
    T2 += ["  s_mov_b64 exec, 15"]
    stamp(T2)
    TP = []
    for i in range(npl):
        TP += poll("nt") + ["  s_cbranch_vccz L_got"]
    TP += poll("sc1") + ["  s_cbranch_vccnz L_poll"]
    T3 = ["  s_mov_b64 exec, -1"]
    stamp(T3)
    VML = V_FR
    VIN = V_S
    for j in range(1, 4):
        T3.append(f"  buffer_load_dwordx4 {vr(VML+4*(j-1),4)}, v{V_MLA}, {srd(S_WS)}, s{S_ML+j} offen {lpol}")
    nld = 2 if bf16p else 4
    for j in range(1, 4):
        if j > 1 and not bf16p:
            T3.append(f"  s_add_u32 s{S_OI}, s{S_OI}, {R}")
        if j == 3 and bf16p:
            T3.append(f"  s_add_u32 s{S_OI}, s{S_OI}, {2*R}")
        for i in range(nld):
            off = i * 1024 + (R if (bf16p and j == 2) else 0)
            T3.append(f"  buffer_load_dwordx4 {vr(VIN+4*nld*(j-1)+4*i,4)}, v{V_LANE16}, {srd(S_WS)}, s{S_OI} offen offset:{off} {lpol}")
    G = V_FR + 16
    p2 = lambda r: f"v[{r}:{r+1}]"
    ml = lambda j: ML if j == 0 else VML + 4 * (j - 1)
    WT = []
    for qb in range(2):
        WT += [f"  v_max3_f32 v{V_T0+qb}, v{ml(0)+qb}, v{ml(1)+qb}, v{ml(2)+qb}"]
    for qb in range(2):
        WT += [f"  v_max_f32 v{V_T0+qb}, v{V_T0+qb}, v{ml(3)+qb}"]
    for j in range(4):
        WT.append(f"  v_pk_add_f32 {p2(G+2*j)}, {p2(ml(j))}, {p2(V_T0)} neg_lo:[0,1] neg_hi:[0,1]")
    for j in range(8):
        WT.append(f"  v_exp_f32 v{G+j}, v{G+j}")
    WT.append(f"  v_pk_mul_f32 {p2(V_T0)}, {p2(G)}, {p2(ml(0)+2)}")
    for j in range(1, 4):
        WT.append(f"  v_pk_fma_f32 {p2(V_T0)}, {p2(G+2*j)}, {p2(ml(j)+2)}, {p2(V_T0)}")
    WT += [f"  v_rcp_f32 v{V_T0}, v{V_T0}", f"  v_rcp_f32 v{V_T1}, v{V_T1}", "  s_nop 0"]
    for j in range(4):
        WT.append(f"  v_pk_mul_f32 {p2(G+2*j)}, {p2(G+2*j)}, {p2(V_T0)}")
    UP = []
    U = V_O + 16 if bf16p else VIN
    if bf16p:
        for i in range(24):
            if i % 4 == 0:
                UP.append(f"  s_waitcnt vmcnt({5 - i // 4})")
            UP += [f"  v_lshlrev_b32 v{U+2*i}, 16, v{VIN+i}", f"  v_and_b32 v{U+2*i+1}, 0xffff0000, v{VIN+i}"]
    else:
        UP.append("  s_waitcnt vmcnt(0)")
    T3.append(f"  s_waitcnt vmcnt({3*nld})")
    T3 += WT[:16]
    k = 0
    for w_ in WT[16:]:
        T3 += UP[k:k + 2] + ([w_] if "s_nop" not in w_ or k >= len(UP) else [])
        k += 2
    T3 += UP[k:]
    sel = lambda i, n: " op_sel:[0,%d%s] op_sel_hi:[1,%d%s]" % ((i >> 2) & 1, ",0" * n, (i >> 2) & 1, ",1" * n)
    for i in range(0, 16, 2):
        T3.append(f"  v_pk_mul_f32 {p2(V_O+i)}, {p2(V_O+i)}, {p2(G)}" + sel(i, 0))
    for j in range(1, 4):
        for i in range(0, 16, 2):
            T3.append(f"  v_pk_fma_f32 {p2(V_O+i)}, {p2(U+16*(j-1)+i)}, {p2(G+2*j)}, {p2(V_O+i)}" + sel(i, 1))
    stamp(T3)
    OV = V_FR
    for qb in range(2):
        for e in range(2):
            for h in range(2):
                T3.append(f"  v_cvt_pk_bf16_f32 v{OV+4*qb+2*e+h}, v{Ob(e,qb)+2*h}, v{Ob(e,qb)+2*h+1}")
    T3 += [
        f"  v_permlane16_swap_b32 v{OV}, v{OV+2}",
        f"  v_permlane16_swap_b32 v{OV+1}, v{OV+3}",
        f"  buffer_store_dwordx4 {vr(OV,4)}, v{V_OUTA}, {srd(S_OUT)}, 0 offen {opol}",
        f"  v_permlane16_swap_b32 v{OV+4}, v{OV+6}",
        f"  v_permlane16_swap_b32 v{OV+5}, v{OV+7}",
        f"  buffer_store_dwordx4 {vr(OV+4,4)}, v{V_OUTA}, {srd(S_OUT)}, s{S_T3} offen {opol}",
    ]
    if diag:
        T3.append("  s_waitcnt vmcnt(0)")
        stamp(T3)
        T3 += [f"  s_mov_b32 s{S_WS}, s14", f"  s_mov_b32 s{S_WS+1}, s15", f"  s_mov_b32 s{S_WS+2}, {32<<20}"]
        T3.append("  s_getreg_b32 s4, hwreg(HW_REG_XCC_ID)")
        for k in range(nstamp[0]):
            T3.append(f"  v_mov_b32 v{V_S+k}, s{S_ST+2*k}")
        T3.append(f"  v_mov_b32 v{V_S+15}, s4")
        T3.append(f"  v_mov_b32 v{V_S+11}, 31")
        if diag in (3, 7):
            T3 += [f"  s_lshl_b32 s{S_T0}, s2, 2", f"  s_add_u32 s{S_T0}, s{S_T0}, s{S_W}", f"  s_lshl_b32 s{S_T0}, s{S_T0}, 8",
                   f"  s_add_u32 s{S_T0}, s{S_T0}, {OFF_T + (1 << 20)}", f"  v_lshrrev_b32 v{V_T0}, 2, v{V_LANE16}",
                   f"  buffer_store_dword v{V_TR}, v{V_T0}, {srd(S_WS)}, s{S_T0} offen"]
        if diag == 4:
            T3 += [f"  v_mov_b32 v{V_S+12}, s94", f"  v_mov_b32 v{V_S+13}, s96", f"  v_mov_b32 v{V_S+14}, s98"]
        T3 += [
            f"  s_lshl_b32 s{S_T0}, s2, 2",
            f"  s_add_u32 s{S_T0}, s{S_T0}, s{S_W}",
            f"  s_lshl_b32 s{S_T0}, s{S_T0}, 6",
            f"  s_add_u32 s{S_T0}, s{S_T0}, {OFF_T}",
            "  s_mov_b64 exec, 1",
        ]
        for i in range(4):
            T3.append(f"  buffer_store_dwordx4 {vr(V_S+4*i,4)}, off, {srd(S_WS)}, s{S_T0} offset:{16*i}")
    T3.append("  s_endpgm")

    if "S" in abl:
        T1 = [l for l in T1 if not l.strip().startswith("buffer_store")]
        T2 = [l for l in T2 if not l.strip().startswith("buffer_store_dwordx4")]
    if "F" in abl:
        T2 = [l for l in T2 if not l.strip().startswith("buffer_store_dword ")]
        TP = []
    if "R" in abl:
        T3 = [l for l in T3 if not l.strip().startswith("buffer_load")]

    def inline_fix(lines):
        o = []
        for l in lines:
            o.append(l)
            if l.strip().startswith("s_cbranch_vccnz L_fix"):
                o += FIX[sites[int(l.strip().split("L_fix")[1])]]
        return o
    flat = [l for cl, fr in BODY for l in cl + fr]
    first = BODY[midx][1] + [l for cl, fr in BODY[midx + 1:] for l in cl + fr]
    main = E + P + P2 + first + flat + T1 + T2 + TP + T3
    nbar = sum(l == "  s_barrier" for l in P + P2 + first + flat * (nit - 1) + T1 + T2)
    assert nbar == NU + 1 + bq or abl, nbar
    traces["cons_far"] = T1 + FAR + T3
    traces["cons_a"] = main
    traces["cons_b"] = inline_fix(main)
    errs = []
    for n, t in traces.items():
        errs += check_hazards(t, n)
    if errs and not abl.strip("L"):
        raise RuntimeError("hazards:\n" + "\n".join(errs))

    out = [HEADER.rstrip(),
           "; 256 workgroups = 64 (batch, kv head) pairs x 4 key splits; wave 0 streams K/V into an LDS ring,",
           "; waves 1-4 each own one query head (32 rows); partial results are exchanged through d_ws.",
           f"; @launch grid=(256,1,1) block=(320,1,1) lds={lds}",
           '.amdgcn_target "amdgcn-amd-amdhsa--gfx950"', ".text", f".globl {NAME}", ".p2align 8",
           f".type {NAME},@function", f"{NAME}:"]
    out += E + LOADER
    out += [".p2align 6", "L_cons:"] + P + P2
    out += [".p2align 6", "L_loop:"]
    loop = []
    for i, (cl, fr) in enumerate(BODY):
        loop += cl + (["L_mid:"] if i == midx else []) + fr
    if al == 1:
        loop, nmis, ph = align8(loop)
    if al == 2:
        loop, nmis, ph = align8(loop)
        loop = ["  s_nop 0"] + loop
    out += loop
    out += T1 + T2 + ["L_poll:"] + TP + ["L_got:"] + T3
    if l2:
        out += ["L_far:"] + FAR
    for k, par in enumerate(sites):
        out += [f"L_fix{k}:", f"  s_call_b64 s[{S_RET}:{S_RET+1}], L_fixfn{par}", f"  s_branch L_ret{k}"]
    for par in range(2):
        out += [f"L_fixfn{par}:"] + FIX[par] + [f"  s_setpc_b64 s[{S_RET}:{S_RET+1}]"]
    out += ["L_end:", "  s_endpgm"]
    out += ['.section .rodata,"a"', ".p2align 6", f".amdhsa_kernel {NAME}",
            f"  .amdhsa_next_free_vgpr {NVGPR}", "  .amdhsa_next_free_sgpr 102",
            f"  .amdhsa_accum_offset {NVGPR}", "  .amdhsa_group_segment_fixed_size 0",
            "  .amdhsa_kernarg_size 48", "  .amdhsa_user_sgpr_count 2",
            "  .amdhsa_user_sgpr_kernarg_segment_ptr 1", "  .amdhsa_system_sgpr_workgroup_id_x 1",
            ".end_amdhsa_kernel"]
    return "\n".join(l.rstrip() for l in out if l is not None) + "\n"


if __name__ == "__main__":
    kw = eval("dict(%s)" % sys.argv[1]) if len(sys.argv) > 1 else {}
    sys.stdout.write(gen(**kw))
```

```python
import struct, sys, math
from asmlib import check_hazards, auto_lgkm, align8

NAME = "standalone__gqa_softmax__sampling_kernel"

HEADER = """; Kernarg layout for this problem (48 bytes, ptrs only, base s[0:1]):
;   offset   0: d_in[0] q  shape=(8, 32, 32, 128) dtype=bfloat16 strides=(262144, 8192, 256, 2) contiguous=True
;   offset   8: d_in[1] k  shape=(8, 8, 8192, 128) dtype=bfloat16 strides=(16777216, 2097152, 256, 2) contiguous=True
;   offset  16: d_in[2] v  shape=(8, 8, 8192, 128) dtype=bfloat16 strides=(16777216, 2097152, 256, 2) contiguous=True
;   offset  24: d_out     shape=(8, 32, 32, 128) dtype=bfloat16 (2 bytes/elem)
"""


def f32(x):
    return "0x%08x" % struct.unpack("<I", struct.pack("<f", x))[0]


V_M = 2
V_T0, V_T1, V_T2, V_T3 = 4, 5, 6, 7
V_LANE16 = 8
V_FADDR = 9
V_OUTA = 10
V_TR = 11
V_KA = 12
V_VA = 16
V_X = 24
V_FR = 32
V_O = 64
V_S = 128
V_P = 160
V_L = 176
V_ONE = 192
V_NM = 196
V_JUNK = 204
V_MLA = 206
V_Q = 208
NVGPR = 240

S_K, S_V, S_Q, S_OUT, S_WS, S_DBG = 16, 20, 24, 28, 32, 36
S_BH, S_SP, S_W = 40, 41, 42
S_MODE = 43
S_C, S_THR = 44, 45
S_CNT = 46
S_T0, S_T1, S_T2, S_T3 = 50, 51, 52, 53
S_OD = 54
S_OI = 57
S_ML = 58
S_F = 62
S_FO = 63
S_DB = 64
S_RET = 66
S_ST = 70

OFF_PR = 0x1c000
PR_STRIDE = (1 << 20) + 256
OFF_T = 20 << 20
NU = 64


def vr(base, n):
    return f"v[{base}:{base+n-1}]"


def srd(b):
    return f"s[{b}:{b+3}]"


def cost(l):
    return 2 if l.split()[0].startswith("v_exp") else 1


def spread(fillers, weights):
    nslots = len(weights)
    tot = sum(cost(f) for f in fillers)
    wt = sum(weights)
    out = [[] for _ in range(nslots)]
    acc = k = cw = 0
    for s in range(nslots):
        cw += weights[s]
        tgt = tot * cw / wt
        while k < len(fillers) and acc + cost(fillers[k]) / 2.0 <= tgt + 1e-9:
            out[s].append(fillers[k])
            acc += cost(fillers[k])
            k += 1
    out[-1] += fillers[k:]
    return out


def sched(up, step=1, lo=20, hold=1, dec=1):
    l = [0]
    x = lo
    for d in up:
        x += d
        l.append(x)
    l += [x] * hold
    while x > lo + dec:
        x -= dec
        l += [x] * step
    return tuple(l)


def gen(W=22, up=(8, 6, 5, 4, 2, 1), hold=1, stg=3, rk=1, nlv=1, th=(14, 26), bias=(-1, -7, -3, -8, 7, 5, 2, -4), hsn=3, wsl=1, lw=0, plp="nt", pfp="", hpol="sc1", psp="", psh=2, lpol="sc1", ppol="sc1", slp=0, pol="nt", grp="xcd2", bf16p=1, THR=2.0 ** 24, diag=0,
        opol="", qpol="", prio=3, abl="", pre=1, pk=0, al=1, LPOS=2, WG=1, RD=4, NSL=8, l2=1, warm=0, bal=1, lds=98304, NE=10, pf=4, il=1, xph=0, pfpos=0, npol="", cpf=2, chain=1, pvo=0, bq=1, probe=0, shs=0, pfw=16, pfn=4, touch=2, tiny=1, cmp=1, npl=0, tord=1, hs=3, rpol="", clr=0, late=-1, rot=0, xw=(7, 15, 5, 17, 22, 5, 13, 6), qlds=1, fastp=1, pfs=(0, 10, 7, 4, 3, 1)):
    traces = {}
    NE = min(NE, 4 if pre == 1 else 7 if pk else 10)
    nstamp = [0]

    def stamp(dst):
        if diag:
            k = nstamp[0]
            nstamp[0] += 1
            dst.append(f"  s_memrealtime s[{S_ST+2*k}:{S_ST+2*k+1}]")
            dst.append("  s_waitcnt lgkmcnt(0)")

    R = 2048 if bf16p else 4096
    GB = 17 if bf16p else 18
    SLAB = 3 * R + 256
    OFF_F = 16 * SLAB
    VBASE = NSL * 8192
    QBASE = 2 * VBASE if NSL == 4 else VBASE + 32768
    LDS_MODE = 2 * VBASE + (32768 if qlds and NSL == 4 else 0)
    LDS_JUNK = LDS_MODE + 64
    lds = max(lds, LDS_MODE + 64 + 256)
    assert lds <= 163840
    c = math.log2(math.e) / math.sqrt(128.0)
    blk = lambda d, t: [f"  s_and_b32 s{d}, s{S_BH}, 7", f"  s_lshl_b32 s{d}, s{d}, {GB+3}", f"  s_lshr_b32 s{t}, s{S_BH}, 3",
                        f"  s_lshl_b32 s{t}, s{t}, {GB}", f"  s_add_u32 s{d}, s{d}, s{t}"] if (wsl and grp != "xcd") else [f"  s_lshl_b32 s{d}, s{S_BH}, {GB}"]
    E = ["  s_cmp_ge_u32 s2, 256", "  s_cbranch_scc1 L_end"]
    if diag == 6:
        E += ["  s_memrealtime s[68:69]"]
    E += [
        "  s_load_dwordx4 s[4:7], s[0:1], 0",
        "  s_load_dwordx4 s[8:11], s[0:1], 16",
        "  s_load_dwordx4 s[12:15], s[0:1], 32",
        "  v_lshrrev_b32 v1, 6, v0",
        "  v_and_b32 v0, 63, v0",
        "  v_readfirstlane_b32 s3, v1",
    ]
    if grp == "xcd":
        E += [
            f"  s_and_b32 s{S_T0}, s2, 7",
            f"  s_bfe_u32 s{S_SP}, s2, {3 | (2 << 16)}",
            f"  s_lshr_b32 s{S_T1}, s2, 5",
            f"  s_lshl_b32 s{S_BH}, s{S_T0}, 3",
            f"  s_add_u32 s{S_BH}, s{S_BH}, s{S_T1}",
        ]
    elif grp == "xcd2":
        E += ([f"  s_add_u32 s{S_T0}, s2, {rot}", f"  s_and_b32 s{S_T0}, s{S_T0}, 7"] if rot else [f"  s_and_b32 s{S_T0}, s2, 7"]) + [
            f"  s_bfe_u32 s{S_SP}, s2, {3 | (2 << 16)}",
            f"  s_lshr_b32 s{S_T1}, s2, 5",
            f"  s_lshl_b32 s{S_BH}, s{S_T1}, 3",
            f"  s_add_u32 s{S_BH}, s{S_BH}, s{S_T0}",
        ]
    elif grp == "lo":
        E += [f"  s_lshr_b32 s{S_BH}, s2, 2", f"  s_and_b32 s{S_SP}, s2, 3"]
    if late >= 0:
        E += [f"  s_cmp_lg_u32 s{S_SP}, {late}", "  s_cbranch_scc1 L_nolate", "  s_mov_b32 s47, 20", "L_late:", "  s_sleep 100",
              "  s_sub_u32 s47, s47, 1", "  s_cmp_lg_u32 s47, 0", "  s_cbranch_scc1 L_late", "L_nolate:"]
    E += ["  s_cmp_lg_u32 s3, 0", "  s_cbranch_scc1 L_cons"]

    LD = []
    if cpf:
        LD += ["  s_getpc_b64 s[48:49]", "L_pc:", "  v_lshlrev_b32 v5, 7, v0", "  v_mov_b32 v9, s49"]
        for i in range(cpf + 1):
            LD += (["  v_add_u32 v5, 8192, v5"] if i else []) + ["  v_min_u32 v6, L_end - L_pc, v5", "  v_add_co_u32 v6, vcc, s48, v6", "  s_nop 1",
                   "  v_addc_co_u32 v7, vcc, 0, v9, vcc", "  global_load_dword v8, v[6:7], off"]
    LD += [
        f"  s_setprio {prio}",
        f"  s_lshl_b32 s{S_T0}, s{S_BH}, 21",
        f"  s_lshl_b32 s{S_T1}, s{S_SP}, {10 if il else 19}",
        f"  s_add_u32 s{S_T0}, s{S_T0}, s{S_T1}",
        "  v_lshrrev_b32 v3, 4, v0",
        "  v_and_b32 v4, 15, v0",
        "  v_xor_b32 v5, v3, v4",
        "  v_lshlrev_b32 v5, 4, v5",
        "  v_lshl_add_u32 v10, v3, 8, v5",
        "  v_xor_b32 v11, 64, v10",
        "  v_xor_b32 v12, 0x80, v10",
        "  v_xor_b32 v13, 0xc0, v10",
        "  v_lshlrev_b32 v5, 1, v3",
        "  v_xor_b32 v5, v5, v4",
        "  v_lshlrev_b32 v5, 4, v5",
        "  v_lshl_add_u32 v14, v3, 8, v5",
        "  v_xor_b32 v15, 0x80, v14",
    ] + ([
        "  v_mov_b32 v25, v11", "  v_mov_b32 v26, v12", "  v_mov_b32 v27, v13",
        f"  s_lshl_b32 s{S_T3}, s{S_BH}, 15", f"  s_mov_b32 s{S_Q+2}, 32768", f"  s_mov_b32 s{S_Q+3}, 0x20000",
    ] if qlds else []) + ([
        "  v_add_u32 v11, 3072, v11", "  v_add_u32 v12, 6144, v12", "  v_add_u32 v13, 9216, v13",
        "  v_add_u32 v16, 6144, v14", "  v_add_u32 v17, 9216, v15", "  v_add_u32 v15, 3072, v15",
        f"  s_sub_u32 s{S_K+2}, 0x200000, s{S_T1}",
    ] if il else [f"  s_mov_b32 s{S_K+2}, 0x80000"]) + [
        f"  s_mov_b32 s{S_K+3}, 0x20000",
        f"  s_mov_b32 s{S_V+2}, s{S_K+2}",
        f"  s_mov_b32 s{S_V+3}, 0x20000",
        f"  s_lshl_b32 s56, s{S_BH}, 15",
        "  s_mov_b32 s54, 0",
        "  s_mov_b32 s55, 0",
        "  s_waitcnt lgkmcnt(0)",
    ]
    QD = []
    if qlds:
        QD += [f"  s_add_u32 s{S_Q}, s4, s{S_T3}", f"  s_addc_u32 s{S_Q+1}, s5, 0"]
        for g in range(8):
            QD += [f"  s_mov_b32 m0, {QBASE + g*4096}", f"  s_movk_i32 s{S_T2}, {g*4096}"]
            for j in range(4):
                QD.append(f"  buffer_load_dwordx4 v{10 if j == 0 else 24+j}, {srd(S_Q)}, s{S_T2} offen offset:{j*1024} {qpol} lds")
    KV = [
        f"  s_add_u32 s{S_K}, s6, s{S_T0}",
        f"  s_addc_u32 s{S_K+1}, s7, 0",
        f"  s_add_u32 s{S_V}, s8, s{S_T0}",
        f"  s_addc_u32 s{S_V+1}, s9, 0",
    ]
    for i in range(probe):
        LD += [f"  s_lshl_b32 s47, s{S_BH}, 21", f"  s_add_u32 s47, s47, {(64 + 128 * i) << 20}", "  v_mov_b32 v30, s47",
               "  global_load_dword v31, v30, s[14:15]", "  s_waitcnt vmcnt(0)"]
    if touch:
        LD += KV + [f"  s_mov_b32 m0, {LDS_JUNK}", "  s_mov_b64 exec, 1",
                    f"  buffer_load_dword v10, {srd(S_K)}, 0 offen lds", f"  buffer_load_dword v10, {srd(S_V)}, 0 offen lds"]
        if touch == 2:
            LD += [f"  v_mov_b32 v30, s{S_T3}", "  global_load_lds_dword v30, s[10:11]"]
        LD += ["  s_mov_b64 exec, -1"]
        KV = []
    if qlds == 1:
        LD += QD
    LD += KV
    LATE = []
    if cmp:
        LD = ["  s_getpc_b64 s[48:49]", "L_pc:", "  v_lshlrev_b32 v4, 7, v0", "  v_mov_b32 v5, 0"]
        for i in range(cpf + 1):
            LD += ([f"  v_add_u32 v4, 8192, v4"] if i else []) + (["  v_min_u32 v4, L_end - L_pc, v4"] if i == cpf else []) + \
                ["  v_lshl_add_u64 v[6:7], v[4:5], 0, s[48:49]", "  global_load_dword v8, v[6:7], off"]
        LD += [
            f"  s_setprio {prio}",
            f"  s_lshl_b32 s{S_T0}, s{S_BH}, 21", f"  s_lshl_b32 s{S_T1}, s{S_SP}, 10", f"  s_add_u32 s{S_T0}, s{S_T0}, s{S_T1}",
            "  v_lshrrev_b32 v3, 4, v0", "  v_and_b32 v4, 15, v0",
            "  v_xor_b32 v5, v3, v4", "  v_lshlrev_b32 v5, 4, v5", "  v_lshl_add_u32 v10, v3, 8, v5",
            "  v_xor_b32 v11, 64, v10", "  v_xor_b32 v12, 0x80, v10", "  v_xor_b32 v13, 64, v12",
            f"  s_lshl_b32 s{S_T3}, s{S_BH}, 15", f"  s_mov_b32 s{S_Q+2}, 32768", f"  s_mov_b32 s{S_Q+3}, 0x20000",
            f"  s_sub_u32 s{S_K+2}, 0x200000, s{S_T1}", f"  s_mov_b32 s{S_K+3}, s{S_Q+3}",
            f"  s_mov_b64 s[{S_V+2}:{S_V+3}], s[{S_K+2}:{S_K+3}]", "  s_mov_b64 s[54:55], 0",
            f"  v_mov_b32 v30, s{S_T3}", f"  s_mov_b32 m0, {LDS_JUNK}", "  s_mov_b64 exec, 1",
            "  s_waitcnt lgkmcnt(0)",
            f"  s_add_u32 s{S_K}, s6, s{S_T0}", f"  s_addc_u32 s{S_K+1}, s7, 0", f"  buffer_load_dword v10, {srd(S_K)}, 0 offen lds",
            f"  s_add_u32 s{S_V}, s8, s{S_T0}", f"  s_addc_u32 s{S_V+1}, s9, 0", f"  buffer_load_dword v10, {srd(S_V)}, 0 offen lds",
            ] + (["  global_load_lds_dword v30, s[10:11]"] if touch == 2 else []) + ["  s_mov_b64 exec, -1",
            f"  s_add_u32 s{S_Q}, s4, s{S_T3}", f"  s_addc_u32 s{S_Q+1}, s5, 0",
            "L_q:", f"  s_add_u32 m0, s54, {QBASE}", "  s_nop 0"]
        LD += [f"  buffer_load_dwordx4 v{10+j}, {srd(S_Q)}, s54 offen offset:{j*1024} {qpol} lds" for j in range(4)]
        LD += ["  s_addk_i32 s54, 0x1000", f"  s_cmp_lg_u32 s54, s{S_Q+2}", "  s_cbranch_scc1 L_q",
               "  s_mov_b32 s54, 0", "  v_add_u32 v11, 3072, v11", "  v_add_u32 v12, 6144, v12", "  v_add_u32 v13, 9216, v13"]
        LATE = ["  v_lshlrev_b32 v5, 1, v3", "  v_xor_b32 v5, v5, v4", "  v_lshlrev_b32 v5, 4, v5", "  v_lshl_add_u32 v14, v3, 8, v5",
                "  v_xor_b32 v15, 0x80, v14", "  v_add_u32 v16, 6144, v14", "  v_add_u32 v17, 9216, v15", "  v_add_u32 v15, 3072, v15"]
    S_CD, S_B, S_TAB, S_PF, S_N, S_BE, S_RK, S_SLOT, S_MASK, S_PR, S_TH = 56, 57, 58, 60, 61, 62, 63, 65, 66, 68, 72
    LV = list(range(-nlv, nlv + 1)) if rk else [0]
    NX = 2 if rk else 0
    lo = W - 1 + max(LV) + NX
    assert 16 < lo < 32
    fld = 2 | ((VBASE.bit_length() - 1) << 16)
    stubs = []

    def dma(which, j):
        go, sr = (54, S_K) if which == "K" else (55, S_V)
        return f"  buffer_load_dwordx4 v{(10 if which == 'K' else 14) + j}, {srd(sr)}, s{go} offen offset:{j*1024} {pol} lds"

    def part(dst, which, before, after=lambda: [], ng=2):
        go = 54 if which == "K" else 55
        for g in range(ng):
            dst += [f"  s_bfe_u32 m0, s{go}, {fld}"] if which == "K" else [f"  s_bfe_u32 s{S_T2}, s{go}, {fld}", f"  s_or_b32 m0, s{S_T2}, {VBASE}"]
            for j in range(4):
                w_ = before()
                dst += (w_ or (["  s_nop 0"] if j == 0 else [])) + [dma(which, j)] + after()
            dst.append(f"  s_add_u32 s{go}, s{go}, 16384")

    st = dict(pos=0, pend=[])

    def static():
        o = []
        x = W - 1
        if st["pos"] == W:
            o += [f"  s_waitcnt vmcnt({W})", "  s_barrier"]
        if st["pos"] > x:
            o.append(f"  s_waitcnt vmcnt({x})")
            while st["pend"] and st["pos"] - st["pend"][0] >= x:
                o.append("  s_barrier")
                st["pend"].pop(0)
        st["pos"] += 1
        return o
    if cmp:
        LD += ["L_k:", "  s_lshr_b32 m0, s54, 2", "  s_nop 0"] + [dma("K", j) for j in range(4)] + \
              ["  s_addk_i32 s54, 0x4000", f"  s_cmp_lg_u32 s54, {5*16384}", "  s_cbranch_scc1 L_k"]
        st["pos"] = 20
        assert W >= 21
    else:
        part(LD, "K", static); part(LD, "K", static)
    st["pend"].append(16)
    setup = [
        f"  s_mov_b32 s{S_DBG}, s12", f"  s_mov_b32 s{S_DBG+1}, s13", f"  s_mov_b32 s{S_DBG+2}, 256", f"  s_mov_b32 s{S_DBG+3}, 0x20000",
        f"  s_lshl_b32 s{S_DB}, s{S_BH}, 2", f"  v_mov_b32 v20, {LDS_MODE}",
    ] + blk(S_T2, S_T1) + [f"  s_add_u32 s{S_WS}, s14, s{S_T2}", f"  s_addc_u32 s{S_WS+1}, s15, 0",
        f"  s_mov_b32 s{S_WS+2}, {1 << GB}", f"  s_mov_b32 s{S_WS+3}, 0x20000",
        f"  v_and_b32 v24, {8*pfn-1}, v0", "  v_lshlrev_b32 v24, 7, v24", f"  s_mul_i32 s{S_PF}, s{S_SP}, {4*SLAB}",
    ]
    lag1 = W - 1 + up[0]
    tabv = [d + 1 for d in up[1:]] + [1] * hold
    assert len(tabv) <= 16 and max(tabv) <= 15 and lag1 >= lo
    bend = len(tabv) + (W - 1 + sum(up)) - lo
    tab = sum(v << (4 * i) for i, v in enumerate(tabv))
    setup += [f"  s_mul_i32 s{S_T2}, s{S_SP}, {stg}", f"  s_add_u32 s{S_CD}, s{S_T2}, {32 + lag1 - 48}", f"  s_add_u32 s{S_BE}, s{S_T2}, {bend}",
              f"  s_mov_b32 s{S_B}, 0", f"  s_mov_b32 s{S_TAB}, {tab & 0xffffffff}", f"  s_mov_b32 s{S_TAB+1}, {tab >> 32}",
              f"  s_mov_b32 s{S_N}, 0"]
    for sp in range(4):
        cd, nb_, t_, done = sp * stg + 32 + lag1 - 48, 0, tab, 0
        for p in range(48, 16 * 63):
            u = p // 16
            need = (u + 1 - NSL) if p % 16 < 8 else (u - 1 - NSL + 2)
            assert done >= need, (sp, p)
            if cd == 0:
                done += 1
                assert p - 16 * (done + 1) >= lo, (sp, p, done)
                nb_ += 1
                cd = (t_ & 15) + 14 + (1 if nb_ > bend + sp * stg else 0)
                t_ >>= 4
                last = p - 16 * (done + 1)
            else:
                cd -= 1
        assert done == 60 and last == lo, (sp, done, last)
    if rk:
        setup += [f"  s_add_u32 s{S_PR}, s14, {OFF_PR}", f"  s_addc_u32 s{S_PR+1}, s15, 0", f"  s_mov_b32 s{S_PR+2}, {8*PR_STRIDE}", f"  s_mov_b32 s{S_PR+3}, 0x20000",
                  f"  s_and_b32 s{S_T2}, s2, 7", f"  s_mul_i32 s{S_T1}, s{S_T2}, {PR_STRIDE}",
                  "  v_and_b32 v28, 31, v0", f"  v_lshl_add_u32 v29, v28, {psh}, s{S_T1}",
                  ] + (["  v_lshrrev_b32 v5, 2, v28", "  v_lshlrev_b32 v5, 5, v5", "  v_and_b32 v28, 3, v28", "  v_add_u32 v28, v28, v5"] if grp != "xcd" else []) + [
                  f"  s_lshl_b32 s{S_T2}, s{S_T2}, {2 if grp != 'xcd' else 5}", f"  v_add_u32 v28, s{S_T2}, v28",
                  f"  s_lshr_b32 s{S_SLOT}, s2, 3", f"  s_lshl_b32 s{S_SLOT}, s{S_SLOT}, {psh}", f"  s_add_u32 s{S_SLOT}, s{S_SLOT}, s{S_T1}",
                  "  v_mov_b32 v30, 0", "  v_mov_b32 v23, 0"]
        setup += [f"  s_movk_i32 s{S_TH+i}, {-1000 if i < nlv else 1000}" for i in range(2 * nlv)]
    if cmp:
        rest = []
        part(rest, "K", static, ng=1)
        k = rest.index(f"  s_waitcnt vmcnt({W})")
        LD += rest[:k] + LATE + setup + rest[k:]
        part(LD, "V", static); part(LD, "K", static); part(LD, "V", static)
    else:
        LD += setup
        for _ in range(2):
            part(LD, "K", static); part(LD, "V", static)
    assert not st["pend"] and st["pos"] == 48

    def passes(lv):
        o = []
        k = [0]

        def before():
            x = W - 1 + lv
            k[0] += 1
            return [f"  s_waitcnt vmcnt({x + (NX if k[0] - 1 < x else 0)})"]

        def after():
            i = len(stubs)
            stubs.append(i)
            return [f"  s_sub_u32 s{S_CD}, s{S_CD}, 1", f"  s_cbranch_scc1 L_bar{i}", f"L_barret{i}:"]
        for _ in range(2):
            part(o, "K", before, after); part(o, "V", before, after)
        return o + [f"  s_cmp_lg_u32 s{S_N}, 30", "  s_cbranch_scc1 L_ldloop"]
    STUB = ["  s_barrier", f"  s_and_b32 s{S_CD}, s{S_TAB}, 15", f"  s_lshr_b64 s[{S_TAB}:{S_TAB+1}], s[{S_TAB}:{S_TAB+1}], 4",
            f"  s_add_u32 s{S_B}, s{S_B}, 1", f"  s_cmp_gt_u32 s{S_B}, s{S_BE}", f"  s_addc_u32 s{S_CD}, s{S_CD}, 14"]
    D0 = []
    if rk:
        D0 += [f"  v_cmp_le_u32 vcc, s{S_N}, v30", f"  s_add_u32 s{S_N}, s{S_N}, 1", f"  v_mov_b32 v31, s{S_N}",
               f"  s_bcnt1_i32_b32 s{S_RK}, vcc_lo",
               f"  buffer_load_dword v30, v29, {srd(S_PR)}, 0 offen {plp}", "  s_mov_b64 exec, 1",
               f"  buffer_store_dword v31, off, {srd(S_PR)}, s{S_SLOT} {psp}", "  s_mov_b64 exec, -1"]
        if "1" in abl:
            D0[-2] = D0[-4].replace("v30", "v31", 1)
        if "2" in abl:
            D0[-4] = D0[-2]
    else:
        D0 += [f"  s_add_u32 s{S_N}, s{S_N}, 1"]
    D0 += [f"  s_cmp_eq_u32 s{S_N}, {hsn}", "  s_cbranch_scc1 L_hs0", f"  s_cmp_eq_u32 s{S_N}, {hsn+2}", "  s_cbranch_scc1 L_hs1", "L_go:"]
    for i in range(nlv if rk else 0):
        D0 += [f"  s_cmp_lt_i32 s{S_RK}, s{S_TH+i}", f"  s_cbranch_scc1 L_lv{i}",
               f"  s_cmp_ge_i32 s{S_RK}, s{S_TH+2*nlv-1-i}", f"  s_cbranch_scc1 L_lv{2*nlv-i}"]
    D1 = passes(0)
    DA_ = []
    for i, lv in enumerate(LV):
        if lv:
            DA_ += [f"L_lv{i}:"] + passes(lv) + ["  s_branch L_ldtail"]
    if tiny:
        DA_ += [".p2align 6", "L_barfn:"] + STUB + ["  s_setpc_b64 s[76:77]"]
    for i in stubs:
        DA_ += [f"L_bar{i}:"] + (["  s_call_b64 s[76:77], L_barfn"] if tiny else STUB) + [f"  s_branch L_barret{i}"]
    H0 = ["  v_mov_b32 v22, 0", f"  buffer_load_dword v22, off, {srd(S_DBG)}, s{S_DB} {hpol}"]
    if rk:
        H0 += [f"  buffer_load_ubyte v23, v28, {srd(S_DBG)}, 0 offen {hpol}"]
    H0 += ["  s_branch L_go"]
    chk4 = lambda m, lab: [f"  v_and_b32 v21, {m}, v22", f"  v_cmp_ne_u32 vcc, {m}, v21", f"  s_cbranch_vccz {lab}"]
    hello = lambda bits: [f"  s_getreg_b32 s{S_T2}, hwreg(HW_REG_XCC_ID, 0, 3)", f"  s_or_b32 s{S_T2}, s{S_T2}, {bits}", f"  v_mov_b32 v21, s{S_T2}",
                          f"  s_add_u32 s{S_T2}, s{S_DB}, s{S_SP}", f"  buffer_store_byte v21, off, {srd(S_DBG)}, s{S_T2} sc1"]
    memrd = ["  v_mov_b32 v22, 0", f"  buffer_atomic_or v22, off, {srd(S_DBG)}, s{S_DB} sc0 sc1", "  s_waitcnt vmcnt(0)"]
    H1 = []
    if rk:
        bt = sum(((bias[i] + 8) & 15) << (4 * i) for i in range(8))
        H1 += [f"  s_getreg_b32 s{S_T2}, hwreg(HW_REG_XCC_ID, 0, 3)", f"  s_or_b32 s{S_T1}, s{S_T2}, 0x80",
               f"  v_cmp_ne_u32 vcc, s{S_T1}, v23", "  s_cbranch_vccnz L_nork",
               f"  s_lshl_b32 s{S_T2}, s{S_T2}, 2", f"  s_lshr_b32 s{S_T2}, {bt}, s{S_T2}", f"  s_and_b32 s{S_T2}, s{S_T2}, 15"]
        H1 += [f"  s_sub_i32 s{S_TH+i}, {th[i] + 8}, s{S_T2}" for i in range(2 * nlv)] + ["L_nork:"]
    H1 += chk4("0x80808080", "L_hs2") + ["  s_mov_b64 exec, 1", f"  s_add_u32 s{S_T2}, s{S_DB}, s{S_SP}", "L_hs1a:",
           f"  buffer_load_ubyte v21, off, {srd(S_DBG)}, s{S_T2} sc1", "  s_waitcnt vmcnt(0)", "  v_cmp_eq_u32 vcc, 0, v21", "  s_cbranch_vccnz L_hs1a"] + hello("0x80") + ["L_hs1b:",
           f"  buffer_load_dword v22, off, {srd(S_DBG)}, s{S_DB} sc1", "  s_waitcnt vmcnt(0)"] + chk4("0x80808080", "L_hs2") \
        + memrd + chk4("0x80808080", "L_hs2") + ["  s_branch L_hs1b"]
    H2 = ["  s_mov_b64 exec, 1", "  v_alignbit_b32 v21, v22, v22, 8", "  v_xor_b32 v21, v21, v22", "  v_and_b32 v21, 0x07070707, v21",
          "  v_cmp_ne_u32 vcc, 0, v21", "  v_mov_b32 v21, 4", "  s_cbranch_vccnz L_hsfar", "L_hs3:",
          "  ds_write_b32 v20, v21", "  s_mov_b64 exec, -1", "  s_waitcnt lgkmcnt(0)",
          "  v_and_b32 v21, 3, v0", "  v_lshlrev_b32 v21, 7, v21", f"  s_mov_b32 s{S_T2}, {OFF_F}",
          f"  buffer_load_dword v23, v21, {srd(S_WS)}, s{S_T2} offen", "  s_branch L_go"]
    HX = ["L_hsfar:", "  s_mov_b64 exec, 15", "  v_lshlrev_b32 v21, 7, v0", "  v_mov_b32 v22, 0",
          f"  s_lshl_b32 s{S_T2}, s{S_SP}, 2", f"  s_add_u32 s{S_T2}, s{S_T2}, {OFF_F}",
          f"  buffer_store_dword v22, v21, {srd(S_WS)}, s{S_T2} offen sc1", "  s_mov_b64 exec, 1", "  s_waitcnt vmcnt(0)"] \
        + hello("0xc0") + ["L_hsfar2:"] + memrd + chk4("0x40404040", "L_hsfar3") + ["  s_branch L_hsfar2",
          "L_hsfar3:", "  v_mov_b32 v21, 0", "  s_branch L_hs3"]
    D6 = []
    st.update(pos=16 * 63, pend=[16 * 62, 16 * 63])
    part(D6, "V", static); st["pend"].append(st["pos"])
    part(D6, "V", static); st["pend"].append(st["pos"])
    D6 += [f"  s_mov_b32 m0, {LDS_JUNK}"]
    for q in range(-(-25 // pfn)):
        while st["pend"] and st["pos"] - st["pend"][0] >= pfw - 1:
            D6 += [f"  s_waitcnt vmcnt({st['pos'] - st['pend'].pop(0)})", "  s_barrier"]
        D6 += [f"  s_waitcnt vmcnt({pfw-1})", f"  buffer_load_dword v24, {srd(S_WS)}, s{S_PF} offen {pfp} lds", f"  s_add_u32 s{S_PF}, s{S_PF}, {1024*pfn}"]
        st["pos"] += 1
    for e_ in st["pend"]:
        D6 += [f"  s_waitcnt vmcnt({st['pos'] - e_})", "  s_barrier"]
    D6.append("  s_endpgm")
    assert sum(l == "  s_barrier" for l in LD + D6) + 60 == NU + 2
    traces["loader"] = E + LD + D0 + H0 + D1 + D0 + H1 + H1 + H2 + HX + H2 + DA_ + D0 + D1 + D6
    LOADER = LD + ["L_ldloop:"] + D0 + D1 + ["L_ldtail:"] + D6 + ["L_hs0:"] + H0 + ["L_hs1:"] + H1 + ["L_hs2:"] + H2 + HX + DA_

    P = []
    stamp(P)
    Qf = lambda qb, ks: V_Q + 4 * (qb * 4 + ks)
    P += [
        f"  s_sub_u32 s{S_W}, s3, 1",
        f"  s_lshl_b32 s{S_DB}, s{S_BH}, 2",
        f"  s_add_u32 s{S_T1}, s{S_DB}, s{S_W}",
        f"  s_lshl_b32 s{S_T2}, s{S_T1}, 13",
        f"  v_and_b32 v{V_T0}, 15, v0",
        f"  v_lshrrev_b32 v{V_T1}, 4, v0",
        f"  v_lshlrev_b32 v{V_T2}, 4, v{V_T1}",
        f"  v_lshl_add_u32 v{V_T3}, v{V_T0}, 8, v{V_T2}",
        f"  s_mov_b32 s{S_Q+2}, 8192",
        f"  s_mov_b32 s{S_Q+3}, 0x20000",
        f"  s_movk_i32 s{S_T3}, 0x1000",
    ] + blk(S_T0, S_T1) + [
        "  s_waitcnt lgkmcnt(0)",
        f"  s_add_u32 s{S_Q}, s4, s{S_T2}",
        f"  s_addc_u32 s{S_Q+1}, s5, 0",
    ]
    for qb in range(2):
        for ks in range(4):
            so = f"s{S_T3}" if qb else "0"
            if not qlds:
                P.append(f"  buffer_load_dwordx4 {vr(Qf(qb,ks),4)}, v{V_T3}, {srd(S_Q)}, {so} offen offset:{ks*64} {qpol}")
    P += [
        f"  s_add_u32 s{S_WS}, s14, s{S_T0}",
        f"  s_addc_u32 s{S_WS+1}, s15, 0",
        f"  s_mov_b32 s{S_WS+2}, {1 << GB}",
        f"  s_mov_b32 s{S_WS+3}, 0x20000",
        f"  s_add_u32 s{S_OUT}, s10, s{S_T2}",
        f"  s_addc_u32 s{S_OUT+1}, s11, 0",
        f"  s_mov_b32 s{S_OUT+2}, 8192",
        f"  s_mov_b32 s{S_OUT+3}, 0x20000",
        f"  s_lshl_b32 s{S_F}, s{S_W}, 7",
        f"  s_add_u32 s{S_F}, s{S_F}, {OFF_F}",
        f"  s_lshl_b32 s{S_FO}, s{S_SP}, 2",
        f"  s_add_u32 s{S_FO}, s{S_FO}, s{S_F}",
        f"  v_mov_b32 v{V_T2}, 0",
        "  s_mov_b64 exec, 1",
        f"  buffer_store_dword v{V_T2}, off, {srd(S_WS)}, s{S_FO} {rpol}" if "Z" not in abl else "  s_nop 0",
    ]
    if rk:
        P += [f"  s_add_u32 s{S_Q}, s14, {OFF_PR}", f"  s_addc_u32 s{S_Q+1}, s15, 0", f"  s_mov_b32 s{S_Q+2}, {8*PR_STRIDE}",
              f"  s_and_b32 s{S_T1}, s2, 7", f"  s_mul_i32 s{S_T1}, s{S_T1}, {PR_STRIDE}", f"  s_lshr_b32 s{S_T0}, s2, 3",
              f"  s_lshl_b32 s{S_T0}, s{S_T0}, {psh}", f"  s_add_u32 s{S_T1}, s{S_T1}, s{S_T0}",
              f"  buffer_store_dword v{V_T2}, off, {srd(S_Q)}, s{S_T1}"]
    if warm:
        P.append(f"  buffer_load_dword v{V_JUNK}, off, {srd(S_OUT)}, 0")
    P += ["  s_mov_b64 exec, -1",
          f"  s_lshl_b32 s{S_OI}, s{S_SP}, 2", f"  s_add_u32 s{S_OI}, s{S_OI}, s{S_W}", f"  s_mul_i32 s{S_OI}, s{S_OI}, {SLAB}"]
    if clr:
        P += [f"  v_lshlrev_b32 v{V_T2}, 4, v0", f"  s_add_u32 s{S_T1}, s{S_OI}, 4096"] + [f"  v_mov_b32 v{V_X+i}, -1" for i in range(4)]
        for i in range(6):
            P.append(f"  buffer_store_dwordx4 {vr(V_X,4)}, v{V_T2}, {srd(S_WS)}, s{S_OI if i < 4 else S_T1} offen offset:{(i&3)*1024}")
        P += ["  s_mov_b64 exec, 0xffff", f"  buffer_store_dwordx4 {vr(V_X,4)}, v{V_T2}, {srd(S_WS)}, s{S_T1} offen offset:2048", "  s_mov_b64 exec, -1", "  s_nop 0"]
    PF = [f"  v_min_u32 v{V_T2}, {SLAB // 128 - 1}, v0", f"  v_lshlrev_b32 v{V_T2}, 7, v{V_T2}",
          f"  buffer_load_dword v{V_JUNK+1}, v{V_T2}, {srd(S_WS)}, s{S_OI} offen"]
    assert bf16p or not pf
    if pf == 1:
        P += PF
    P += [
        f"  v_xor_b32 v{V_T2}, v{V_T0}, v{V_T1}",
        f"  v_lshlrev_b32 v{V_T2}, 4, v{V_T2}",
        f"  v_lshl_add_u32 v{V_KA}, v{V_T0}, 8, v{V_T2}",
    ]
    for ks in range(1, 4):
        P.append(f"  v_xor_b32 v{V_KA+ks}, {ks*64}, v{V_KA}")
    P += [
        f"  v_lshrrev_b32 v{V_T2}, 2, v0",
        f"  v_lshlrev_b32 v{V_T3}, 8, v{V_T2}",
        f"  v_and_b32 v{V_T2}, 7, v{V_T2}",
        f"  s_lshl_b32 s{S_T2}, s{S_SP}, 1",
        f"  v_xor_b32 v{V_T2}, s{S_T2}, v{V_T2}",
        f"  v_lshl_add_u32 v{V_T3}, v{V_T2}, 5, v{V_T3}",
        f"  v_and_b32 v{V_T2}, 3, v0",
        f"  v_lshl_add_u32 v{V_T3}, v{V_T2}, 3, v{V_T3}",
        f"  v_lshlrev_b32 v{V_FADDR}, 2, v{V_T2}",
        f"  v_add_u32 v{V_VA}, {VBASE}, v{V_T3}",
    ]
    for db in range(1, 8):
        P.append(f"  v_xor_b32 v{V_VA+db}, {db*32}, v{V_VA}")
    P += [
        f"  v_cmp_eq_u32 vcc, 0, v{V_T2}",
        f"  v_mov_b32 v{V_T3}, 0x3f803f80",
        f"  v_lshlrev_b32 v{V_LANE16}, 4, v0",
        f"  v_cndmask_b32 v{V_ONE}, 0, v{V_T3}, vcc",
        f"  v_cndmask_b32 v{V_ONE+1}, 0, v{V_T3}, vcc",
        f"  v_cndmask_b32 v{V_ONE+2}, 0, v{V_T3}, vcc",
        f"  v_cndmask_b32 v{V_ONE+3}, 0, v{V_T3}, vcc",
        f"  s_mov_b32 s{S_C}, {f32(c)}",
        f"  s_mov_b32 s{S_THR}, {f32(THR)}",
    ]
    for i in range(32):
        P.append(f"  v_mov_b64 v[{V_O+2*i}:{V_O+2*i+1}], 0")
    X = []
    for j in range(1, 4):
        X += [f"  s_xor_b32 s{S_T1}, s{S_SP}, {j}", f"  s_lshl_b32 s{S_T1}, s{S_T1}, 2", f"  s_add_u32 s{S_T1}, s{S_T1}, s{S_W}",
              f"  s_mul_i32 s{S_T1}, s{S_T1}, {SLAB}",
              f"  s_add_u32 s{S_ML+j}, s{S_T1}, {3*R}", f"  s_add_u32 s{S_OD+j-1}, s{S_T1}, {(j-1)*R}"]
    X += [f"  s_add_u32 s{S_ML}, s{S_OI}, {3*R}", f"  v_and_b32 v{V_MLA}, 0xf0, v{V_LANE16}"]
    X += [
        f"  v_and_b32 v{V_T2}, 15, v0", f"  v_lshlrev_b32 v{V_OUTA}, 8, v{V_T2}",
        f"  v_bfe_u32 v{V_T2}, v0, 4, 1", f"  v_lshl_add_u32 v{V_OUTA}, v{V_T2}, 5, v{V_OUTA}",
        f"  v_lshrrev_b32 v{V_T2}, 5, v0", f"  v_lshl_add_u32 v{V_OUTA}, v{V_T2}, 4, v{V_OUTA}",
        f"  s_lshl_b32 s{S_T2}, s{S_SP}, 6", f"  v_add_u32 v{V_OUTA}, s{S_T2}, v{V_OUTA}",
    ]
    if qlds:
        X += [f"  s_lshl_b32 s{S_T2}, s{S_W}, 13", f"  s_add_u32 s{S_T2}, s{S_T2}, {QBASE}"]
        X += [f"  v_add_u32 v{V_X+ks}, s{S_T2}, v{V_KA+ks}" for ks in range(4)]
        P += X + (PF[:2] if pf in (2, 3) else []) + ["  s_waitcnt vmcnt(0)", "  s_barrier"] + (PF[2:] if pf == 2 else [])
        P += [f"  ds_read_b128 {vr(Qf(qb,ks),4)}, v{V_X+ks} offset:{qb*4096}" for qb in range(2) for ks in range(4)]
        P += ["  s_waitcnt lgkmcnt(0)"]
    elif pf >= 4:
        P += ["  s_barrier"] + X + ["  s_waitcnt vmcnt(0)"]
    elif pf >= 2:
        P += ["  s_barrier"] + X + PF[:2] + ["  s_waitcnt vmcnt(0)"] + (PF[2:] if pf == 2 else [])
    else:
        P += ["  s_barrier"] + X + [f"  s_waitcnt vmcnt({(1 if warm else 0) + (1 if pf else 0)})"]
    if pre == 1:
        P += [f"  v_mov_b32 v{V_T2}, s{S_C}"]
        for i in range(33):
            q = V_Q + i
            t = V_S + 2 * (i & 3)
            if i < 32:
                P += [f"  v_lshlrev_b32 v{t}, 16, v{q}", f"  v_and_b32 v{t+1}, 0xffff0000, v{q}",
                      f"  v_pk_mul_f32 v[{t}:{t+1}], v[{t}:{t+1}], v[{V_T2}:{V_T2+1}] op_sel_hi:[1,0]"]
            if i:
                t = V_S + 2 * ((i - 1) & 3)
                P += [f"  v_cvt_pk_bf16_f32 v{q-1}, v{t}, v{t+1}"]
    if bq:
        assert qlds == 1
        P += ["  s_barrier"]
    stamp(P)
    PA = [f"  s_mov_b32 s{S_DBG}, s12", f"  s_mov_b32 s{S_DBG+1}, s13", f"  s_mov_b32 s{S_DBG+2}, 256", f"  s_mov_b32 s{S_DBG+3}, 0x20000"]
    if hs:
        PA += [f"  s_getreg_b32 s{S_T2}, hwreg(HW_REG_XCC_ID, 0, 3)", f"  s_or_b32 s{S_T2}, s{S_T2}, 0x80", f"  v_mov_b32 v{V_T2}, s{S_T2}",
               f"  s_add_u32 s{S_T2}, s{S_DB}, s{S_SP}", "  s_mov_b64 exec, 1",
               f"  buffer_store_byte v{V_T2}, off, {srd(S_DBG)}, s{S_T2} {'sc1' if hs == 1 else ''}", "  s_mov_b64 exec, -1"]
    else:
        if l2:
            PA += [f"  s_getreg_b32 s{S_T2}, hwreg(HW_REG_XCC_ID, 0, 3)", f"  s_mul_i32 s{S_T2}, s{S_T2}, 3",
                   f"  s_lshl_b32 s{S_T2}, 16, s{S_T2}", f"  s_add_u32 s{S_T2}, s{S_T2}, 1", f"  v_mov_b32 v{V_T2}, s{S_T2}"]
        else:
            PA += [f"  v_mov_b32 v{V_T2}, 1"]
        PA += [
            "  s_mov_b64 exec, 1",
            f"  buffer_atomic_add v{V_T2}, off, {srd(S_DBG)}, s{S_DB} sc1",
            "  s_mov_b64 exec, -1",
        ]
    if "H" in abl:
        PA = []

    Sb = lambda par, kbl, qb: V_S + 16 * par + 4 * (kbl * 2 + qb)
    Pb = lambda par, qb: V_P + 8 * par + 4 * qb
    Lb = lambda par, qb: V_L + 8 * par + 4 * qb
    Ob = lambda db, qb: V_O + 4 * (db * 2 + qb)
    Fr = lambda half, f: V_FR + 16 * half + 4 * f

    def kreads(half, u, kbl):
        return [f"  ds_read_b128 {vr(Fr(half,ks),4)}, v{V_KA+ks} offset:{(u % NSL)*8192 + kbl*4096}" for ks in range(4)]

    def vreads(half, u, dbs):
        o = []
        for f, db in enumerate(dbs):
            for h in range(2):
                o.append(f"  ds_read_b64_tr_b16 {vr(Fr(half,f)+2*h,2)}, v{V_VA+db} offset:{(u % NSL)*8192 + h*4096}")
        return o

    def qkm(half, u, kbl, first=False):
        o = []
        for qb, ks in {1: [(a, b) for a in range(2) for b in range(4)], 0: [(a, b) for b in range(4) for a in range(2)], 2: [(0, 0), (0, 1), (0, 2), (0, 3), (1, 3), (1, 2), (1, 1), (1, 0)]}[chain]:
            if True:
                d = vr(Sb(u & 1, kbl, qb), 4)
                c0 = vr(V_NM + 4 * qb, 4) if (pre and not first) else 0
                o.append(f"  v_mfma_f32_16x16x32_bf16 {d}, {vr(Fr(half,ks),4)}, {vr(Qf(qb,ks),4)}, {d if ks != (3 if chain == 2 and qb else 0) else c0}")
        return o

    def pvm(half, u, dbs, order=None):
        o = []
        order = pvo if order is None else order
        seq = {0: [(f, qb) for f in range(4) for qb in range(2)],
               1: [(f, qb) for qb in range(2) for f in range(4)],
               2: [(f, (f + i) & 1) for i in range(2) for f in range(4)]}[order]
        for f, qb in seq:
            d = vr(Ob(dbs[f], qb), 4)
            o.append(f"  v_mfma_f32_16x16x32_bf16 {d}, {vr(Fr(half,f),4)}, {vr(Pb(u&1,qb),4)}, {d}")
        return o

    def lm(par, first=False):
        return [f"  v_mfma_f32_16x16x32_bf16 {vr(Lb(par,qb),4)}, {vr(V_ONE,4)}, {vr(Pb(par,qb),4)}, {0 if first else vr(Lb(par^1,qb),4)}"
                for qb in range(2)]

    def softmax(par):
        pairs = [(kbl, qb, h) for kbl in range(2) for qb in range(2) for h in range(2)]
        s3 = [[], [], []]
        for k, (kbl, qb, h) in enumerate(pairs):
            s = Sb(par, kbl, qb) + 2 * h
            x = V_X + 2 * (k & 3)
            if pre == 1:
                s3[0].append([])
                s3[1].append([f"  v_exp_f32 v{x}, v{s}", f"  v_exp_f32 v{x+1}, v{s+1}"])
            else:
                if pre == 2 and pk:
                    s3[0].append([f"  v_pk_mul_f32 v[{x}:{x+1}], v[{s}:{s+1}], s[{S_C}:{S_C+1}] op_sel_hi:[1,0]"])
                elif pre == 2:
                    s3[0].append([f"  v_mul_f32 v{x}, s{S_C}, v{s}", f"  v_mul_f32 v{x+1}, s{S_C}, v{s+1}"])
                elif pk:
                    s3[0].append([f"  v_pk_fma_f32 v[{x}:{x+1}], v[{s}:{s+1}], s[{S_C}:{S_C+1}], v[{V_M}:{V_M+1}] op_sel:[0,0,{qb}] op_sel_hi:[1,0,{qb}] neg_lo:[0,0,1] neg_hi:[0,0,1]"])
                else:
                    s3[0].append([f"  v_fma_f32 v{x}, v{s}, s{S_C}, -v{V_M+qb}", f"  v_fma_f32 v{x+1}, v{s+1}, s{S_C}, -v{V_M+qb}"])
                s3[1].append([f"  v_exp_f32 v{x}, v{x}", f"  v_exp_f32 v{x+1}, v{x+1}"])
            s3[2].append([f"  v_cvt_pk_bf16_f32 v{Pb(par,qb)+2*kbl+h}, v{x}, v{x+1}"])
        o = []
        for k in range(10):
            for j in range(3):
                if 0 <= k - j < 8:
                    o += s3[j][k - j]
        return o

    def softmax_plain(par):
        sm = softmax(par)
        return sm[:-1] + ["  s_nop 0", sm[-1], "  s_nop 1"]

    def chk(par):
        return [f"  v_add_f32 v{V_T0}, v{Lb(par,0)}, v{Lb(par,1)}", f"  v_cmp_nge_f32 vcc, s{S_THR}, v{V_T0}"]

    sites = []

    def br(par):
        k = len(sites)
        sites.append(par)
        return [f"  s_cbranch_vccnz L_fix{k}", f"L_ret{k}:"]

    def xmax(reg, tmp):
        return [f"  v_mov_b32 v{tmp}, v{reg}", "  s_nop 1", f"  v_permlane16_swap_b32 v{reg}, v{tmp}",
                f"  v_max_f32 v{reg}, v{reg}, v{tmp}",
                f"  v_mov_b32 v{tmp}, v{reg}", "  s_nop 1", f"  v_permlane32_swap_b32 v{reg}, v{tmp}",
                f"  v_max_f32 v{reg}, v{reg}, v{tmp}"]

    def maxof(dst, regs):
        o = [f"  v_max3_f32 v{dst}, v{regs[0]}, v{regs[1]}, v{regs[2]}"]
        k = 3
        while k + 1 < len(regs):
            o.append(f"  v_max3_f32 v{dst}, v{dst}, v{regs[k]}, v{regs[k+1]}")
            k += 2
        if k < len(regs):
            o.append(f"  v_max_f32 v{dst}, v{dst}, v{regs[k]}")
        return o

    def group(mf, reads, fill, rd=None):
        o = []
        rd = rd or RD
        per = -(-len(reads) // rd) if reads else 0
        for i, m in enumerate(mf):
            o.append(m)
            o += reads[i * per:(i + 1) * per]
            o += fill[i]
        return o

    def coarse(lines, pend):
        if WG >= 4:
            return auto_lgkm(lines, pend)
        out = []
        n = 4 // WG
        for l in lines:
            if l.strip().startswith("v_mfma"):
                a = int(l.split(",")[2 if "x" in abl else 1].split("[")[1].split(":")[0])
                if V_FR <= a < V_FR + 32:
                    f = (a - V_FR) // 4
                    last = V_FR + 4 * ((f // n) * n + n - 1) + 3
                    out.append(f"  v_touch v{last}, v{last}")
            out.append(l)
        out, pend = auto_lgkm(out, pend)
        return [l for l in out if not l.strip().startswith("v_touch")], pend

    def ablate(B):
        if "d" in abl:
            B = [l for l in B if not l.strip().startswith("ds_")]
        if "v" in abl:
            B = [l for l in B if not l.strip().startswith(("v_exp", "v_fma", "v_cvt"))]
        if "B" in abl:
            B = [l for l in B if l.strip() != "s_barrier"]
        if "k" in abl:
            B = [l for l in B if not l.strip().startswith("ds_read_b128")]
        if "t" in abl:
            B = [l for l in B if not l.strip().startswith("ds_read_b64_tr")]
        if "o" in abl:
            B = [l for l in B if f"v[{V_ONE}:" not in l]
        if "q" in abl:
            B = [l for l in B if not (l.strip().startswith("v_mfma") and V_S <= int(l.split("[")[1].split(":")[0]) < V_S + 32)]
        if "p" in abl:
            B = [l for l in B if not (l.strip().startswith("v_mfma") and V_O <= int(l.split("[")[1].split(":")[0]) < V_O + 64)]
        if "x" in abl:
            BB = []
            for l in B:
                if l.strip().startswith("v_mfma"):
                    a = l.split(", ")
                    l = ", ".join([a[0], a[2], a[1], a[3]])
                BB.append(l)
            B = BB
        return B

    DA, DB_ = [0, 1, 2, 3], [4, 5, 6, 7]

    def fills(par, nfront):
        n = nfront + max(LPOS - 1, 0)
        wts = [1.0] * n
        if bal and nfront == 24:
            per = [-(-4 // RD), -(-8 // RD), -(-8 // RD)]
            cnt = [4, 8, 8]
            for g in range(3):
                for i in range(8):
                    nr = max(0, min(per[g], cnt[g] - i * per[g]))
                    wts[8 * g + i] = max(0.2, 3.1 - nr)
            for i in range(24, n):
                wts[i] = 2.1
        f = spread(softmax(par)[NE:], wts)
        return f + [[] for _ in range(nfront + 10 - n)]

    def closing(n, nxt_reads, tailfill, extra=()):
        o = ["  s_waitcnt lgkmcnt(0)", "  s_barrier"] + list(extra)
        mf = pvm(1, n - 1, DB_)
        mf = mf[:LPOS] + lm(n & 1) + mf[LPOS:]
        fl = [list(x) for x in tailfill]
        c2 = chk(n & 1)
        if n < NU - 1:
            for i, e in enumerate(spread(softmax((n + 1) & 1)[:NE], [1] * (8 - LPOS - 1))):
                fl[LPOS + 1 + i] += e
        fl[8] = fl[8] + c2
        o += group(mf, nxt_reads, fl)
        return o + br(n & 1)

    def front(n):
        f = fills(n & 1, 24)
        o = group(qkm(0, n + 1, 0), kreads(1, n + 1, 1), f[0:8])
        o += group(qkm(1, n + 1, 1), vreads(0, n - 1, DA), f[8:16])
        o += group(pvm(0, n - 1, DA), vreads(1, n - 1, DB_), f[16:24])
        return o, f[24:34]

    P2 = kreads(0, 0, 0) + kreads(1, 0, 1) + qkm(0, 0, 0, True) + kreads(0, 1, 0) + qkm(1, 0, 1, True) + kreads(1, 1, 1) \
        + qkm(0, 1, 0, True) + qkm(1, 1, 1, True) + ["  s_nop 7"]
    for qb in range(2):
        P2 += maxof(V_M + qb, [Sb(par, kbl, qb) + r for par in range(2) for kbl in range(2) for r in range(4)])
    for qb in range(2):
        P2 += xmax(V_M + qb, V_T0)
    if pre:
        for qb in range(2):
            for par in range(2):
                for kbl in range(2):
                    for r in range(4):
                        s = Sb(par, kbl, qb) + r
                        P2.append(f"  v_sub_f32 v{s}, v{s}, v{V_M+qb}")
            for r in range(4):
                P2.append(f"  v_sub_f32 v{V_NM+4*qb+r}, 0, v{V_M+qb}")
    else:
        for qb in range(2):
            P2.append(f"  v_mul_f32 v{V_M+qb}, s{S_C}, v{V_M+qb}")
    P2 += softmax_plain(0) + lm(0, True) + softmax(1)[:NE]
    if fastp:
        V = []
        for qb in range(2):
            V += maxof(V_M + qb, [Sb(0, kbl, qb) + r for kbl in range(2) for r in range(4)])
        a, b = xmax(V_M, V_T0), xmax(V_M + 1, V_T1)
        for x, y in zip(a, b):
            V += [x, y] if "s_nop" not in x else ["  s_nop 0"]
        subm = lambda par: [f"  v_sub_f32 v{Sb(par,kbl,qb)+r}, v{Sb(par,kbl,qb)+r}, v{V_M+qb}" for kbl in range(2) for qb in range(2) for r in range(4)]
        if pre:
            V += subm(0)
        else:
            V += [f"  v_mul_f32 v{V_M+qb}, s{S_C}, v{V_M+qb}" for qb in range(2)]
        V += softmax(0)
        fl = [[] for _ in range(4)] + spread(V, [1] * 12)
        fl[3] = ["  s_nop 3"]
        P2 = kreads(0, 0, 0) + kreads(1, 0, 1) + qkm(0, 0, 0, True) + kreads(0, 1, 0) + qkm(1, 0, 1, True) + kreads(1, 1, 1)
        P2 += group(qkm(0, 1, 0, True) + qkm(1, 1, 1, True), [], fl) + ["  s_nop 1"] + lm(0, True)
        if pre:
            P2 += [f"  v_sub_f32 v{V_NM+4*qb+r}, 0, v{V_M+qb}" for qb in range(2) for r in range(4)] + subm(1)
        P2 += softmax(1)[:NE]
    nit = (NU - 2 + NSL - 1) // NSL
    P2 += [f"  s_mov_b32 s{S_CNT}, {nit}"] + (["  s_waitcnt vmcnt(0)"] if pf < 2 else PF[2:] if pf == 3 else []) + ["  s_barrier"] + kreads(0, 2, 0)
    P2, pend0 = auto_lgkm(P2)
    if diag in (3, 7):
        P2 += ["  s_mov_b32 s95, 0"]
    if hs == 3:
        assert qlds and pf >= 4
        k = P.index("  s_barrier") + 1
        if lw == 3:
            assert P[k - 2] == "  s_waitcnt vmcnt(0)"
            del P[k - 2]
            k = P2.index("  s_barrier")
            P2 = P2[:k] + ["  s_waitcnt vmcnt(0)"] + P2[k:] + [f"  s_cmp_lg_u32 s{S_W}, 0", "  s_cbranch_scc1 L_mid"] + PA + ["  s_branch L_mid"]
        if lw == 2:
            assert P[k - 2] == "  s_waitcnt vmcnt(0)"
            del P[k - 2]
            i0 = P.index(f"  v_mov_b32 v{V_T2}, 0")
            i1 = P.index("  s_mov_b64 exec, -1") + 1
            clears = P[i0:i1]
            del P[i0:i1]
            k = P.index("  s_barrier") + 1
            P[k:k] = clears
            if touch == 3:
                P[k + 2:k + 2] = [f"  buffer_load_dword v{V_JUNK}, off, {srd(S_OUT)}, 0"]
            k = P2.index("  s_barrier")
            P2 = P2[:k] + ["  s_waitcnt vmcnt(0)"] + P2[k:] + [f"  s_cmp_lg_u32 s{S_W}, 0", "  s_cbranch_scc1 L_mid"] + PA + ["  s_branch L_mid"]
    if hs == 3 and lw < 2:
        if lw:
            assert P[k - 2] == "  s_waitcnt vmcnt(0)"
            del P[k - 2]
            k = len(P) - 1 - P[::-1].index("  s_barrier")
            P.insert(k, "  s_waitcnt vmcnt(0)")
            k += 2
            j = P.index("  s_mov_b64 exec, -1")
            P[j:j] = PA[:4] + [f"  buffer_load_dword v{V_JUNK}, off, {srd(S_DBG)}, s{S_DB}"]
            PA = PA[4:]
            k += 5
        P = P[:k] + [f"  s_cmp_lg_u32 s{S_W}, 0", "  s_cbranch_scc1 L_nohello"] + PA + ["L_nohello:"] + P[k:]
        k = P2.index("  s_barrier")
        P2 = P2[:k] + ["  s_waitcnt vmcnt(0)"] + P2[k:] + ["  s_branch L_mid"]


    BODY = []
    nfirst = NU - 1 - NSL
    tf = front(nfirst - 1)[1]
    midx = None
    for n in range(nfirst, NU - 1):
        extra = []
        if (diag == 3 and n % 2 == 1) or diag == 7:
            extra = ["  s_memrealtime s[92:93]", "  s_memtime s[90:91]", "  s_add_u32 s95, s95, 1", "  s_min_u32 s95, s95, 31", "  s_add_u32 s94, s95, 32", "  s_waitcnt lgkmcnt(0)",
                     "  s_mov_b32 m0, s95", f"  v_writelane_b32 v{V_TR}, s92, m0", "  s_mov_b32 m0, s94", f"  v_writelane_b32 v{V_TR}, s90, m0"]
        if diag == 4 and n == nfirst:
            extra = [f"  s_cmp_lg_u32 s{S_CNT}, {nit - 16 // NSL}", "  s_cbranch_scc1 L_nost", "  s_memtime s[96:97]", "  s_memrealtime s[98:99]",
                     "  s_waitcnt lgkmcnt(0)", "  s_mov_b32 s94, 0", "L_nost:"]
        cl = closing(n - 1, kreads(0, n + 1, 0), tf, extra)
        fr, tf = front(n)
        if n == NU - 2:
            k = max(i for i, l in enumerate(fr) if "v_mfma" in l)
            fr = fr[:k] + [f"  s_sub_u32 s{S_CNT}, s{S_CNT}, 1", f"  s_cmp_lg_u32 s{S_CNT}, 0"] + fr[k:] + ["  s_cbranch_scc1 L_loop"]
        cl, pendc = coarse(ablate(cl), [])
        assert abl or pendc == pend0
        if "q" in abl or "p" in abl:
            fr = [x for l in fr for x in ([l, "  s_waitcnt lgkmcnt(6)"] if l.strip().startswith("ds_") else [l])]
        fr, pendf = coarse(ablate(fr), pendc)
        if n % NSL == 1 % NSL:
            midx = len(BODY)
        BODY.append((cl, fr))

    def fix(par):
        o = ["  s_nop 7"]
        for qb in range(2):
            o += maxof(V_T0 + qb, [Sb(par, kbl, qb) + r for kbl in range(2) for r in range(4)])
        for qb in range(2):
            o += xmax(V_T0 + qb, V_T2)
        for qb in range(2):
            t = V_T0 + qb
            if pre:
                o += [f"  v_max_f32 v{t}, 0, v{t}", f"  v_add_f32 v{V_M+qb}, v{V_M+qb}, v{t}"]
                for p2 in range(2):
                    for kbl in range(2):
                        for r in range(4):
                            s = Sb(p2, kbl, qb) + r
                            o.append(f"  v_sub_f32 v{s}, v{s}, v{t}")
                for r in range(4):
                    o.append(f"  v_sub_f32 v{V_NM+4*qb+r}, 0, v{V_M+qb}")
                if pre == 2:
                    o += [f"  v_mul_f32 v{t}, s{S_C}, v{t}"]
                o += [f"  v_exp_f32 v{t}, -v{t}"]
            else:
                o += [f"  v_mul_f32 v{t}, s{S_C}, v{t}", f"  v_max_f32 v{t}, v{t}, v{V_M+qb}",
                      f"  v_sub_f32 v{V_T2}, v{V_M+qb}, v{t}", f"  v_mov_b32 v{V_M+qb}, v{t}", f"  v_exp_f32 v{t}, v{V_T2}"]
        o.append("  s_nop 0")
        for qb in range(2):
            o.append(f"  v_mul_f32 v{Lb(par^1,qb)}, v{V_T0+qb}, v{Lb(par^1,qb)}")
            for db in range(8):
                for r in range(4):
                    o.append(f"  v_mul_f32 v{Ob(db,qb)+r}, v{V_T0+qb}, v{Ob(db,qb)+r}")
        return o + softmax_plain(par) + lm(par) + softmax(par ^ 1)[:NE] + ["  s_nop 7"]
    FIX = [fix(0), fix(1)]

    T1 = []
    if diag == 4:
        T1 += ["  s_waitcnt lgkmcnt(0)", "  s_memtime s[90:91]", "  s_memrealtime s[92:93]", "  s_waitcnt lgkmcnt(0)", "  s_sub_u32 s96, s90, s96", "  s_sub_u32 s98, s92, s98"]
    X = []
    if l2:
        X += [f"  v_mov_b32 v{V_T2}, {LDS_MODE}", f"  ds_read_b32 v{V_T3}, v{V_T2}", "  s_waitcnt lgkmcnt(0)",
              f"  v_readfirstlane_b32 s{S_MODE}, v{V_T3}"]
    T1 += X
    T1 += closing(NU - 2, vreads(0, NU - 2, DA), tf)
    f = fills(1, 8)
    T1 += group(pvm(0, NU - 2, DA), vreads(1, NU - 2, DB_), f[0:8])
    T1, pend = auto_lgkm(T1, pendf)
    c2 = closing(NU - 1, [], f[8:18])[2:]
    k = next(i for i, l in enumerate(c2) if l.strip().startswith("v_add_f32"))
    c2 = c2[:k] + ["  s_nop 3"] + c2[k:]
    c2, pend = auto_lgkm(c2, pend)
    assert not pend
    T1 += c2
    ML = V_X
    T1 += [
        f"  v_mov_b32 v{ML}, v{V_M}" if pre != 2 else f"  v_mul_f32 v{ML}, s{S_C}, v{V_M}",
        f"  v_mov_b32 v{ML+1}, v{V_M+1}" if pre != 2 else f"  v_mul_f32 v{ML+1}, s{S_C}, v{V_M+1}",
        f"  v_mov_b32 v{ML+2}, v{Lb(1,0)}", f"  v_mov_b32 v{ML+3}, v{Lb(1,1)}",
    ]

    def publish(spol):
        def ostore(j):
            o = []
            if bf16p:
                b = V_S + 8 * (j - 1)
                for i in range(8):
                    o.append(f"  v_cvt_pk_bf16_f32 v{b+i}, v{V_O+16*j+2*i}, v{V_O+16*j+2*i+1}")
                    if i & 3 == 3:
                        o.append(f"  buffer_store_dwordx4 {vr(b+(i&4),4)}, v{V_LANE16}, {srd(S_WS)}, s{S_OD+j-1} offen offset:{(i>>2)*1024} {spol}")
            else:
                for i in range(4):
                    o.append(f"  buffer_store_dwordx4 {vr(V_O+16*j+4*i,4)}, v{V_LANE16}, {srd(S_WS)}, s{S_OD+j-1} offen offset:{i*1024} {spol}")
            return o
        nstamp[0] = 2
        o = ["  s_mov_b64 exec, 0xffff", f"  buffer_store_dwordx4 {vr(ML,4)}, v{V_LANE16}, {srd(S_WS)}, s{S_ML} offen {spol}", "  s_mov_b64 exec, -1"]
        stamp(o)
        o.append("  s_barrier")
        stamp(o)
        r0 = vreads(0, NU - 1, [2, 3, 4, 5])
        r1 = vreads(1, NU - 1, [6, 7, 0, 1])
        o += r0 + r1[:6]
        mf = pvm(0, NU - 1, [2, 3, 4, 5], 0) + pvm(1, NU - 1, [6, 7, 0, 1], 0)
        if tord == 0:
            o += mf[:2] + r1[6:] + mf[2:12] + ostore(1)[:5] + mf[12:14] + ostore(1)[5:] + mf[14:16] + ostore(2) + ostore(3)
        else:
            st_ = ostore(1) + ostore(2) + ostore(3)
            o += mf[:2] + r1[6:] + mf[2:8]
            k = 0
            for i, n in zip(range(8, 16), (2, 3, 2, 3, 5, 5, 5, 5)):
                o += [mf[i]] + st_[k:k + n]
                k += n
        o, pend = auto_lgkm(o)
        assert not pend
        return o + [f"  v_mov_b32 v{V_T1}, 1", "  s_mov_b64 exec, 1", "  s_waitcnt vmcnt(0)",
                    f"  buffer_store_dword v{V_T1}, off, {srd(S_WS)}, s{S_FO} {spol}"]
    if l2:
        T1 += [f"  s_cmp_eq_u32 s{S_MODE}, 4", "  s_cbranch_scc0 L_far"]
        poll = lambda p: [f"  buffer_load_dword v{V_T1}, v{V_FADDR}, {srd(S_WS)}, s{S_F} offen {p}", "  s_waitcnt vmcnt(0)",
                          f"  v_cmp_ne_u32 vcc, 1, v{V_T1}"]
        FAR = publish("sc1") + ["  s_mov_b64 exec, 15"]
        stamp(FAR)
        FAR += ["L_fpoll:"] + poll("sc1") + ["  s_cbranch_vccnz L_fpoll", "  buffer_inv sc1", "  s_waitcnt vmcnt(0)", "  s_branch L_got"]
        T2 = publish(npol)
    T2 += ["  s_mov_b64 exec, 15"]
    stamp(T2)
    TP = []
    for i in range(npl):
        TP += poll("nt") + ["  s_cbranch_vccz L_got"]
    TP += poll("sc1") + ["  s_cbranch_vccnz L_poll"]
    T3 = ["  s_mov_b64 exec, -1"]
    stamp(T3)
    VML = V_FR
    VIN = V_S
    for j in range(1, 4):
        T3.append(f"  buffer_load_dwordx4 {vr(VML+4*(j-1),4)}, v{V_MLA}, {srd(S_WS)}, s{S_ML+j} offen {lpol}")
    nld = 2 if bf16p else 4
    for j in range(1, 4):
        if j > 1 and not bf16p:
            T3.append(f"  s_add_u32 s{S_OI}, s{S_OI}, {R}")
        if j == 3 and bf16p:
            T3.append(f"  s_add_u32 s{S_OI}, s{S_OI}, {2*R}")
        for i in range(nld):
            off = i * 1024 + (R if (bf16p and j == 2) else 0)
            T3.append(f"  buffer_load_dwordx4 {vr(VIN+4*nld*(j-1)+4*i,4)}, v{V_LANE16}, {srd(S_WS)}, s{S_OI} offen offset:{off} {lpol}")
    G = V_FR + 16
    p2 = lambda r: f"v[{r}:{r+1}]"
    ml = lambda j: ML if j == 0 else VML + 4 * (j - 1)
    WT = []
    for qb in range(2):
        WT += [f"  v_max3_f32 v{V_T0+qb}, v{ml(0)+qb}, v{ml(1)+qb}, v{ml(2)+qb}"]
    for qb in range(2):
        WT += [f"  v_max_f32 v{V_T0+qb}, v{V_T0+qb}, v{ml(3)+qb}"]
    for j in range(4):
        WT.append(f"  v_pk_add_f32 {p2(G+2*j)}, {p2(ml(j))}, {p2(V_T0)} neg_lo:[0,1] neg_hi:[0,1]")
    for j in range(8):
        WT.append(f"  v_exp_f32 v{G+j}, v{G+j}")
    WT.append(f"  v_pk_mul_f32 {p2(V_T0)}, {p2(G)}, {p2(ml(0)+2)}")
    for j in range(1, 4):
        WT.append(f"  v_pk_fma_f32 {p2(V_T0)}, {p2(G+2*j)}, {p2(ml(j)+2)}, {p2(V_T0)}")
    WT += [f"  v_rcp_f32 v{V_T0}, v{V_T0}", f"  v_rcp_f32 v{V_T1}, v{V_T1}", "  s_nop 0"]
    for j in range(4):
        WT.append(f"  v_pk_mul_f32 {p2(G+2*j)}, {p2(G+2*j)}, {p2(V_T0)}")
    UP = []
    U = V_O + 16 if bf16p else VIN
    if bf16p:
        for i in range(24):
            if i % 4 == 0:
                UP.append(f"  s_waitcnt vmcnt({5 - i // 4})")
            UP += [f"  v_lshlrev_b32 v{U+2*i}, 16, v{VIN+i}", f"  v_and_b32 v{U+2*i+1}, 0xffff0000, v{VIN+i}"]
    else:
        UP.append("  s_waitcnt vmcnt(0)")
    T3.append(f"  s_waitcnt vmcnt({3*nld})")
    T3 += WT[:16]
    k = 0
    for w_ in WT[16:]:
        T3 += UP[k:k + 2] + ([w_] if "s_nop" not in w_ or k >= len(UP) else [])
        k += 2
    T3 += UP[k:]
    sel = lambda i, n: " op_sel:[0,%d%s] op_sel_hi:[1,%d%s]" % ((i >> 2) & 1, ",0" * n, (i >> 2) & 1, ",1" * n)
    for i in range(0, 16, 2):
        T3.append(f"  v_pk_mul_f32 {p2(V_O+i)}, {p2(V_O+i)}, {p2(G)}" + sel(i, 0))
    for j in range(1, 4):
        for i in range(0, 16, 2):
            T3.append(f"  v_pk_fma_f32 {p2(V_O+i)}, {p2(U+16*(j-1)+i)}, {p2(G+2*j)}, {p2(V_O+i)}" + sel(i, 1))
    stamp(T3)
    OV = V_FR
    for qb in range(2):
        for e in range(2):
            for h in range(2):
                T3.append(f"  v_cvt_pk_bf16_f32 v{OV+4*qb+2*e+h}, v{Ob(e,qb)+2*h}, v{Ob(e,qb)+2*h+1}")
    T3 += [
        f"  v_permlane16_swap_b32 v{OV}, v{OV+2}",
        f"  v_permlane16_swap_b32 v{OV+1}, v{OV+3}",
        f"  buffer_store_dwordx4 {vr(OV,4)}, v{V_OUTA}, {srd(S_OUT)}, 0 offen {opol}",
        f"  v_permlane16_swap_b32 v{OV+4}, v{OV+6}",
        f"  v_permlane16_swap_b32 v{OV+5}, v{OV+7}",
        f"  buffer_store_dwordx4 {vr(OV+4,4)}, v{V_OUTA}, {srd(S_OUT)}, s{S_T3} offen {opol}",
    ]
    if diag:
        T3.append("  s_waitcnt vmcnt(0)")
        stamp(T3)
        T3 += [f"  s_mov_b32 s{S_WS}, s14", f"  s_mov_b32 s{S_WS+1}, s15", f"  s_mov_b32 s{S_WS+2}, {32<<20}"]
        T3.append("  s_getreg_b32 s4, hwreg(HW_REG_XCC_ID)")
        for k in range(nstamp[0]):
            T3.append(f"  v_mov_b32 v{V_S+k}, s{S_ST+2*k}")
        T3.append(f"  v_mov_b32 v{V_S+15}, s4")
        T3.append(f"  v_mov_b32 v{V_S+11}, 31")
        if diag in (3, 7):
            T3 += [f"  s_lshl_b32 s{S_T0}, s2, 2", f"  s_add_u32 s{S_T0}, s{S_T0}, s{S_W}", f"  s_lshl_b32 s{S_T0}, s{S_T0}, 8",
                   f"  s_add_u32 s{S_T0}, s{S_T0}, {OFF_T + (1 << 20)}", f"  v_lshrrev_b32 v{V_T0}, 2, v{V_LANE16}",
                   f"  buffer_store_dword v{V_TR}, v{V_T0}, {srd(S_WS)}, s{S_T0} offen"]
        if diag == 4:
            T3 += [f"  v_mov_b32 v{V_S+12}, s94", f"  v_mov_b32 v{V_S+13}, s96", f"  v_mov_b32 v{V_S+14}, s98"]
        T3 += [
            f"  s_lshl_b32 s{S_T0}, s2, 2",
            f"  s_add_u32 s{S_T0}, s{S_T0}, s{S_W}",
            f"  s_lshl_b32 s{S_T0}, s{S_T0}, 6",
            f"  s_add_u32 s{S_T0}, s{S_T0}, {OFF_T}",
            "  s_mov_b64 exec, 1",
        ]
        for i in range(4):
            T3.append(f"  buffer_store_dwordx4 {vr(V_S+4*i,4)}, off, {srd(S_WS)}, s{S_T0} offset:{16*i}")
    T3.append("  s_endpgm")

    if "S" in abl:
        T1 = [l for l in T1 if not l.strip().startswith("buffer_store")]
        T2 = [l for l in T2 if not l.strip().startswith("buffer_store_dwordx4")]
    if "F" in abl:
        T2 = [l for l in T2 if not l.strip().startswith("buffer_store_dword ")]
        TP = []
    if "R" in abl:
        T3 = [l for l in T3 if not l.strip().startswith("buffer_load")]

    def inline_fix(lines):
        o = []
        for l in lines:
            o.append(l)
            if l.strip().startswith("s_cbranch_vccnz L_fix"):
                o += FIX[sites[int(l.strip().split("L_fix")[1])]]
        return o
    flat = [l for cl, fr in BODY for l in cl + fr]
    first = BODY[midx][1] + [l for cl, fr in BODY[midx + 1:] for l in cl + fr]
    main = E + P + P2 + first + flat + T1 + T2 + TP + T3
    nbar = sum(l == "  s_barrier" for l in P + P2 + first + flat * (nit - 1) + T1 + T2)
    assert nbar == NU + 1 + bq or abl, nbar
    traces["cons_far"] = T1 + FAR + T3
    traces["cons_a"] = main
    traces["cons_b"] = inline_fix(main)
    errs = []
    for n, t in traces.items():
        errs += check_hazards(t, n)
    if errs and not abl.strip("L"):
        raise RuntimeError("hazards:\n" + "\n".join(errs))

    out = [HEADER.rstrip(),
           "; 256 workgroups = 64 (batch, kv head) pairs x 4 key splits; wave 0 streams K/V into an LDS ring,",
           "; waves 1-4 each own one query head (32 rows); partial results are exchanged through d_ws.",
           f"; @launch grid=(256,1,1) block=(320,1,1) lds={lds}",
           '.amdgcn_target "amdgcn-amd-amdhsa--gfx950"', ".text", f".globl {NAME}", ".p2align 8",
           f".type {NAME},@function", f"{NAME}:"]
    out += E + LOADER
    out += [".p2align 6", "L_cons:"] + P + P2
    out += [".p2align 6", "L_loop:"]
    loop = []
    for i, (cl, fr) in enumerate(BODY):
        loop += cl + (["L_mid:"] if i == midx else []) + fr
    if al == 1:
        loop, nmis, ph = align8(loop)
    if al == 2:
        loop, nmis, ph = align8(loop)
        loop = ["  s_nop 0"] + loop
    out += loop
    out += T1 + T2 + ["L_poll:"] + TP + ["L_got:"] + T3
    if l2:
        out += ["L_far:"] + FAR
    for k, par in enumerate(sites):
        out += [f"L_fix{k}:", f"  s_call_b64 s[{S_RET}:{S_RET+1}], L_fixfn{par}", f"  s_branch L_ret{k}"]
    for par in range(2):
        out += [f"L_fixfn{par}:"] + FIX[par] + [f"  s_setpc_b64 s[{S_RET}:{S_RET+1}]"]
    out += ["L_end:", "  s_endpgm"]
    out += ['.section .rodata,"a"', ".p2align 6", f".amdhsa_kernel {NAME}",
            f"  .amdhsa_next_free_vgpr {NVGPR}", "  .amdhsa_next_free_sgpr 102",
            f"  .amdhsa_accum_offset {NVGPR}", "  .amdhsa_group_segment_fixed_size 0",
            "  .amdhsa_kernarg_size 48", "  .amdhsa_user_sgpr_count 2",
            "  .amdhsa_user_sgpr_kernarg_segment_ptr 1", "  .amdhsa_system_sgpr_workgroup_id_x 1",
            ".end_amdhsa_kernel"]
    return "\n".join(l.rstrip() for l in out if l is not None) + "\n"


if __name__ == "__main__":
    kw = eval("dict(%s)" % sys.argv[1]) if len(sys.argv) > 1 else {}
    sys.stdout.write(gen(**kw))
```

```python
import struct, sys, math
from asmlib import check_hazards, auto_lgkm, align8

NAME = "standalone__gqa_softmax__sampling_kernel"

HEADER = """; Kernarg layout for this problem (48 bytes, ptrs only, base s[0:1]):
;   offset   0: d_in[0] q  shape=(8, 32, 32, 128) dtype=bfloat16 strides=(262144, 8192, 256, 2) contiguous=True
;   offset   8: d_in[1] k  shape=(8, 8, 8192, 128) dtype=bfloat16 strides=(16777216, 2097152, 256, 2) contiguous=True
;   offset  16: d_in[2] v  shape=(8, 8, 8192, 128) dtype=bfloat16 strides=(16777216, 2097152, 256, 2) contiguous=True
;   offset  24: d_out     shape=(8, 32, 32, 128) dtype=bfloat16 (2 bytes/elem)
"""


def f32(x):
    return "0x%08x" % struct.unpack("<I", struct.pack("<f", x))[0]


V_M = 2
V_T0, V_T1, V_T2, V_T3 = 4, 5, 6, 7
V_LANE16 = 8
V_FADDR = 9
V_OUTA = 10
V_TR = 11
V_KA = 12
V_VA = 16
V_X = 24
V_FR = 32
V_O = 64
V_S = 128
V_P = 160
V_L = 176
V_ONE = 192
V_NM = 196
V_JUNK = 204
V_MLA = 206
V_Q = 208
NVGPR = 240

S_K, S_V, S_Q, S_OUT, S_WS, S_DBG = 16, 20, 24, 28, 32, 36
S_BH, S_SP, S_W = 40, 41, 42
S_MODE = 43
S_C, S_THR = 44, 45
S_CNT = 46
S_T0, S_T1, S_T2, S_T3 = 50, 51, 52, 53
S_OD = 54
S_OI = 57
S_ML = 58
S_F = 62
S_FO = 63
S_DB = 64
S_RET = 66
S_ST = 70

OFF_PR = 0x1c000
PR_STRIDE = (1 << 20) + 256
OFF_T = 20 << 20
NU = 64


def vr(base, n):
    return f"v[{base}:{base+n-1}]"


def srd(b):
    return f"s[{b}:{b+3}]"


def cost(l):
    return 2 if l.split()[0].startswith("v_exp") else 1


def spread(fillers, weights):
    nslots = len(weights)
    tot = sum(cost(f) for f in fillers)
    wt = sum(weights)
    out = [[] for _ in range(nslots)]
    acc = k = cw = 0
    for s in range(nslots):
        cw += weights[s]
        tgt = tot * cw / wt
        while k < len(fillers) and acc + cost(fillers[k]) / 2.0 <= tgt + 1e-9:
            out[s].append(fillers[k])
            acc += cost(fillers[k])
            k += 1
    out[-1] += fillers[k:]
    return out


def sched(up, step=1, lo=20, hold=1, dec=1):
    l = [0]
    x = lo
    for d in up:
        x += d
        l.append(x)
    l += [x] * hold
    while x > lo + dec:
        x -= dec
        l += [x] * step
    return tuple(l)


def gen(W=22, up=(8, 6, 5, 4, 2, 1), hold=1, stg=3, rk=1, nlv=1, th=(14, 26), bias=(-1, -7, -3, -8, 7, 5, 2, -4), hsn=5, wsl=1, lw=2, plp="nt", pfp="", hpol="sc1", psp="", psh=2, lpol="sc1", ppol="sc1", slp=0, pol="nt", grp="xcd2", bf16p=1, THR=2.0 ** 24, diag=0,
        opol="", qpol="", prio=3, abl="", pre=1, pk=0, al=1, LPOS=2, WG=1, RD=4, NSL=8, l2=1, warm=0, bal=1, lds=98304, NE=10, pf=4, il=1, xph=0, pfpos=0, npol="", cpf=2, chain=1, pvo=0, bq=1, probe=0, shs=0, pfw=16, pfn=4, touch=2, tiny=1, cmp=1, hop=0, seq=0, npl=0, tord=1, hs=3, rpol="", clr=0, late=-1, rot=0, xw=(7, 15, 5, 17, 22, 5, 13, 6), qlds=1, fastp=1, pfs=(0, 10, 7, 4, 3, 1)):
    traces = {}
    NE = min(NE, 4 if pre == 1 else 7 if pk else 10)
    nstamp = [0]

    def stamp(dst):
        if diag:
            k = nstamp[0]
            nstamp[0] += 1
            dst.append(f"  s_memrealtime s[{S_ST+2*k}:{S_ST+2*k+1}]")
            dst.append("  s_waitcnt lgkmcnt(0)")

    R = 2048 if bf16p else 4096
    GB = 17 if bf16p else 18
    SLAB = 3 * R + 256
    OFF_F = 16 * SLAB
    VBASE = NSL * 8192
    QBASE = 2 * VBASE if NSL == 4 else VBASE + 32768
    LDS_MODE = 2 * VBASE + (32768 if qlds and NSL == 4 else 0)
    LDS_JUNK = LDS_MODE + 64
    lds = max(lds, LDS_MODE + 64 + 256)
    assert lds <= 163840
    c = math.log2(math.e) / math.sqrt(128.0)
    blk = lambda d, t: [f"  s_and_b32 s{d}, s{S_BH}, 7", f"  s_lshl_b32 s{d}, s{d}, {GB+3}", f"  s_lshr_b32 s{t}, s{S_BH}, 3",
                        f"  s_lshl_b32 s{t}, s{t}, {GB}", f"  s_add_u32 s{d}, s{d}, s{t}"] if (wsl and grp != "xcd") else [f"  s_lshl_b32 s{d}, s{S_BH}, {GB}"]
    E = ["  s_cmp_ge_u32 s2, 256", "  s_cbranch_scc1 L_end"]
    for i in range(hop):
        E += [f"  s_branch L_hop{i}", ".fill 255, 4, 0xbf800000", f"L_hop{i}:"]
    for i in range(seq):
        E += ["  s_mov_b32 s47, 0x12345678"]
    if diag == 6:
        E += ["  s_memrealtime s[68:69]"]
    E += [
        "  s_load_dwordx4 s[4:7], s[0:1], 0",
        "  s_load_dwordx4 s[8:11], s[0:1], 16",
        "  s_load_dwordx4 s[12:15], s[0:1], 32",
        "  v_lshrrev_b32 v1, 6, v0",
        "  v_and_b32 v0, 63, v0",
        "  v_readfirstlane_b32 s3, v1",
    ]
    if grp == "xcd":
        E += [
            f"  s_and_b32 s{S_T0}, s2, 7",
            f"  s_bfe_u32 s{S_SP}, s2, {3 | (2 << 16)}",
            f"  s_lshr_b32 s{S_T1}, s2, 5",
            f"  s_lshl_b32 s{S_BH}, s{S_T0}, 3",
            f"  s_add_u32 s{S_BH}, s{S_BH}, s{S_T1}",
        ]
    elif grp == "xcd2":
        E += ([f"  s_add_u32 s{S_T0}, s2, {rot}", f"  s_and_b32 s{S_T0}, s{S_T0}, 7"] if rot else [f"  s_and_b32 s{S_T0}, s2, 7"]) + [
            f"  s_bfe_u32 s{S_SP}, s2, {3 | (2 << 16)}",
            f"  s_lshr_b32 s{S_T1}, s2, 5",
            f"  s_lshl_b32 s{S_BH}, s{S_T1}, 3",
            f"  s_add_u32 s{S_BH}, s{S_BH}, s{S_T0}",
        ]
    elif grp == "lo":
        E += [f"  s_lshr_b32 s{S_BH}, s2, 2", f"  s_and_b32 s{S_SP}, s2, 3"]
    if late >= 0:
        E += [f"  s_cmp_lg_u32 s{S_SP}, {late}", "  s_cbranch_scc1 L_nolate", "  s_mov_b32 s47, 20", "L_late:", "  s_sleep 100",
              "  s_sub_u32 s47, s47, 1", "  s_cmp_lg_u32 s47, 0", "  s_cbranch_scc1 L_late", "L_nolate:"]
    E += ["  s_cmp_lg_u32 s3, 0", "  s_cbranch_scc1 L_cons"]

    LD = []
    if cpf:
        LD += ["  s_getpc_b64 s[48:49]", "L_pc:", "  v_lshlrev_b32 v5, 7, v0", "  v_mov_b32 v9, s49"]
        for i in range(cpf + 1):
            LD += (["  v_add_u32 v5, 8192, v5"] if i else []) + ["  v_min_u32 v6, L_end - L_pc, v5", "  v_add_co_u32 v6, vcc, s48, v6", "  s_nop 1",
                   "  v_addc_co_u32 v7, vcc, 0, v9, vcc", "  global_load_dword v8, v[6:7], off"]
    LD += [
        f"  s_setprio {prio}",
        f"  s_lshl_b32 s{S_T0}, s{S_BH}, 21",
        f"  s_lshl_b32 s{S_T1}, s{S_SP}, {10 if il else 19}",
        f"  s_add_u32 s{S_T0}, s{S_T0}, s{S_T1}",
        "  v_lshrrev_b32 v3, 4, v0",
        "  v_and_b32 v4, 15, v0",
        "  v_xor_b32 v5, v3, v4",
        "  v_lshlrev_b32 v5, 4, v5",
        "  v_lshl_add_u32 v10, v3, 8, v5",
        "  v_xor_b32 v11, 64, v10",
        "  v_xor_b32 v12, 0x80, v10",
        "  v_xor_b32 v13, 0xc0, v10",
        "  v_lshlrev_b32 v5, 1, v3",
        "  v_xor_b32 v5, v5, v4",
        "  v_lshlrev_b32 v5, 4, v5",
        "  v_lshl_add_u32 v14, v3, 8, v5",
        "  v_xor_b32 v15, 0x80, v14",
    ] + ([
        "  v_mov_b32 v25, v11", "  v_mov_b32 v26, v12", "  v_mov_b32 v27, v13",
        f"  s_lshl_b32 s{S_T3}, s{S_BH}, 15", f"  s_mov_b32 s{S_Q+2}, 32768", f"  s_mov_b32 s{S_Q+3}, 0x20000",
    ] if qlds else []) + ([
        "  v_add_u32 v11, 3072, v11", "  v_add_u32 v12, 6144, v12", "  v_add_u32 v13, 9216, v13",
        "  v_add_u32 v16, 6144, v14", "  v_add_u32 v17, 9216, v15", "  v_add_u32 v15, 3072, v15",
        f"  s_sub_u32 s{S_K+2}, 0x200000, s{S_T1}",
    ] if il else [f"  s_mov_b32 s{S_K+2}, 0x80000"]) + [
        f"  s_mov_b32 s{S_K+3}, 0x20000",
        f"  s_mov_b32 s{S_V+2}, s{S_K+2}",
        f"  s_mov_b32 s{S_V+3}, 0x20000",
        f"  s_lshl_b32 s56, s{S_BH}, 15",
        "  s_mov_b32 s54, 0",
        "  s_mov_b32 s55, 0",
        "  s_waitcnt lgkmcnt(0)",
    ]
    QD = []
    if qlds:
        QD += [f"  s_add_u32 s{S_Q}, s4, s{S_T3}", f"  s_addc_u32 s{S_Q+1}, s5, 0"]
        for g in range(8):
            QD += [f"  s_mov_b32 m0, {QBASE + g*4096}", f"  s_movk_i32 s{S_T2}, {g*4096}"]
            for j in range(4):
                QD.append(f"  buffer_load_dwordx4 v{10 if j == 0 else 24+j}, {srd(S_Q)}, s{S_T2} offen offset:{j*1024} {qpol} lds")
    KV = [
        f"  s_add_u32 s{S_K}, s6, s{S_T0}",
        f"  s_addc_u32 s{S_K+1}, s7, 0",
        f"  s_add_u32 s{S_V}, s8, s{S_T0}",
        f"  s_addc_u32 s{S_V+1}, s9, 0",
    ]
    for i in range(probe):
        LD += [f"  s_lshl_b32 s47, s{S_BH}, 21", f"  s_add_u32 s47, s47, {(64 + 128 * i) << 20}", "  v_mov_b32 v30, s47",
               "  global_load_dword v31, v30, s[14:15]", "  s_waitcnt vmcnt(0)"]
    if touch:
        LD += KV + [f"  s_mov_b32 m0, {LDS_JUNK}", "  s_mov_b64 exec, 1",
                    f"  buffer_load_dword v10, {srd(S_K)}, 0 offen lds", f"  buffer_load_dword v10, {srd(S_V)}, 0 offen lds"]
        if touch == 2:
            LD += [f"  v_mov_b32 v30, s{S_T3}", "  global_load_lds_dword v30, s[10:11]"]
        LD += ["  s_mov_b64 exec, -1"]
        KV = []
    if qlds == 1:
        LD += QD
    LD += KV
    LATE = []
    if cmp:
        LD = ["  s_getpc_b64 s[48:49]", "L_pc:", "  v_lshlrev_b32 v4, 7, v0", "  v_mov_b32 v5, 0"]
        for i in range(cpf + 1):
            LD += ([f"  v_add_u32 v4, 8192, v4"] if i else []) + (["  v_min_u32 v4, L_end - L_pc, v4"] if i == cpf else []) + \
                ["  v_lshl_add_u64 v[6:7], v[4:5], 0, s[48:49]", "  global_load_dword v8, v[6:7], off"]
        LD += [
            f"  s_setprio {prio}",
            f"  s_lshl_b32 s{S_T0}, s{S_BH}, 21", f"  s_lshl_b32 s{S_T1}, s{S_SP}, 10", f"  s_add_u32 s{S_T0}, s{S_T0}, s{S_T1}",
            "  v_lshrrev_b32 v3, 4, v0", "  v_and_b32 v4, 15, v0",
            "  v_xor_b32 v5, v3, v4", "  v_lshlrev_b32 v5, 4, v5", "  v_lshl_add_u32 v10, v3, 8, v5",
            "  v_xor_b32 v11, 64, v10", "  v_xor_b32 v12, 0x80, v10", "  v_xor_b32 v13, 64, v12",
            f"  s_lshl_b32 s{S_T3}, s{S_BH}, 15", f"  s_mov_b32 s{S_Q+2}, 32768", f"  s_mov_b32 s{S_Q+3}, 0x20000",
            f"  s_sub_u32 s{S_K+2}, 0x200000, s{S_T1}", f"  s_mov_b32 s{S_K+3}, s{S_Q+3}",
            f"  s_mov_b64 s[{S_V+2}:{S_V+3}], s[{S_K+2}:{S_K+3}]", "  s_mov_b64 s[54:55], 0",
            f"  v_mov_b32 v30, s{S_T3}", f"  s_mov_b32 m0, {LDS_JUNK}", "  s_mov_b64 exec, 1",
            "  s_waitcnt lgkmcnt(0)",
            f"  s_add_u32 s{S_K}, s6, s{S_T0}", f"  s_addc_u32 s{S_K+1}, s7, 0", f"  buffer_load_dword v10, {srd(S_K)}, 0 offen lds",
            f"  s_add_u32 s{S_V}, s8, s{S_T0}", f"  s_addc_u32 s{S_V+1}, s9, 0", f"  buffer_load_dword v10, {srd(S_V)}, 0 offen lds",
            ] + (["  global_load_lds_dword v30, s[10:11]"] if touch == 2 else []) + ["  s_mov_b64 exec, -1",
            f"  s_add_u32 s{S_Q}, s4, s{S_T3}", f"  s_addc_u32 s{S_Q+1}, s5, 0",
            "L_q:", f"  s_add_u32 m0, s54, {QBASE}", "  s_nop 0"]
        LD += [f"  buffer_load_dwordx4 v{10+j}, {srd(S_Q)}, s54 offen offset:{j*1024} {qpol} lds" for j in range(4)]
        LD += ["  s_addk_i32 s54, 0x1000", f"  s_cmp_lg_u32 s54, s{S_Q+2}", "  s_cbranch_scc1 L_q",
               "  s_mov_b32 s54, 0", "  v_add_u32 v11, 3072, v11", "  v_add_u32 v12, 6144, v12", "  v_add_u32 v13, 9216, v13"]
        LATE = ["  v_lshlrev_b32 v5, 1, v3", "  v_xor_b32 v5, v5, v4", "  v_lshlrev_b32 v5, 4, v5", "  v_lshl_add_u32 v14, v3, 8, v5",
                "  v_xor_b32 v15, 0x80, v14", "  v_add_u32 v16, 6144, v14", "  v_add_u32 v17, 9216, v15", "  v_add_u32 v15, 3072, v15"]
    S_CD, S_B, S_TAB, S_PF, S_N, S_BE, S_RK, S_SLOT, S_MASK, S_PR, S_TH = 56, 57, 58, 60, 61, 62, 63, 65, 66, 68, 72
    LV = list(range(-nlv, nlv + 1)) if rk else [0]
    NX = 2 if rk else 0
    lo = W - 1 + max(LV) + NX
    assert 16 < lo < 32
    fld = 2 | ((VBASE.bit_length() - 1) << 16)
    stubs = []

    def dma(which, j):
        go, sr = (54, S_K) if which == "K" else (55, S_V)
        return f"  buffer_load_dwordx4 v{(10 if which == 'K' else 14) + j}, {srd(sr)}, s{go} offen offset:{j*1024} {pol} lds"

    def part(dst, which, before, after=lambda: [], ng=2):
        go = 54 if which == "K" else 55
        for g in range(ng):
            dst += [f"  s_bfe_u32 m0, s{go}, {fld}"] if which == "K" else [f"  s_bfe_u32 s{S_T2}, s{go}, {fld}", f"  s_or_b32 m0, s{S_T2}, {VBASE}"]
            for j in range(4):
                w_ = before()
                dst += (w_ or (["  s_nop 0"] if j == 0 else [])) + [dma(which, j)] + after()
            dst.append(f"  s_add_u32 s{go}, s{go}, 16384")

    st = dict(pos=0, pend=[])

    def static():
        o = []
        x = W - 1
        if st["pos"] == W:
            o += [f"  s_waitcnt vmcnt({W})", "  s_barrier"]
        if st["pos"] > x:
            o.append(f"  s_waitcnt vmcnt({x})")
            while st["pend"] and st["pos"] - st["pend"][0] >= x:
                o.append("  s_barrier")
                st["pend"].pop(0)
        st["pos"] += 1
        return o
    if cmp:
        LD += ["L_k:", "  s_lshr_b32 m0, s54, 2", "  s_nop 0"] + [dma("K", j) for j in range(4)] + \
              ["  s_addk_i32 s54, 0x4000", f"  s_cmp_lg_u32 s54, {5*16384}", "  s_cbranch_scc1 L_k"]
        st["pos"] = 20
        assert W >= 21
    else:
        part(LD, "K", static); part(LD, "K", static)
    st["pend"].append(16)
    setup = [
        f"  s_mov_b32 s{S_DBG}, s12", f"  s_mov_b32 s{S_DBG+1}, s13", f"  s_mov_b32 s{S_DBG+2}, 256", f"  s_mov_b32 s{S_DBG+3}, 0x20000",
        f"  s_lshl_b32 s{S_DB}, s{S_BH}, 2", f"  v_mov_b32 v20, {LDS_MODE}",
    ] + blk(S_T2, S_T1) + [f"  s_add_u32 s{S_WS}, s14, s{S_T2}", f"  s_addc_u32 s{S_WS+1}, s15, 0",
        f"  s_mov_b32 s{S_WS+2}, {1 << GB}", f"  s_mov_b32 s{S_WS+3}, 0x20000",
        f"  v_and_b32 v24, {8*pfn-1}, v0", "  v_lshlrev_b32 v24, 7, v24", f"  s_mul_i32 s{S_PF}, s{S_SP}, {4*SLAB}",
    ]
    lag1 = W - 1 + up[0]
    tabv = [d + 1 for d in up[1:]] + [1] * hold
    assert len(tabv) <= 16 and max(tabv) <= 15 and lag1 >= lo
    bend = len(tabv) + (W - 1 + sum(up)) - lo
    tab = sum(v << (4 * i) for i, v in enumerate(tabv))
    setup += [f"  s_mul_i32 s{S_T2}, s{S_SP}, {stg}", f"  s_add_u32 s{S_CD}, s{S_T2}, {32 + lag1 - 48}", f"  s_add_u32 s{S_BE}, s{S_T2}, {bend}",
              f"  s_mov_b32 s{S_B}, 0", f"  s_mov_b32 s{S_TAB}, {tab & 0xffffffff}", f"  s_mov_b32 s{S_TAB+1}, {tab >> 32}",
              f"  s_mov_b32 s{S_N}, 0"]
    for sp in range(4):
        cd, nb_, t_, done = sp * stg + 32 + lag1 - 48, 0, tab, 0
        for p in range(48, 16 * 63):
            u = p // 16
            need = (u + 1 - NSL) if p % 16 < 8 else (u - 1 - NSL + 2)
            assert done >= need, (sp, p)
            if cd == 0:
                done += 1
                assert p - 16 * (done + 1) >= lo, (sp, p, done)
                nb_ += 1
                cd = (t_ & 15) + 14 + (1 if nb_ > bend + sp * stg else 0)
                t_ >>= 4
                last = p - 16 * (done + 1)
            else:
                cd -= 1
        assert done == 60 and last == lo, (sp, done, last)
    if rk:
        setup += [f"  s_add_u32 s{S_PR}, s14, {OFF_PR}", f"  s_addc_u32 s{S_PR+1}, s15, 0", f"  s_mov_b32 s{S_PR+2}, {8*PR_STRIDE}", f"  s_mov_b32 s{S_PR+3}, 0x20000",
                  f"  s_and_b32 s{S_T2}, s2, 7", f"  s_mul_i32 s{S_T1}, s{S_T2}, {PR_STRIDE}",
                  "  v_and_b32 v28, 31, v0", f"  v_lshl_add_u32 v29, v28, {psh}, s{S_T1}",
                  ] + (["  v_lshrrev_b32 v5, 2, v28", "  v_lshlrev_b32 v5, 5, v5", "  v_and_b32 v28, 3, v28", "  v_add_u32 v28, v28, v5"] if grp != "xcd" else []) + [
                  f"  s_lshl_b32 s{S_T2}, s{S_T2}, {2 if grp != 'xcd' else 5}", f"  v_add_u32 v28, s{S_T2}, v28",
                  f"  s_lshr_b32 s{S_SLOT}, s2, 3", f"  s_lshl_b32 s{S_SLOT}, s{S_SLOT}, {psh}", f"  s_add_u32 s{S_SLOT}, s{S_SLOT}, s{S_T1}",
                  "  v_mov_b32 v30, 0", "  v_mov_b32 v23, 0"]
        setup += [f"  s_movk_i32 s{S_TH+i}, {-1000 if i < nlv else 1000}" for i in range(2 * nlv)]
    if cmp:
        rest = []
        part(rest, "K", static, ng=1)
        k = rest.index(f"  s_waitcnt vmcnt({W})")
        LD += rest[:k] + LATE + setup + rest[k:]
        part(LD, "V", static); part(LD, "K", static); part(LD, "V", static)
    else:
        LD += setup
        for _ in range(2):
            part(LD, "K", static); part(LD, "V", static)
    assert not st["pend"] and st["pos"] == 48

    def passes(lv):
        o = []
        k = [0]

        def before():
            x = W - 1 + lv
            k[0] += 1
            return [f"  s_waitcnt vmcnt({x + (NX if k[0] - 1 < x else 0)})"]

        def after():
            i = len(stubs)
            stubs.append(i)
            return [f"  s_sub_u32 s{S_CD}, s{S_CD}, 1", f"  s_cbranch_scc1 L_bar{i}", f"L_barret{i}:"]
        for _ in range(2):
            part(o, "K", before, after); part(o, "V", before, after)
        return o + [f"  s_cmp_lg_u32 s{S_N}, 30", "  s_cbranch_scc1 L_ldloop"]
    STUB = ["  s_barrier", f"  s_and_b32 s{S_CD}, s{S_TAB}, 15", f"  s_lshr_b64 s[{S_TAB}:{S_TAB+1}], s[{S_TAB}:{S_TAB+1}], 4",
            f"  s_add_u32 s{S_B}, s{S_B}, 1", f"  s_cmp_gt_u32 s{S_B}, s{S_BE}", f"  s_addc_u32 s{S_CD}, s{S_CD}, 14"]
    D0 = []
    if rk:
        D0 += [f"  v_cmp_le_u32 vcc, s{S_N}, v30", f"  s_add_u32 s{S_N}, s{S_N}, 1", f"  v_mov_b32 v31, s{S_N}",
               f"  s_bcnt1_i32_b32 s{S_RK}, vcc_lo",
               f"  buffer_load_dword v30, v29, {srd(S_PR)}, 0 offen {plp}", "  s_mov_b64 exec, 1",
               f"  buffer_store_dword v31, off, {srd(S_PR)}, s{S_SLOT} {psp}", "  s_mov_b64 exec, -1"]
        if "1" in abl:
            D0[-2] = D0[-4].replace("v30", "v31", 1)
        if "2" in abl:
            D0[-4] = D0[-2]
    else:
        D0 += [f"  s_add_u32 s{S_N}, s{S_N}, 1"]
    D0 += [f"  s_cmp_eq_u32 s{S_N}, {hsn}", "  s_cbranch_scc1 L_hs0", f"  s_cmp_eq_u32 s{S_N}, {hsn+2}", "  s_cbranch_scc1 L_hs1", "L_go:"]
    for i in range(nlv if rk else 0):
        D0 += [f"  s_cmp_lt_i32 s{S_RK}, s{S_TH+i}", f"  s_cbranch_scc1 L_lv{i}",
               f"  s_cmp_ge_i32 s{S_RK}, s{S_TH+2*nlv-1-i}", f"  s_cbranch_scc1 L_lv{2*nlv-i}"]
    D1 = passes(0)
    DA_ = []
    for i, lv in enumerate(LV):
        if lv:
            DA_ += [f"L_lv{i}:"] + passes(lv) + ["  s_branch L_ldtail"]
    if tiny:
        DA_ += [".p2align 6", "L_barfn:"] + STUB + ["  s_setpc_b64 s[76:77]"]
    for i in stubs:
        DA_ += [f"L_bar{i}:"] + (["  s_call_b64 s[76:77], L_barfn"] if tiny else STUB) + [f"  s_branch L_barret{i}"]
    H0 = ["  v_mov_b32 v22, 0", f"  buffer_load_dword v22, off, {srd(S_DBG)}, s{S_DB} {hpol}"]
    if rk:
        H0 += [f"  buffer_load_ubyte v23, v28, {srd(S_DBG)}, 0 offen {hpol}"]
    H0 += ["  s_branch L_go"]
    chk4 = lambda m, lab: [f"  v_and_b32 v21, {m}, v22", f"  v_cmp_ne_u32 vcc, {m}, v21", f"  s_cbranch_vccz {lab}"]
    hello = lambda bits: [f"  s_getreg_b32 s{S_T2}, hwreg(HW_REG_XCC_ID, 0, 3)", f"  s_or_b32 s{S_T2}, s{S_T2}, {bits}", f"  v_mov_b32 v21, s{S_T2}",
                          f"  s_add_u32 s{S_T2}, s{S_DB}, s{S_SP}", f"  buffer_store_byte v21, off, {srd(S_DBG)}, s{S_T2} sc1"]
    memrd = ["  v_mov_b32 v22, 0", f"  buffer_atomic_or v22, off, {srd(S_DBG)}, s{S_DB} sc0 sc1", "  s_waitcnt vmcnt(0)"]
    H1 = []
    if rk:
        bt = sum(((bias[i] + 8) & 15) << (4 * i) for i in range(8))
        H1 += [f"  s_getreg_b32 s{S_T2}, hwreg(HW_REG_XCC_ID, 0, 3)", f"  s_or_b32 s{S_T1}, s{S_T2}, 0x80",
               f"  v_cmp_ne_u32 vcc, s{S_T1}, v23", "  s_cbranch_vccnz L_nork",
               f"  s_lshl_b32 s{S_T2}, s{S_T2}, 2", f"  s_lshr_b32 s{S_T2}, {bt}, s{S_T2}", f"  s_and_b32 s{S_T2}, s{S_T2}, 15"]
        H1 += [f"  s_sub_i32 s{S_TH+i}, {th[i] + 8}, s{S_T2}" for i in range(2 * nlv)] + ["L_nork:"]
    H1 += chk4("0x80808080", "L_hs2") + ["  s_mov_b64 exec, 1", f"  s_add_u32 s{S_T2}, s{S_DB}, s{S_SP}", "L_hs1a:",
           f"  buffer_load_ubyte v21, off, {srd(S_DBG)}, s{S_T2} sc1", "  s_waitcnt vmcnt(0)", "  v_cmp_eq_u32 vcc, 0, v21", "  s_cbranch_vccnz L_hs1a"] + hello("0x80") + ["L_hs1b:",
           f"  buffer_load_dword v22, off, {srd(S_DBG)}, s{S_DB} sc1", "  s_waitcnt vmcnt(0)"] + chk4("0x80808080", "L_hs2") \
        + memrd + chk4("0x80808080", "L_hs2") + ["  s_branch L_hs1b"]
    H2 = ["  s_mov_b64 exec, 1", "  v_alignbit_b32 v21, v22, v22, 8", "  v_xor_b32 v21, v21, v22", "  v_and_b32 v21, 0x07070707, v21",
          "  v_cmp_ne_u32 vcc, 0, v21", "  v_mov_b32 v21, 4", "  s_cbranch_vccnz L_hsfar", "L_hs3:",
          "  ds_write_b32 v20, v21", "  s_mov_b64 exec, -1", "  s_waitcnt lgkmcnt(0)",
          "  v_and_b32 v21, 3, v0", "  v_lshlrev_b32 v21, 7, v21", f"  s_mov_b32 s{S_T2}, {OFF_F}",
          f"  buffer_load_dword v23, v21, {srd(S_WS)}, s{S_T2} offen", "  s_branch L_go"]
    HX = ["L_hsfar:", "  s_mov_b64 exec, 15", "  v_lshlrev_b32 v21, 7, v0", "  v_mov_b32 v22, 0",
          f"  s_lshl_b32 s{S_T2}, s{S_SP}, 2", f"  s_add_u32 s{S_T2}, s{S_T2}, {OFF_F}",
          f"  buffer_store_dword v22, v21, {srd(S_WS)}, s{S_T2} offen sc1", "  s_mov_b64 exec, 1", "  s_waitcnt vmcnt(0)"] \
        + hello("0xc0") + ["L_hsfar2:"] + memrd + chk4("0x40404040", "L_hsfar3") + ["  s_branch L_hsfar2",
          "L_hsfar3:", "  v_mov_b32 v21, 0", "  s_branch L_hs3"]
    D6 = []
    st.update(pos=16 * 63, pend=[16 * 62, 16 * 63])
    part(D6, "V", static); st["pend"].append(st["pos"])
    part(D6, "V", static); st["pend"].append(st["pos"])
    D6 += [f"  s_mov_b32 m0, {LDS_JUNK}"]
    for q in range(-(-25 // pfn)):
        while st["pend"] and st["pos"] - st["pend"][0] >= pfw - 1:
            D6 += [f"  s_waitcnt vmcnt({st['pos'] - st['pend'].pop(0)})", "  s_barrier"]
        D6 += [f"  s_waitcnt vmcnt({pfw-1})", f"  buffer_load_dword v24, {srd(S_WS)}, s{S_PF} offen {pfp} lds", f"  s_add_u32 s{S_PF}, s{S_PF}, {1024*pfn}"]
        st["pos"] += 1
    for e_ in st["pend"]:
        D6 += [f"  s_waitcnt vmcnt({st['pos'] - e_})", "  s_barrier"]
    D6.append("  s_endpgm")
    assert sum(l == "  s_barrier" for l in LD + D6) + 60 == NU + 2
    traces["loader"] = E + LD + D0 + H0 + D1 + D0 + H1 + H1 + H2 + HX + H2 + DA_ + D0 + D1 + D6
    LOADER = LD + ["L_ldloop:"] + D0 + D1 + ["L_ldtail:"] + D6 + ["L_hs0:"] + H0 + ["L_hs1:"] + H1 + ["L_hs2:"] + H2 + HX + DA_

    P = []
    stamp(P)
    Qf = lambda qb, ks: V_Q + 4 * (qb * 4 + ks)
    P += [
        f"  s_sub_u32 s{S_W}, s3, 1",
        f"  s_lshl_b32 s{S_DB}, s{S_BH}, 2",
        f"  s_add_u32 s{S_T1}, s{S_DB}, s{S_W}",
        f"  s_lshl_b32 s{S_T2}, s{S_T1}, 13",
        f"  v_and_b32 v{V_T0}, 15, v0",
        f"  v_lshrrev_b32 v{V_T1}, 4, v0",
        f"  v_lshlrev_b32 v{V_T2}, 4, v{V_T1}",
        f"  v_lshl_add_u32 v{V_T3}, v{V_T0}, 8, v{V_T2}",
        f"  s_mov_b32 s{S_Q+2}, 8192",
        f"  s_mov_b32 s{S_Q+3}, 0x20000",
        f"  s_movk_i32 s{S_T3}, 0x1000",
    ] + blk(S_T0, S_T1) + [
        "  s_waitcnt lgkmcnt(0)",
        f"  s_add_u32 s{S_Q}, s4, s{S_T2}",
        f"  s_addc_u32 s{S_Q+1}, s5, 0",
    ]
    for qb in range(2):
        for ks in range(4):
            so = f"s{S_T3}" if qb else "0"
            if not qlds:
                P.append(f"  buffer_load_dwordx4 {vr(Qf(qb,ks),4)}, v{V_T3}, {srd(S_Q)}, {so} offen offset:{ks*64} {qpol}")
    P += [
        f"  s_add_u32 s{S_WS}, s14, s{S_T0}",
        f"  s_addc_u32 s{S_WS+1}, s15, 0",
        f"  s_mov_b32 s{S_WS+2}, {1 << GB}",
        f"  s_mov_b32 s{S_WS+3}, 0x20000",
        f"  s_add_u32 s{S_OUT}, s10, s{S_T2}",
        f"  s_addc_u32 s{S_OUT+1}, s11, 0",
        f"  s_mov_b32 s{S_OUT+2}, 8192",
        f"  s_mov_b32 s{S_OUT+3}, 0x20000",
        f"  s_lshl_b32 s{S_F}, s{S_W}, 7",
        f"  s_add_u32 s{S_F}, s{S_F}, {OFF_F}",
        f"  s_lshl_b32 s{S_FO}, s{S_SP}, 2",
        f"  s_add_u32 s{S_FO}, s{S_FO}, s{S_F}",
        f"  v_mov_b32 v{V_T2}, 0",
        "  s_mov_b64 exec, 1",
        f"  buffer_store_dword v{V_T2}, off, {srd(S_WS)}, s{S_FO} {rpol}" if "Z" not in abl else "  s_nop 0",
    ]
    if rk:
        P += [f"  s_add_u32 s{S_Q}, s14, {OFF_PR}", f"  s_addc_u32 s{S_Q+1}, s15, 0", f"  s_mov_b32 s{S_Q+2}, {8*PR_STRIDE}",
              f"  s_and_b32 s{S_T1}, s2, 7", f"  s_mul_i32 s{S_T1}, s{S_T1}, {PR_STRIDE}", f"  s_lshr_b32 s{S_T0}, s2, 3",
              f"  s_lshl_b32 s{S_T0}, s{S_T0}, {psh}", f"  s_add_u32 s{S_T1}, s{S_T1}, s{S_T0}",
              f"  buffer_store_dword v{V_T2}, off, {srd(S_Q)}, s{S_T1}"]
    if warm:
        P.append(f"  buffer_load_dword v{V_JUNK}, off, {srd(S_OUT)}, 0")
    P += ["  s_mov_b64 exec, -1",
          f"  s_lshl_b32 s{S_OI}, s{S_SP}, 2", f"  s_add_u32 s{S_OI}, s{S_OI}, s{S_W}", f"  s_mul_i32 s{S_OI}, s{S_OI}, {SLAB}"]
    if clr:
        P += [f"  v_lshlrev_b32 v{V_T2}, 4, v0", f"  s_add_u32 s{S_T1}, s{S_OI}, 4096"] + [f"  v_mov_b32 v{V_X+i}, -1" for i in range(4)]
        for i in range(6):
            P.append(f"  buffer_store_dwordx4 {vr(V_X,4)}, v{V_T2}, {srd(S_WS)}, s{S_OI if i < 4 else S_T1} offen offset:{(i&3)*1024}")
        P += ["  s_mov_b64 exec, 0xffff", f"  buffer_store_dwordx4 {vr(V_X,4)}, v{V_T2}, {srd(S_WS)}, s{S_T1} offen offset:2048", "  s_mov_b64 exec, -1", "  s_nop 0"]
    PF = [f"  v_min_u32 v{V_T2}, {SLAB // 128 - 1}, v0", f"  v_lshlrev_b32 v{V_T2}, 7, v{V_T2}",
          f"  buffer_load_dword v{V_JUNK+1}, v{V_T2}, {srd(S_WS)}, s{S_OI} offen"]
    assert bf16p or not pf
    if pf == 1:
        P += PF
    P += [
        f"  v_xor_b32 v{V_T2}, v{V_T0}, v{V_T1}",
        f"  v_lshlrev_b32 v{V_T2}, 4, v{V_T2}",
        f"  v_lshl_add_u32 v{V_KA}, v{V_T0}, 8, v{V_T2}",
    ]
    for ks in range(1, 4):
        P.append(f"  v_xor_b32 v{V_KA+ks}, {ks*64}, v{V_KA}")
    P += [
        f"  v_lshrrev_b32 v{V_T2}, 2, v0",
        f"  v_lshlrev_b32 v{V_T3}, 8, v{V_T2}",
        f"  v_and_b32 v{V_T2}, 7, v{V_T2}",
        f"  s_lshl_b32 s{S_T2}, s{S_SP}, 1",
        f"  v_xor_b32 v{V_T2}, s{S_T2}, v{V_T2}",
        f"  v_lshl_add_u32 v{V_T3}, v{V_T2}, 5, v{V_T3}",
        f"  v_and_b32 v{V_T2}, 3, v0",
        f"  v_lshl_add_u32 v{V_T3}, v{V_T2}, 3, v{V_T3}",
        f"  v_lshlrev_b32 v{V_FADDR}, 2, v{V_T2}",
        f"  v_add_u32 v{V_VA}, {VBASE}, v{V_T3}",
    ]
    for db in range(1, 8):
        P.append(f"  v_xor_b32 v{V_VA+db}, {db*32}, v{V_VA}")
    P += [
        f"  v_cmp_eq_u32 vcc, 0, v{V_T2}",
        f"  v_mov_b32 v{V_T3}, 0x3f803f80",
        f"  v_lshlrev_b32 v{V_LANE16}, 4, v0",
        f"  v_cndmask_b32 v{V_ONE}, 0, v{V_T3}, vcc",
        f"  v_cndmask_b32 v{V_ONE+1}, 0, v{V_T3}, vcc",
        f"  v_cndmask_b32 v{V_ONE+2}, 0, v{V_T3}, vcc",
        f"  v_cndmask_b32 v{V_ONE+3}, 0, v{V_T3}, vcc",
        f"  s_mov_b32 s{S_C}, {f32(c)}",
        f"  s_mov_b32 s{S_THR}, {f32(THR)}",
    ]
    for i in range(32):
        P.append(f"  v_mov_b64 v[{V_O+2*i}:{V_O+2*i+1}], 0")
    X = []
    for j in range(1, 4):
        X += [f"  s_xor_b32 s{S_T1}, s{S_SP}, {j}", f"  s_lshl_b32 s{S_T1}, s{S_T1}, 2", f"  s_add_u32 s{S_T1}, s{S_T1}, s{S_W}",
              f"  s_mul_i32 s{S_T1}, s{S_T1}, {SLAB}",
              f"  s_add_u32 s{S_ML+j}, s{S_T1}, {3*R}", f"  s_add_u32 s{S_OD+j-1}, s{S_T1}, {(j-1)*R}"]
    X += [f"  s_add_u32 s{S_ML}, s{S_OI}, {3*R}", f"  v_and_b32 v{V_MLA}, 0xf0, v{V_LANE16}"]
    X += [
        f"  v_and_b32 v{V_T2}, 15, v0", f"  v_lshlrev_b32 v{V_OUTA}, 8, v{V_T2}",
        f"  v_bfe_u32 v{V_T2}, v0, 4, 1", f"  v_lshl_add_u32 v{V_OUTA}, v{V_T2}, 5, v{V_OUTA}",
        f"  v_lshrrev_b32 v{V_T2}, 5, v0", f"  v_lshl_add_u32 v{V_OUTA}, v{V_T2}, 4, v{V_OUTA}",
        f"  s_lshl_b32 s{S_T2}, s{S_SP}, 6", f"  v_add_u32 v{V_OUTA}, s{S_T2}, v{V_OUTA}",
    ]
    if qlds:
        X += [f"  s_lshl_b32 s{S_T2}, s{S_W}, 13", f"  s_add_u32 s{S_T2}, s{S_T2}, {QBASE}"]
        X += [f"  v_add_u32 v{V_X+ks}, s{S_T2}, v{V_KA+ks}" for ks in range(4)]
        P += X + (PF[:2] if pf in (2, 3) else []) + ["  s_waitcnt vmcnt(0)", "  s_barrier"] + (PF[2:] if pf == 2 else [])
        P += [f"  ds_read_b128 {vr(Qf(qb,ks),4)}, v{V_X+ks} offset:{qb*4096}" for qb in range(2) for ks in range(4)]
        P += ["  s_waitcnt lgkmcnt(0)"]
    elif pf >= 4:
        P += ["  s_barrier"] + X + ["  s_waitcnt vmcnt(0)"]
    elif pf >= 2:
        P += ["  s_barrier"] + X + PF[:2] + ["  s_waitcnt vmcnt(0)"] + (PF[2:] if pf == 2 else [])
    else:
        P += ["  s_barrier"] + X + [f"  s_waitcnt vmcnt({(1 if warm else 0) + (1 if pf else 0)})"]
    if pre == 1:
        P += [f"  v_mov_b32 v{V_T2}, s{S_C}"]
        for i in range(33):
            q = V_Q + i
            t = V_S + 2 * (i & 3)
            if i < 32:
                P += [f"  v_lshlrev_b32 v{t}, 16, v{q}", f"  v_and_b32 v{t+1}, 0xffff0000, v{q}",
                      f"  v_pk_mul_f32 v[{t}:{t+1}], v[{t}:{t+1}], v[{V_T2}:{V_T2+1}] op_sel_hi:[1,0]"]
            if i:
                t = V_S + 2 * ((i - 1) & 3)
                P += [f"  v_cvt_pk_bf16_f32 v{q-1}, v{t}, v{t+1}"]
    if bq:
        assert qlds == 1
        P += ["  s_barrier"]
    stamp(P)
    PA = [f"  s_mov_b32 s{S_DBG}, s12", f"  s_mov_b32 s{S_DBG+1}, s13", f"  s_mov_b32 s{S_DBG+2}, 256", f"  s_mov_b32 s{S_DBG+3}, 0x20000"]
    if hs:
        PA += [f"  s_getreg_b32 s{S_T2}, hwreg(HW_REG_XCC_ID, 0, 3)", f"  s_or_b32 s{S_T2}, s{S_T2}, 0x80", f"  v_mov_b32 v{V_T2}, s{S_T2}",
               f"  s_add_u32 s{S_T2}, s{S_DB}, s{S_SP}", "  s_mov_b64 exec, 1",
               f"  buffer_store_byte v{V_T2}, off, {srd(S_DBG)}, s{S_T2} {'sc1' if hs == 1 else ''}", "  s_mov_b64 exec, -1"]
    else:
        if l2:
            PA += [f"  s_getreg_b32 s{S_T2}, hwreg(HW_REG_XCC_ID, 0, 3)", f"  s_mul_i32 s{S_T2}, s{S_T2}, 3",
                   f"  s_lshl_b32 s{S_T2}, 16, s{S_T2}", f"  s_add_u32 s{S_T2}, s{S_T2}, 1", f"  v_mov_b32 v{V_T2}, s{S_T2}"]
        else:
            PA += [f"  v_mov_b32 v{V_T2}, 1"]
        PA += [
            "  s_mov_b64 exec, 1",
            f"  buffer_atomic_add v{V_T2}, off, {srd(S_DBG)}, s{S_DB} sc1",
            "  s_mov_b64 exec, -1",
        ]
    if "H" in abl:
        PA = []

    Sb = lambda par, kbl, qb: V_S + 16 * par + 4 * (kbl * 2 + qb)
    Pb = lambda par, qb: V_P + 8 * par + 4 * qb
    Lb = lambda par, qb: V_L + 8 * par + 4 * qb
    Ob = lambda db, qb: V_O + 4 * (db * 2 + qb)
    Fr = lambda half, f: V_FR + 16 * half + 4 * f

    def kreads(half, u, kbl):
        return [f"  ds_read_b128 {vr(Fr(half,ks),4)}, v{V_KA+ks} offset:{(u % NSL)*8192 + kbl*4096}" for ks in range(4)]

    def vreads(half, u, dbs):
        o = []
        for f, db in enumerate(dbs):
            for h in range(2):
                o.append(f"  ds_read_b64_tr_b16 {vr(Fr(half,f)+2*h,2)}, v{V_VA+db} offset:{(u % NSL)*8192 + h*4096}")
        return o

    def qkm(half, u, kbl, first=False):
        o = []
        for qb, ks in {1: [(a, b) for a in range(2) for b in range(4)], 0: [(a, b) for b in range(4) for a in range(2)], 2: [(0, 0), (0, 1), (0, 2), (0, 3), (1, 3), (1, 2), (1, 1), (1, 0)]}[chain]:
            if True:
                d = vr(Sb(u & 1, kbl, qb), 4)
                c0 = vr(V_NM + 4 * qb, 4) if (pre and not first) else 0
                o.append(f"  v_mfma_f32_16x16x32_bf16 {d}, {vr(Fr(half,ks),4)}, {vr(Qf(qb,ks),4)}, {d if ks != (3 if chain == 2 and qb else 0) else c0}")
        return o

    def pvm(half, u, dbs, order=None):
        o = []
        order = pvo if order is None else order
        seq = {0: [(f, qb) for f in range(4) for qb in range(2)],
               1: [(f, qb) for qb in range(2) for f in range(4)],
               2: [(f, (f + i) & 1) for i in range(2) for f in range(4)]}[order]
        for f, qb in seq:
            d = vr(Ob(dbs[f], qb), 4)
            o.append(f"  v_mfma_f32_16x16x32_bf16 {d}, {vr(Fr(half,f),4)}, {vr(Pb(u&1,qb),4)}, {d}")
        return o

    def lm(par, first=False):
        return [f"  v_mfma_f32_16x16x32_bf16 {vr(Lb(par,qb),4)}, {vr(V_ONE,4)}, {vr(Pb(par,qb),4)}, {0 if first else vr(Lb(par^1,qb),4)}"
                for qb in range(2)]

    def softmax(par):
        pairs = [(kbl, qb, h) for kbl in range(2) for qb in range(2) for h in range(2)]
        s3 = [[], [], []]
        for k, (kbl, qb, h) in enumerate(pairs):
            s = Sb(par, kbl, qb) + 2 * h
            x = V_X + 2 * (k & 3)
            if pre == 1:
                s3[0].append([])
                s3[1].append([f"  v_exp_f32 v{x}, v{s}", f"  v_exp_f32 v{x+1}, v{s+1}"])
            else:
                if pre == 2 and pk:
                    s3[0].append([f"  v_pk_mul_f32 v[{x}:{x+1}], v[{s}:{s+1}], s[{S_C}:{S_C+1}] op_sel_hi:[1,0]"])
                elif pre == 2:
                    s3[0].append([f"  v_mul_f32 v{x}, s{S_C}, v{s}", f"  v_mul_f32 v{x+1}, s{S_C}, v{s+1}"])
                elif pk:
                    s3[0].append([f"  v_pk_fma_f32 v[{x}:{x+1}], v[{s}:{s+1}], s[{S_C}:{S_C+1}], v[{V_M}:{V_M+1}] op_sel:[0,0,{qb}] op_sel_hi:[1,0,{qb}] neg_lo:[0,0,1] neg_hi:[0,0,1]"])
                else:
                    s3[0].append([f"  v_fma_f32 v{x}, v{s}, s{S_C}, -v{V_M+qb}", f"  v_fma_f32 v{x+1}, v{s+1}, s{S_C}, -v{V_M+qb}"])
                s3[1].append([f"  v_exp_f32 v{x}, v{x}", f"  v_exp_f32 v{x+1}, v{x+1}"])
            s3[2].append([f"  v_cvt_pk_bf16_f32 v{Pb(par,qb)+2*kbl+h}, v{x}, v{x+1}"])
        o = []
        for k in range(10):
            for j in range(3):
                if 0 <= k - j < 8:
                    o += s3[j][k - j]
        return o

    def softmax_plain(par):
        sm = softmax(par)
        return sm[:-1] + ["  s_nop 0", sm[-1], "  s_nop 1"]

    def chk(par):
        return [f"  v_add_f32 v{V_T0}, v{Lb(par,0)}, v{Lb(par,1)}", f"  v_cmp_nge_f32 vcc, s{S_THR}, v{V_T0}"]

    sites = []

    def br(par):
        k = len(sites)
        sites.append(par)
        return [f"  s_cbranch_vccnz L_fix{k}", f"L_ret{k}:"]

    def xmax(reg, tmp):
        return [f"  v_mov_b32 v{tmp}, v{reg}", "  s_nop 1", f"  v_permlane16_swap_b32 v{reg}, v{tmp}",
                f"  v_max_f32 v{reg}, v{reg}, v{tmp}",
                f"  v_mov_b32 v{tmp}, v{reg}", "  s_nop 1", f"  v_permlane32_swap_b32 v{reg}, v{tmp}",
                f"  v_max_f32 v{reg}, v{reg}, v{tmp}"]

    def maxof(dst, regs):
        o = [f"  v_max3_f32 v{dst}, v{regs[0]}, v{regs[1]}, v{regs[2]}"]
        k = 3
        while k + 1 < len(regs):
            o.append(f"  v_max3_f32 v{dst}, v{dst}, v{regs[k]}, v{regs[k+1]}")
            k += 2
        if k < len(regs):
            o.append(f"  v_max_f32 v{dst}, v{dst}, v{regs[k]}")
        return o

    def group(mf, reads, fill, rd=None):
        o = []
        rd = rd or RD
        per = -(-len(reads) // rd) if reads else 0
        for i, m in enumerate(mf):
            o.append(m)
            o += reads[i * per:(i + 1) * per]
            o += fill[i]
        return o

    def coarse(lines, pend):
        if WG >= 4:
            return auto_lgkm(lines, pend)
        out = []
        n = 4 // WG
        for l in lines:
            if l.strip().startswith("v_mfma"):
                a = int(l.split(",")[2 if "x" in abl else 1].split("[")[1].split(":")[0])
                if V_FR <= a < V_FR + 32:
                    f = (a - V_FR) // 4
                    last = V_FR + 4 * ((f // n) * n + n - 1) + 3
                    out.append(f"  v_touch v{last}, v{last}")
            out.append(l)
        out, pend = auto_lgkm(out, pend)
        return [l for l in out if not l.strip().startswith("v_touch")], pend

    def ablate(B):
        if "d" in abl:
            B = [l for l in B if not l.strip().startswith("ds_")]
        if "v" in abl:
            B = [l for l in B if not l.strip().startswith(("v_exp", "v_fma", "v_cvt"))]
        if "B" in abl:
            B = [l for l in B if l.strip() != "s_barrier"]
        if "k" in abl:
            B = [l for l in B if not l.strip().startswith("ds_read_b128")]
        if "t" in abl:
            B = [l for l in B if not l.strip().startswith("ds_read_b64_tr")]
        if "o" in abl:
            B = [l for l in B if f"v[{V_ONE}:" not in l]
        if "q" in abl:
            B = [l for l in B if not (l.strip().startswith("v_mfma") and V_S <= int(l.split("[")[1].split(":")[0]) < V_S + 32)]
        if "p" in abl:
            B = [l for l in B if not (l.strip().startswith("v_mfma") and V_O <= int(l.split("[")[1].split(":")[0]) < V_O + 64)]
        if "x" in abl:
            BB = []
            for l in B:
                if l.strip().startswith("v_mfma"):
                    a = l.split(", ")
                    l = ", ".join([a[0], a[2], a[1], a[3]])
                BB.append(l)
            B = BB
        return B

    DA, DB_ = [0, 1, 2, 3], [4, 5, 6, 7]

    def fills(par, nfront):
        n = nfront + max(LPOS - 1, 0)
        wts = [1.0] * n
        if bal and nfront == 24:
            per = [-(-4 // RD), -(-8 // RD), -(-8 // RD)]
            cnt = [4, 8, 8]
            for g in range(3):
                for i in range(8):
                    nr = max(0, min(per[g], cnt[g] - i * per[g]))
                    wts[8 * g + i] = max(0.2, 3.1 - nr)
            for i in range(24, n):
                wts[i] = 2.1
        f = spread(softmax(par)[NE:], wts)
        return f + [[] for _ in range(nfront + 10 - n)]

    def closing(n, nxt_reads, tailfill, extra=()):
        o = ["  s_waitcnt lgkmcnt(0)", "  s_barrier"] + list(extra)
        mf = pvm(1, n - 1, DB_)
        mf = mf[:LPOS] + lm(n & 1) + mf[LPOS:]
        fl = [list(x) for x in tailfill]
        c2 = chk(n & 1)
        if n < NU - 1:
            for i, e in enumerate(spread(softmax((n + 1) & 1)[:NE], [1] * (8 - LPOS - 1))):
                fl[LPOS + 1 + i] += e
        fl[8] = fl[8] + c2
        o += group(mf, nxt_reads, fl)
        return o + br(n & 1)

    def front(n):
        f = fills(n & 1, 24)
        o = group(qkm(0, n + 1, 0), kreads(1, n + 1, 1), f[0:8])
        o += group(qkm(1, n + 1, 1), vreads(0, n - 1, DA), f[8:16])
        o += group(pvm(0, n - 1, DA), vreads(1, n - 1, DB_), f[16:24])
        return o, f[24:34]

    P2 = kreads(0, 0, 0) + kreads(1, 0, 1) + qkm(0, 0, 0, True) + kreads(0, 1, 0) + qkm(1, 0, 1, True) + kreads(1, 1, 1) \
        + qkm(0, 1, 0, True) + qkm(1, 1, 1, True) + ["  s_nop 7"]
    for qb in range(2):
        P2 += maxof(V_M + qb, [Sb(par, kbl, qb) + r for par in range(2) for kbl in range(2) for r in range(4)])
    for qb in range(2):
        P2 += xmax(V_M + qb, V_T0)
    if pre:
        for qb in range(2):
            for par in range(2):
                for kbl in range(2):
                    for r in range(4):
                        s = Sb(par, kbl, qb) + r
                        P2.append(f"  v_sub_f32 v{s}, v{s}, v{V_M+qb}")
            for r in range(4):
                P2.append(f"  v_sub_f32 v{V_NM+4*qb+r}, 0, v{V_M+qb}")
    else:
        for qb in range(2):
            P2.append(f"  v_mul_f32 v{V_M+qb}, s{S_C}, v{V_M+qb}")
    P2 += softmax_plain(0) + lm(0, True) + softmax(1)[:NE]
    if fastp:
        V = []
        for qb in range(2):
            V += maxof(V_M + qb, [Sb(0, kbl, qb) + r for kbl in range(2) for r in range(4)])
        a, b = xmax(V_M, V_T0), xmax(V_M + 1, V_T1)
        for x, y in zip(a, b):
            V += [x, y] if "s_nop" not in x else ["  s_nop 0"]
        subm = lambda par: [f"  v_sub_f32 v{Sb(par,kbl,qb)+r}, v{Sb(par,kbl,qb)+r}, v{V_M+qb}" for kbl in range(2) for qb in range(2) for r in range(4)]
        if pre:
            V += subm(0)
        else:
            V += [f"  v_mul_f32 v{V_M+qb}, s{S_C}, v{V_M+qb}" for qb in range(2)]
        V += softmax(0)
        fl = [[] for _ in range(4)] + spread(V, [1] * 12)
        fl[3] = ["  s_nop 3"]
        P2 = kreads(0, 0, 0) + kreads(1, 0, 1) + qkm(0, 0, 0, True) + kreads(0, 1, 0) + qkm(1, 0, 1, True) + kreads(1, 1, 1)
        P2 += group(qkm(0, 1, 0, True) + qkm(1, 1, 1, True), [], fl) + ["  s_nop 1"] + lm(0, True)
        if pre:
            P2 += [f"  v_sub_f32 v{V_NM+4*qb+r}, 0, v{V_M+qb}" for qb in range(2) for r in range(4)] + subm(1)
        P2 += softmax(1)[:NE]
    nit = (NU - 2 + NSL - 1) // NSL
    P2 += [f"  s_mov_b32 s{S_CNT}, {nit}"] + (["  s_waitcnt vmcnt(0)"] if pf < 2 else PF[2:] if pf == 3 else []) + ["  s_barrier"] + kreads(0, 2, 0)
    P2, pend0 = auto_lgkm(P2)
    if diag in (3, 7):
        P2 += ["  s_mov_b32 s95, 0"]
    if hs == 3:
        assert qlds and pf >= 4
        k = P.index("  s_barrier") + 1
        if lw == 3:
            assert P[k - 2] == "  s_waitcnt vmcnt(0)"
            del P[k - 2]
            k = P2.index("  s_barrier")
            P2 = P2[:k] + ["  s_waitcnt vmcnt(0)"] + P2[k:] + [f"  s_cmp_lg_u32 s{S_W}, 0", "  s_cbranch_scc1 L_mid"] + PA + ["  s_branch L_mid"]
        if lw == 2:
            assert P[k - 2] == "  s_waitcnt vmcnt(0)"
            del P[k - 2]
            i0 = P.index(f"  v_mov_b32 v{V_T2}, 0")
            i1 = P.index("  s_mov_b64 exec, -1") + 1
            clears = P[i0:i1]
            del P[i0:i1]
            k = P.index("  s_barrier") + 1
            P[k:k] = clears
            if touch == 3:
                P[k + 2:k + 2] = [f"  buffer_load_dword v{V_JUNK}, off, {srd(S_OUT)}, 0"]
            k = P2.index("  s_barrier")
            P2 = P2[:k] + ["  s_waitcnt vmcnt(0)"] + P2[k:] + [f"  s_cmp_lg_u32 s{S_W}, 0", "  s_cbranch_scc1 L_mid"] + PA + ["  s_branch L_mid"]
    if hs == 3 and lw < 2:
        if lw:
            assert P[k - 2] == "  s_waitcnt vmcnt(0)"
            del P[k - 2]
            k = len(P) - 1 - P[::-1].index("  s_barrier")
            P.insert(k, "  s_waitcnt vmcnt(0)")
            k += 2
            j = P.index("  s_mov_b64 exec, -1")
            P[j:j] = PA[:4] + [f"  buffer_load_dword v{V_JUNK}, off, {srd(S_DBG)}, s{S_DB}"]
            PA = PA[4:]
            k += 5
        P = P[:k] + [f"  s_cmp_lg_u32 s{S_W}, 0", "  s_cbranch_scc1 L_nohello"] + PA + ["L_nohello:"] + P[k:]
        k = P2.index("  s_barrier")
        P2 = P2[:k] + ["  s_waitcnt vmcnt(0)"] + P2[k:] + ["  s_branch L_mid"]


    BODY = []
    nfirst = NU - 1 - NSL
    tf = front(nfirst - 1)[1]
    midx = None
    for n in range(nfirst, NU - 1):
        extra = []
        if (diag == 3 and n % 2 == 1) or diag == 7:
            extra = ["  s_memrealtime s[92:93]", "  s_memtime s[90:91]", "  s_add_u32 s95, s95, 1", "  s_min_u32 s95, s95, 31", "  s_add_u32 s94, s95, 32", "  s_waitcnt lgkmcnt(0)",
                     "  s_mov_b32 m0, s95", f"  v_writelane_b32 v{V_TR}, s92, m0", "  s_mov_b32 m0, s94", f"  v_writelane_b32 v{V_TR}, s90, m0"]
        if diag == 4 and n == nfirst:
            extra = [f"  s_cmp_lg_u32 s{S_CNT}, {nit - 16 // NSL}", "  s_cbranch_scc1 L_nost", "  s_memtime s[96:97]", "  s_memrealtime s[98:99]",
                     "  s_waitcnt lgkmcnt(0)", "  s_mov_b32 s94, 0", "L_nost:"]
        cl = closing(n - 1, kreads(0, n + 1, 0), tf, extra)
        fr, tf = front(n)
        if n == NU - 2:
            k = max(i for i, l in enumerate(fr) if "v_mfma" in l)
            fr = fr[:k] + [f"  s_sub_u32 s{S_CNT}, s{S_CNT}, 1", f"  s_cmp_lg_u32 s{S_CNT}, 0"] + fr[k:] + ["  s_cbranch_scc1 L_loop"]
        cl, pendc = coarse(ablate(cl), [])
        assert abl or pendc == pend0
        if "q" in abl or "p" in abl:
            fr = [x for l in fr for x in ([l, "  s_waitcnt lgkmcnt(6)"] if l.strip().startswith("ds_") else [l])]
        fr, pendf = coarse(ablate(fr), pendc)
        if n % NSL == 1 % NSL:
            midx = len(BODY)
        BODY.append((cl, fr))

    def fix(par):
        o = ["  s_nop 7"]
        for qb in range(2):
            o += maxof(V_T0 + qb, [Sb(par, kbl, qb) + r for kbl in range(2) for r in range(4)])
        for qb in range(2):
            o += xmax(V_T0 + qb, V_T2)
        for qb in range(2):
            t = V_T0 + qb
            if pre:
                o += [f"  v_max_f32 v{t}, 0, v{t}", f"  v_add_f32 v{V_M+qb}, v{V_M+qb}, v{t}"]
                for p2 in range(2):
                    for kbl in range(2):
                        for r in range(4):
                            s = Sb(p2, kbl, qb) + r
                            o.append(f"  v_sub_f32 v{s}, v{s}, v{t}")
                for r in range(4):
                    o.append(f"  v_sub_f32 v{V_NM+4*qb+r}, 0, v{V_M+qb}")
                if pre == 2:
                    o += [f"  v_mul_f32 v{t}, s{S_C}, v{t}"]
                o += [f"  v_exp_f32 v{t}, -v{t}"]
            else:
                o += [f"  v_mul_f32 v{t}, s{S_C}, v{t}", f"  v_max_f32 v{t}, v{t}, v{V_M+qb}",
                      f"  v_sub_f32 v{V_T2}, v{V_M+qb}, v{t}", f"  v_mov_b32 v{V_M+qb}, v{t}", f"  v_exp_f32 v{t}, v{V_T2}"]
        o.append("  s_nop 0")
        for qb in range(2):
            o.append(f"  v_mul_f32 v{Lb(par^1,qb)}, v{V_T0+qb}, v{Lb(par^1,qb)}")
            for db in range(8):
                for r in range(4):
                    o.append(f"  v_mul_f32 v{Ob(db,qb)+r}, v{V_T0+qb}, v{Ob(db,qb)+r}")
        return o + softmax_plain(par) + lm(par) + softmax(par ^ 1)[:NE] + ["  s_nop 7"]
    FIX = [fix(0), fix(1)]

    T1 = []
    if diag == 4:
        T1 += ["  s_waitcnt lgkmcnt(0)", "  s_memtime s[90:91]", "  s_memrealtime s[92:93]", "  s_waitcnt lgkmcnt(0)", "  s_sub_u32 s96, s90, s96", "  s_sub_u32 s98, s92, s98"]
    X = []
    if l2:
        X += [f"  v_mov_b32 v{V_T2}, {LDS_MODE}", f"  ds_read_b32 v{V_T3}, v{V_T2}", "  s_waitcnt lgkmcnt(0)",
              f"  v_readfirstlane_b32 s{S_MODE}, v{V_T3}"]
    T1 += X
    T1 += closing(NU - 2, vreads(0, NU - 2, DA), tf)
    f = fills(1, 8)
    T1 += group(pvm(0, NU - 2, DA), vreads(1, NU - 2, DB_), f[0:8])
    T1, pend = auto_lgkm(T1, pendf)
    c2 = closing(NU - 1, [], f[8:18])[2:]
    k = next(i for i, l in enumerate(c2) if l.strip().startswith("v_add_f32"))
    c2 = c2[:k] + ["  s_nop 3"] + c2[k:]
    c2, pend = auto_lgkm(c2, pend)
    assert not pend
    T1 += c2
    ML = V_X
    T1 += [
        f"  v_mov_b32 v{ML}, v{V_M}" if pre != 2 else f"  v_mul_f32 v{ML}, s{S_C}, v{V_M}",
        f"  v_mov_b32 v{ML+1}, v{V_M+1}" if pre != 2 else f"  v_mul_f32 v{ML+1}, s{S_C}, v{V_M+1}",
        f"  v_mov_b32 v{ML+2}, v{Lb(1,0)}", f"  v_mov_b32 v{ML+3}, v{Lb(1,1)}",
    ]

    def publish(spol):
        def ostore(j):
            o = []
            if bf16p:
                b = V_S + 8 * (j - 1)
                for i in range(8):
                    o.append(f"  v_cvt_pk_bf16_f32 v{b+i}, v{V_O+16*j+2*i}, v{V_O+16*j+2*i+1}")
                    if i & 3 == 3:
                        o.append(f"  buffer_store_dwordx4 {vr(b+(i&4),4)}, v{V_LANE16}, {srd(S_WS)}, s{S_OD+j-1} offen offset:{(i>>2)*1024} {spol}")
            else:
                for i in range(4):
                    o.append(f"  buffer_store_dwordx4 {vr(V_O+16*j+4*i,4)}, v{V_LANE16}, {srd(S_WS)}, s{S_OD+j-1} offen offset:{i*1024} {spol}")
            return o
        nstamp[0] = 2
        o = ["  s_mov_b64 exec, 0xffff", f"  buffer_store_dwordx4 {vr(ML,4)}, v{V_LANE16}, {srd(S_WS)}, s{S_ML} offen {spol}", "  s_mov_b64 exec, -1"]
        stamp(o)
        o.append("  s_barrier")
        stamp(o)
        r0 = vreads(0, NU - 1, [2, 3, 4, 5])
        r1 = vreads(1, NU - 1, [6, 7, 0, 1])
        o += r0 + r1[:6]
        mf = pvm(0, NU - 1, [2, 3, 4, 5], 0) + pvm(1, NU - 1, [6, 7, 0, 1], 0)
        if tord == 0:
            o += mf[:2] + r1[6:] + mf[2:12] + ostore(1)[:5] + mf[12:14] + ostore(1)[5:] + mf[14:16] + ostore(2) + ostore(3)
        else:
            st_ = ostore(1) + ostore(2) + ostore(3)
            o += mf[:2] + r1[6:] + mf[2:8]
            k = 0
            for i, n in zip(range(8, 16), (2, 3, 2, 3, 5, 5, 5, 5)):
                o += [mf[i]] + st_[k:k + n]
                k += n
        o, pend = auto_lgkm(o)
        assert not pend
        return o + [f"  v_mov_b32 v{V_T1}, 1", "  s_mov_b64 exec, 1", "  s_waitcnt vmcnt(0)",
                    f"  buffer_store_dword v{V_T1}, off, {srd(S_WS)}, s{S_FO} {spol}"]
    if l2:
        T1 += [f"  s_cmp_eq_u32 s{S_MODE}, 4", "  s_cbranch_scc0 L_far"]
        poll = lambda p: [f"  buffer_load_dword v{V_T1}, v{V_FADDR}, {srd(S_WS)}, s{S_F} offen {p}", "  s_waitcnt vmcnt(0)",
                          f"  v_cmp_ne_u32 vcc, 1, v{V_T1}"]
        FAR = publish("sc1") + ["  s_mov_b64 exec, 15"]
        stamp(FAR)
        FAR += ["L_fpoll:"] + poll("sc1") + ["  s_cbranch_vccnz L_fpoll", "  buffer_inv sc1", "  s_waitcnt vmcnt(0)", "  s_branch L_got"]
        T2 = publish(npol)
    T2 += ["  s_mov_b64 exec, 15"]
    stamp(T2)
    TP = []
    for i in range(npl):
        TP += poll("nt") + ["  s_cbranch_vccz L_got"]
    TP += poll("sc1") + ["  s_cbranch_vccnz L_poll"]
    T3 = ["  s_mov_b64 exec, -1"]
    stamp(T3)
    VML = V_FR
    VIN = V_S
    for j in range(1, 4):
        T3.append(f"  buffer_load_dwordx4 {vr(VML+4*(j-1),4)}, v{V_MLA}, {srd(S_WS)}, s{S_ML+j} offen {lpol}")
    nld = 2 if bf16p else 4
    for j in range(1, 4):
        if j > 1 and not bf16p:
            T3.append(f"  s_add_u32 s{S_OI}, s{S_OI}, {R}")
        if j == 3 and bf16p:
            T3.append(f"  s_add_u32 s{S_OI}, s{S_OI}, {2*R}")
        for i in range(nld):
            off = i * 1024 + (R if (bf16p and j == 2) else 0)
            T3.append(f"  buffer_load_dwordx4 {vr(VIN+4*nld*(j-1)+4*i,4)}, v{V_LANE16}, {srd(S_WS)}, s{S_OI} offen offset:{off} {lpol}")
    G = V_FR + 16
    p2 = lambda r: f"v[{r}:{r+1}]"
    ml = lambda j: ML if j == 0 else VML + 4 * (j - 1)
    WT = []
    for qb in range(2):
        WT += [f"  v_max3_f32 v{V_T0+qb}, v{ml(0)+qb}, v{ml(1)+qb}, v{ml(2)+qb}"]
    for qb in range(2):
        WT += [f"  v_max_f32 v{V_T0+qb}, v{V_T0+qb}, v{ml(3)+qb}"]
    for j in range(4):
        WT.append(f"  v_pk_add_f32 {p2(G+2*j)}, {p2(ml(j))}, {p2(V_T0)} neg_lo:[0,1] neg_hi:[0,1]")
    for j in range(8):
        WT.append(f"  v_exp_f32 v{G+j}, v{G+j}")
    WT.append(f"  v_pk_mul_f32 {p2(V_T0)}, {p2(G)}, {p2(ml(0)+2)}")
    for j in range(1, 4):
        WT.append(f"  v_pk_fma_f32 {p2(V_T0)}, {p2(G+2*j)}, {p2(ml(j)+2)}, {p2(V_T0)}")
    WT += [f"  v_rcp_f32 v{V_T0}, v{V_T0}", f"  v_rcp_f32 v{V_T1}, v{V_T1}", "  s_nop 0"]
    for j in range(4):
        WT.append(f"  v_pk_mul_f32 {p2(G+2*j)}, {p2(G+2*j)}, {p2(V_T0)}")
    UP = []
    U = V_O + 16 if bf16p else VIN
    if bf16p:
        for i in range(24):
            if i % 4 == 0:
                UP.append(f"  s_waitcnt vmcnt({5 - i // 4})")
            UP += [f"  v_lshlrev_b32 v{U+2*i}, 16, v{VIN+i}", f"  v_and_b32 v{U+2*i+1}, 0xffff0000, v{VIN+i}"]
    else:
        UP.append("  s_waitcnt vmcnt(0)")
    T3.append(f"  s_waitcnt vmcnt({3*nld})")
    T3 += WT[:16]
    k = 0
    for w_ in WT[16:]:
        T3 += UP[k:k + 2] + ([w_] if "s_nop" not in w_ or k >= len(UP) else [])
        k += 2
    T3 += UP[k:]
    sel = lambda i, n: " op_sel:[0,%d%s] op_sel_hi:[1,%d%s]" % ((i >> 2) & 1, ",0" * n, (i >> 2) & 1, ",1" * n)
    for i in range(0, 16, 2):
        T3.append(f"  v_pk_mul_f32 {p2(V_O+i)}, {p2(V_O+i)}, {p2(G)}" + sel(i, 0))
    for j in range(1, 4):
        for i in range(0, 16, 2):
            T3.append(f"  v_pk_fma_f32 {p2(V_O+i)}, {p2(U+16*(j-1)+i)}, {p2(G+2*j)}, {p2(V_O+i)}" + sel(i, 1))
    stamp(T3)
    OV = V_FR
    for qb in range(2):
        for e in range(2):
            for h in range(2):
                T3.append(f"  v_cvt_pk_bf16_f32 v{OV+4*qb+2*e+h}, v{Ob(e,qb)+2*h}, v{Ob(e,qb)+2*h+1}")
    T3 += [
        f"  v_permlane16_swap_b32 v{OV}, v{OV+2}",
        f"  v_permlane16_swap_b32 v{OV+1}, v{OV+3}",
        f"  buffer_store_dwordx4 {vr(OV,4)}, v{V_OUTA}, {srd(S_OUT)}, 0 offen {opol}",
        f"  v_permlane16_swap_b32 v{OV+4}, v{OV+6}",
        f"  v_permlane16_swap_b32 v{OV+5}, v{OV+7}",
        f"  buffer_store_dwordx4 {vr(OV+4,4)}, v{V_OUTA}, {srd(S_OUT)}, s{S_T3} offen {opol}",
    ]
    if diag:
        T3.append("  s_waitcnt vmcnt(0)")
        stamp(T3)
        T3 += [f"  s_mov_b32 s{S_WS}, s14", f"  s_mov_b32 s{S_WS+1}, s15", f"  s_mov_b32 s{S_WS+2}, {32<<20}"]
        T3.append("  s_getreg_b32 s4, hwreg(HW_REG_XCC_ID)")
        for k in range(nstamp[0]):
            T3.append(f"  v_mov_b32 v{V_S+k}, s{S_ST+2*k}")
        T3.append(f"  v_mov_b32 v{V_S+15}, s4")
        T3.append(f"  v_mov_b32 v{V_S+11}, 31")
        if diag in (3, 7):
            T3 += [f"  s_lshl_b32 s{S_T0}, s2, 2", f"  s_add_u32 s{S_T0}, s{S_T0}, s{S_W}", f"  s_lshl_b32 s{S_T0}, s{S_T0}, 8",
                   f"  s_add_u32 s{S_T0}, s{S_T0}, {OFF_T + (1 << 20)}", f"  v_lshrrev_b32 v{V_T0}, 2, v{V_LANE16}",
                   f"  buffer_store_dword v{V_TR}, v{V_T0}, {srd(S_WS)}, s{S_T0} offen"]
        if diag == 4:
            T3 += [f"  v_mov_b32 v{V_S+12}, s94", f"  v_mov_b32 v{V_S+13}, s96", f"  v_mov_b32 v{V_S+14}, s98"]
        T3 += [
            f"  s_lshl_b32 s{S_T0}, s2, 2",
            f"  s_add_u32 s{S_T0}, s{S_T0}, s{S_W}",
            f"  s_lshl_b32 s{S_T0}, s{S_T0}, 6",
            f"  s_add_u32 s{S_T0}, s{S_T0}, {OFF_T}",
            "  s_mov_b64 exec, 1",
        ]
        for i in range(4):
            T3.append(f"  buffer_store_dwordx4 {vr(V_S+4*i,4)}, off, {srd(S_WS)}, s{S_T0} offset:{16*i}")
    T3.append("  s_endpgm")

    if "S" in abl:
        T1 = [l for l in T1 if not l.strip().startswith("buffer_store")]
        T2 = [l for l in T2 if not l.strip().startswith("buffer_store_dwordx4")]
    if "F" in abl:
        T2 = [l for l in T2 if not l.strip().startswith("buffer_store_dword ")]
        TP = []
    if "R" in abl:
        T3 = [l for l in T3 if not l.strip().startswith("buffer_load")]

    def inline_fix(lines):
        o = []
        for l in lines:
            o.append(l)
            if l.strip().startswith("s_cbranch_vccnz L_fix"):
                o += FIX[sites[int(l.strip().split("L_fix")[1])]]
        return o
    flat = [l for cl, fr in BODY for l in cl + fr]
    first = BODY[midx][1] + [l for cl, fr in BODY[midx + 1:] for l in cl + fr]
    main = E + P + P2 + first + flat + T1 + T2 + TP + T3
    nbar = sum(l == "  s_barrier" for l in P + P2 + first + flat * (nit - 1) + T1 + T2)
    assert nbar == NU + 1 + bq or abl, nbar
    traces["cons_far"] = T1 + FAR + T3
    traces["cons_a"] = main
    traces["cons_b"] = inline_fix(main)
    errs = []
    for n, t in traces.items():
        errs += check_hazards(t, n)
    if errs and not abl.strip("L"):
        raise RuntimeError("hazards:\n" + "\n".join(errs))

    out = [HEADER.rstrip(),
           "; 256 workgroups = 64 (batch, kv head) pairs x 4 key splits; wave 0 streams K/V into an LDS ring,",
           "; waves 1-4 each own one query head (32 rows); partial results are exchanged through d_ws.",
           f"; @launch grid=(256,1,1) block=(320,1,1) lds={lds}",
           '.amdgcn_target "amdgcn-amd-amdhsa--gfx950"', ".text", f".globl {NAME}", ".p2align 8",
           f".type {NAME},@function", f"{NAME}:"]
    out += E + LOADER
    out += [".p2align 6", "L_cons:"] + P + P2
    out += [".p2align 6", "L_loop:"]
    loop = []
    for i, (cl, fr) in enumerate(BODY):
        loop += cl + (["L_mid:"] if i == midx else []) + fr
    if al == 1:
        loop, nmis, ph = align8(loop)
    if al == 2:
        loop, nmis, ph = align8(loop)
        loop = ["  s_nop 0"] + loop
    out += loop
    out += T1 + T2 + ["L_poll:"] + TP + ["L_got:"] + T3
    if l2:
        out += ["L_far:"] + FAR
    for k, par in enumerate(sites):
        out += [f"L_fix{k}:", f"  s_call_b64 s[{S_RET}:{S_RET+1}], L_fixfn{par}", f"  s_branch L_ret{k}"]
    for par in range(2):
        out += [f"L_fixfn{par}:"] + FIX[par] + [f"  s_setpc_b64 s[{S_RET}:{S_RET+1}]"]
    out += ["L_end:", "  s_endpgm"]
    out += ['.section .rodata,"a"', ".p2align 6", f".amdhsa_kernel {NAME}",
            f"  .amdhsa_next_free_vgpr {NVGPR}", "  .amdhsa_next_free_sgpr 102",
            f"  .amdhsa_accum_offset {NVGPR}", "  .amdhsa_group_segment_fixed_size 0",
            "  .amdhsa_kernarg_size 48", "  .amdhsa_user_sgpr_count 2",
            "  .amdhsa_user_sgpr_kernarg_segment_ptr 1", "  .amdhsa_system_sgpr_workgroup_id_x 1",
            ".end_amdhsa_kernel"]
    return "\n".join(l.rstrip() for l in out if l is not None) + "\n"


if __name__ == "__main__":
    kw = eval("dict(%s)" % sys.argv[1]) if len(sys.argv) > 1 else {}
    sys.stdout.write(gen(**kw))
```

```python
import struct, sys, math
from asmlib import check_hazards, auto_lgkm, align8

NAME = "standalone__gqa_softmax__sampling_kernel"

HEADER = """; Kernarg layout for this problem (48 bytes, ptrs only, base s[0:1]):
;   offset   0: d_in[0] q  shape=(8, 32, 32, 128) dtype=bfloat16 strides=(262144, 8192, 256, 2) contiguous=True
;   offset   8: d_in[1] k  shape=(8, 8, 8192, 128) dtype=bfloat16 strides=(16777216, 2097152, 256, 2) contiguous=True
;   offset  16: d_in[2] v  shape=(8, 8, 8192, 128) dtype=bfloat16 strides=(16777216, 2097152, 256, 2) contiguous=True
;   offset  24: d_out     shape=(8, 32, 32, 128) dtype=bfloat16 (2 bytes/elem)
"""


def f32(x):
    return "0x%08x" % struct.unpack("<I", struct.pack("<f", x))[0]


V_M = 2
V_T0, V_T1, V_T2, V_T3 = 4, 5, 6, 7
V_LANE16 = 8
V_FADDR = 9
V_OUTA = 10
V_TR = 11
V_KA = 12
V_VA = 16
V_X = 24
V_FR = 32
V_O = 64
V_S = 128
V_P = 160
V_L = 176
V_ONE = 192
V_NM = 196
V_JUNK = 204
V_MLA = 206
V_Q = 208
NVGPR = 240

S_K, S_V, S_Q, S_OUT, S_WS, S_DBG = 16, 20, 24, 28, 32, 36
S_BH, S_SP, S_W = 40, 41, 42
S_MODE = 43
S_C, S_THR = 44, 45
S_CNT = 46
S_T0, S_T1, S_T2, S_T3 = 50, 51, 52, 53
S_OD = 54
S_OI = 57
S_ML = 58
S_F = 62
S_FO = 63
S_DB = 64
S_RET = 66
S_ST = 70

OFF_PR = 0x1c000
PR_STRIDE = (1 << 20) + 256
OFF_T = 20 << 20
NU = 64


def vr(base, n):
    return f"v[{base}:{base+n-1}]"


def srd(b):
    return f"s[{b}:{b+3}]"


def cost(l):
    return 2 if l.split()[0].startswith("v_exp") else 1


def spread(fillers, weights):
    nslots = len(weights)
    tot = sum(cost(f) for f in fillers)
    wt = sum(weights)
    out = [[] for _ in range(nslots)]
    acc = k = cw = 0
    for s in range(nslots):
        cw += weights[s]
        tgt = tot * cw / wt
        while k < len(fillers) and acc + cost(fillers[k]) / 2.0 <= tgt + 1e-9:
            out[s].append(fillers[k])
            acc += cost(fillers[k])
            k += 1
    out[-1] += fillers[k:]
    return out


def sched(up, step=1, lo=20, hold=1, dec=1):
    l = [0]
    x = lo
    for d in up:
        x += d
        l.append(x)
    l += [x] * hold
    while x > lo + dec:
        x -= dec
        l += [x] * step
    return tuple(l)


def gen(W=22, up=(8, 6, 5, 4, 2, 1), hold=1, stg=3, rk=1, nlv=1, th=(14, 26), bias=(-1, -7, -3, -8, 7, 5, 2, -4), hsn=3, wsl=1, lw=0, plp="nt", pfp="", hpol="sc1", psp="", psh=2, lpol="sc1", ppol="sc1", slp=0, pol="nt", grp="xcd2", bf16p=1, THR=2.0 ** 24, diag=0,
        opol="", qpol="", prio=3, abl="", pre=1, pk=0, al=1, LPOS=2, WG=1, RD=4, NSL=8, l2=1, warm=0, bal=1, lds=98304, NE=10, pf=4, il=1, xph=0, pfpos=0, npol="", cpf=2, chain=1, pvo=0, bq=1, probe=0, shs=0, pfw=16, pfn=4, touch=2, tiny=1, npl=0, tord=1, hs=3, rpol="", clr=0, late=-1, rot=0, xw=(7, 15, 5, 17, 22, 5, 13, 6), qlds=1, fastp=1, pfs=(0, 10, 7, 4, 3, 1)):
    traces = {}
    NE = min(NE, 4 if pre == 1 else 7 if pk else 10)
    nstamp = [0]

    def stamp(dst):
        if diag:
            k = nstamp[0]
            nstamp[0] += 1
            dst.append(f"  s_memrealtime s[{S_ST+2*k}:{S_ST+2*k+1}]")
            dst.append("  s_waitcnt lgkmcnt(0)")

    R = 2048 if bf16p else 4096
    GB = 17 if bf16p else 18
    SLAB = 3 * R + 256
    OFF_F = 16 * SLAB
    VBASE = NSL * 8192
    QBASE = 2 * VBASE if NSL == 4 else VBASE + 32768
    LDS_MODE = 2 * VBASE + (32768 if qlds and NSL == 4 else 0)
    LDS_JUNK = LDS_MODE + 64
    lds = max(lds, LDS_MODE + 64 + 256)
    assert lds <= 163840
    c = math.log2(math.e) / math.sqrt(128.0)
    blk = lambda d, t: [f"  s_and_b32 s{d}, s{S_BH}, 7", f"  s_lshl_b32 s{d}, s{d}, {GB+3}", f"  s_lshr_b32 s{t}, s{S_BH}, 3",
                        f"  s_lshl_b32 s{t}, s{t}, {GB}", f"  s_add_u32 s{d}, s{d}, s{t}"] if (wsl and grp != "xcd") else [f"  s_lshl_b32 s{d}, s{S_BH}, {GB}"]
    E = ["  s_cmp_ge_u32 s2, 256", "  s_cbranch_scc1 L_end"]
    if diag == 6:
        E += ["  s_memrealtime s[68:69]"]
    E += [
        "  s_load_dwordx4 s[4:7], s[0:1], 0",
        "  s_load_dwordx4 s[8:11], s[0:1], 16",
        "  s_load_dwordx4 s[12:15], s[0:1], 32",
        "  v_lshrrev_b32 v1, 6, v0",
        "  v_and_b32 v0, 63, v0",
        "  v_readfirstlane_b32 s3, v1",
    ]
    if grp == "xcd":
        E += [
            f"  s_and_b32 s{S_T0}, s2, 7",
            f"  s_bfe_u32 s{S_SP}, s2, {3 | (2 << 16)}",
            f"  s_lshr_b32 s{S_T1}, s2, 5",
            f"  s_lshl_b32 s{S_BH}, s{S_T0}, 3",
            f"  s_add_u32 s{S_BH}, s{S_BH}, s{S_T1}",
        ]
    elif grp == "xcd2":
        E += ([f"  s_add_u32 s{S_T0}, s2, {rot}", f"  s_and_b32 s{S_T0}, s{S_T0}, 7"] if rot else [f"  s_and_b32 s{S_T0}, s2, 7"]) + [
            f"  s_bfe_u32 s{S_SP}, s2, {3 | (2 << 16)}",
            f"  s_lshr_b32 s{S_T1}, s2, 5",
            f"  s_lshl_b32 s{S_BH}, s{S_T1}, 3",
            f"  s_add_u32 s{S_BH}, s{S_BH}, s{S_T0}",
        ]
    elif grp == "lo":
        E += [f"  s_lshr_b32 s{S_BH}, s2, 2", f"  s_and_b32 s{S_SP}, s2, 3"]
    if late >= 0:
        E += [f"  s_cmp_lg_u32 s{S_SP}, {late}", "  s_cbranch_scc1 L_nolate", "  s_mov_b32 s47, 20", "L_late:", "  s_sleep 100",
              "  s_sub_u32 s47, s47, 1", "  s_cmp_lg_u32 s47, 0", "  s_cbranch_scc1 L_late", "L_nolate:"]
    E += ["  s_cmp_lg_u32 s3, 0", "  s_cbranch_scc1 L_cons"]

    LD = []
    if cpf:
        LD += ["  s_getpc_b64 s[48:49]", "L_pc:", "  v_lshlrev_b32 v5, 7, v0", "  v_mov_b32 v9, s49"]
        for i in range(cpf + 1):
            LD += (["  v_add_u32 v5, 8192, v5"] if i else []) + ["  v_min_u32 v6, L_end - L_pc, v5", "  v_add_co_u32 v6, vcc, s48, v6", "  s_nop 1",
                   "  v_addc_co_u32 v7, vcc, 0, v9, vcc", "  global_load_dword v8, v[6:7], off"]
    LD += [
        f"  s_setprio {prio}",
        f"  s_lshl_b32 s{S_T0}, s{S_BH}, 21",
        f"  s_lshl_b32 s{S_T1}, s{S_SP}, {10 if il else 19}",
        f"  s_add_u32 s{S_T0}, s{S_T0}, s{S_T1}",
        "  v_lshrrev_b32 v3, 4, v0",
        "  v_and_b32 v4, 15, v0",
        "  v_xor_b32 v5, v3, v4",
        "  v_lshlrev_b32 v5, 4, v5",
        "  v_lshl_add_u32 v10, v3, 8, v5",
        "  v_xor_b32 v11, 64, v10",
        "  v_xor_b32 v12, 0x80, v10",
        "  v_xor_b32 v13, 0xc0, v10",
        "  v_lshlrev_b32 v5, 1, v3",
        "  v_xor_b32 v5, v5, v4",
        "  v_lshlrev_b32 v5, 4, v5",
        "  v_lshl_add_u32 v14, v3, 8, v5",
        "  v_xor_b32 v15, 0x80, v14",
    ] + ([
        "  v_mov_b32 v25, v11", "  v_mov_b32 v26, v12", "  v_mov_b32 v27, v13",
        f"  s_lshl_b32 s{S_T3}, s{S_BH}, 15", f"  s_mov_b32 s{S_Q+2}, 32768", f"  s_mov_b32 s{S_Q+3}, 0x20000",
    ] if qlds else []) + ([
        "  v_add_u32 v11, 3072, v11", "  v_add_u32 v12, 6144, v12", "  v_add_u32 v13, 9216, v13",
        "  v_add_u32 v16, 6144, v14", "  v_add_u32 v17, 9216, v15", "  v_add_u32 v15, 3072, v15",
        f"  s_sub_u32 s{S_K+2}, 0x200000, s{S_T1}",
    ] if il else [f"  s_mov_b32 s{S_K+2}, 0x80000"]) + [
        f"  s_mov_b32 s{S_K+3}, 0x20000",
        f"  s_mov_b32 s{S_V+2}, s{S_K+2}",
        f"  s_mov_b32 s{S_V+3}, 0x20000",
        f"  s_lshl_b32 s56, s{S_BH}, 15",
        "  s_mov_b32 s54, 0",
        "  s_mov_b32 s55, 0",
        "  s_waitcnt lgkmcnt(0)",
    ]
    QD = []
    if qlds:
        QD += [f"  s_add_u32 s{S_Q}, s4, s{S_T3}", f"  s_addc_u32 s{S_Q+1}, s5, 0"]
        for g in range(8):
            QD += [f"  s_mov_b32 m0, {QBASE + g*4096}", f"  s_movk_i32 s{S_T2}, {g*4096}"]
            for j in range(4):
                QD.append(f"  buffer_load_dwordx4 v{10 if j == 0 else 24+j}, {srd(S_Q)}, s{S_T2} offen offset:{j*1024} {qpol} lds")
    KV = [
        f"  s_add_u32 s{S_K}, s6, s{S_T0}",
        f"  s_addc_u32 s{S_K+1}, s7, 0",
        f"  s_add_u32 s{S_V}, s8, s{S_T0}",
        f"  s_addc_u32 s{S_V+1}, s9, 0",
    ]
    for i in range(probe):
        LD += [f"  s_lshl_b32 s47, s{S_BH}, 21", f"  s_add_u32 s47, s47, {(64 + 128 * i) << 20}", "  v_mov_b32 v30, s47",
               "  global_load_dword v31, v30, s[14:15]", "  s_waitcnt vmcnt(0)"]
    if touch:
        LD += KV + [f"  s_mov_b32 m0, {LDS_JUNK}", "  s_mov_b64 exec, 1",
                    f"  buffer_load_dword v10, {srd(S_K)}, 0 offen lds", f"  buffer_load_dword v10, {srd(S_V)}, 0 offen lds"]
        if touch == 2:
            LD += [f"  v_mov_b32 v30, s{S_T3}", "  global_load_lds_dword v30, s[10:11]"]
        LD += ["  s_mov_b64 exec, -1"]
        KV = []
    if qlds == 1:
        LD += QD
    LD += KV
    S_CD, S_B, S_TAB, S_PF, S_N, S_BE, S_RK, S_SLOT, S_MASK, S_PR, S_TH = 56, 57, 58, 60, 61, 62, 63, 65, 66, 68, 72
    LV = list(range(-nlv, nlv + 1)) if rk else [0]
    NX = 2 if rk else 0
    lo = W - 1 + max(LV) + NX
    assert 16 < lo < 32
    fld = 2 | ((VBASE.bit_length() - 1) << 16)
    stubs = []

    def dma(which, j):
        go, sr = (54, S_K) if which == "K" else (55, S_V)
        return f"  buffer_load_dwordx4 v{(10 if which == 'K' else 14) + j}, {srd(sr)}, s{go} offen offset:{j*1024} {pol} lds"

    def part(dst, which, before, after=lambda: []):
        go = 54 if which == "K" else 55
        for g in range(2):
            dst += [f"  s_bfe_u32 m0, s{go}, {fld}"] if which == "K" else [f"  s_bfe_u32 s{S_T2}, s{go}, {fld}", f"  s_or_b32 m0, s{S_T2}, {VBASE}"]
            for j in range(4):
                w_ = before()
                dst += (w_ or (["  s_nop 0"] if j == 0 else [])) + [dma(which, j)] + after()
            dst.append(f"  s_add_u32 s{go}, s{go}, 16384")

    st = dict(pos=0, pend=[])

    def static():
        o = []
        x = W - 1
        if st["pos"] == W:
            o += [f"  s_waitcnt vmcnt({W})", "  s_barrier"]
        if st["pos"] > x:
            o.append(f"  s_waitcnt vmcnt({x})")
            while st["pend"] and st["pos"] - st["pend"][0] >= x:
                o.append("  s_barrier")
                st["pend"].pop(0)
        st["pos"] += 1
        return o
    part(LD, "K", static); part(LD, "K", static)
    st["pend"].append(16)
    setup = [
        f"  s_mov_b32 s{S_DBG}, s12", f"  s_mov_b32 s{S_DBG+1}, s13", f"  s_mov_b32 s{S_DBG+2}, 256", f"  s_mov_b32 s{S_DBG+3}, 0x20000",
        f"  s_lshl_b32 s{S_DB}, s{S_BH}, 2", f"  v_mov_b32 v20, {LDS_MODE}",
    ] + blk(S_T2, S_T1) + [f"  s_add_u32 s{S_WS}, s14, s{S_T2}", f"  s_addc_u32 s{S_WS+1}, s15, 0",
        f"  s_mov_b32 s{S_WS+2}, {1 << GB}", f"  s_mov_b32 s{S_WS+3}, 0x20000",
        f"  v_and_b32 v24, {8*pfn-1}, v0", "  v_lshlrev_b32 v24, 7, v24", f"  s_mul_i32 s{S_PF}, s{S_SP}, {4*SLAB}",
    ]
    lag1 = W - 1 + up[0]
    tabv = [d + 1 for d in up[1:]] + [1] * hold
    assert len(tabv) <= 16 and max(tabv) <= 15 and lag1 >= lo
    bend = len(tabv) + (W - 1 + sum(up)) - lo
    tab = sum(v << (4 * i) for i, v in enumerate(tabv))
    setup += [f"  s_mul_i32 s{S_T2}, s{S_SP}, {stg}", f"  s_add_u32 s{S_CD}, s{S_T2}, {32 + lag1 - 48}", f"  s_add_u32 s{S_BE}, s{S_T2}, {bend}",
              f"  s_mov_b32 s{S_B}, 0", f"  s_mov_b32 s{S_TAB}, {tab & 0xffffffff}", f"  s_mov_b32 s{S_TAB+1}, {tab >> 32}",
              f"  s_mov_b32 s{S_N}, 0"]
    for sp in range(4):
        cd, nb_, t_, done = sp * stg + 32 + lag1 - 48, 0, tab, 0
        for p in range(48, 16 * 63):
            u = p // 16
            need = (u + 1 - NSL) if p % 16 < 8 else (u - 1 - NSL + 2)
            assert done >= need, (sp, p)
            if cd == 0:
                done += 1
                assert p - 16 * (done + 1) >= lo, (sp, p, done)
                nb_ += 1
                cd = (t_ & 15) + 14 + (1 if nb_ > bend + sp * stg else 0)
                t_ >>= 4
                last = p - 16 * (done + 1)
            else:
                cd -= 1
        assert done == 60 and last == lo, (sp, done, last)
    if rk:
        setup += [f"  s_add_u32 s{S_PR}, s14, {OFF_PR}", f"  s_addc_u32 s{S_PR+1}, s15, 0", f"  s_mov_b32 s{S_PR+2}, {8*PR_STRIDE}", f"  s_mov_b32 s{S_PR+3}, 0x20000",
                  f"  s_and_b32 s{S_T2}, s2, 7", f"  s_mul_i32 s{S_T1}, s{S_T2}, {PR_STRIDE}",
                  "  v_and_b32 v28, 31, v0", f"  v_lshl_add_u32 v29, v28, {psh}, s{S_T1}",
                  ] + (["  v_lshrrev_b32 v5, 2, v28", "  v_lshlrev_b32 v5, 5, v5", "  v_and_b32 v28, 3, v28", "  v_add_u32 v28, v28, v5"] if grp != "xcd" else []) + [
                  f"  s_lshl_b32 s{S_T2}, s{S_T2}, {2 if grp != 'xcd' else 5}", f"  v_add_u32 v28, s{S_T2}, v28",
                  f"  s_lshr_b32 s{S_SLOT}, s2, 3", f"  s_lshl_b32 s{S_SLOT}, s{S_SLOT}, {psh}", f"  s_add_u32 s{S_SLOT}, s{S_SLOT}, s{S_T1}",
                  "  v_mov_b32 v30, 0", "  v_mov_b32 v23, 0"]
        setup += [f"  s_movk_i32 s{S_TH+i}, {-1000 if i < nlv else 1000}" for i in range(2 * nlv)]
    LD += setup
    for _ in range(2):
        part(LD, "K", static); part(LD, "V", static)
    assert not st["pend"] and st["pos"] == 48

    def passes(lv):
        o = []
        k = [0]

        def before():
            x = W - 1 + lv
            k[0] += 1
            return [f"  s_waitcnt vmcnt({x + (NX if k[0] - 1 < x else 0)})"]

        def after():
            i = len(stubs)
            stubs.append(i)
            return [f"  s_sub_u32 s{S_CD}, s{S_CD}, 1", f"  s_cbranch_scc1 L_bar{i}", f"L_barret{i}:"]
        for _ in range(2):
            part(o, "K", before, after); part(o, "V", before, after)
        return o + [f"  s_cmp_lg_u32 s{S_N}, 30", "  s_cbranch_scc1 L_ldloop"]
    STUB = ["  s_barrier", f"  s_and_b32 s{S_CD}, s{S_TAB}, 15", f"  s_lshr_b64 s[{S_TAB}:{S_TAB+1}], s[{S_TAB}:{S_TAB+1}], 4",
            f"  s_add_u32 s{S_B}, s{S_B}, 1", f"  s_cmp_gt_u32 s{S_B}, s{S_BE}", f"  s_addc_u32 s{S_CD}, s{S_CD}, 14"]
    D0 = []
    if rk:
        D0 += [f"  v_cmp_le_u32 vcc, s{S_N}, v30", f"  s_add_u32 s{S_N}, s{S_N}, 1", f"  v_mov_b32 v31, s{S_N}",
               f"  s_bcnt1_i32_b32 s{S_RK}, vcc_lo",
               f"  buffer_load_dword v30, v29, {srd(S_PR)}, 0 offen {plp}", "  s_mov_b64 exec, 1",
               f"  buffer_store_dword v31, off, {srd(S_PR)}, s{S_SLOT} {psp}", "  s_mov_b64 exec, -1"]
        if "1" in abl:
            D0[-2] = D0[-4].replace("v30", "v31", 1)
        if "2" in abl:
            D0[-4] = D0[-2]
    else:
        D0 += [f"  s_add_u32 s{S_N}, s{S_N}, 1"]
    D0 += [f"  s_cmp_eq_u32 s{S_N}, {hsn}", "  s_cbranch_scc1 L_hs0", f"  s_cmp_eq_u32 s{S_N}, {hsn+2}", "  s_cbranch_scc1 L_hs1", "L_go:"]
    for i in range(nlv if rk else 0):
        D0 += [f"  s_cmp_lt_i32 s{S_RK}, s{S_TH+i}", f"  s_cbranch_scc1 L_lv{i}",
               f"  s_cmp_ge_i32 s{S_RK}, s{S_TH+2*nlv-1-i}", f"  s_cbranch_scc1 L_lv{2*nlv-i}"]
    D1 = passes(0)
    DA_ = []
    for i, lv in enumerate(LV):
        if lv:
            DA_ += [f"L_lv{i}:"] + passes(lv) + ["  s_branch L_ldtail"]
    if tiny:
        DA_ += [".p2align 6", "L_barfn:"] + STUB + ["  s_setpc_b64 s[76:77]"]
    for i in stubs:
        DA_ += [f"L_bar{i}:"] + (["  s_call_b64 s[76:77], L_barfn"] if tiny else STUB) + [f"  s_branch L_barret{i}"]
    H0 = ["  v_mov_b32 v22, 0", f"  buffer_load_dword v22, off, {srd(S_DBG)}, s{S_DB} {hpol}"]
    if rk:
        H0 += [f"  buffer_load_ubyte v23, v28, {srd(S_DBG)}, 0 offen {hpol}"]
    H0 += ["  s_branch L_go"]
    chk4 = lambda m, lab: [f"  v_and_b32 v21, {m}, v22", f"  v_cmp_ne_u32 vcc, {m}, v21", f"  s_cbranch_vccz {lab}"]
    hello = lambda bits: [f"  s_getreg_b32 s{S_T2}, hwreg(HW_REG_XCC_ID, 0, 3)", f"  s_or_b32 s{S_T2}, s{S_T2}, {bits}", f"  v_mov_b32 v21, s{S_T2}",
                          f"  s_add_u32 s{S_T2}, s{S_DB}, s{S_SP}", f"  buffer_store_byte v21, off, {srd(S_DBG)}, s{S_T2} sc1"]
    memrd = ["  v_mov_b32 v22, 0", f"  buffer_atomic_or v22, off, {srd(S_DBG)}, s{S_DB} sc0 sc1", "  s_waitcnt vmcnt(0)"]
    H1 = []
    if rk:
        bt = sum(((bias[i] + 8) & 15) << (4 * i) for i in range(8))
        H1 += [f"  s_getreg_b32 s{S_T2}, hwreg(HW_REG_XCC_ID, 0, 3)", f"  s_or_b32 s{S_T1}, s{S_T2}, 0x80",
               f"  v_cmp_ne_u32 vcc, s{S_T1}, v23", "  s_cbranch_vccnz L_nork",
               f"  s_lshl_b32 s{S_T2}, s{S_T2}, 2", f"  s_lshr_b32 s{S_T2}, {bt}, s{S_T2}", f"  s_and_b32 s{S_T2}, s{S_T2}, 15"]
        H1 += [f"  s_sub_i32 s{S_TH+i}, {th[i] + 8}, s{S_T2}" for i in range(2 * nlv)] + ["L_nork:"]
    H1 += chk4("0x80808080", "L_hs2") + ["  s_mov_b64 exec, 1", f"  s_add_u32 s{S_T2}, s{S_DB}, s{S_SP}", "L_hs1a:",
           f"  buffer_load_ubyte v21, off, {srd(S_DBG)}, s{S_T2} sc1", "  s_waitcnt vmcnt(0)", "  v_cmp_eq_u32 vcc, 0, v21", "  s_cbranch_vccnz L_hs1a"] + hello("0x80") + ["L_hs1b:",
           f"  buffer_load_dword v22, off, {srd(S_DBG)}, s{S_DB} sc1", "  s_waitcnt vmcnt(0)"] + chk4("0x80808080", "L_hs2") \
        + memrd + chk4("0x80808080", "L_hs2") + ["  s_branch L_hs1b"]
    H2 = ["  s_mov_b64 exec, 1", "  v_alignbit_b32 v21, v22, v22, 8", "  v_xor_b32 v21, v21, v22", "  v_and_b32 v21, 0x07070707, v21",
          "  v_cmp_ne_u32 vcc, 0, v21", "  v_mov_b32 v21, 4", "  s_cbranch_vccnz L_hsfar", "L_hs3:",
          "  ds_write_b32 v20, v21", "  s_mov_b64 exec, -1", "  s_waitcnt lgkmcnt(0)",
          "  v_and_b32 v21, 3, v0", "  v_lshlrev_b32 v21, 7, v21", f"  s_mov_b32 s{S_T2}, {OFF_F}",
          f"  buffer_load_dword v23, v21, {srd(S_WS)}, s{S_T2} offen", "  s_branch L_go"]
    HX = ["L_hsfar:", "  s_mov_b64 exec, 15", "  v_lshlrev_b32 v21, 7, v0", "  v_mov_b32 v22, 0",
          f"  s_lshl_b32 s{S_T2}, s{S_SP}, 2", f"  s_add_u32 s{S_T2}, s{S_T2}, {OFF_F}",
          f"  buffer_store_dword v22, v21, {srd(S_WS)}, s{S_T2} offen sc1", "  s_mov_b64 exec, 1", "  s_waitcnt vmcnt(0)"] \
        + hello("0xc0") + ["L_hsfar2:"] + memrd + chk4("0x40404040", "L_hsfar3") + ["  s_branch L_hsfar2",
          "L_hsfar3:", "  v_mov_b32 v21, 0", "  s_branch L_hs3"]
    D6 = []
    st.update(pos=16 * 63, pend=[16 * 62, 16 * 63])
    part(D6, "V", static); st["pend"].append(st["pos"])
    part(D6, "V", static); st["pend"].append(st["pos"])
    D6 += [f"  s_mov_b32 m0, {LDS_JUNK}"]
    for q in range(-(-25 // pfn)):
        while st["pend"] and st["pos"] - st["pend"][0] >= pfw - 1:
            D6 += [f"  s_waitcnt vmcnt({st['pos'] - st['pend'].pop(0)})", "  s_barrier"]
        D6 += [f"  s_waitcnt vmcnt({pfw-1})", f"  buffer_load_dword v24, {srd(S_WS)}, s{S_PF} offen {pfp} lds", f"  s_add_u32 s{S_PF}, s{S_PF}, {1024*pfn}"]
        st["pos"] += 1
    for e_ in st["pend"]:
        D6 += [f"  s_waitcnt vmcnt({st['pos'] - e_})", "  s_barrier"]
    D6.append("  s_endpgm")
    assert sum(l == "  s_barrier" for l in LD + D6) + 60 == NU + 2
    traces["loader"] = E + LD + D0 + H0 + D1 + D0 + H1 + H1 + H2 + HX + H2 + DA_ + D0 + D1 + D6
    LOADER = LD + ["L_ldloop:"] + D0 + D1 + ["L_ldtail:"] + D6 + ["L_hs0:"] + H0 + ["L_hs1:"] + H1 + ["L_hs2:"] + H2 + HX + DA_

    P = []
    stamp(P)
    Qf = lambda qb, ks: V_Q + 4 * (qb * 4 + ks)
    P += [
        f"  s_sub_u32 s{S_W}, s3, 1",
        f"  s_lshl_b32 s{S_DB}, s{S_BH}, 2",
        f"  s_add_u32 s{S_T1}, s{S_DB}, s{S_W}",
        f"  s_lshl_b32 s{S_T2}, s{S_T1}, 13",
        f"  v_and_b32 v{V_T0}, 15, v0",
        f"  v_lshrrev_b32 v{V_T1}, 4, v0",
        f"  v_lshlrev_b32 v{V_T2}, 4, v{V_T1}",
        f"  v_lshl_add_u32 v{V_T3}, v{V_T0}, 8, v{V_T2}",
        f"  s_mov_b32 s{S_Q+2}, 8192",
        f"  s_mov_b32 s{S_Q+3}, 0x20000",
        f"  s_movk_i32 s{S_T3}, 0x1000",
    ] + blk(S_T0, S_T1) + [
        "  s_waitcnt lgkmcnt(0)",
        f"  s_add_u32 s{S_Q}, s4, s{S_T2}",
        f"  s_addc_u32 s{S_Q+1}, s5, 0",
    ]
    for qb in range(2):
        for ks in range(4):
            so = f"s{S_T3}" if qb else "0"
            if not qlds:
                P.append(f"  buffer_load_dwordx4 {vr(Qf(qb,ks),4)}, v{V_T3}, {srd(S_Q)}, {so} offen offset:{ks*64} {qpol}")
    P += [
        f"  s_add_u32 s{S_WS}, s14, s{S_T0}",
        f"  s_addc_u32 s{S_WS+1}, s15, 0",
        f"  s_mov_b32 s{S_WS+2}, {1 << GB}",
        f"  s_mov_b32 s{S_WS+3}, 0x20000",
        f"  s_add_u32 s{S_OUT}, s10, s{S_T2}",
        f"  s_addc_u32 s{S_OUT+1}, s11, 0",
        f"  s_mov_b32 s{S_OUT+2}, 8192",
        f"  s_mov_b32 s{S_OUT+3}, 0x20000",
        f"  s_lshl_b32 s{S_F}, s{S_W}, 7",
        f"  s_add_u32 s{S_F}, s{S_F}, {OFF_F}",
        f"  s_lshl_b32 s{S_FO}, s{S_SP}, 2",
        f"  s_add_u32 s{S_FO}, s{S_FO}, s{S_F}",
        f"  v_mov_b32 v{V_T2}, 0",
        "  s_mov_b64 exec, 1",
        f"  buffer_store_dword v{V_T2}, off, {srd(S_WS)}, s{S_FO} {rpol}" if "Z" not in abl else "  s_nop 0",
    ]
    if rk:
        P += [f"  s_add_u32 s{S_Q}, s14, {OFF_PR}", f"  s_addc_u32 s{S_Q+1}, s15, 0", f"  s_mov_b32 s{S_Q+2}, {8*PR_STRIDE}",
              f"  s_and_b32 s{S_T1}, s2, 7", f"  s_mul_i32 s{S_T1}, s{S_T1}, {PR_STRIDE}", f"  s_lshr_b32 s{S_T0}, s2, 3",
              f"  s_lshl_b32 s{S_T0}, s{S_T0}, {psh}", f"  s_add_u32 s{S_T1}, s{S_T1}, s{S_T0}",
              f"  buffer_store_dword v{V_T2}, off, {srd(S_Q)}, s{S_T1}"]
    if warm:
        P.append(f"  buffer_load_dword v{V_JUNK}, off, {srd(S_OUT)}, 0")
    P += ["  s_mov_b64 exec, -1",
          f"  s_lshl_b32 s{S_OI}, s{S_SP}, 2", f"  s_add_u32 s{S_OI}, s{S_OI}, s{S_W}", f"  s_mul_i32 s{S_OI}, s{S_OI}, {SLAB}"]
    if clr:
        P += [f"  v_lshlrev_b32 v{V_T2}, 4, v0", f"  s_add_u32 s{S_T1}, s{S_OI}, 4096"] + [f"  v_mov_b32 v{V_X+i}, -1" for i in range(4)]
        for i in range(6):
            P.append(f"  buffer_store_dwordx4 {vr(V_X,4)}, v{V_T2}, {srd(S_WS)}, s{S_OI if i < 4 else S_T1} offen offset:{(i&3)*1024}")
        P += ["  s_mov_b64 exec, 0xffff", f"  buffer_store_dwordx4 {vr(V_X,4)}, v{V_T2}, {srd(S_WS)}, s{S_T1} offen offset:2048", "  s_mov_b64 exec, -1", "  s_nop 0"]
    PF = [f"  v_min_u32 v{V_T2}, {SLAB // 128 - 1}, v0", f"  v_lshlrev_b32 v{V_T2}, 7, v{V_T2}",
          f"  buffer_load_dword v{V_JUNK+1}, v{V_T2}, {srd(S_WS)}, s{S_OI} offen"]
    assert bf16p or not pf
    if pf == 1:
        P += PF
    P += [
        f"  v_xor_b32 v{V_T2}, v{V_T0}, v{V_T1}",
        f"  v_lshlrev_b32 v{V_T2}, 4, v{V_T2}",
        f"  v_lshl_add_u32 v{V_KA}, v{V_T0}, 8, v{V_T2}",
    ]
    for ks in range(1, 4):
        P.append(f"  v_xor_b32 v{V_KA+ks}, {ks*64}, v{V_KA}")
    P += [
        f"  v_lshrrev_b32 v{V_T2}, 2, v0",
        f"  v_lshlrev_b32 v{V_T3}, 8, v{V_T2}",
        f"  v_and_b32 v{V_T2}, 7, v{V_T2}",
        f"  s_lshl_b32 s{S_T2}, s{S_SP}, 1",
        f"  v_xor_b32 v{V_T2}, s{S_T2}, v{V_T2}",
        f"  v_lshl_add_u32 v{V_T3}, v{V_T2}, 5, v{V_T3}",
        f"  v_and_b32 v{V_T2}, 3, v0",
        f"  v_lshl_add_u32 v{V_T3}, v{V_T2}, 3, v{V_T3}",
        f"  v_lshlrev_b32 v{V_FADDR}, 2, v{V_T2}",
        f"  v_add_u32 v{V_VA}, {VBASE}, v{V_T3}",
    ]
    for db in range(1, 8):
        P.append(f"  v_xor_b32 v{V_VA+db}, {db*32}, v{V_VA}")
    P += [
        f"  v_cmp_eq_u32 vcc, 0, v{V_T2}",
        f"  v_mov_b32 v{V_T3}, 0x3f803f80",
        f"  v_lshlrev_b32 v{V_LANE16}, 4, v0",
        f"  v_cndmask_b32 v{V_ONE}, 0, v{V_T3}, vcc",
        f"  v_cndmask_b32 v{V_ONE+1}, 0, v{V_T3}, vcc",
        f"  v_cndmask_b32 v{V_ONE+2}, 0, v{V_T3}, vcc",
        f"  v_cndmask_b32 v{V_ONE+3}, 0, v{V_T3}, vcc",
        f"  s_mov_b32 s{S_C}, {f32(c)}",
        f"  s_mov_b32 s{S_THR}, {f32(THR)}",
    ]
    for i in range(32):
        P.append(f"  v_mov_b64 v[{V_O+2*i}:{V_O+2*i+1}], 0")
    X = []
    for j in range(1, 4):
        X += [f"  s_xor_b32 s{S_T1}, s{S_SP}, {j}", f"  s_lshl_b32 s{S_T1}, s{S_T1}, 2", f"  s_add_u32 s{S_T1}, s{S_T1}, s{S_W}",
              f"  s_mul_i32 s{S_T1}, s{S_T1}, {SLAB}",
              f"  s_add_u32 s{S_ML+j}, s{S_T1}, {3*R}", f"  s_add_u32 s{S_OD+j-1}, s{S_T1}, {(j-1)*R}"]
    X += [f"  s_add_u32 s{S_ML}, s{S_OI}, {3*R}", f"  v_and_b32 v{V_MLA}, 0xf0, v{V_LANE16}"]
    X += [
        f"  v_and_b32 v{V_T2}, 15, v0", f"  v_lshlrev_b32 v{V_OUTA}, 8, v{V_T2}",
        f"  v_bfe_u32 v{V_T2}, v0, 4, 1", f"  v_lshl_add_u32 v{V_OUTA}, v{V_T2}, 5, v{V_OUTA}",
        f"  v_lshrrev_b32 v{V_T2}, 5, v0", f"  v_lshl_add_u32 v{V_OUTA}, v{V_T2}, 4, v{V_OUTA}",
        f"  s_lshl_b32 s{S_T2}, s{S_SP}, 6", f"  v_add_u32 v{V_OUTA}, s{S_T2}, v{V_OUTA}",
    ]
    if qlds:
        X += [f"  s_lshl_b32 s{S_T2}, s{S_W}, 13", f"  s_add_u32 s{S_T2}, s{S_T2}, {QBASE}"]
        X += [f"  v_add_u32 v{V_X+ks}, s{S_T2}, v{V_KA+ks}" for ks in range(4)]
        P += X + (PF[:2] if pf in (2, 3) else []) + ["  s_waitcnt vmcnt(0)", "  s_barrier"] + (PF[2:] if pf == 2 else [])
        P += [f"  ds_read_b128 {vr(Qf(qb,ks),4)}, v{V_X+ks} offset:{qb*4096}" for qb in range(2) for ks in range(4)]
        P += ["  s_waitcnt lgkmcnt(0)"]
    elif pf >= 4:
        P += ["  s_barrier"] + X + ["  s_waitcnt vmcnt(0)"]
    elif pf >= 2:
        P += ["  s_barrier"] + X + PF[:2] + ["  s_waitcnt vmcnt(0)"] + (PF[2:] if pf == 2 else [])
    else:
        P += ["  s_barrier"] + X + [f"  s_waitcnt vmcnt({(1 if warm else 0) + (1 if pf else 0)})"]
    if pre == 1:
        P += [f"  v_mov_b32 v{V_T2}, s{S_C}"]
        for i in range(33):
            q = V_Q + i
            t = V_S + 2 * (i & 3)
            if i < 32:
                P += [f"  v_lshlrev_b32 v{t}, 16, v{q}", f"  v_and_b32 v{t+1}, 0xffff0000, v{q}",
                      f"  v_pk_mul_f32 v[{t}:{t+1}], v[{t}:{t+1}], v[{V_T2}:{V_T2+1}] op_sel_hi:[1,0]"]
            if i:
                t = V_S + 2 * ((i - 1) & 3)
                P += [f"  v_cvt_pk_bf16_f32 v{q-1}, v{t}, v{t+1}"]
    if bq:
        assert qlds == 1
        P += ["  s_barrier"]
    stamp(P)
    PA = [f"  s_mov_b32 s{S_DBG}, s12", f"  s_mov_b32 s{S_DBG+1}, s13", f"  s_mov_b32 s{S_DBG+2}, 256", f"  s_mov_b32 s{S_DBG+3}, 0x20000"]
    if hs:
        PA += [f"  s_getreg_b32 s{S_T2}, hwreg(HW_REG_XCC_ID, 0, 3)", f"  s_or_b32 s{S_T2}, s{S_T2}, 0x80", f"  v_mov_b32 v{V_T2}, s{S_T2}",
               f"  s_add_u32 s{S_T2}, s{S_DB}, s{S_SP}", "  s_mov_b64 exec, 1",
               f"  buffer_store_byte v{V_T2}, off, {srd(S_DBG)}, s{S_T2} {'sc1' if hs == 1 else ''}", "  s_mov_b64 exec, -1"]
    else:
        if l2:
            PA += [f"  s_getreg_b32 s{S_T2}, hwreg(HW_REG_XCC_ID, 0, 3)", f"  s_mul_i32 s{S_T2}, s{S_T2}, 3",
                   f"  s_lshl_b32 s{S_T2}, 16, s{S_T2}", f"  s_add_u32 s{S_T2}, s{S_T2}, 1", f"  v_mov_b32 v{V_T2}, s{S_T2}"]
        else:
            PA += [f"  v_mov_b32 v{V_T2}, 1"]
        PA += [
            "  s_mov_b64 exec, 1",
            f"  buffer_atomic_add v{V_T2}, off, {srd(S_DBG)}, s{S_DB} sc1",
            "  s_mov_b64 exec, -1",
        ]
    if "H" in abl:
        PA = []

    Sb = lambda par, kbl, qb: V_S + 16 * par + 4 * (kbl * 2 + qb)
    Pb = lambda par, qb: V_P + 8 * par + 4 * qb
    Lb = lambda par, qb: V_L + 8 * par + 4 * qb
    Ob = lambda db, qb: V_O + 4 * (db * 2 + qb)
    Fr = lambda half, f: V_FR + 16 * half + 4 * f

    def kreads(half, u, kbl):
        return [f"  ds_read_b128 {vr(Fr(half,ks),4)}, v{V_KA+ks} offset:{(u % NSL)*8192 + kbl*4096}" for ks in range(4)]

    def vreads(half, u, dbs):
        o = []
        for f, db in enumerate(dbs):
            for h in range(2):
                o.append(f"  ds_read_b64_tr_b16 {vr(Fr(half,f)+2*h,2)}, v{V_VA+db} offset:{(u % NSL)*8192 + h*4096}")
        return o

    def qkm(half, u, kbl, first=False):
        o = []
        for qb, ks in {1: [(a, b) for a in range(2) for b in range(4)], 0: [(a, b) for b in range(4) for a in range(2)], 2: [(0, 0), (0, 1), (0, 2), (0, 3), (1, 3), (1, 2), (1, 1), (1, 0)]}[chain]:
            if True:
                d = vr(Sb(u & 1, kbl, qb), 4)
                c0 = vr(V_NM + 4 * qb, 4) if (pre and not first) else 0
                o.append(f"  v_mfma_f32_16x16x32_bf16 {d}, {vr(Fr(half,ks),4)}, {vr(Qf(qb,ks),4)}, {d if ks != (3 if chain == 2 and qb else 0) else c0}")
        return o

    def pvm(half, u, dbs, order=None):
        o = []
        order = pvo if order is None else order
        seq = {0: [(f, qb) for f in range(4) for qb in range(2)],
               1: [(f, qb) for qb in range(2) for f in range(4)],
               2: [(f, (f + i) & 1) for i in range(2) for f in range(4)]}[order]
        for f, qb in seq:
            d = vr(Ob(dbs[f], qb), 4)
            o.append(f"  v_mfma_f32_16x16x32_bf16 {d}, {vr(Fr(half,f),4)}, {vr(Pb(u&1,qb),4)}, {d}")
        return o

    def lm(par, first=False):
        return [f"  v_mfma_f32_16x16x32_bf16 {vr(Lb(par,qb),4)}, {vr(V_ONE,4)}, {vr(Pb(par,qb),4)}, {0 if first else vr(Lb(par^1,qb),4)}"
                for qb in range(2)]

    def softmax(par):
        pairs = [(kbl, qb, h) for kbl in range(2) for qb in range(2) for h in range(2)]
        s3 = [[], [], []]
        for k, (kbl, qb, h) in enumerate(pairs):
            s = Sb(par, kbl, qb) + 2 * h
            x = V_X + 2 * (k & 3)
            if pre == 1:
                s3[0].append([])
                s3[1].append([f"  v_exp_f32 v{x}, v{s}", f"  v_exp_f32 v{x+1}, v{s+1}"])
            else:
                if pre == 2 and pk:
                    s3[0].append([f"  v_pk_mul_f32 v[{x}:{x+1}], v[{s}:{s+1}], s[{S_C}:{S_C+1}] op_sel_hi:[1,0]"])
                elif pre == 2:
                    s3[0].append([f"  v_mul_f32 v{x}, s{S_C}, v{s}", f"  v_mul_f32 v{x+1}, s{S_C}, v{s+1}"])
                elif pk:
                    s3[0].append([f"  v_pk_fma_f32 v[{x}:{x+1}], v[{s}:{s+1}], s[{S_C}:{S_C+1}], v[{V_M}:{V_M+1}] op_sel:[0,0,{qb}] op_sel_hi:[1,0,{qb}] neg_lo:[0,0,1] neg_hi:[0,0,1]"])
                else:
                    s3[0].append([f"  v_fma_f32 v{x}, v{s}, s{S_C}, -v{V_M+qb}", f"  v_fma_f32 v{x+1}, v{s+1}, s{S_C}, -v{V_M+qb}"])
                s3[1].append([f"  v_exp_f32 v{x}, v{x}", f"  v_exp_f32 v{x+1}, v{x+1}"])
            s3[2].append([f"  v_cvt_pk_bf16_f32 v{Pb(par,qb)+2*kbl+h}, v{x}, v{x+1}"])
        o = []
        for k in range(10):
            for j in range(3):
                if 0 <= k - j < 8:
                    o += s3[j][k - j]
        return o

    def softmax_plain(par):
        sm = softmax(par)
        return sm[:-1] + ["  s_nop 0", sm[-1], "  s_nop 1"]

    def chk(par):
        return [f"  v_add_f32 v{V_T0}, v{Lb(par,0)}, v{Lb(par,1)}", f"  v_cmp_nge_f32 vcc, s{S_THR}, v{V_T0}"]

    sites = []

    def br(par):
        k = len(sites)
        sites.append(par)
        return [f"  s_cbranch_vccnz L_fix{k}", f"L_ret{k}:"]

    def xmax(reg, tmp):
        return [f"  v_mov_b32 v{tmp}, v{reg}", "  s_nop 1", f"  v_permlane16_swap_b32 v{reg}, v{tmp}",
                f"  v_max_f32 v{reg}, v{reg}, v{tmp}",
                f"  v_mov_b32 v{tmp}, v{reg}", "  s_nop 1", f"  v_permlane32_swap_b32 v{reg}, v{tmp}",
                f"  v_max_f32 v{reg}, v{reg}, v{tmp}"]

    def maxof(dst, regs):
        o = [f"  v_max3_f32 v{dst}, v{regs[0]}, v{regs[1]}, v{regs[2]}"]
        k = 3
        while k + 1 < len(regs):
            o.append(f"  v_max3_f32 v{dst}, v{dst}, v{regs[k]}, v{regs[k+1]}")
            k += 2
        if k < len(regs):
            o.append(f"  v_max_f32 v{dst}, v{dst}, v{regs[k]}")
        return o

    def group(mf, reads, fill, rd=None):
        o = []
        rd = rd or RD
        per = -(-len(reads) // rd) if reads else 0
        for i, m in enumerate(mf):
            o.append(m)
            o += reads[i * per:(i + 1) * per]
            o += fill[i]
        return o

    def coarse(lines, pend):
        if WG >= 4:
            return auto_lgkm(lines, pend)
        out = []
        n = 4 // WG
        for l in lines:
            if l.strip().startswith("v_mfma"):
                a = int(l.split(",")[2 if "x" in abl else 1].split("[")[1].split(":")[0])
                if V_FR <= a < V_FR + 32:
                    f = (a - V_FR) // 4
                    last = V_FR + 4 * ((f // n) * n + n - 1) + 3
                    out.append(f"  v_touch v{last}, v{last}")
            out.append(l)
        out, pend = auto_lgkm(out, pend)
        return [l for l in out if not l.strip().startswith("v_touch")], pend

    def ablate(B):
        if "d" in abl:
            B = [l for l in B if not l.strip().startswith("ds_")]
        if "v" in abl:
            B = [l for l in B if not l.strip().startswith(("v_exp", "v_fma", "v_cvt"))]
        if "B" in abl:
            B = [l for l in B if l.strip() != "s_barrier"]
        if "k" in abl:
            B = [l for l in B if not l.strip().startswith("ds_read_b128")]
        if "t" in abl:
            B = [l for l in B if not l.strip().startswith("ds_read_b64_tr")]
        if "o" in abl:
            B = [l for l in B if f"v[{V_ONE}:" not in l]
        if "q" in abl:
            B = [l for l in B if not (l.strip().startswith("v_mfma") and V_S <= int(l.split("[")[1].split(":")[0]) < V_S + 32)]
        if "p" in abl:
            B = [l for l in B if not (l.strip().startswith("v_mfma") and V_O <= int(l.split("[")[1].split(":")[0]) < V_O + 64)]
        if "x" in abl:
            BB = []
            for l in B:
                if l.strip().startswith("v_mfma"):
                    a = l.split(", ")
                    l = ", ".join([a[0], a[2], a[1], a[3]])
                BB.append(l)
            B = BB
        return B

    DA, DB_ = [0, 1, 2, 3], [4, 5, 6, 7]

    def fills(par, nfront):
        n = nfront + max(LPOS - 1, 0)
        wts = [1.0] * n
        if bal and nfront == 24:
            per = [-(-4 // RD), -(-8 // RD), -(-8 // RD)]
            cnt = [4, 8, 8]
            for g in range(3):
                for i in range(8):
                    nr = max(0, min(per[g], cnt[g] - i * per[g]))
                    wts[8 * g + i] = max(0.2, 3.1 - nr)
            for i in range(24, n):
                wts[i] = 2.1
        f = spread(softmax(par)[NE:], wts)
        return f + [[] for _ in range(nfront + 10 - n)]

    def closing(n, nxt_reads, tailfill, extra=()):
        o = ["  s_waitcnt lgkmcnt(0)", "  s_barrier"] + list(extra)
        mf = pvm(1, n - 1, DB_)
        mf = mf[:LPOS] + lm(n & 1) + mf[LPOS:]
        fl = [list(x) for x in tailfill]
        c2 = chk(n & 1)
        if n < NU - 1:
            for i, e in enumerate(spread(softmax((n + 1) & 1)[:NE], [1] * (8 - LPOS - 1))):
                fl[LPOS + 1 + i] += e
        fl[8] = fl[8] + c2
        o += group(mf, nxt_reads, fl)
        return o + br(n & 1)

    def front(n):
        f = fills(n & 1, 24)
        o = group(qkm(0, n + 1, 0), kreads(1, n + 1, 1), f[0:8])
        o += group(qkm(1, n + 1, 1), vreads(0, n - 1, DA), f[8:16])
        o += group(pvm(0, n - 1, DA), vreads(1, n - 1, DB_), f[16:24])
        return o, f[24:34]

    P2 = kreads(0, 0, 0) + kreads(1, 0, 1) + qkm(0, 0, 0, True) + kreads(0, 1, 0) + qkm(1, 0, 1, True) + kreads(1, 1, 1) \
        + qkm(0, 1, 0, True) + qkm(1, 1, 1, True) + ["  s_nop 7"]
    for qb in range(2):
        P2 += maxof(V_M + qb, [Sb(par, kbl, qb) + r for par in range(2) for kbl in range(2) for r in range(4)])
    for qb in range(2):
        P2 += xmax(V_M + qb, V_T0)
    if pre:
        for qb in range(2):
            for par in range(2):
                for kbl in range(2):
                    for r in range(4):
                        s = Sb(par, kbl, qb) + r
                        P2.append(f"  v_sub_f32 v{s}, v{s}, v{V_M+qb}")
            for r in range(4):
                P2.append(f"  v_sub_f32 v{V_NM+4*qb+r}, 0, v{V_M+qb}")
    else:
        for qb in range(2):
            P2.append(f"  v_mul_f32 v{V_M+qb}, s{S_C}, v{V_M+qb}")
    P2 += softmax_plain(0) + lm(0, True) + softmax(1)[:NE]
    if fastp:
        V = []
        for qb in range(2):
            V += maxof(V_M + qb, [Sb(0, kbl, qb) + r for kbl in range(2) for r in range(4)])
        a, b = xmax(V_M, V_T0), xmax(V_M + 1, V_T1)
        for x, y in zip(a, b):
            V += [x, y] if "s_nop" not in x else ["  s_nop 0"]
        subm = lambda par: [f"  v_sub_f32 v{Sb(par,kbl,qb)+r}, v{Sb(par,kbl,qb)+r}, v{V_M+qb}" for kbl in range(2) for qb in range(2) for r in range(4)]
        if pre:
            V += subm(0)
        else:
            V += [f"  v_mul_f32 v{V_M+qb}, s{S_C}, v{V_M+qb}" for qb in range(2)]
        V += softmax(0)
        fl = [[] for _ in range(4)] + spread(V, [1] * 12)
        fl[3] = ["  s_nop 3"]
        P2 = kreads(0, 0, 0) + kreads(1, 0, 1) + qkm(0, 0, 0, True) + kreads(0, 1, 0) + qkm(1, 0, 1, True) + kreads(1, 1, 1)
        P2 += group(qkm(0, 1, 0, True) + qkm(1, 1, 1, True), [], fl) + ["  s_nop 1"] + lm(0, True)
        if pre:
            P2 += [f"  v_sub_f32 v{V_NM+4*qb+r}, 0, v{V_M+qb}" for qb in range(2) for r in range(4)] + subm(1)
        P2 += softmax(1)[:NE]
    nit = (NU - 2 + NSL - 1) // NSL
    P2 += [f"  s_mov_b32 s{S_CNT}, {nit}"] + (["  s_waitcnt vmcnt(0)"] if pf < 2 else PF[2:] if pf == 3 else []) + ["  s_barrier"] + kreads(0, 2, 0)
    P2, pend0 = auto_lgkm(P2)
    if diag in (3, 7):
        P2 += ["  s_mov_b32 s95, 0"]
    if hs == 3:
        assert qlds and pf >= 4
        k = P.index("  s_barrier") + 1
        if lw == 2:
            assert P[k - 2] == "  s_waitcnt vmcnt(0)"
            del P[k - 2]
            i0 = P.index(f"  v_mov_b32 v{V_T2}, 0")
            i1 = P.index("  s_mov_b64 exec, -1") + 1
            clears = P[i0:i1]
            del P[i0:i1]
            k = P.index("  s_barrier") + 1
            P[k:k] = clears
            if touch == 3:
                P[k + 2:k + 2] = [f"  buffer_load_dword v{V_JUNK}, off, {srd(S_OUT)}, 0"]
            k = P2.index("  s_barrier")
            P2 = P2[:k] + ["  s_waitcnt vmcnt(0)"] + P2[k:] + [f"  s_cmp_lg_u32 s{S_W}, 0", "  s_cbranch_scc1 L_mid"] + PA + ["  s_branch L_mid"]
    if hs == 3 and lw != 2:
        if lw:
            assert P[k - 2] == "  s_waitcnt vmcnt(0)"
            del P[k - 2]
            k = len(P) - 1 - P[::-1].index("  s_barrier")
            P.insert(k, "  s_waitcnt vmcnt(0)")
            k += 2
            j = P.index("  s_mov_b64 exec, -1")
            P[j:j] = PA[:4] + [f"  buffer_load_dword v{V_JUNK}, off, {srd(S_DBG)}, s{S_DB}"]
            PA = PA[4:]
            k += 5
        P = P[:k] + [f"  s_cmp_lg_u32 s{S_W}, 0", "  s_cbranch_scc1 L_nohello"] + PA + ["L_nohello:"] + P[k:]
        k = P2.index("  s_barrier")
        P2 = P2[:k] + ["  s_waitcnt vmcnt(0)"] + P2[k:] + ["  s_branch L_mid"]


    BODY = []
    nfirst = NU - 1 - NSL
    tf = front(nfirst - 1)[1]
    midx = None
    for n in range(nfirst, NU - 1):
        extra = []
        if (diag == 3 and n % 2 == 1) or diag == 7:
            extra = ["  s_memrealtime s[92:93]", "  s_memtime s[90:91]", "  s_add_u32 s95, s95, 1", "  s_min_u32 s95, s95, 31", "  s_add_u32 s94, s95, 32", "  s_waitcnt lgkmcnt(0)",
                     "  s_mov_b32 m0, s95", f"  v_writelane_b32 v{V_TR}, s92, m0", "  s_mov_b32 m0, s94", f"  v_writelane_b32 v{V_TR}, s90, m0"]
        if diag == 4 and n == nfirst:
            extra = [f"  s_cmp_lg_u32 s{S_CNT}, {nit - 16 // NSL}", "  s_cbranch_scc1 L_nost", "  s_memtime s[96:97]", "  s_memrealtime s[98:99]",
                     "  s_waitcnt lgkmcnt(0)", "  s_mov_b32 s94, 0", "L_nost:"]
        cl = closing(n - 1, kreads(0, n + 1, 0), tf, extra)
        fr, tf = front(n)
        if n == NU - 2:
            k = max(i for i, l in enumerate(fr) if "v_mfma" in l)
            fr = fr[:k] + [f"  s_sub_u32 s{S_CNT}, s{S_CNT}, 1", f"  s_cmp_lg_u32 s{S_CNT}, 0"] + fr[k:] + ["  s_cbranch_scc1 L_loop"]
        cl, pendc = coarse(ablate(cl), [])
        assert abl or pendc == pend0
        if "q" in abl or "p" in abl:
            fr = [x for l in fr for x in ([l, "  s_waitcnt lgkmcnt(6)"] if l.strip().startswith("ds_") else [l])]
        fr, pendf = coarse(ablate(fr), pendc)
        if n % NSL == 1 % NSL:
            midx = len(BODY)
        BODY.append((cl, fr))

    def fix(par):
        o = ["  s_nop 7"]
        for qb in range(2):
            o += maxof(V_T0 + qb, [Sb(par, kbl, qb) + r for kbl in range(2) for r in range(4)])
        for qb in range(2):
            o += xmax(V_T0 + qb, V_T2)
        for qb in range(2):
            t = V_T0 + qb
            if pre:
                o += [f"  v_max_f32 v{t}, 0, v{t}", f"  v_add_f32 v{V_M+qb}, v{V_M+qb}, v{t}"]
                for p2 in range(2):
                    for kbl in range(2):
                        for r in range(4):
                            s = Sb(p2, kbl, qb) + r
                            o.append(f"  v_sub_f32 v{s}, v{s}, v{t}")
                for r in range(4):
                    o.append(f"  v_sub_f32 v{V_NM+4*qb+r}, 0, v{V_M+qb}")
                if pre == 2:
                    o += [f"  v_mul_f32 v{t}, s{S_C}, v{t}"]
                o += [f"  v_exp_f32 v{t}, -v{t}"]
            else:
                o += [f"  v_mul_f32 v{t}, s{S_C}, v{t}", f"  v_max_f32 v{t}, v{t}, v{V_M+qb}",
                      f"  v_sub_f32 v{V_T2}, v{V_M+qb}, v{t}", f"  v_mov_b32 v{V_M+qb}, v{t}", f"  v_exp_f32 v{t}, v{V_T2}"]
        o.append("  s_nop 0")
        for qb in range(2):
            o.append(f"  v_mul_f32 v{Lb(par^1,qb)}, v{V_T0+qb}, v{Lb(par^1,qb)}")
            for db in range(8):
                for r in range(4):
                    o.append(f"  v_mul_f32 v{Ob(db,qb)+r}, v{V_T0+qb}, v{Ob(db,qb)+r}")
        return o + softmax_plain(par) + lm(par) + softmax(par ^ 1)[:NE] + ["  s_nop 7"]
    FIX = [fix(0), fix(1)]

    T1 = []
    if diag == 4:
        T1 += ["  s_waitcnt lgkmcnt(0)", "  s_memtime s[90:91]", "  s_memrealtime s[92:93]", "  s_waitcnt lgkmcnt(0)", "  s_sub_u32 s96, s90, s96", "  s_sub_u32 s98, s92, s98"]
    X = []
    if l2:
        X += [f"  v_mov_b32 v{V_T2}, {LDS_MODE}", f"  ds_read_b32 v{V_T3}, v{V_T2}", "  s_waitcnt lgkmcnt(0)",
              f"  v_readfirstlane_b32 s{S_MODE}, v{V_T3}"]
    T1 += X
    T1 += closing(NU - 2, vreads(0, NU - 2, DA), tf)
    f = fills(1, 8)
    T1 += group(pvm(0, NU - 2, DA), vreads(1, NU - 2, DB_), f[0:8])
    T1, pend = auto_lgkm(T1, pendf)
    c2 = closing(NU - 1, [], f[8:18])[2:]
    k = next(i for i, l in enumerate(c2) if l.strip().startswith("v_add_f32"))
    c2 = c2[:k] + ["  s_nop 3"] + c2[k:]
    c2, pend = auto_lgkm(c2, pend)
    assert not pend
    T1 += c2
    ML = V_X
    T1 += [
        f"  v_mov_b32 v{ML}, v{V_M}" if pre != 2 else f"  v_mul_f32 v{ML}, s{S_C}, v{V_M}",
        f"  v_mov_b32 v{ML+1}, v{V_M+1}" if pre != 2 else f"  v_mul_f32 v{ML+1}, s{S_C}, v{V_M+1}",
        f"  v_mov_b32 v{ML+2}, v{Lb(1,0)}", f"  v_mov_b32 v{ML+3}, v{Lb(1,1)}",
    ]

    def publish(spol):
        def ostore(j):
            o = []
            if bf16p:
                b = V_S + 8 * (j - 1)
                for i in range(8):
                    o.append(f"  v_cvt_pk_bf16_f32 v{b+i}, v{V_O+16*j+2*i}, v{V_O+16*j+2*i+1}")
                    if i & 3 == 3:
                        o.append(f"  buffer_store_dwordx4 {vr(b+(i&4),4)}, v{V_LANE16}, {srd(S_WS)}, s{S_OD+j-1} offen offset:{(i>>2)*1024} {spol}")
            else:
                for i in range(4):
                    o.append(f"  buffer_store_dwordx4 {vr(V_O+16*j+4*i,4)}, v{V_LANE16}, {srd(S_WS)}, s{S_OD+j-1} offen offset:{i*1024} {spol}")
            return o
        nstamp[0] = 2
        o = ["  s_mov_b64 exec, 0xffff", f"  buffer_store_dwordx4 {vr(ML,4)}, v{V_LANE16}, {srd(S_WS)}, s{S_ML} offen {spol}", "  s_mov_b64 exec, -1"]
        stamp(o)
        o.append("  s_barrier")
        stamp(o)
        r0 = vreads(0, NU - 1, [2, 3, 4, 5])
        r1 = vreads(1, NU - 1, [6, 7, 0, 1])
        o += r0 + r1[:6]
        mf = pvm(0, NU - 1, [2, 3, 4, 5], 0) + pvm(1, NU - 1, [6, 7, 0, 1], 0)
        if tord == 0:
            o += mf[:2] + r1[6:] + mf[2:12] + ostore(1)[:5] + mf[12:14] + ostore(1)[5:] + mf[14:16] + ostore(2) + ostore(3)
        else:
            st_ = ostore(1) + ostore(2) + ostore(3)
            o += mf[:2] + r1[6:] + mf[2:8]
            k = 0
            for i, n in zip(range(8, 16), (2, 3, 2, 3, 5, 5, 5, 5)):
                o += [mf[i]] + st_[k:k + n]
                k += n
        o, pend = auto_lgkm(o)
        assert not pend
        return o + [f"  v_mov_b32 v{V_T1}, 1", "  s_mov_b64 exec, 1", "  s_waitcnt vmcnt(0)",
                    f"  buffer_store_dword v{V_T1}, off, {srd(S_WS)}, s{S_FO} {spol}"]
    if l2:
        T1 += [f"  s_cmp_eq_u32 s{S_MODE}, 4", "  s_cbranch_scc0 L_far"]
        poll = lambda p: [f"  buffer_load_dword v{V_T1}, v{V_FADDR}, {srd(S_WS)}, s{S_F} offen {p}", "  s_waitcnt vmcnt(0)",
                          f"  v_cmp_ne_u32 vcc, 1, v{V_T1}"]
        FAR = publish("sc1") + ["  s_mov_b64 exec, 15"]
        stamp(FAR)
        FAR += ["L_fpoll:"] + poll("sc1") + ["  s_cbranch_vccnz L_fpoll", "  buffer_inv sc1", "  s_waitcnt vmcnt(0)", "  s_branch L_got"]
        T2 = publish(npol)
    T2 += ["  s_mov_b64 exec, 15"]
    stamp(T2)
    TP = []
    for i in range(npl):
        TP += poll("nt") + ["  s_cbranch_vccz L_got"]
    TP += poll("sc1") + ["  s_cbranch_vccnz L_poll"]
    T3 = ["  s_mov_b64 exec, -1"]
    stamp(T3)
    VML = V_FR
    VIN = V_S
    for j in range(1, 4):
        T3.append(f"  buffer_load_dwordx4 {vr(VML+4*(j-1),4)}, v{V_MLA}, {srd(S_WS)}, s{S_ML+j} offen {lpol}")
    nld = 2 if bf16p else 4
    for j in range(1, 4):
        if j > 1 and not bf16p:
            T3.append(f"  s_add_u32 s{S_OI}, s{S_OI}, {R}")
        if j == 3 and bf16p:
            T3.append(f"  s_add_u32 s{S_OI}, s{S_OI}, {2*R}")
        for i in range(nld):
            off = i * 1024 + (R if (bf16p and j == 2) else 0)
            T3.append(f"  buffer_load_dwordx4 {vr(VIN+4*nld*(j-1)+4*i,4)}, v{V_LANE16}, {srd(S_WS)}, s{S_OI} offen offset:{off} {lpol}")
    G = V_FR + 16
    p2 = lambda r: f"v[{r}:{r+1}]"
    ml = lambda j: ML if j == 0 else VML + 4 * (j - 1)
    WT = []
    for qb in range(2):
        WT += [f"  v_max3_f32 v{V_T0+qb}, v{ml(0)+qb}, v{ml(1)+qb}, v{ml(2)+qb}"]
    for qb in range(2):
        WT += [f"  v_max_f32 v{V_T0+qb}, v{V_T0+qb}, v{ml(3)+qb}"]
    for j in range(4):
        WT.append(f"  v_pk_add_f32 {p2(G+2*j)}, {p2(ml(j))}, {p2(V_T0)} neg_lo:[0,1] neg_hi:[0,1]")
    for j in range(8):
        WT.append(f"  v_exp_f32 v{G+j}, v{G+j}")
    WT.append(f"  v_pk_mul_f32 {p2(V_T0)}, {p2(G)}, {p2(ml(0)+2)}")
    for j in range(1, 4):
        WT.append(f"  v_pk_fma_f32 {p2(V_T0)}, {p2(G+2*j)}, {p2(ml(j)+2)}, {p2(V_T0)}")
    WT += [f"  v_rcp_f32 v{V_T0}, v{V_T0}", f"  v_rcp_f32 v{V_T1}, v{V_T1}", "  s_nop 0"]
    for j in range(4):
        WT.append(f"  v_pk_mul_f32 {p2(G+2*j)}, {p2(G+2*j)}, {p2(V_T0)}")
    UP = []
    U = V_O + 16 if bf16p else VIN
    if bf16p:
        for i in range(24):
            if i % 4 == 0:
                UP.append(f"  s_waitcnt vmcnt({5 - i // 4})")
            UP += [f"  v_lshlrev_b32 v{U+2*i}, 16, v{VIN+i}", f"  v_and_b32 v{U+2*i+1}, 0xffff0000, v{VIN+i}"]
    else:
        UP.append("  s_waitcnt vmcnt(0)")
    T3.append(f"  s_waitcnt vmcnt({3*nld})")
    T3 += WT[:16]
    k = 0
    for w_ in WT[16:]:
        T3 += UP[k:k + 2] + ([w_] if "s_nop" not in w_ or k >= len(UP) else [])
        k += 2
    T3 += UP[k:]
    sel = lambda i, n: " op_sel:[0,%d%s] op_sel_hi:[1,%d%s]" % ((i >> 2) & 1, ",0" * n, (i >> 2) & 1, ",1" * n)
    for i in range(0, 16, 2):
        T3.append(f"  v_pk_mul_f32 {p2(V_O+i)}, {p2(V_O+i)}, {p2(G)}" + sel(i, 0))
    for j in range(1, 4):
        for i in range(0, 16, 2):
            T3.append(f"  v_pk_fma_f32 {p2(V_O+i)}, {p2(U+16*(j-1)+i)}, {p2(G+2*j)}, {p2(V_O+i)}" + sel(i, 1))
    stamp(T3)
    OV = V_FR
    for qb in range(2):
        for e in range(2):
            for h in range(2):
                T3.append(f"  v_cvt_pk_bf16_f32 v{OV+4*qb+2*e+h}, v{Ob(e,qb)+2*h}, v{Ob(e,qb)+2*h+1}")
    T3 += [
        f"  v_permlane16_swap_b32 v{OV}, v{OV+2}",
        f"  v_permlane16_swap_b32 v{OV+1}, v{OV+3}",
        f"  buffer_store_dwordx4 {vr(OV,4)}, v{V_OUTA}, {srd(S_OUT)}, 0 offen {opol}",
        f"  v_permlane16_swap_b32 v{OV+4}, v{OV+6}",
        f"  v_permlane16_swap_b32 v{OV+5}, v{OV+7}",
        f"  buffer_store_dwordx4 {vr(OV+4,4)}, v{V_OUTA}, {srd(S_OUT)}, s{S_T3} offen {opol}",
    ]
    if diag:
        T3.append("  s_waitcnt vmcnt(0)")
        stamp(T3)
        T3 += [f"  s_mov_b32 s{S_WS}, s14", f"  s_mov_b32 s{S_WS+1}, s15", f"  s_mov_b32 s{S_WS+2}, {32<<20}"]
        T3.append("  s_getreg_b32 s4, hwreg(HW_REG_XCC_ID)")
        for k in range(nstamp[0]):
            T3.append(f"  v_mov_b32 v{V_S+k}, s{S_ST+2*k}")
        T3.append(f"  v_mov_b32 v{V_S+15}, s4")
        T3.append(f"  v_mov_b32 v{V_S+11}, 31")
        if diag in (3, 7):
            T3 += [f"  s_lshl_b32 s{S_T0}, s2, 2", f"  s_add_u32 s{S_T0}, s{S_T0}, s{S_W}", f"  s_lshl_b32 s{S_T0}, s{S_T0}, 8",
                   f"  s_add_u32 s{S_T0}, s{S_T0}, {OFF_T + (1 << 20)}", f"  v_lshrrev_b32 v{V_T0}, 2, v{V_LANE16}",
                   f"  buffer_store_dword v{V_TR}, v{V_T0}, {srd(S_WS)}, s{S_T0} offen"]
        if diag == 4:
            T3 += [f"  v_mov_b32 v{V_S+12}, s94", f"  v_mov_b32 v{V_S+13}, s96", f"  v_mov_b32 v{V_S+14}, s98"]
        T3 += [
            f"  s_lshl_b32 s{S_T0}, s2, 2",
            f"  s_add_u32 s{S_T0}, s{S_T0}, s{S_W}",
            f"  s_lshl_b32 s{S_T0}, s{S_T0}, 6",
            f"  s_add_u32 s{S_T0}, s{S_T0}, {OFF_T}",
            "  s_mov_b64 exec, 1",
        ]
        for i in range(4):
            T3.append(f"  buffer_store_dwordx4 {vr(V_S+4*i,4)}, off, {srd(S_WS)}, s{S_T0} offset:{16*i}")
    T3.append("  s_endpgm")

    if "S" in abl:
        T1 = [l for l in T1 if not l.strip().startswith("buffer_store")]
        T2 = [l for l in T2 if not l.strip().startswith("buffer_store_dwordx4")]
    if "F" in abl:
        T2 = [l for l in T2 if not l.strip().startswith("buffer_store_dword ")]
        TP = []
    if "R" in abl:
        T3 = [l for l in T3 if not l.strip().startswith("buffer_load")]

    def inline_fix(lines):
        o = []
        for l in lines:
            o.append(l)
            if l.strip().startswith("s_cbranch_vccnz L_fix"):
                o += FIX[sites[int(l.strip().split("L_fix")[1])]]
        return o
    flat = [l for cl, fr in BODY for l in cl + fr]
    first = BODY[midx][1] + [l for cl, fr in BODY[midx + 1:] for l in cl + fr]
    main = E + P + P2 + first + flat + T1 + T2 + TP + T3
    nbar = sum(l == "  s_barrier" for l in P + P2 + first + flat * (nit - 1) + T1 + T2)
    assert nbar == NU + 1 + bq or abl, nbar
    traces["cons_far"] = T1 + FAR + T3
    traces["cons_a"] = main
    traces["cons_b"] = inline_fix(main)
    errs = []
    for n, t in traces.items():
        errs += check_hazards(t, n)
    if errs and not abl.strip("L"):
        raise RuntimeError("hazards:\n" + "\n".join(errs))

    out = [HEADER.rstrip(),
           "; 256 workgroups = 64 (batch, kv head) pairs x 4 key splits; wave 0 streams K/V into an LDS ring,",
           "; waves 1-4 each own one query head (32 rows); partial results are exchanged through d_ws.",
           f"; @launch grid=(256,1,1) block=(320,1,1) lds={lds}",
           '.amdgcn_target "amdgcn-amd-amdhsa--gfx950"', ".text", f".globl {NAME}", ".p2align 8",
           f".type {NAME},@function", f"{NAME}:"]
    out += E + LOADER
    out += [".p2align 6", "L_cons:"] + P + P2
    out += [".p2align 6", "L_loop:"]
    loop = []
    for i, (cl, fr) in enumerate(BODY):
        loop += cl + (["L_mid:"] if i == midx else []) + fr
    if al == 1:
        loop, nmis, ph = align8(loop)
    if al == 2:
        loop, nmis, ph = align8(loop)
        loop = ["  s_nop 0"] + loop
    out += loop
    out += T1 + T2 + ["L_poll:"] + TP + ["L_got:"] + T3
    if l2:
        out += ["L_far:"] + FAR
    for k, par in enumerate(sites):
        out += [f"L_fix{k}:", f"  s_call_b64 s[{S_RET}:{S_RET+1}], L_fixfn{par}", f"  s_branch L_ret{k}"]
    for par in range(2):
        out += [f"L_fixfn{par}:"] + FIX[par] + [f"  s_setpc_b64 s[{S_RET}:{S_RET+1}]"]
    out += ["L_end:", "  s_endpgm"]
    out += ['.section .rodata,"a"', ".p2align 6", f".amdhsa_kernel {NAME}",
            f"  .amdhsa_next_free_vgpr {NVGPR}", "  .amdhsa_next_free_sgpr 102",
            f"  .amdhsa_accum_offset {NVGPR}", "  .amdhsa_group_segment_fixed_size 0",
            "  .amdhsa_kernarg_size 48", "  .amdhsa_user_sgpr_count 2",
            "  .amdhsa_user_sgpr_kernarg_segment_ptr 1", "  .amdhsa_system_sgpr_workgroup_id_x 1",
            ".end_amdhsa_kernel"]
    return "\n".join(l.rstrip() for l in out if l is not None) + "\n"


if __name__ == "__main__":
    kw = eval("dict(%s)" % sys.argv[1]) if len(sys.argv) > 1 else {}
    sys.stdout.write(gen(**kw))
```

```python
import struct, sys, math
from asmlib import check_hazards, auto_lgkm, align8

NAME = "standalone__gqa_softmax__sampling_kernel"

HEADER = """; Kernarg layout for this problem (48 bytes, ptrs only, base s[0:1]):
;   offset   0: d_in[0] q  shape=(8, 32, 32, 128) dtype=bfloat16 strides=(262144, 8192, 256, 2) contiguous=True
;   offset   8: d_in[1] k  shape=(8, 8, 8192, 128) dtype=bfloat16 strides=(16777216, 2097152, 256, 2) contiguous=True
;   offset  16: d_in[2] v  shape=(8, 8, 8192, 128) dtype=bfloat16 strides=(16777216, 2097152, 256, 2) contiguous=True
;   offset  24: d_out     shape=(8, 32, 32, 128) dtype=bfloat16 (2 bytes/elem)
"""


def f32(x):
    return "0x%08x" % struct.unpack("<I", struct.pack("<f", x))[0]


V_M = 2
V_T0, V_T1, V_T2, V_T3 = 4, 5, 6, 7
V_LANE16 = 8
V_FADDR = 9
V_OUTA = 10
V_TR = 11
V_KA = 12
V_VA = 16
V_X = 24
V_FR = 32
V_O = 64
V_S = 128
V_P = 160
V_L = 176
V_ONE = 192
V_NM = 196
V_JUNK = 204
V_MLA = 206
V_Q = 208
NVGPR = 240

S_K, S_V, S_Q, S_OUT, S_WS, S_DBG = 16, 20, 24, 28, 32, 36
S_BH, S_SP, S_W = 40, 41, 42
S_MODE = 43
S_C, S_THR = 44, 45
S_CNT = 46
S_T0, S_T1, S_T2, S_T3 = 50, 51, 52, 53
S_OD = 54
S_OI = 57
S_ML = 58
S_F = 62
S_FO = 63
S_DB = 64
S_RET = 66
S_ST = 70

OFF_PR = 0x1c000
PR_STRIDE = (1 << 20) + 256
OFF_T = 20 << 20
NU = 64


def vr(base, n):
    return f"v[{base}:{base+n-1}]"


def srd(b):
    return f"s[{b}:{b+3}]"


def cost(l):
    return 2 if l.split()[0].startswith("v_exp") else 1


def spread(fillers, weights):
    nslots = len(weights)
    tot = sum(cost(f) for f in fillers)
    wt = sum(weights)
    out = [[] for _ in range(nslots)]
    acc = k = cw = 0
    for s in range(nslots):
        cw += weights[s]
        tgt = tot * cw / wt
        while k < len(fillers) and acc + cost(fillers[k]) / 2.0 <= tgt + 1e-9:
            out[s].append(fillers[k])
            acc += cost(fillers[k])
            k += 1
    out[-1] += fillers[k:]
    return out


def sched(up, step=1, lo=20, hold=1, dec=1):
    l = [0]
    x = lo
    for d in up:
        x += d
        l.append(x)
    l += [x] * hold
    while x > lo + dec:
        x -= dec
        l += [x] * step
    return tuple(l)


TAB1 = "dd e dd e e e k e e - dd e dc dc e e e c dd dd dd dd e e e c dd ddc dd e ddc e ec c"


def gen(W=22, up=(7, 6, 5, 4, 2, 1), hold=1, stg=4, rk=1, nlv=1, th=(14, 26), bias=(0, -5, -1, -6, 6, 2, 2, -3), hsn=3, wsl=1, lw=0, plp="nt", pfp="", hpol="sc1", psp="", psh=2, lpol="sc1", ppol="sc1", slp=0, pol="nt", grp="xcd2", bf16p=1, THR=2.0 ** 24, diag=0,
        opol="", qpol="", prio=3, abl="", pre=1, pk=0, al=1, LPOS=0, WG=1, RD=4, NSL=8, l2=1, warm=0, bal=1, lds=98304, NE=10, pf=4, il=1, xph=0, pfpos=0, npol="", cpf=2, chain=1, pvo=0, bq=1, probe=0, shs=0, pfw=16, pfn=4, touch=2, tiny=1, cmp=0, tab=TAB1, npf=25, rst=0, wb=None, rsp="sc1", nb3=0, rotl=0, hop=0, seq=0, npl=0, tord=1, hs=3, rpol="", clr=0, late=-1, rot=0, xw=(7, 15, 5, 17, 22, 5, 13, 6), qlds=1, fastp=1, pfs=(0, 10, 7, 4, 3, 1)):
    traces = {}
    NE = min(NE, 4 if pre == 1 else 7 if pk else 10)
    nstamp = [0]

    def stamp(dst):
        if diag:
            k = nstamp[0]
            nstamp[0] += 1
            dst.append(f"  s_memrealtime s[{S_ST+2*k}:{S_ST+2*k+1}]")
            dst.append("  s_waitcnt lgkmcnt(0)")

    R = 2048 if bf16p else 4096
    GB = 17 if bf16p else 18
    SLAB = 3 * R + 256
    OFF_F = 16 * SLAB
    VBASE = NSL * 8192
    QBASE = 2 * VBASE if NSL == 4 else VBASE + 32768
    LDS_MODE = 2 * VBASE + (32768 if qlds and NSL == 4 else 0)
    LDS_JUNK = LDS_MODE + 64
    lds = max(lds, LDS_MODE + 64 + 256)
    assert lds <= 163840
    c = math.log2(math.e) / math.sqrt(128.0)
    blk = lambda d, t: [f"  s_and_b32 s{d}, s{S_BH}, 7", f"  s_lshl_b32 s{d}, s{d}, {GB+3}", f"  s_lshr_b32 s{t}, s{S_BH}, 3",
                        f"  s_lshl_b32 s{t}, s{t}, {GB}", f"  s_add_u32 s{d}, s{d}, s{t}"] if (wsl and grp != "xcd") else [f"  s_lshl_b32 s{d}, s{S_BH}, {GB}"]
    E = ["  s_cmp_ge_u32 s2, 256", "  s_cbranch_scc1 L_end"]
    for i in range(hop):
        E += [f"  s_branch L_hop{i}", ".fill 255, 4, 0xbf800000", f"L_hop{i}:"]
    for i in range(seq):
        E += ["  s_mov_b32 s47, 0x12345678"]
    if diag == 6:
        E += ["  s_memrealtime s[68:69]"]
    E += [
        "  s_load_dwordx4 s[4:7], s[0:1], 0",
        "  s_load_dwordx4 s[8:11], s[0:1], 16",
        "  s_load_dwordx4 s[12:15], s[0:1], 32",
        "  v_lshrrev_b32 v1, 6, v0",
        "  v_and_b32 v0, 63, v0",
        "  v_readfirstlane_b32 s3, v1",
    ]
    if grp == "xcd":
        E += [
            f"  s_and_b32 s{S_T0}, s2, 7",
            f"  s_bfe_u32 s{S_SP}, s2, {3 | (2 << 16)}",
            f"  s_lshr_b32 s{S_T1}, s2, 5",
            f"  s_lshl_b32 s{S_BH}, s{S_T0}, 3",
            f"  s_add_u32 s{S_BH}, s{S_BH}, s{S_T1}",
        ]
    elif grp == "xcd2":
        E += ([f"  s_add_u32 s{S_T0}, s2, {rot}", f"  s_and_b32 s{S_T0}, s{S_T0}, 7"] if rot else [f"  s_and_b32 s{S_T0}, s2, 7"]) + [
            f"  s_bfe_u32 s{S_SP}, s2, {3 | (2 << 16)}",
            f"  s_lshr_b32 s{S_T1}, s2, 5",
            f"  s_lshl_b32 s{S_BH}, s{S_T1}, 3",
            f"  s_add_u32 s{S_BH}, s{S_BH}, s{S_T0}",
        ]
    elif grp == "lo":
        E += [f"  s_lshr_b32 s{S_BH}, s2, 2", f"  s_and_b32 s{S_SP}, s2, 3"]
    if "3" in abl:
        E += [f"  s_cmp_eq_u32 s{S_SP}, 3", "  s_cbranch_scc1 L_end"]
    if late >= 0:
        E += [f"  s_cmp_lg_u32 s{S_SP}, {late}", "  s_cbranch_scc1 L_nolate", "  s_mov_b32 s47, 20", "L_late:", "  s_sleep 100",
              "  s_sub_u32 s47, s47, 1", "  s_cmp_lg_u32 s47, 0", "  s_cbranch_scc1 L_late", "L_nolate:"]
    E += ["  s_cmp_lg_u32 s3, 0", "  s_cbranch_scc1 L_cons"]

    LD = []
    if cpf:
        LD += ["  s_getpc_b64 s[48:49]", "L_pc:", "  v_lshlrev_b32 v5, 7, v0", "  v_mov_b32 v9, s49"]
        for i in range(cpf + 1):
            LD += (["  v_add_u32 v5, 8192, v5"] if i else []) + ["  v_min_u32 v6, L_end - L_pc, v5", "  v_add_co_u32 v6, vcc, s48, v6", "  s_nop 1",
                   "  v_addc_co_u32 v7, vcc, 0, v9, vcc", "  global_load_dword v8, v[6:7], off"]
    LD += [
        f"  s_setprio {prio}",
        f"  s_lshl_b32 s{S_T0}, s{S_BH}, 21",
        f"  s_lshl_b32 s{S_T1}, s{S_SP}, {10 if il else 19}",
        f"  s_add_u32 s{S_T0}, s{S_T0}, s{S_T1}",
        "  v_lshrrev_b32 v3, 4, v0",
        "  v_and_b32 v4, 15, v0",
        "  v_xor_b32 v5, v3, v4",
        "  v_lshlrev_b32 v5, 4, v5",
        "  v_lshl_add_u32 v10, v3, 8, v5",
        "  v_xor_b32 v11, 64, v10",
        "  v_xor_b32 v12, 0x80, v10",
        "  v_xor_b32 v13, 0xc0, v10",
        "  v_lshlrev_b32 v5, 1, v3",
        "  v_xor_b32 v5, v5, v4",
        "  v_lshlrev_b32 v5, 4, v5",
        "  v_lshl_add_u32 v14, v3, 8, v5",
        "  v_xor_b32 v15, 0x80, v14",
    ] + ([
        "  v_mov_b32 v25, v11", "  v_mov_b32 v26, v12", "  v_mov_b32 v27, v13",
        f"  s_lshl_b32 s{S_T3}, s{S_BH}, 15", f"  s_mov_b32 s{S_Q+2}, 32768", f"  s_mov_b32 s{S_Q+3}, 0x20000",
    ] if qlds else []) + ([
        "  v_add_u32 v11, 3072, v11", "  v_add_u32 v12, 6144, v12", "  v_add_u32 v13, 9216, v13",
        "  v_add_u32 v16, 6144, v14", "  v_add_u32 v17, 9216, v15", "  v_add_u32 v15, 3072, v15",
        f"  s_sub_u32 s{S_K+2}, 0x200000, s{S_T1}",
    ] if il else [f"  s_mov_b32 s{S_K+2}, 0x80000"]) + [
        f"  s_mov_b32 s{S_K+3}, 0x20000",
        f"  s_mov_b32 s{S_V+2}, s{S_K+2}",
        f"  s_mov_b32 s{S_V+3}, 0x20000",
        "  s_mov_b32 s54, 0",
        "  s_mov_b32 s55, 0",
        "  s_waitcnt lgkmcnt(0)",
    ]
    QD = []
    if qlds:
        QD += [f"  s_add_u32 s{S_Q}, s4, s{S_T3}", f"  s_addc_u32 s{S_Q+1}, s5, 0"]
        for g in range(8):
            QD += [f"  s_mov_b32 m0, {QBASE + g*4096}", f"  s_movk_i32 s{S_T2}, {g*4096}"]
            for j in range(4):
                QD.append(f"  buffer_load_dwordx4 v{10 if j == 0 else 24+j}, {srd(S_Q)}, s{S_T2} offen offset:{j*1024} {qpol} lds")
    KV = [
        f"  s_add_u32 s{S_K}, s6, s{S_T0}",
        f"  s_addc_u32 s{S_K+1}, s7, 0",
        f"  s_add_u32 s{S_V}, s8, s{S_T0}",
        f"  s_addc_u32 s{S_V+1}, s9, 0",
    ]
    for i in range(probe):
        LD += [f"  s_lshl_b32 s47, s{S_BH}, 21", f"  s_add_u32 s47, s47, {(64 + 128 * i) << 20}", "  v_mov_b32 v30, s47",
               "  global_load_dword v31, v30, s[14:15]", "  s_waitcnt vmcnt(0)"]
    if touch:
        LD += KV + [f"  s_mov_b32 m0, {LDS_JUNK}", "  s_mov_b64 exec, 1",
                    f"  buffer_load_dword v10, {srd(S_K)}, 0 offen lds", f"  buffer_load_dword v10, {srd(S_V)}, 0 offen lds"]
        if touch == 2:
            LD += [f"  v_mov_b32 v30, s{S_T3}", "  global_load_lds_dword v30, s[10:11]"]
        LD += ["  s_mov_b64 exec, -1"]
        KV = []
    if qlds == 1:
        LD += QD
    LD += KV
    LATE = []
    if cmp:
        LD = ["  s_getpc_b64 s[48:49]", "L_pc:", "  v_lshlrev_b32 v4, 7, v0", "  v_mov_b32 v5, 0"]
        for i in range(cpf + 1):
            LD += ([f"  v_add_u32 v4, 8192, v4"] if i else []) + (["  v_min_u32 v4, L_end - L_pc, v4"] if i == cpf else []) + \
                ["  v_lshl_add_u64 v[6:7], v[4:5], 0, s[48:49]", "  global_load_dword v8, v[6:7], off"]
        LD += [
            f"  s_setprio {prio}",
            f"  s_lshl_b32 s{S_T0}, s{S_BH}, 21", f"  s_lshl_b32 s{S_T1}, s{S_SP}, 10", f"  s_add_u32 s{S_T0}, s{S_T0}, s{S_T1}",
            "  v_lshrrev_b32 v3, 4, v0", "  v_and_b32 v4, 15, v0",
            "  v_xor_b32 v5, v3, v4", "  v_lshlrev_b32 v5, 4, v5", "  v_lshl_add_u32 v10, v3, 8, v5",
            "  v_xor_b32 v11, 64, v10", "  v_xor_b32 v12, 0x80, v10", "  v_xor_b32 v13, 64, v12",
            f"  s_lshl_b32 s{S_T3}, s{S_BH}, 15", f"  s_mov_b32 s{S_Q+2}, 32768", f"  s_mov_b32 s{S_Q+3}, 0x20000",
            f"  s_sub_u32 s{S_K+2}, 0x200000, s{S_T1}", f"  s_mov_b32 s{S_K+3}, s{S_Q+3}",
            f"  s_mov_b64 s[{S_V+2}:{S_V+3}], s[{S_K+2}:{S_K+3}]", "  s_mov_b64 s[54:55], 0",
            f"  v_mov_b32 v30, s{S_T3}", f"  s_mov_b32 m0, {LDS_JUNK}", "  s_mov_b64 exec, 1",
            "  s_waitcnt lgkmcnt(0)",
            f"  s_add_u32 s{S_K}, s6, s{S_T0}", f"  s_addc_u32 s{S_K+1}, s7, 0", f"  buffer_load_dword v10, {srd(S_K)}, 0 offen lds",
            f"  s_add_u32 s{S_V}, s8, s{S_T0}", f"  s_addc_u32 s{S_V+1}, s9, 0", f"  buffer_load_dword v10, {srd(S_V)}, 0 offen lds",
            ] + (["  global_load_lds_dword v30, s[10:11]"] if touch == 2 else []) + ["  s_mov_b64 exec, -1",
            f"  s_add_u32 s{S_Q}, s4, s{S_T3}", f"  s_addc_u32 s{S_Q+1}, s5, 0",
            "L_q:", f"  s_add_u32 m0, s54, {QBASE}", "  s_nop 0"]
        LD += [f"  buffer_load_dwordx4 v{10+j}, {srd(S_Q)}, s54 offen offset:{j*1024} {qpol} lds" for j in range(4)]
        LD += ["  s_addk_i32 s54, 0x1000", f"  s_cmp_lg_u32 s54, s{S_Q+2}", "  s_cbranch_scc1 L_q",
               "  s_mov_b32 s54, 0", "  v_add_u32 v11, 3072, v11", "  v_add_u32 v12, 6144, v12", "  v_add_u32 v13, 9216, v13"]
        LATE = ["  v_lshlrev_b32 v5, 1, v3", "  v_xor_b32 v5, v5, v4", "  v_lshlrev_b32 v5, 4, v5", "  v_lshl_add_u32 v14, v3, 8, v5",
                "  v_xor_b32 v15, 0x80, v14", "  v_add_u32 v16, 6144, v14", "  v_add_u32 v17, 9216, v15", "  v_add_u32 v15, 3072, v15"]
    S_CD, S_B, S_TAB, S_PF, S_N, S_BE, S_RK, S_SLOT, S_MASK, S_PR, S_TH = 56, 57, 58, 60, 61, 62, 63, 65, 66, 68, 72
    LV = list(range(-nlv, nlv + 1)) if rk else [0]
    NX = 2 if rk else 0
    lo = W - 1 + max(LV) + NX
    assert 16 < lo < 32
    fld = 2 | ((VBASE.bit_length() - 1) << 16)
    stubs = []

    def dma(which, j):
        go, sr = (54, S_K) if which == "K" else (55, S_V)
        return f"  buffer_load_dwordx4 v{(10 if which == 'K' else 14) + j}, {srd(sr)}, s{go} offen offset:{j*1024} {pol} lds"

    def part(dst, which, before, after=lambda: [], ng=2):
        go = 54 if which == "K" else 55
        for g in range(ng):
            dst += [f"  s_bfe_u32 m0, s{go}, {fld}"] if which == "K" else [f"  s_bfe_u32 s{S_T2}, s{go}, {fld}", f"  s_or_b32 m0, s{S_T2}, {VBASE}"]
            for j in range(4):
                w_ = before()
                dst += (w_ or (["  s_nop 0"] if j == 0 else [])) + [dma(which, j)] + after()
            dst.append(f"  s_add_u32 s{go}, s{go}, 16384")

    st = dict(pos=0, pend=[])

    def static():
        o = []
        x = W - 1
        if st["pos"] == W:
            o += [f"  s_waitcnt vmcnt({W})", "  s_barrier"]
        if st["pos"] > x:
            o.append(f"  s_waitcnt vmcnt({x})")
            while st["pend"] and st["pos"] - st["pend"][0] >= x:
                o.append("  s_barrier")
                st["pend"].pop(0)
        st["pos"] += 1
        return o
    if cmp:
        LD += ["L_k:", "  s_lshr_b32 m0, s54, 2", "  s_nop 0"] + [dma("K", j) for j in range(4)] + \
              ["  s_addk_i32 s54, 0x4000", f"  s_cmp_lg_u32 s54, {5*16384}", "  s_cbranch_scc1 L_k"]
        st["pos"] = 20
        assert W >= 21
    else:
        part(LD, "K", static); part(LD, "K", static)
    st["pend"].append(16)
    setup = [
        f"  s_mov_b32 s{S_DBG}, s12", f"  s_mov_b32 s{S_DBG+1}, s13", f"  s_mov_b32 s{S_DBG+2}, 256", f"  s_mov_b32 s{S_DBG+3}, 0x20000",
        f"  s_lshl_b32 s{S_DB}, s{S_BH}, 2", f"  v_mov_b32 v20, {LDS_MODE}",
    ] + blk(S_T2, S_T1) + [f"  s_add_u32 s{S_WS}, s14, s{S_T2}", f"  s_addc_u32 s{S_WS+1}, s15, 0",
        f"  s_mov_b32 s{S_WS+2}, {1 << GB}", f"  s_mov_b32 s{S_WS+3}, 0x20000",
        f"  v_and_b32 v24, {8*pfn-1}, v0", "  v_lshlrev_b32 v24, 7, v24", f"  s_mul_i32 s{S_PF}, s{S_SP}, {4*SLAB}",
    ]
    lag1 = W - 1 + up[0]
    tabv = [d + 1 for d in up[1:]] + [1] * hold
    assert len(tabv) <= 16 and max(tabv) <= 15 and lag1 >= lo
    bend = len(tabv) + (W - 1 + sum(up)) - lo
    tab_ = sum(v << (4 * i) for i, v in enumerate(tabv))
    setup += [f"  s_mul_i32 s{S_T2}, s{S_SP}, {stg}", f"  s_add_u32 s{S_CD}, s{S_T2}, {32 + lag1 - 48}", f"  s_add_u32 s{S_BE}, s{S_T2}, {bend}",
              f"  s_mov_b32 s{S_B}, 0", f"  s_mov_b32 s{S_TAB}, {tab_ & 0xffffffff}", f"  s_mov_b32 s{S_TAB+1}, {tab_ >> 32}",
              f"  s_mov_b32 s{S_N}, 0"]
    for sp in range(4):
        cd, nb_, t_, done = sp * stg + 32 + lag1 - 48, 0, tab_, 0
        for p in range(48, 16 * 63):
            u = p // 16
            need = (u + 1 - NSL) if p % 16 < 8 else (u - 1 - NSL + 2)
            assert done >= need, (sp, p)
            if cd == 0:
                done += 1
                assert p - 16 * (done + 1) >= lo, (sp, p, done)
                nb_ += 1
                cd = (t_ & 15) + 14 + (1 if nb_ > bend + sp * stg else 0)
                t_ >>= 4
                last = p - 16 * (done + 1)
            else:
                cd -= 1
        assert done == 60 and last == lo, (sp, done, last)
    if rk:
        setup += [f"  s_add_u32 s{S_PR}, s14, {OFF_PR}", f"  s_addc_u32 s{S_PR+1}, s15, 0", f"  s_mov_b32 s{S_PR+2}, {8*PR_STRIDE}", f"  s_mov_b32 s{S_PR+3}, 0x20000",
                  f"  s_and_b32 s{S_T2}, s2, 7", f"  s_mul_i32 s{S_T1}, s{S_T2}, {PR_STRIDE}",
                  "  v_and_b32 v28, 31, v0", f"  v_lshl_add_u32 v29, v28, {psh}, s{S_T1}",
                  ] + (["  v_lshrrev_b32 v5, 2, v28", "  v_lshlrev_b32 v5, 5, v5", "  v_and_b32 v28, 3, v28", "  v_add_u32 v28, v28, v5"] if grp != "xcd" else []) + [
                  f"  s_lshl_b32 s{S_T2}, s{S_T2}, {2 if grp != 'xcd' else 5}", f"  v_add_u32 v28, s{S_T2}, v28",
                  f"  s_lshr_b32 s{S_SLOT}, s2, 3", f"  s_lshl_b32 s{S_SLOT}, s{S_SLOT}, {psh}", f"  s_add_u32 s{S_SLOT}, s{S_SLOT}, s{S_T1}",
                  "  v_mov_b32 v30, 0", "  v_mov_b32 v23, 0"]
        setup += [f"  s_movk_i32 s{S_TH+i}, {-1000 if i < nlv else 1000}" for i in range(2 * nlv)]
    if cmp:
        rest = []
        part(rest, "K", static, ng=1)
        k = rest.index(f"  s_waitcnt vmcnt({W})")
        LD += rest[:k] + LATE + setup + rest[k:]
        part(LD, "V", static); part(LD, "K", static); part(LD, "V", static)
    else:
        LD += setup
        for _ in range(2):
            part(LD, "K", static); part(LD, "V", static)
    assert not st["pend"] and st["pos"] == 48

    def passes(lv):
        o = []
        k = [0]

        def before():
            x = W - 1 + lv
            k[0] += 1
            return [f"  s_waitcnt vmcnt({x + (NX if k[0] - 1 < x else 0)})"]

        def after():
            i = len(stubs)
            stubs.append(i)
            return [f"  s_sub_u32 s{S_CD}, s{S_CD}, 1", f"  s_cbranch_scc1 L_bar{i}", f"L_barret{i}:"]
        for _ in range(2):
            part(o, "K", before, after); part(o, "V", before, after)
        return o + [f"  s_cmp_lg_u32 s{S_N}, 30", "  s_cbranch_scc1 L_ldloop"]
    STUB = ["  s_barrier", f"  s_and_b32 s{S_CD}, s{S_TAB}, 15", f"  s_lshr_b64 s[{S_TAB}:{S_TAB+1}], s[{S_TAB}:{S_TAB+1}], 4",
            f"  s_add_u32 s{S_B}, s{S_B}, 1", f"  s_cmp_gt_u32 s{S_B}, s{S_BE}", f"  s_addc_u32 s{S_CD}, s{S_CD}, 14"]
    D0 = []
    if rk:
        D0 += [f"  v_cmp_le_u32 vcc, s{S_N}, v30", f"  s_add_u32 s{S_N}, s{S_N}, 1", f"  v_mov_b32 v31, s{S_N}",
               f"  s_bcnt1_i32_b32 s{S_RK}, vcc_lo",
               f"  buffer_load_dword v30, v29, {srd(S_PR)}, 0 offen {plp}", "  s_mov_b64 exec, 1",
               f"  buffer_store_dword v31, off, {srd(S_PR)}, s{S_SLOT} {psp}", "  s_mov_b64 exec, -1"]
        if "1" in abl:
            D0[-2] = D0[-4].replace("v30", "v31", 1)
        if "2" in abl:
            D0[-4] = D0[-2]
    else:
        D0 += [f"  s_add_u32 s{S_N}, s{S_N}, 1"]
    D0 += [f"  s_cmp_eq_u32 s{S_N}, {hsn}", "  s_cbranch_scc1 L_hs0", f"  s_cmp_eq_u32 s{S_N}, {hsn+2}", "  s_cbranch_scc1 L_hs1", "L_go:"]
    for i in range(nlv if rk else 0):
        D0 += [f"  s_cmp_lt_i32 s{S_RK}, s{S_TH+i}", f"  s_cbranch_scc1 L_lv{i}",
               f"  s_cmp_ge_i32 s{S_RK}, s{S_TH+2*nlv-1-i}", f"  s_cbranch_scc1 L_lv{2*nlv-i}"]
    D1 = passes(0)
    DA_ = []
    for i, lv in enumerate(LV):
        if lv:
            DA_ += [f"L_lv{i}:"] + passes(lv) + ["  s_branch L_ldtail"]
    if tiny:
        DA_ += [".p2align 6", "L_barfn:"] + STUB + ["  s_setpc_b64 s[76:77]"]
    for i in stubs:
        DA_ += [f"L_bar{i}:"] + (["  s_call_b64 s[76:77], L_barfn"] if tiny else STUB) + [f"  s_branch L_barret{i}"]
    H0 = ["  v_mov_b32 v22, 0", f"  buffer_load_dword v22, off, {srd(S_DBG)}, s{S_DB} {hpol}"]
    if rk:
        H0 += [f"  buffer_load_ubyte v23, v28, {srd(S_DBG)}, 0 offen {hpol}"]
    H0 += ["  s_branch L_go"]
    chk4 = lambda m, lab: [f"  v_and_b32 v21, {m}, v22", f"  v_cmp_ne_u32 vcc, {m}, v21", f"  s_cbranch_vccz {lab}"]
    hello = lambda bits: [f"  s_getreg_b32 s{S_T2}, hwreg(HW_REG_XCC_ID, 0, 3)", f"  s_or_b32 s{S_T2}, s{S_T2}, {bits}", f"  v_mov_b32 v21, s{S_T2}",
                          f"  s_add_u32 s{S_T2}, s{S_DB}, s{S_SP}", f"  buffer_store_byte v21, off, {srd(S_DBG)}, s{S_T2} sc1"]
    memrd = ["  v_mov_b32 v22, 0", f"  buffer_atomic_or v22, off, {srd(S_DBG)}, s{S_DB} sc0 sc1", "  s_waitcnt vmcnt(0)"]
    H1 = []
    if rk:
        bt = sum(((bias[i] + 8) & 15) << (4 * i) for i in range(8))
        H1 += [f"  s_getreg_b32 s{S_T2}, hwreg(HW_REG_XCC_ID, 0, 3)", f"  s_or_b32 s{S_T1}, s{S_T2}, 0x80",
               f"  v_cmp_ne_u32 vcc, s{S_T1}, v23", "  s_cbranch_vccnz L_nork",
               f"  s_lshl_b32 s{S_T2}, s{S_T2}, 2", f"  s_lshr_b32 s{S_T2}, {bt}, s{S_T2}", f"  s_and_b32 s{S_T2}, s{S_T2}, 15"]
        H1 += [f"  s_sub_i32 s{S_TH+i}, {th[i] + 8}, s{S_T2}" for i in range(2 * nlv)] + ["L_nork:"]
    H1 += chk4("0x80808080", "L_hs2") + ["  s_mov_b64 exec, 1", f"  s_add_u32 s{S_T2}, s{S_DB}, s{S_SP}", "L_hs1a:",
           f"  buffer_load_ubyte v21, off, {srd(S_DBG)}, s{S_T2} sc1", "  s_waitcnt vmcnt(0)", "  v_cmp_eq_u32 vcc, 0, v21", "  s_cbranch_vccnz L_hs1a"] + hello("0x80") + ["L_hs1b:",
           f"  buffer_load_dword v22, off, {srd(S_DBG)}, s{S_DB} sc1", "  s_waitcnt vmcnt(0)"] + chk4("0x80808080", "L_hs2") \
        + memrd + chk4("0x80808080", "L_hs2") + ["  s_branch L_hs1b"]
    H2 = ["  s_mov_b64 exec, 1", "  v_alignbit_b32 v21, v22, v22, 8", "  v_xor_b32 v21, v21, v22", "  v_and_b32 v21, 0x07070707, v21",
          "  v_cmp_ne_u32 vcc, 0, v21", "  v_mov_b32 v21, 4", "  s_cbranch_vccnz L_hsfar", "L_hs3:",
          "  ds_write_b32 v20, v21", "  s_mov_b64 exec, -1", "  s_waitcnt lgkmcnt(0)",
          "  v_and_b32 v21, 3, v0", "  v_lshlrev_b32 v21, 7, v21", f"  s_mov_b32 s{S_T2}, {OFF_F}",
          f"  buffer_load_dword v23, v21, {srd(S_WS)}, s{S_T2} offen", "  s_branch L_go"]
    HX = ["L_hsfar:", "  s_mov_b64 exec, 15", "  v_lshlrev_b32 v21, 7, v0", "  v_mov_b32 v22, 0",
          f"  s_lshl_b32 s{S_T2}, s{S_SP}, 2", f"  s_add_u32 s{S_T2}, s{S_T2}, {OFF_F}",
          f"  buffer_store_dword v22, v21, {srd(S_WS)}, s{S_T2} offen sc1", "  s_mov_b64 exec, 1", "  s_waitcnt vmcnt(0)"] \
        + hello("0xc0") + ["L_hsfar2:"] + memrd + chk4("0x40404040", "L_hsfar3") + ["  s_branch L_hsfar2",
          "L_hsfar3:", "  v_mov_b32 v21, 0", "  s_branch L_hs3"]
    if "H" in abl:
        H1 = ["  v_mov_b32 v21, 4", "  s_branch L_hs3"]
    D6 = []
    st.update(pos=16 * 63, pend=[16 * 62, 16 * 63])
    part(D6, "V", static); st["pend"].append(st["pos"])
    part(D6, "V", static); st["pend"].append(st["pos"])
    D6 += [f"  s_mov_b32 m0, {LDS_JUNK}"]
    for q in range(-(-npf // pfn)):
        while st["pend"] and st["pos"] - st["pend"][0] >= pfw - 1:
            D6 += [f"  s_waitcnt vmcnt({st['pos'] - st['pend'].pop(0)})", "  s_barrier"]
        D6 += [f"  s_waitcnt vmcnt({pfw-1})", f"  buffer_load_dword v24, {srd(S_WS)}, s{S_PF} offen {pfp} lds", f"  s_add_u32 s{S_PF}, s{S_PF}, {1024*pfn}"]
        st["pos"] += 1
    for e_ in st["pend"]:
        D6 += [f"  s_waitcnt vmcnt({st['pos'] - e_})", "  s_barrier"]
    D6.append("  s_endpgm")
    assert sum(l == "  s_barrier" for l in LD + D6) + 60 == NU + 2
    if "E" in abl or "B" in abl:
        LD = LD[:LD.index(next(l for l in LD if l.startswith("  s_bfe_u32 m0")))]
        for wh in "KKKKKKKKVVVV":
            part(LD, wh, lambda: ["  s_waitcnt vmcnt(40)"])
        LD += [f"  v_mov_b32 v20, {LDS_MODE}", "  v_mov_b32 v21, 4", "  ds_write_b32 v20, v21", "  s_waitcnt vmcnt(0) lgkmcnt(0)", "  s_barrier", "  s_endpgm"]
        D0 = D1 = D6 = ["  s_endpgm"]
        H0 = H1 = H2 = HX = DA_ = []
    traces["loader"] = E + LD + D0 + H0 + D1 + D0 + H1 + H1 + H2 + HX + H2 + DA_ + D0 + D1 + D6
    LOADER = LD + ["L_ldloop:"] + D0 + D1 + ["L_ldtail:"] + D6 + ["L_hs0:"] + H0 + ["L_hs1:"] + H1 + ["L_hs2:"] + H2 + HX + DA_

    P = []
    stamp(P)
    Qf = lambda qb, ks: V_Q + 4 * (qb * 4 + ks)
    P += [
        f"  s_sub_u32 s{S_W}, s3, 1",
        f"  s_lshl_b32 s{S_DB}, s{S_BH}, 2",
        f"  s_add_u32 s{S_T1}, s{S_DB}, s{S_W}",
        f"  s_lshl_b32 s{S_T2}, s{S_T1}, 13",
        f"  v_and_b32 v{V_T0}, 15, v0",
        f"  v_lshrrev_b32 v{V_T1}, 4, v0",
        f"  s_mov_b32 s{S_Q+3}, 0x20000",
        f"  s_movk_i32 s{S_T3}, 0x1000",
    ] + blk(S_T0, S_T1) + [
        "  s_waitcnt lgkmcnt(0)",
    ]
    for qb in range(2):
        for ks in range(4):
            so = f"s{S_T3}" if qb else "0"
            if not qlds:
                P.append(f"  buffer_load_dwordx4 {vr(Qf(qb,ks),4)}, v{V_T3}, {srd(S_Q)}, {so} offen offset:{ks*64} {qpol}")
    P += [
        f"  s_add_u32 s{S_WS}, s14, s{S_T0}",
        f"  s_addc_u32 s{S_WS+1}, s15, 0",
        f"  s_mov_b32 s{S_WS+2}, {1 << GB}",
        f"  s_mov_b32 s{S_WS+3}, 0x20000",
        f"  s_add_u32 s{S_OUT}, s10, s{S_T2}",
        f"  s_addc_u32 s{S_OUT+1}, s11, 0",
        f"  s_mov_b32 s{S_OUT+2}, 8192",
        f"  s_mov_b32 s{S_OUT+3}, 0x20000",
        f"  s_lshl_b32 s{S_F}, s{S_W}, 7",
        f"  s_add_u32 s{S_F}, s{S_F}, {OFF_F}",
        f"  s_lshl_b32 s{S_FO}, s{S_SP}, 2",
        f"  s_add_u32 s{S_FO}, s{S_FO}, s{S_F}",
        f"  v_mov_b32 v{V_T2}, 0",
        "  s_mov_b64 exec, 1",
        f"  buffer_store_dword v{V_T2}, off, {srd(S_WS)}, s{S_FO} {rpol}" if "Z" not in abl else "  s_nop 0",
    ]
    if rk:
        P += [f"  s_add_u32 s{S_Q}, s14, {OFF_PR}", f"  s_addc_u32 s{S_Q+1}, s15, 0", f"  s_mov_b32 s{S_Q+2}, {8*PR_STRIDE}",
              f"  s_and_b32 s{S_T1}, s2, 7", f"  s_mul_i32 s{S_T1}, s{S_T1}, {PR_STRIDE}", f"  s_lshr_b32 s{S_T0}, s2, 3",
              f"  s_lshl_b32 s{S_T0}, s{S_T0}, {psh}", f"  s_add_u32 s{S_T1}, s{S_T1}, s{S_T0}",
              f"  buffer_store_dword v{V_T2}, off, {srd(S_Q)}, s{S_T1}"]
    if warm:
        P.append(f"  buffer_load_dword v{V_JUNK}, off, {srd(S_OUT)}, 0")
    P += ["  s_mov_b64 exec, -1",
          f"  s_lshl_b32 s{S_OI}, s{S_SP}, 2", f"  s_add_u32 s{S_OI}, s{S_OI}, s{S_W}", f"  s_mul_i32 s{S_OI}, s{S_OI}, {SLAB}"]
    if clr:
        P += [f"  v_lshlrev_b32 v{V_T2}, 4, v0", f"  s_add_u32 s{S_T1}, s{S_OI}, 4096"] + [f"  v_mov_b32 v{V_X+i}, -1" for i in range(4)]
        for i in range(6):
            P.append(f"  buffer_store_dwordx4 {vr(V_X,4)}, v{V_T2}, {srd(S_WS)}, s{S_OI if i < 4 else S_T1} offen offset:{(i&3)*1024}")
        P += ["  s_mov_b64 exec, 0xffff", f"  buffer_store_dwordx4 {vr(V_X,4)}, v{V_T2}, {srd(S_WS)}, s{S_T1} offen offset:2048", "  s_mov_b64 exec, -1", "  s_nop 0"]
    PF = [f"  v_min_u32 v{V_T2}, {SLAB // 128 - 1}, v0", f"  v_lshlrev_b32 v{V_T2}, 7, v{V_T2}",
          f"  buffer_load_dword v{V_JUNK+1}, v{V_T2}, {srd(S_WS)}, s{S_OI} offen"]
    assert bf16p or not pf
    if pf == 1:
        P += PF
    P += [
        f"  v_xor_b32 v{V_T2}, v{V_T0}, v{V_T1}",
        f"  v_lshlrev_b32 v{V_T2}, 4, v{V_T2}",
        f"  v_lshl_add_u32 v{V_KA}, v{V_T0}, 8, v{V_T2}",
    ]
    for ks in range(1, 4):
        P.append(f"  v_xor_b32 v{V_KA+ks}, {ks*64}, v{V_KA}")
    P += [
        f"  v_lshrrev_b32 v{V_T2}, 2, v0",
        f"  v_lshlrev_b32 v{V_T3}, 8, v{V_T2}",
        f"  v_and_b32 v{V_T2}, 7, v{V_T2}",
        f"  s_lshl_b32 s{S_T2}, s{S_SP}, 1",
        f"  v_xor_b32 v{V_T2}, s{S_T2}, v{V_T2}",
        f"  v_lshl_add_u32 v{V_T3}, v{V_T2}, 5, v{V_T3}",
        f"  v_and_b32 v{V_T2}, 3, v0",
        f"  v_lshl_add_u32 v{V_T3}, v{V_T2}, 3, v{V_T3}",
        f"  v_lshlrev_b32 v{V_FADDR}, 2, v{V_T2}",
        f"  v_add_u32 v{V_VA}, {VBASE}, v{V_T3}",
    ]
    for db in range(1, 8):
        P.append(f"  v_xor_b32 v{V_VA+db}, {db*32}, v{V_VA}")
    P += [
        f"  v_cmp_eq_u32 vcc, 0, v{V_T2}",
        f"  v_mov_b32 v{V_T3}, 0x3f803f80",
        f"  v_lshlrev_b32 v{V_LANE16}, 4, v0",
        f"  v_cndmask_b32 v{V_ONE}, 0, v{V_T3}, vcc",
        f"  v_cndmask_b32 v{V_ONE+1}, 0, v{V_T3}, vcc",
        f"  v_cndmask_b32 v{V_ONE+2}, 0, v{V_T3}, vcc",
        f"  v_cndmask_b32 v{V_ONE+3}, 0, v{V_T3}, vcc",
        f"  s_mov_b32 s{S_C}, {f32(c)}",
        f"  s_mov_b32 s{S_THR}, {f32(THR)}",
    ]
    for i in range(32):
        P.append(f"  v_mov_b64 v[{V_O+2*i}:{V_O+2*i+1}], 0")
    X = []
    for j in range(1, 4):
        X += [f"  s_xor_b32 s{S_T1}, s{S_SP}, {j}", f"  s_lshl_b32 s{S_T1}, s{S_T1}, 2", f"  s_add_u32 s{S_T1}, s{S_T1}, s{S_W}",
              f"  s_mul_i32 s{S_T1}, s{S_T1}, {SLAB}",
              f"  s_add_u32 s{S_ML+j}, s{S_T1}, {3*R}", f"  s_add_u32 s{S_OD+j-1}, s{S_T1}, {(j-1)*R}"]
    X += [f"  s_add_u32 s{S_ML}, s{S_OI}, {3*R}", f"  v_and_b32 v{V_MLA}, 0xf0, v{V_LANE16}"]
    X += [
        f"  v_and_b32 v{V_T2}, 15, v0", f"  v_lshlrev_b32 v{V_OUTA}, 8, v{V_T2}",
        f"  v_bfe_u32 v{V_T2}, v0, 4, 1", f"  v_lshl_add_u32 v{V_OUTA}, v{V_T2}, 5, v{V_OUTA}",
        f"  v_lshrrev_b32 v{V_T2}, 5, v0", f"  v_lshl_add_u32 v{V_OUTA}, v{V_T2}, 4, v{V_OUTA}",
        f"  s_lshl_b32 s{S_T2}, s{S_SP}, 6", f"  v_add_u32 v{V_OUTA}, s{S_T2}, v{V_OUTA}",
    ]
    if qlds:
        X += [f"  s_lshl_b32 s{S_T2}, s{S_W}, 13", f"  s_add_u32 s{S_T2}, s{S_T2}, {QBASE}"]
        X += [f"  v_add_u32 v{V_X+ks}, s{S_T2}, v{V_KA+ks}" for ks in range(4)]
        P += X + (PF[:2] if pf in (2, 3) else []) + ["  s_waitcnt vmcnt(0)", "  s_barrier"] + (PF[2:] if pf == 2 else [])
        P += [f"  ds_read_b128 {vr(Qf(qb,ks),4)}, v{V_X+ks} offset:{qb*4096}" for qb in range(2) for ks in range(4)]
        P += ["  s_waitcnt lgkmcnt(0)"]
    elif pf >= 4:
        P += ["  s_barrier"] + X + ["  s_waitcnt vmcnt(0)"]
    elif pf >= 2:
        P += ["  s_barrier"] + X + PF[:2] + ["  s_waitcnt vmcnt(0)"] + (PF[2:] if pf == 2 else [])
    else:
        P += ["  s_barrier"] + X + [f"  s_waitcnt vmcnt({(1 if warm else 0) + (1 if pf else 0)})"]
    if pre == 1:
        P += [f"  v_mov_b32 v{V_T2}, s{S_C}"]
        for i in range(33):
            q = V_Q + i
            t = V_S + 2 * (i & 3)
            if i < 32:
                P += [f"  v_lshlrev_b32 v{t}, 16, v{q}", f"  v_and_b32 v{t+1}, 0xffff0000, v{q}",
                      f"  v_pk_mul_f32 v[{t}:{t+1}], v[{t}:{t+1}], v[{V_T2}:{V_T2+1}] op_sel_hi:[1,0]"]
            if i:
                t = V_S + 2 * ((i - 1) & 3)
                P += [f"  v_cvt_pk_bf16_f32 v{q-1}, v{t}, v{t+1}"]
    if bq:
        assert qlds == 1
        P += ["  s_barrier"]
    stamp(P)
    PA = [f"  s_mov_b32 s{S_DBG}, s12", f"  s_mov_b32 s{S_DBG+1}, s13", f"  s_mov_b32 s{S_DBG+2}, 256", f"  s_mov_b32 s{S_DBG+3}, 0x20000"]
    if hs:
        PA += [f"  s_getreg_b32 s{S_T2}, hwreg(HW_REG_XCC_ID, 0, 3)", f"  s_or_b32 s{S_T2}, s{S_T2}, 0x80", f"  v_mov_b32 v{V_T2}, s{S_T2}",
               f"  s_add_u32 s{S_T2}, s{S_DB}, s{S_SP}", "  s_mov_b64 exec, 1",
               f"  buffer_store_byte v{V_T2}, off, {srd(S_DBG)}, s{S_T2} {'sc1' if hs == 1 else ''}", "  s_mov_b64 exec, -1"]
    else:
        if l2:
            PA += [f"  s_getreg_b32 s{S_T2}, hwreg(HW_REG_XCC_ID, 0, 3)", f"  s_mul_i32 s{S_T2}, s{S_T2}, 3",
                   f"  s_lshl_b32 s{S_T2}, 16, s{S_T2}", f"  s_add_u32 s{S_T2}, s{S_T2}, 1", f"  v_mov_b32 v{V_T2}, s{S_T2}"]
        else:
            PA += [f"  v_mov_b32 v{V_T2}, 1"]
        PA += [
            "  s_mov_b64 exec, 1",
            f"  buffer_atomic_add v{V_T2}, off, {srd(S_DBG)}, s{S_DB} sc1",
            "  s_mov_b64 exec, -1",
        ]
    if "H" in abl:
        PA = []

    Sb = lambda par, kbl, qb: V_S + 16 * par + 4 * (kbl * 2 + qb)
    Pb = lambda par, qb: V_P + 8 * par + 4 * qb
    Lb = lambda par, qb: V_L + 8 * par + 4 * qb
    Ob = lambda db, qb: V_O + 4 * (db * 2 + qb)
    Fr = lambda half, f: (V_FR + 16 * half if half < 2 else 240 if half == 2 else V_Q) + 4 * f
    bufs_ = lambda n: ((n & 1, (n & 1) ^ 1, 2, n & 1) if nb3 else (0, 1, 0, 1))

    def kreads(half, u, kbl):
        return [f"  ds_read_b128 {vr(Fr(half,ks),4)}, v{V_KA+ks} offset:{(u % NSL)*8192 + kbl*4096}" for ks in range(4)]

    def vreads(half, u, dbs):
        o = []
        for f, db in enumerate(dbs):
            for h in range(2):
                o.append(f"  ds_read_b64_tr_b16 {vr(Fr(half,f)+2*h,2)}, v{V_VA+db} offset:{(u % NSL)*8192 + h*4096}")
        return o

    def qkm(half, u, kbl, first=False):
        o = []
        for qb, ks in {1: [(a, b) for a in range(2) for b in range(4)], 0: [(a, b) for b in range(4) for a in range(2)], 2: [(0, 0), (0, 1), (0, 2), (0, 3), (1, 3), (1, 2), (1, 1), (1, 0)]}[chain]:
            if True:
                d = vr(Sb(u & 1, kbl, qb), 4)
                c0 = vr(V_NM + 4 * qb, 4) if (pre and not first) else 0
                o.append(f"  v_mfma_f32_16x16x32_bf16 {d}, {vr(Fr(half,ks),4)}, {vr(Qf(qb,ks),4)}, {d if ks != (3 if chain == 2 and qb else 0) else c0}")
        return o

    def pvm(half, u, dbs, order=None):
        o = []
        order = pvo if order is None else order
        seq = {0: [(f, qb) for f in range(4) for qb in range(2)],
               1: [(f, qb) for qb in range(2) for f in range(4)],
               2: [(f, (f + i) & 1) for i in range(2) for f in range(4)]}[order]
        for f, qb in seq:
            d = vr(Ob(dbs[f], qb), 4)
            o.append(f"  v_mfma_f32_16x16x32_bf16 {d}, {vr(Fr(half,f),4)}, {vr(Pb(u&1,qb),4)}, {d}")
        return o

    def lm(par, first=False):
        return [f"  v_mfma_f32_16x16x32_bf16 {vr(Lb(par,qb),4)}, {vr(V_ONE,4)}, {vr(Pb(par,qb),4)}, {0 if first else vr(Lb(par^1,qb),4)}"
                for qb in range(2)]

    def softmax(par):
        pairs = [(kbl, qb, h) for kbl in range(2) for qb in range(2) for h in range(2)]
        s3 = [[], [], []]
        for k, (kbl, qb, h) in enumerate(pairs):
            s = Sb(par, kbl, qb) + 2 * h
            x = V_X + 2 * (k & 3)
            if pre == 1:
                s3[0].append([])
                s3[1].append([f"  v_exp_f32 v{x}, v{s}", f"  v_exp_f32 v{x+1}, v{s+1}"])
            else:
                if pre == 2 and pk:
                    s3[0].append([f"  v_pk_mul_f32 v[{x}:{x+1}], v[{s}:{s+1}], s[{S_C}:{S_C+1}] op_sel_hi:[1,0]"])
                elif pre == 2:
                    s3[0].append([f"  v_mul_f32 v{x}, s{S_C}, v{s}", f"  v_mul_f32 v{x+1}, s{S_C}, v{s+1}"])
                elif pk:
                    s3[0].append([f"  v_pk_fma_f32 v[{x}:{x+1}], v[{s}:{s+1}], s[{S_C}:{S_C+1}], v[{V_M}:{V_M+1}] op_sel:[0,0,{qb}] op_sel_hi:[1,0,{qb}] neg_lo:[0,0,1] neg_hi:[0,0,1]"])
                else:
                    s3[0].append([f"  v_fma_f32 v{x}, v{s}, s{S_C}, -v{V_M+qb}", f"  v_fma_f32 v{x+1}, v{s+1}, s{S_C}, -v{V_M+qb}"])
                s3[1].append([f"  v_exp_f32 v{x}, v{x}", f"  v_exp_f32 v{x+1}, v{x+1}"])
            s3[2].append([f"  v_cvt_pk_bf16_f32 v{Pb(par,qb)+2*kbl+h}, v{x}, v{x+1}"])
        o = []
        for k in range(10):
            for j in range(3):
                if 0 <= k - j < 8:
                    o += s3[j][k - j]
        return o

    def softmax_plain(par):
        sm = softmax(par)
        return sm[:-1] + ["  s_nop 0", sm[-1], "  s_nop 1"]

    def chk(par):
        return [f"  v_add_f32 v{V_T0}, v{Lb(par,0)}, v{Lb(par,1)}", f"  v_cmp_nge_f32 vcc, s{S_THR}, v{V_T0}"]

    sites = []

    def br(par):
        k = len(sites)
        sites.append(par)
        return [f"  s_cbranch_vccnz L_fix{k}", f"L_ret{k}:"]

    def xmax(reg, tmp):
        return [f"  v_mov_b32 v{tmp}, v{reg}", "  s_nop 1", f"  v_permlane16_swap_b32 v{reg}, v{tmp}",
                f"  v_max_f32 v{reg}, v{reg}, v{tmp}",
                f"  v_mov_b32 v{tmp}, v{reg}", "  s_nop 1", f"  v_permlane32_swap_b32 v{reg}, v{tmp}",
                f"  v_max_f32 v{reg}, v{reg}, v{tmp}"]

    def maxof(dst, regs):
        o = [f"  v_max3_f32 v{dst}, v{regs[0]}, v{regs[1]}, v{regs[2]}"]
        k = 3
        while k + 1 < len(regs):
            o.append(f"  v_max3_f32 v{dst}, v{dst}, v{regs[k]}, v{regs[k+1]}")
            k += 2
        if k < len(regs):
            o.append(f"  v_max_f32 v{dst}, v{dst}, v{regs[k]}")
        return o

    def group(mf, reads, fill, rd=None):
        o = []
        rd = rd or RD
        per = -(-len(reads) // rd) if reads else 0
        for i, m in enumerate(mf):
            o.append(m)
            o += reads[i * per:(i + 1) * per]
            o += fill[i]
        return o

    def coarse(lines, pend):
        if WG >= 4:
            return auto_lgkm(lines, pend)
        out = []
        n = 4 // WG
        for l in lines:
            if l.strip().startswith("v_mfma"):
                a = int(l.split(",")[2 if "x" in abl else 1].split("[")[1].split(":")[0])
                if V_FR <= a < V_FR + 32 or a >= 240:
                    f = (a - V_FR) // 4
                    last = V_FR + 4 * ((f // n) * n + n - 1) + 3
                    out.append(f"  v_touch v{last}, v{last}")
            out.append(l)
        out, pend = auto_lgkm(out, pend)
        return [l for l in out if not l.strip().startswith("v_touch")], pend

    def ablate(B):
        if "d" in abl:
            B = [l for l in B if not l.strip().startswith("ds_")]
        if "v" in abl:
            B = [l for l in B if not l.strip().startswith(("v_exp", "v_fma", "v_cvt"))]
        if "B" in abl:
            B = [l for l in B if l.strip() != "s_barrier"]
        if "k" in abl:
            B = [l for l in B if not l.strip().startswith("ds_read_b128")]
        if "t" in abl:
            B = [l for l in B if not l.strip().startswith("ds_read_b64_tr")]
        if "o" in abl:
            B = [l for l in B if f"v[{V_ONE}:" not in l]
        if "q" in abl:
            B = [l for l in B if not (l.strip().startswith("v_mfma") and V_S <= int(l.split("[")[1].split(":")[0]) < V_S + 32)]
        if "p" in abl:
            B = [l for l in B if not (l.strip().startswith("v_mfma") and V_O <= int(l.split("[")[1].split(":")[0]) < V_O + 64)]
        if "x" in abl:
            BB = []
            for l in B:
                if l.strip().startswith("v_mfma"):
                    a = l.split(", ")
                    l = ", ".join([a[0], a[2], a[1], a[3]])
                BB.append(l)
            B = BB
        return B

    DA, DB_ = [0, 1, 2, 3], [4, 5, 6, 7]

    def fills(par, nfront):
        n = nfront + max(LPOS - 1, 0)
        wts = [1.0] * n
        if bal and nfront == 24:
            per = [-(-4 // RD), -(-8 // RD), -(-8 // RD)]
            cnt = [4, 8, 8]
            for g in range(3):
                for i in range(8):
                    nr = max(0, min(per[g], cnt[g] - i * per[g]))
                    wts[8 * g + i] = max(0.2, 3.1 - nr)
            for i in range(24, n):
                wts[i] = 2.1
        f = spread(softmax(par)[NE:], wts)
        return f + [[] for _ in range(nfront + 10 - n)]

    def closing(n, nxt_reads, tailfill, extra=()):
        o = ["  s_waitcnt lgkmcnt(0)", "  s_barrier"] + list(extra)
        mf = pvm(1, n - 1, DB_)
        mf = mf[:LPOS] + lm(n & 1) + mf[LPOS:]
        fl = [list(x) for x in tailfill]
        c2 = chk(n & 1)
        if n < NU - 1:
            for i, e in enumerate(spread(softmax((n + 1) & 1)[:NE], [1] * (8 - LPOS - 1))):
                fl[LPOS + 1 + i] += e
        fl[8] = fl[8] + c2
        o += group(mf, nxt_reads, fl)
        return o + br(n & 1)

    def front(n):
        f = fills(n & 1, 24)
        o = group(qkm(0, n + 1, 0), kreads(1, n + 1, 1), f[0:8])
        o += group(qkm(1, n + 1, 1), vreads(0, n - 1, DA), f[8:16])
        o += group(pvm(0, n - 1, DA), vreads(1, n - 1, DB_), f[16:24])
        return o, f[24:34]

    if tab:
        assert pre == 1
        slots = [x.replace("-", "") for x in tab.split()]
        assert len(slots) == 34
        NE = "".join(slots[:10]).count("e")
        sm0 = softmax

        def softmax(par):
            ex = [l for l in sm0(par) if "v_exp" in l]
            cv = [l for l in sm0(par) if "v_cvt" in l]
            o = ex[:NE]
            ne, nc = NE, 0
            while nc < 8:
                if ne < 16 and ne // 2 - 4 < nc:
                    o.append(ex[ne]); ne += 1
                if 2 * nc + 3 <= ne or (ne == 16 and "v_cvt" in o[-1]) or (ne // 2 - 4 >= nc):
                    o.append(cv[nc]); nc += 1
                elif ne == 16:
                    o.append("  s_nop 0"); o.append(cv[nc]); nc += 1
            return o

        def fill_slots(sl, q):
            return [[x for ch in s_ for x in ([q[ch].pop(0)] if ch != "k" else q["k"]) if x] for s_ in sl]

        def closing(n, nxt_reads, tailfill, extra=()):
            o = ["  s_waitcnt lgkmcnt(0)", "  s_barrier"] + list(extra)
            mf = pvm(bufs_(n)[3], n - 1, DB_)
            mf = mf[:LPOS] + lm(n & 1) + mf[LPOS:]
            nd = "".join(slots[:10]).count("d")
            per = len(nxt_reads) // nd
            q = dict(d=["\n".join(nxt_reads[i * per:(i + 1) * per]) for i in range(nd)], c=[""] * 8, k=chk(n & 1),
                     e=softmax((n + 1) & 1)[:NE] if n < NU - 1 else [""] * NE)
            fl = [list(a) + b for a, b in zip(tailfill, fill_slots(slots[:10], q))]
            fl = [[y for x in f_ for y in x.split("\n")] for f_ in fl]
            return o + group(mf, [], fl) + br(n & 1)

        def front(n):
            b = bufs_(n)
            sm = sm0(n & 1)
            q = dict(d=kreads(b[1], n + 1, 1) + vreads(b[2], n - 1, DA) + vreads(b[3], n - 1, DB_),
                     e=[l for l in sm if "v_exp" in l][NE:], c=[l for l in sm if "v_cvt" in l])
            nd = ne = nc = 0
            ne = NE
            for i, s_ in enumerate(slots[10:] + slots[:10]):
                for ch in s_:
                    if ch == "d" and i < 24:
                        lo_, hi_ = ((0, 8) if nd < 4 else (0 if nb3 else 8, 16) if nd < 12 else (8 if nb3 else 16, 24))
                        assert lo_ <= i < hi_, (tab, nd, i)
                        nd += 1
                    if ch == "e" and (i < 24 or True):
                        k_ = ne // 2
                        assert k_ - 4 < nc, (tab, "temp busy", ne)
                        ne += 1
                    if ch == "c":
                        assert 2 * nc + 2 <= ne and (i < 24 or i - 24 < LPOS - 1), (tab, "cvt", nc)
                        nc += 1
            assert nd == 20 and nc == 8 and ne == 16 + NE
            f = fill_slots(slots[10:], q)
            tfl = [[q["c"].pop(0) for ch in s_ if ch == "c"] for s_ in slots[:10]]
            o = group(qkm(b[0], n + 1, 0), [], f[0:8]) + group(qkm(b[1], n + 1, 1), [], f[8:16]) + group(pvm(b[2], n - 1, DA), [], f[16:24])
            return o, tfl

    P2 = kreads(0, 0, 0) + kreads(1, 0, 1) + qkm(0, 0, 0, True) + kreads(0, 1, 0) + qkm(1, 0, 1, True) + kreads(1, 1, 1) \
        + qkm(0, 1, 0, True) + qkm(1, 1, 1, True) + ["  s_nop 7"]
    for qb in range(2):
        P2 += maxof(V_M + qb, [Sb(par, kbl, qb) + r for par in range(2) for kbl in range(2) for r in range(4)])
    for qb in range(2):
        P2 += xmax(V_M + qb, V_T0)
    if pre:
        for qb in range(2):
            for par in range(2):
                for kbl in range(2):
                    for r in range(4):
                        s = Sb(par, kbl, qb) + r
                        P2.append(f"  v_sub_f32 v{s}, v{s}, v{V_M+qb}")
            for r in range(4):
                P2.append(f"  v_sub_f32 v{V_NM+4*qb+r}, 0, v{V_M+qb}")
    else:
        for qb in range(2):
            P2.append(f"  v_mul_f32 v{V_M+qb}, s{S_C}, v{V_M+qb}")
    P2 += softmax_plain(0) + lm(0, True) + softmax(1)[:NE]
    if fastp:
        V = []
        for qb in range(2):
            V += maxof(V_M + qb, [Sb(0, kbl, qb) + r for kbl in range(2) for r in range(4)])
        a, b = xmax(V_M, V_T0), xmax(V_M + 1, V_T1)
        for x, y in zip(a, b):
            V += [x, y] if "s_nop" not in x else ["  s_nop 0"]
        subm = lambda par: [f"  v_sub_f32 v{Sb(par,kbl,qb)+r}, v{Sb(par,kbl,qb)+r}, v{V_M+qb}" for kbl in range(2) for qb in range(2) for r in range(4)]
        if pre:
            V += subm(0)
        else:
            V += [f"  v_mul_f32 v{V_M+qb}, s{S_C}, v{V_M+qb}" for qb in range(2)]
        V += softmax(0)
        fl = [[] for _ in range(4)] + spread(V, [1] * 12)
        fl[3] = ["  s_nop 3"]
        P2 = kreads(0, 0, 0) + kreads(1, 0, 1) + qkm(0, 0, 0, True) + kreads(0, 1, 0) + qkm(1, 0, 1, True) + kreads(1, 1, 1)
        P2 += group(qkm(0, 1, 0, True) + qkm(1, 1, 1, True), [], fl) + ["  s_nop 1"] + lm(0, True)
        if pre:
            P2 += [f"  v_sub_f32 v{V_NM+4*qb+r}, 0, v{V_M+qb}" for qb in range(2) for r in range(4)] + subm(1)
        P2 += softmax(1)[:NE]
    nit = (NU - 2 + NSL - 1) // NSL
    P2 += [f"  s_mov_b32 s{S_CNT}, {nit}"] + (["  s_waitcnt vmcnt(0)"] if pf < 2 else PF[2:] if pf == 3 else []) + ["  s_barrier"] + kreads(bufs_(1)[0], 2, 0)
    P2, pend0 = auto_lgkm(P2)
    if diag in (3, 7):
        P2 += ["  s_mov_b32 s95, 0"]
    if hs == 3:
        assert qlds and pf >= 4
        k = P.index("  s_barrier") + 1
        if lw == 3:
            assert P[k - 2] == "  s_waitcnt vmcnt(0)"
            del P[k - 2]
            k = P2.index("  s_barrier")
            P2 = P2[:k] + ["  s_waitcnt vmcnt(0)"] + P2[k:] + [f"  s_cmp_lg_u32 s{S_W}, 0", "  s_cbranch_scc1 L_mid"] + PA + ["  s_branch L_mid"]
        if lw == 2:
            assert P[k - 2] == "  s_waitcnt vmcnt(0)"
            del P[k - 2]
            i0 = P.index(f"  v_mov_b32 v{V_T2}, 0")
            i1 = P.index("  s_mov_b64 exec, -1") + 1
            clears = P[i0:i1]
            del P[i0:i1]
            k = P.index("  s_barrier") + 1
            P[k:k] = clears
            if touch == 3:
                P[k + 2:k + 2] = [f"  buffer_load_dword v{V_JUNK}, off, {srd(S_OUT)}, 0"]
            k = P2.index("  s_barrier")
            P2 = P2[:k] + ["  s_waitcnt vmcnt(0)"] + P2[k:] + [f"  s_cmp_lg_u32 s{S_W}, 0", "  s_cbranch_scc1 L_mid"] + PA + ["  s_branch L_mid"]
    if hs == 3 and lw < 2:
        if lw:
            assert P[k - 2] == "  s_waitcnt vmcnt(0)"
            del P[k - 2]
            k = len(P) - 1 - P[::-1].index("  s_barrier")
            P.insert(k, "  s_waitcnt vmcnt(0)")
            k += 2
            j = P.index("  s_mov_b64 exec, -1")
            P[j:j] = PA[:4] + [f"  buffer_load_dword v{V_JUNK}, off, {srd(S_DBG)}, s{S_DB}"]
            PA = PA[4:]
            k += 5
        P = P[:k] + [f"  s_cmp_lg_u32 s{S_W}, 0", "  s_cbranch_scc1 L_nohello"] + PA + ["L_nohello:"] + P[k:]
        k = P2.index("  s_barrier")
        P2 = P2[:k] + ["  s_waitcnt vmcnt(0)"] + P2[k:] + ["  s_branch L_mid"]


    BODY = []
    nfirst = NU - 1 - NSL
    tf = front(nfirst - 1)[1]
    midx = None
    for n in range(nfirst, NU - 1):
        extra = []
        if (diag == 3 and n % 2 == 1) or diag == 7:
            extra = ["  s_memrealtime s[92:93]", "  s_memtime s[90:91]", "  s_add_u32 s95, s95, 1", "  s_min_u32 s95, s95, 31", "  s_add_u32 s94, s95, 32", "  s_waitcnt lgkmcnt(0)",
                     "  s_mov_b32 m0, s95", f"  v_writelane_b32 v{V_TR}, s92, m0", "  s_mov_b32 m0, s94", f"  v_writelane_b32 v{V_TR}, s90, m0"]
        if diag == 4 and n == nfirst:
            extra = [f"  s_cmp_lg_u32 s{S_CNT}, {nit - 16 // NSL}", "  s_cbranch_scc1 L_nost", "  s_memtime s[96:97]", "  s_memrealtime s[98:99]",
                     "  s_waitcnt lgkmcnt(0)", "  s_mov_b32 s94, 0", "L_nost:"]
        cl = closing(n - 1, kreads(bufs_(n)[0], n + 1, 0), tf, extra)
        fr, tf = front(n)
        if n == NU - 2:
            k = max(i for i, l in enumerate(fr) if "v_mfma" in l)
            fr = fr[:k] + [f"  s_sub_u32 s{S_CNT}, s{S_CNT}, 1", f"  s_cmp_lg_u32 s{S_CNT}, 0"] + fr[k:] + ["  s_cbranch_scc1 L_loop"]
        cl, pendc = coarse(ablate(cl), [])
        assert abl or pendc == pend0 or (nb3 and n % 2 == 0)
        if "q" in abl or "p" in abl:
            fr = [x for l in fr for x in ([l, "  s_waitcnt lgkmcnt(6)"] if l.strip().startswith("ds_") else [l])]
        fr, pendf = coarse(ablate(fr), pendc)
        if n % NSL == 1 % NSL:
            midx = len(BODY)
        BODY.append((cl, fr))

    def fix(par):
        o = ["  s_nop 7"]
        for qb in range(2):
            o += maxof(V_T0 + qb, [Sb(par, kbl, qb) + r for kbl in range(2) for r in range(4)])
        for qb in range(2):
            o += xmax(V_T0 + qb, V_T2)
        for qb in range(2):
            t = V_T0 + qb
            if pre:
                o += [f"  v_max_f32 v{t}, 0, v{t}", f"  v_add_f32 v{V_M+qb}, v{V_M+qb}, v{t}"]
                for p2 in range(2):
                    for kbl in range(2):
                        for r in range(4):
                            s = Sb(p2, kbl, qb) + r
                            o.append(f"  v_sub_f32 v{s}, v{s}, v{t}")
                for r in range(4):
                    o.append(f"  v_sub_f32 v{V_NM+4*qb+r}, 0, v{V_M+qb}")
                if pre == 2:
                    o += [f"  v_mul_f32 v{t}, s{S_C}, v{t}"]
                o += [f"  v_exp_f32 v{t}, -v{t}"]
            else:
                o += [f"  v_mul_f32 v{t}, s{S_C}, v{t}", f"  v_max_f32 v{t}, v{t}, v{V_M+qb}",
                      f"  v_sub_f32 v{V_T2}, v{V_M+qb}, v{t}", f"  v_mov_b32 v{V_M+qb}, v{t}", f"  v_exp_f32 v{t}, v{V_T2}"]
        o.append("  s_nop 0")
        for qb in range(2):
            o.append(f"  v_mul_f32 v{Lb(par^1,qb)}, v{V_T0+qb}, v{Lb(par^1,qb)}")
            for db in range(8):
                for r in range(4):
                    o.append(f"  v_mul_f32 v{Ob(db,qb)+r}, v{V_T0+qb}, v{Ob(db,qb)+r}")
        return o + softmax_plain(par) + lm(par) + softmax(par ^ 1)[:NE] + ["  s_nop 7"]
    FIX = [fix(0), fix(1)]

    T1 = []
    if diag == 4:
        T1 += ["  s_waitcnt lgkmcnt(0)", "  s_memtime s[90:91]", "  s_memrealtime s[92:93]", "  s_waitcnt lgkmcnt(0)", "  s_sub_u32 s96, s90, s96", "  s_sub_u32 s98, s92, s98"]
    X = []
    if l2:
        X += [f"  v_mov_b32 v{V_T2}, {LDS_MODE}", f"  ds_read_b32 v{V_T3}, v{V_T2}", "  s_waitcnt lgkmcnt(0)",
              f"  v_readfirstlane_b32 s{S_MODE}, v{V_T3}"]
    if rotl:
        T1 += X[:2]
        X = X[3:]
    else:
        T1 += X
        X = []
    T1 += closing(NU - 2, vreads(bufs_(NU - 1)[2], NU - 2, DA), tf)
    T1 += X
    f = fills(1, 8)
    T1 += group(pvm(bufs_(NU - 1)[2], NU - 2, DA), vreads(1, NU - 2, DB_), f[0:8]) + (["  s_nop 1"] if LPOS == 0 else [])
    T1, pend = auto_lgkm(T1, pendf)
    c2 = closing(NU - 1, [], f[8:18])[2:]
    k = next(i for i, l in enumerate(c2) if l.strip().startswith("v_add_f32"))
    if rotl:
        rr = vreads(0, NU - 1, [2, 3, 4, 5]) + vreads(3, NU - 1, [6, 7, 0, 1])
        o = ["  s_waitcnt lgkmcnt(0)"]
        nstamp[0] = 2
        stamp(o)
        o.append("  s_barrier")
        stamp(o)
        i = 0
        for l in c2:
            o.append(l)
            if "v_mfma" in l and i < 7:
                o += rr[2 * i:2 * i + 2]
                i += 1
        c2 = o
    else:
        c2 = c2[:k] + ["  s_nop 3"] + c2[k:]
    c2, pendl = auto_lgkm(c2, pend)
    assert rotl or not pendl
    T1 += c2
    ML = V_X
    T1 += [
        f"  v_mov_b32 v{ML}, v{V_M}" if pre != 2 else f"  v_mul_f32 v{ML}, s{S_C}, v{V_M}",
        f"  v_mov_b32 v{ML+1}, v{V_M+1}" if pre != 2 else f"  v_mul_f32 v{ML+1}, s{S_C}, v{V_M+1}",
        f"  v_mov_b32 v{ML+2}, v{Lb(1,0)}", f"  v_mov_b32 v{ML+3}, v{Lb(1,1)}",
    ]

    def publish(spol):
        def ostore(j):
            o = []
            if bf16p:
                b = V_S + 8 * (j - 1)
                for i in range(8):
                    o.append(f"  v_cvt_pk_bf16_f32 v{b+i}, v{V_O+16*j+2*i}, v{V_O+16*j+2*i+1}")
                    if i & 3 == 3:
                        o.append(f"  buffer_store_dwordx4 {vr(b+(i&4),4)}, v{V_LANE16}, {srd(S_WS)}, s{S_OD+j-1} offen offset:{(i>>2)*1024} {spol}")
            else:
                for i in range(4):
                    o.append(f"  buffer_store_dwordx4 {vr(V_O+16*j+4*i,4)}, v{V_LANE16}, {srd(S_WS)}, s{S_OD+j-1} offen offset:{i*1024} {spol}")
            return o
        nstamp[0] = 4 if rotl and diag else 2
        o = ["  s_mov_b64 exec, 0xffff", f"  buffer_store_dwordx4 {vr(ML,4)}, v{V_LANE16}, {srd(S_WS)}, s{S_ML} offen {spol}", "  s_mov_b64 exec, -1"]
        b1 = 3 if rotl else 1
        r0 = vreads(0, NU - 1, [2, 3, 4, 5])
        r1 = vreads(b1, NU - 1, [6, 7, 0, 1])
        if not rotl:
            stamp(o)
            o.append("  s_barrier")
            stamp(o)
            o += r0 + r1[:6]
        mf = pvm(0, NU - 1, [2, 3, 4, 5], 0) + pvm(b1, NU - 1, [6, 7, 0, 1], 0)
        if tord == 0:
            o += mf[:2] + r1[6:] + mf[2:12] + ostore(1)[:5] + mf[12:14] + ostore(1)[5:] + mf[14:16] + ostore(2) + ostore(3)
        else:
            st_ = ostore(1) + ostore(2) + ostore(3)
            o += mf[:2] + r1[6:] + mf[2:8]
            k = 0
            for i, n in zip(range(8, 16), (2, 3, 2, 3, 5, 5, 5, 5)):
                o += [mf[i]] + st_[k:k + n]
                k += n
        o, pend = auto_lgkm(o, pendl)
        assert not pend
        return o + [f"  v_mov_b32 v{V_T1}, 1", "  s_mov_b64 exec, 1", "  s_waitcnt vmcnt(0)",
                    f"  buffer_store_dword v{V_T1}, off, {srd(S_WS)}, s{S_FO} {spol}"]
    if l2:
        T1 += [f"  s_cmp_eq_u32 s{S_MODE}, 4", "  s_cbranch_scc0 L_far"]
        poll = lambda p: [f"  buffer_load_dword v{V_T1}, v{V_FADDR}, {srd(S_WS)}, s{S_F} offen {p}", "  s_waitcnt vmcnt(0)",
                          f"  v_cmp_ne_u32 vcc, 1, v{V_T1}"]
        FAR = publish("sc1") + ["  s_mov_b64 exec, 15"]
        stamp(FAR)
        FAR += ["L_fpoll:"] + poll("sc1") + ["  s_cbranch_vccnz L_fpoll", "  buffer_inv sc1", "  s_waitcnt vmcnt(0)", "  s_branch L_got"]
        T2 = publish(npol)
    T2 += ["  s_mov_b64 exec, 15"]
    stamp(T2)
    TP = []
    for i in range(npl):
        TP += poll("nt") + ["  s_cbranch_vccz L_got"]
    TP += poll("sc1") + ["  s_cbranch_vccnz L_poll"]
    T3 = ["  s_mov_b64 exec, -1"]
    stamp(T3)
    VML = V_FR
    VIN = V_S
    for j in range(1, 4):
        T3.append(f"  buffer_load_dwordx4 {vr(VML+4*(j-1),4)}, v{V_MLA}, {srd(S_WS)}, s{S_ML+j} offen {lpol}")
    nld = 2 if bf16p else 4
    for j in range(1, 4):
        if j > 1 and not bf16p:
            T3.append(f"  s_add_u32 s{S_OI}, s{S_OI}, {R}")
        if j == 3 and bf16p:
            T3.append(f"  s_add_u32 s{S_OI}, s{S_OI}, {2*R}")
        for i in range(nld):
            off = i * 1024 + (R if (bf16p and j == 2) else 0)
            T3.append(f"  buffer_load_dwordx4 {vr(VIN+4*nld*(j-1)+4*i,4)}, v{V_LANE16}, {srd(S_WS)}, s{S_OI} offen offset:{off} {lpol}")
    G = V_FR + 16
    p2 = lambda r: f"v[{r}:{r+1}]"
    ml = lambda j: ML if j == 0 else VML + 4 * (j - 1)
    WT = []
    for qb in range(2):
        WT += [f"  v_max3_f32 v{V_T0+qb}, v{ml(0)+qb}, v{ml(1)+qb}, v{ml(2)+qb}"]
    for qb in range(2):
        WT += [f"  v_max_f32 v{V_T0+qb}, v{V_T0+qb}, v{ml(3)+qb}"]
    for j in range(4):
        WT.append(f"  v_pk_add_f32 {p2(G+2*j)}, {p2(ml(j))}, {p2(V_T0)} neg_lo:[0,1] neg_hi:[0,1]")
    for j in range(8):
        WT.append(f"  v_exp_f32 v{G+j}, v{G+j}")
    WT.append(f"  v_pk_mul_f32 {p2(V_T0)}, {p2(G)}, {p2(ml(0)+2)}")
    for j in range(1, 4):
        WT.append(f"  v_pk_fma_f32 {p2(V_T0)}, {p2(G+2*j)}, {p2(ml(j)+2)}, {p2(V_T0)}")
    WT += [f"  v_rcp_f32 v{V_T0}, v{V_T0}", f"  v_rcp_f32 v{V_T1}, v{V_T1}", "  s_nop 0"]
    for j in range(4):
        WT.append(f"  v_pk_mul_f32 {p2(G+2*j)}, {p2(G+2*j)}, {p2(V_T0)}")
    UP = []
    U = V_O + 16 if bf16p else VIN
    if bf16p:
        for i in range(24):
            if i % 4 == 0:
                UP.append(f"  s_waitcnt vmcnt({5 - i // 4})")
            UP += [f"  v_lshlrev_b32 v{U+2*i}, 16, v{VIN+i}", f"  v_and_b32 v{U+2*i+1}, 0xffff0000, v{VIN+i}"]
    else:
        UP.append("  s_waitcnt vmcnt(0)")
    if rst:
        RS = [f"  s_sub_u32 s{S_T1}, s{S_OI}, 4096"] + [f"  buffer_store_dwordx4 {vr(VIN+4*i,4)}, v{V_LANE16}, {srd(S_WS)}, s{S_T1 if i < 4 else S_OI} offen offset:{(i&3)*1024} {rsp}" for i in range(6)]
        if rst == 1:
            UP = ["  s_waitcnt vmcnt(0)"] + RS + [l for l in UP if "s_waitcnt" not in l]
        else:
            k = UP.index("  s_waitcnt vmcnt(0)")
            UP = UP[:k + 1] + RS + UP[k + 1:]
    if wb is not None:
        k = UP.index("  s_waitcnt vmcnt(0)")
        UP = UP[:k + 1] + ["\n".join([f"  s_and_b32 s{S_T1}, s2, {wb}", f"  s_or_b32 s{S_T1}, s{S_T1}, s{S_W}", "  s_cbranch_scc1 L_nowb", "  buffer_wbl2 sc1", "L_nowb:"])] + UP[k + 1:]
    T3.append(f"  s_waitcnt vmcnt({3*nld})")
    T3 += WT[:16]
    k = 0
    for w_ in WT[16:]:
        T3 += UP[k:k + 2] + ([w_] if "s_nop" not in w_ or k >= len(UP) else [])
        k += 2
    T3 += UP[k:]
    T3 = [y for x in T3 for y in x.split("\n")]
    sel = lambda i, n: " op_sel:[0,%d%s] op_sel_hi:[1,%d%s]" % ((i >> 2) & 1, ",0" * n, (i >> 2) & 1, ",1" * n)
    for i in range(0, 16, 2):
        T3.append(f"  v_pk_mul_f32 {p2(V_O+i)}, {p2(V_O+i)}, {p2(G)}" + sel(i, 0))
    for j in range(1, 4):
        for i in range(0, 16, 2):
            T3.append(f"  v_pk_fma_f32 {p2(V_O+i)}, {p2(U+16*(j-1)+i)}, {p2(G+2*j)}, {p2(V_O+i)}" + sel(i, 1))
    stamp(T3)
    OV = V_FR
    for qb in range(2):
        for e in range(2):
            for h in range(2):
                T3.append(f"  v_cvt_pk_bf16_f32 v{OV+4*qb+2*e+h}, v{Ob(e,qb)+2*h}, v{Ob(e,qb)+2*h+1}")
    T3 += [
        f"  v_permlane16_swap_b32 v{OV}, v{OV+2}",
        f"  v_permlane16_swap_b32 v{OV+1}, v{OV+3}",
        f"  buffer_store_dwordx4 {vr(OV,4)}, v{V_OUTA}, {srd(S_OUT)}, 0 offen {opol}",
        f"  v_permlane16_swap_b32 v{OV+4}, v{OV+6}",
        f"  v_permlane16_swap_b32 v{OV+5}, v{OV+7}",
        f"  buffer_store_dwordx4 {vr(OV+4,4)}, v{V_OUTA}, {srd(S_OUT)}, s{S_T3} offen {opol}",
    ]
    if diag:
        T3.append("  s_waitcnt vmcnt(0)")
        stamp(T3)
        T3 += [f"  s_mov_b32 s{S_WS}, s14", f"  s_mov_b32 s{S_WS+1}, s15", f"  s_mov_b32 s{S_WS+2}, {32<<20}"]
        T3.append("  s_getreg_b32 s4, hwreg(HW_REG_XCC_ID)")
        for k in range(nstamp[0]):
            T3.append(f"  v_mov_b32 v{V_S+k}, s{S_ST+2*k}")
        T3.append(f"  v_mov_b32 v{V_S+15}, s4")
        T3.append(f"  v_mov_b32 v{V_S+11}, 31")
        if diag in (3, 7):
            T3 += [f"  s_lshl_b32 s{S_T0}, s2, 2", f"  s_add_u32 s{S_T0}, s{S_T0}, s{S_W}", f"  s_lshl_b32 s{S_T0}, s{S_T0}, 8",
                   f"  s_add_u32 s{S_T0}, s{S_T0}, {OFF_T + (1 << 20)}", f"  v_lshrrev_b32 v{V_T0}, 2, v{V_LANE16}",
                   f"  buffer_store_dword v{V_TR}, v{V_T0}, {srd(S_WS)}, s{S_T0} offen"]
        if diag == 4:
            T3 += [f"  v_mov_b32 v{V_S+12}, s94", f"  v_mov_b32 v{V_S+13}, s96", f"  v_mov_b32 v{V_S+14}, s98"]
        T3 += [
            f"  s_lshl_b32 s{S_T0}, s2, 2",
            f"  s_add_u32 s{S_T0}, s{S_T0}, s{S_W}",
            f"  s_lshl_b32 s{S_T0}, s{S_T0}, 6",
            f"  s_add_u32 s{S_T0}, s{S_T0}, {OFF_T}",
            "  s_mov_b64 exec, 1",
        ]
        for i in range(4):
            T3.append(f"  buffer_store_dwordx4 {vr(V_S+4*i,4)}, off, {srd(S_WS)}, s{S_T0} offset:{16*i}")
    T3.append("  s_endpgm")

    if "S" in abl:
        T1 = [l for l in T1 if not l.strip().startswith("buffer_store")]
        T2 = [l for l in T2 if not l.strip().startswith("buffer_store_dwordx4")]
    if "F" in abl:
        T2 = [l for l in T2 if not l.strip().startswith("buffer_store_dword ")]
        TP = []
    if "R" in abl:
        T3 = [l for l in T3 if not l.strip().startswith("buffer_load")]

    def inline_fix(lines):
        o = []
        for l in lines:
            o.append(l)
            if l.strip().startswith("s_cbranch_vccnz L_fix"):
                o += FIX[sites[int(l.strip().split("L_fix")[1])]]
        return o
    flat = [l for cl, fr in BODY for l in cl + fr]
    first = BODY[midx][1] + [l for cl, fr in BODY[midx + 1:] for l in cl + fr]
    main = E + P + P2 + first + flat + T1 + T2 + TP + T3
    nbar = sum(l == "  s_barrier" for l in P + P2 + first + flat * (nit - 1) + T1 + T2)
    assert nbar == NU + 1 + bq or abl, nbar
    traces["cons_far"] = T1 + FAR + T3
    traces["cons_a"] = main
    traces["cons_b"] = inline_fix(main)
    errs = []
    for n, t in traces.items():
        errs += check_hazards(t, n)
    if errs and not abl.strip("L"):
        raise RuntimeError("hazards:\n" + "\n".join(errs))

    out = [HEADER.rstrip(),
           ";",
           "; GQA attention, split over keys (generated by my own script from a hand-made schedule).",
           "; * 256 workgroups = 64 (batch, kv head) pairs x 4 key splits (interleaved in 1 KB pieces); one workgroup per CU.",
           "; * wave 0 streams Q, K, V into LDS (LDS-DMA, swizzled, about 22 requests in flight, ring of 8 x 32 keys);",
           ";   waves 1-4 own one query head each: S^T = K Q^T and O^T += V^T P^T with 16x16x32 MFMAs, software-pipelined",
           ";   in units of 32 keys, one barrier per unit; scale*log2(e) is folded into Q, -max rides in the MFMA C operand.",
           "; * softmax guard: the reference point is the true max of the first unit; the running row sum (an extra MFMA",
           ";   with a ones fragment) is checked after EVERY unit, before that unit reaches O.  When it passes 2^24 or is",
           ";   not finite, L_fixfn* computes that unit's true row max (= the running max whenever a weight passes 2^24,",
           ";   since all earlier weights were below), moves the reference up to it, rescales O and l and recomputes P.",
           "; * the four splits of a pair combine through d_ws: each keeps one quarter of d and sends the other three.",
           ";   A start-up greeting in d_debug (one byte per workgroup, with its XCD) orders the flag clears and tells",
           ";   whether all four share an XCD: then the hand-off stays in that L2, otherwise L_far uses write-through",
           ";   stores and an acquire.  Both paths give the same bits.",
           "; * speed only: the loader runs further ahead of the compute waves in the first microseconds, and keeps one",
           ";   request more or fewer in flight depending on how many workgroups of its XCD are ahead of it.",
           f"; @launch grid=(256,1,1) block=(320,1,1) lds={lds}",
           '.amdgcn_target "amdgcn-amd-amdhsa--gfx950"', ".text", f".globl {NAME}", ".p2align 8",
           f".type {NAME},@function", f"{NAME}:"]
    out += E + LOADER
    out += [".p2align 6", "L_cons:"] + P + P2
    out += [".p2align 6", "L_loop:"]
    loop = []
    for i, (cl, fr) in enumerate(BODY):
        loop += cl + (["L_mid:"] if i == midx else []) + fr
    if al == 1:
        loop, nmis, ph = align8(loop)
    if al == 2:
        loop, nmis, ph = align8(loop)
        loop = ["  s_nop 0"] + loop
    out += loop
    out += T1 + T2 + ["L_poll:"] + TP + ["L_got:"] + T3
    if l2:
        out += ["L_far:"] + FAR
    for k, par in enumerate(sites):
        out += [f"L_fix{k}:", f"  s_call_b64 s[{S_RET}:{S_RET+1}], L_fixfn{par}", f"  s_branch L_ret{k}"]
    for par in range(2):
        out += [f"L_fixfn{par}:"] + FIX[par] + [f"  s_setpc_b64 s[{S_RET}:{S_RET+1}]"]
    out += ["L_end:", "  s_endpgm"]
    out += ['.section .rodata,"a"', ".p2align 6", f".amdhsa_kernel {NAME}",
            f"  .amdhsa_next_free_vgpr {256 if nb3 else NVGPR}", "  .amdhsa_next_free_sgpr 102",
            f"  .amdhsa_accum_offset {256 if nb3 else NVGPR}", "  .amdhsa_group_segment_fixed_size 0",
            "  .amdhsa_kernarg_size 48", "  .amdhsa_user_sgpr_count 2",
            "  .amdhsa_user_sgpr_kernarg_segment_ptr 1", "  .amdhsa_system_sgpr_workgroup_id_x 1",
            ".end_amdhsa_kernel"]
    notes = {
        "L_pc:": "loader wave: own code into L2, descriptors, first touches, Q, then the K/V stream",
        "L_ldloop:": "two stages (K unit, V unit) per pass; s56 counts requests down to the next barrier",
        "L_ldtail:": "last two V units, then the hand-off lines of this workgroup are brought into L2",
        "L_hs0:": "greeting check: first look",
        "L_hs1:": "greeting check: decide (waits until all four members have greeted)",
        "L_hsfar:": "members on different XCDs: clear the flags in memory and greet again through memory",
        "L_barfn:": "barrier + next interval",
        "L_cons:": "compute waves: addresses, flag clear, Q fragments (scaled), units 0 and 1, true max of unit 0",
        "L_loop:": "8 steps; step n = barrier, PV(n-2) second half + row sum(n-1) + check, QK(n+1), PV(n-1) first half, softmax(n)",
        "L_poll:": "wait for the three other splits",
        "L_got:": "combine the four partial results of this quarter and store it",
        "L_far:": "publish when the splits do not share an XCD",
        "L_fixfn0:": "fall-back to the true running max, even unit",
        "L_fixfn1:": "fall-back to the true running max, odd unit",
    }
    out = [x for l in out for x in ([f"; ---- {notes[l]}", l] if l in notes else [l])]
    return "\n".join(l.rstrip() for l in out if l is not None) + "\n"


if __name__ == "__main__":
    kw = eval("dict(%s)" % sys.argv[1]) if len(sys.argv) > 1 else {}
    sys.stdout.write(gen(**kw))
```

```python
import struct, sys, math
from asmlib import check_hazards, auto_lgkm, align8

NAME = "standalone__gqa_softmax__sampling_kernel"

HEADER = """; Kernarg layout for this problem (48 bytes, ptrs only, base s[0:1]):
;   offset   0: d_in[0] q  shape=(8, 32, 32, 128) dtype=bfloat16 strides=(262144, 8192, 256, 2) contiguous=True
;   offset   8: d_in[1] k  shape=(8, 8, 8192, 128) dtype=bfloat16 strides=(16777216, 2097152, 256, 2) contiguous=True
;   offset  16: d_in[2] v  shape=(8, 8, 8192, 128) dtype=bfloat16 strides=(16777216, 2097152, 256, 2) contiguous=True
;   offset  24: d_out     shape=(8, 32, 32, 128) dtype=bfloat16 (2 bytes/elem)
"""


def f32(x):
    return "0x%08x" % struct.unpack("<I", struct.pack("<f", x))[0]


V_M = 2
V_T0, V_T1, V_T2, V_T3 = 4, 5, 6, 7
V_LANE16 = 8
V_FADDR = 9
V_OUTA = 10
V_TR = 11
V_KA = 12
V_VA = 16
V_X = 24
V_FR = 32
V_O = 64
V_S = 128
V_P = 160
V_L = 176
V_ONE = 192
V_NM = 196
V_JUNK = 204
V_MLA = 206
V_Q = 208
NVGPR = 240

S_K, S_V, S_Q, S_OUT, S_WS, S_DBG = 16, 20, 24, 28, 32, 36
S_BH, S_SP, S_W = 40, 41, 42
S_MODE = 43
S_C, S_THR = 44, 45
S_CNT = 46
S_T0, S_T1, S_T2, S_T3 = 50, 51, 52, 53
S_OD = 54
S_OI = 57
S_ML = 58
S_F = 62
S_FO = 63
S_DB = 64
S_RET = 66
S_ST = 70

OFF_PR = 0x1c000
PR_STRIDE = (1 << 20) + 256
OFF_T = 20 << 20
NU = 64


def vr(base, n):
    return f"v[{base}:{base+n-1}]"


def srd(b):
    return f"s[{b}:{b+3}]"


def cost(l):
    return 2 if l.split()[0].startswith("v_exp") else 1


def spread(fillers, weights):
    nslots = len(weights)
    tot = sum(cost(f) for f in fillers)
    wt = sum(weights)
    out = [[] for _ in range(nslots)]
    acc = k = cw = 0
    for s in range(nslots):
        cw += weights[s]
        tgt = tot * cw / wt
        while k < len(fillers) and acc + cost(fillers[k]) / 2.0 <= tgt + 1e-9:
            out[s].append(fillers[k])
            acc += cost(fillers[k])
            k += 1
    out[-1] += fillers[k:]
    return out


def sched(up, step=1, lo=20, hold=1, dec=1):
    l = [0]
    x = lo
    for d in up:
        x += d
        l.append(x)
    l += [x] * hold
    while x > lo + dec:
        x -= dec
        l += [x] * step
    return tuple(l)


TAB1 = "dd e dd e e e k e e - dd e dc dc e e e c dd dd dd dd e e e c dd ddc dd e ddc e ec c"


def gen(W=22, up=(7, 6, 5, 4, 2, 1), hold=1, stg=4, rk=1, nlv=1, th=(14, 26), bias=(0, -5, -1, -6, 6, 2, 2, -3), hsn=3, wsl=1, lw=0, plp="nt", pfp="", hpol="sc1", psp="", psh=2, lpol="sc1", ppol="sc1", slp=0, pol="nt", grp="xcd2", bf16p=1, THR=2.0 ** 24, diag=0,
        opol="", qpol="", prio=3, abl="", pre=1, pk=0, al=1, LPOS=0, WG=1, RD=4, NSL=8, l2=1, warm=0, bal=1, lds=98304, NE=10, pf=4, il=1, xph=0, pfpos=0, npol="", cpf=2, chain=1, pvo=0, bq=1, probe=0, shs=0, pfw=15, pfn=4, touch=2, tiny=1, cmp=0, tab=TAB1, npf=25, oa=1, own=1, blkn=0, xg=0, xp=2, x0=2, rst=0, wb=None, rsp="sc1", nb3=0, rotl=0, hop=0, seq=0, npl=0, tord=1, hs=3, rpol="", clr=0, cpol="sc1", late=-1, rot=0, xw=(7, 15, 5, 17, 22, 5, 13, 6), qlds=1, fastp=1, pfs=(0, 10, 7, 4, 3, 1)):
    traces = {}
    NE = min(NE, 4 if pre == 1 else 7 if pk else 10)
    nstamp = [0]

    def stamp(dst):
        if diag:
            k = nstamp[0]
            nstamp[0] += 1
            dst.append(f"  s_memrealtime s[{S_ST+2*k}:{S_ST+2*k+1}]")
            dst.append("  s_waitcnt lgkmcnt(0)")

    R = 2048 if bf16p else 4096
    GB = 17 if bf16p else 18
    NQ = 2 if oa else 3
    if oa:
        npf = 17
    SLAB = NQ * R + 256
    OFF_F = 16 * SLAB
    VBASE = NSL * 8192
    QBASE = 2 * VBASE if NSL == 4 else VBASE + 32768
    LDS_MODE = 2 * VBASE + (32768 if qlds and NSL == 4 else 0)
    LDS_JUNK = LDS_MODE + 64
    lds = max(lds, LDS_MODE + 64 + 256)
    assert lds <= 163840
    c = math.log2(math.e) / math.sqrt(128.0)
    blk = lambda d, t: [f"  s_and_b32 s{d}, s{S_BH}, 7", f"  s_lshl_b32 s{d}, s{d}, {GB+3}", f"  s_lshr_b32 s{t}, s{S_BH}, 3",
                        f"  s_lshl_b32 s{t}, s{t}, {GB}", f"  s_add_u32 s{d}, s{d}, s{t}"] if (wsl and grp != "xcd") else [f"  s_lshl_b32 s{d}, s{S_BH}, {GB}"]
    E = ["  s_cmp_ge_u32 s2, 256", "  s_cbranch_scc1 L_end"]
    for i in range(hop):
        E += [f"  s_branch L_hop{i}", ".fill 255, 4, 0xbf800000", f"L_hop{i}:"]
    for i in range(seq):
        E += ["  s_mov_b32 s47, 0x12345678"]
    if diag == 6:
        E += ["  s_memrealtime s[68:69]"]
    E += [
        "  s_load_dwordx4 s[4:7], s[0:1], 0",
        "  s_load_dwordx4 s[8:11], s[0:1], 16",
        "  s_load_dwordx4 s[12:15], s[0:1], 32",
        "  v_lshrrev_b32 v1, 6, v0",
        "  v_and_b32 v0, 63, v0",
        "  v_readfirstlane_b32 s3, v1",
    ]
    if grp == "xcd":
        E += [
            f"  s_and_b32 s{S_T0}, s2, 7",
            f"  s_bfe_u32 s{S_SP}, s2, {3 | (2 << 16)}",
            f"  s_lshr_b32 s{S_T1}, s2, 5",
            f"  s_lshl_b32 s{S_BH}, s{S_T0}, 3",
            f"  s_add_u32 s{S_BH}, s{S_BH}, s{S_T1}",
        ]
    elif grp == "xcd2":
        E += ([f"  s_add_u32 s{S_T0}, s2, {rot}", f"  s_and_b32 s{S_T0}, s{S_T0}, 7"] if rot else [f"  s_and_b32 s{S_T0}, s2, 7"]) + [
            f"  s_bfe_u32 s{S_SP}, s2, {3 | (2 << 16)}",
            f"  s_lshr_b32 s{S_T1}, s2, 5",
            f"  s_lshl_b32 s{S_BH}, s{S_T1}, 3",
            f"  s_add_u32 s{S_BH}, s{S_BH}, s{S_T0}",
        ]
    elif grp == "lo":
        E += [f"  s_lshr_b32 s{S_BH}, s2, 2", f"  s_and_b32 s{S_SP}, s2, 3"]
    if "3" in abl:
        E += [f"  s_cmp_eq_u32 s{S_SP}, 3", "  s_cbranch_scc1 L_end"]
    if late >= 0:
        E += [f"  s_cmp_lg_u32 s{S_SP}, {late}", "  s_cbranch_scc1 L_nolate", "  s_mov_b32 s47, 20", "L_late:", "  s_sleep 100",
              "  s_sub_u32 s47, s47, 1", "  s_cmp_lg_u32 s47, 0", "  s_cbranch_scc1 L_late", "L_nolate:"]
    E += ["  s_cmp_lg_u32 s3, 0", "  s_cbranch_scc1 L_cons"]

    LD = []
    if cpf:
        LD += ["  s_getpc_b64 s[48:49]", "L_pc:", "  v_lshlrev_b32 v5, 7, v0", "  v_mov_b32 v9, s49"]
        for i in range(cpf + 1):
            LD += (["  v_add_u32 v5, 8192, v5"] if i else []) + ["  v_min_u32 v6, L_end - L_pc, v5", "  v_add_co_u32 v6, vcc, s48, v6", "  s_nop 1",
                   "  v_addc_co_u32 v7, vcc, 0, v9, vcc", "  global_load_dword v8, v[6:7], off"]
    LD += [
        f"  s_setprio {prio}",
        f"  s_lshl_b32 s{S_T0}, s{S_BH}, 21",
        f"  s_lshl_b32 s{S_T1}, s{S_SP}, {10 if il else 19}",
        f"  s_add_u32 s{S_T0}, s{S_T0}, s{S_T1}",
        "  v_lshrrev_b32 v3, 4, v0",
        "  v_and_b32 v4, 15, v0",
        "  v_xor_b32 v5, v3, v4",
        "  v_lshlrev_b32 v5, 4, v5",
        "  v_lshl_add_u32 v10, v3, 8, v5",
        "  v_xor_b32 v11, 64, v10",
        "  v_xor_b32 v12, 0x80, v10",
        "  v_xor_b32 v13, 0xc0, v10",
        "  v_lshlrev_b32 v5, 1, v3",
        "  v_xor_b32 v5, v5, v4",
        "  v_lshlrev_b32 v5, 4, v5",
        "  v_lshl_add_u32 v14, v3, 8, v5",
        "  v_xor_b32 v15, 0x80, v14",
    ] + ([
        "  v_mov_b32 v25, v11", "  v_mov_b32 v26, v12", "  v_mov_b32 v27, v13",
        f"  s_lshl_b32 s{S_T3}, s{S_BH}, 15", f"  s_mov_b32 s{S_Q+2}, 32768", f"  s_mov_b32 s{S_Q+3}, 0x20000",
    ] if qlds else []) + ([
        "  v_add_u32 v11, 3072, v11", "  v_add_u32 v12, 6144, v12", "  v_add_u32 v13, 9216, v13",
        "  v_add_u32 v16, 6144, v14", "  v_add_u32 v17, 9216, v15", "  v_add_u32 v15, 3072, v15",
        f"  s_sub_u32 s{S_K+2}, 0x200000, s{S_T1}",
    ] if il else [f"  s_mov_b32 s{S_K+2}, 0x80000"]) + [
        f"  s_mov_b32 s{S_K+3}, 0x20000",
        f"  s_mov_b32 s{S_V+2}, s{S_K+2}",
        f"  s_mov_b32 s{S_V+3}, 0x20000",
        "  s_mov_b32 s54, 0",
        "  s_mov_b32 s55, 0",
        "  s_waitcnt lgkmcnt(0)",
    ]
    QD = []
    if qlds:
        QD += [f"  s_add_u32 s{S_Q}, s4, s{S_T3}", f"  s_addc_u32 s{S_Q+1}, s5, 0"]
        for g in range(8):
            QD += [f"  s_mov_b32 m0, {QBASE + g*4096}", f"  s_movk_i32 s{S_T2}, {g*4096}"]
            for j in range(4):
                QD.append(f"  buffer_load_dwordx4 v{10 if j == 0 else 24+j}, {srd(S_Q)}, s{S_T2} offen offset:{j*1024} {qpol} lds")
    KV = [
        f"  s_add_u32 s{S_K}, s6, s{S_T0}",
        f"  s_addc_u32 s{S_K+1}, s7, 0",
        f"  s_add_u32 s{S_V}, s8, s{S_T0}",
        f"  s_addc_u32 s{S_V+1}, s9, 0",
    ]
    for i in range(probe):
        LD += [f"  s_lshl_b32 s47, s{S_BH}, 21", f"  s_add_u32 s47, s47, {(64 + 128 * i) << 20}", "  v_mov_b32 v30, s47",
               "  global_load_dword v31, v30, s[14:15]", "  s_waitcnt vmcnt(0)"]
    if touch:
        LD += KV + [f"  s_mov_b32 m0, {LDS_JUNK}", "  s_mov_b64 exec, 1",
                    f"  buffer_load_dword v10, {srd(S_K)}, 0 offen lds", f"  buffer_load_dword v10, {srd(S_V)}, 0 offen lds"]
        if touch == 2:
            LD += [f"  v_mov_b32 v30, s{S_T3}", "  global_load_lds_dword v30, s[10:11]"]
        LD += ["  s_mov_b64 exec, -1"]
        KV = []
    if qlds == 1:
        LD += QD
    LD += KV
    LATE = []
    if cmp:
        LD = ["  s_getpc_b64 s[48:49]", "L_pc:", "  v_lshlrev_b32 v4, 7, v0", "  v_mov_b32 v5, 0"]
        for i in range(cpf + 1):
            LD += ([f"  v_add_u32 v4, 8192, v4"] if i else []) + (["  v_min_u32 v4, L_end - L_pc, v4"] if i == cpf else []) + \
                ["  v_lshl_add_u64 v[6:7], v[4:5], 0, s[48:49]", "  global_load_dword v8, v[6:7], off"]
        LD += [
            f"  s_setprio {prio}",
            f"  s_lshl_b32 s{S_T0}, s{S_BH}, 21", f"  s_lshl_b32 s{S_T1}, s{S_SP}, 10", f"  s_add_u32 s{S_T0}, s{S_T0}, s{S_T1}",
            "  v_lshrrev_b32 v3, 4, v0", "  v_and_b32 v4, 15, v0",
            "  v_xor_b32 v5, v3, v4", "  v_lshlrev_b32 v5, 4, v5", "  v_lshl_add_u32 v10, v3, 8, v5",
            "  v_xor_b32 v11, 64, v10", "  v_xor_b32 v12, 0x80, v10", "  v_xor_b32 v13, 64, v12",
            f"  s_lshl_b32 s{S_T3}, s{S_BH}, 15", f"  s_mov_b32 s{S_Q+2}, 32768", f"  s_mov_b32 s{S_Q+3}, 0x20000",
            f"  s_sub_u32 s{S_K+2}, 0x200000, s{S_T1}", f"  s_mov_b32 s{S_K+3}, s{S_Q+3}",
            f"  s_mov_b64 s[{S_V+2}:{S_V+3}], s[{S_K+2}:{S_K+3}]", "  s_mov_b64 s[54:55], 0",
            f"  v_mov_b32 v30, s{S_T3}", f"  s_mov_b32 m0, {LDS_JUNK}", "  s_mov_b64 exec, 1",
            "  s_waitcnt lgkmcnt(0)",
            f"  s_add_u32 s{S_K}, s6, s{S_T0}", f"  s_addc_u32 s{S_K+1}, s7, 0", f"  buffer_load_dword v10, {srd(S_K)}, 0 offen lds",
            f"  s_add_u32 s{S_V}, s8, s{S_T0}", f"  s_addc_u32 s{S_V+1}, s9, 0", f"  buffer_load_dword v10, {srd(S_V)}, 0 offen lds",
            ] + (["  global_load_lds_dword v30, s[10:11]"] if touch == 2 else []) + ["  s_mov_b64 exec, -1",
            f"  s_add_u32 s{S_Q}, s4, s{S_T3}", f"  s_addc_u32 s{S_Q+1}, s5, 0",
            "L_q:", f"  s_add_u32 m0, s54, {QBASE}", "  s_nop 0"]
        LD += [f"  buffer_load_dwordx4 v{10+j}, {srd(S_Q)}, s54 offen offset:{j*1024} {qpol} lds" for j in range(4)]
        LD += ["  s_addk_i32 s54, 0x1000", f"  s_cmp_lg_u32 s54, s{S_Q+2}", "  s_cbranch_scc1 L_q",
               "  s_mov_b32 s54, 0", "  v_add_u32 v11, 3072, v11", "  v_add_u32 v12, 6144, v12", "  v_add_u32 v13, 9216, v13"]
        LATE = ["  v_lshlrev_b32 v5, 1, v3", "  v_xor_b32 v5, v5, v4", "  v_lshlrev_b32 v5, 4, v5", "  v_lshl_add_u32 v14, v3, 8, v5",
                "  v_xor_b32 v15, 0x80, v14", "  v_add_u32 v16, 6144, v14", "  v_add_u32 v17, 9216, v15", "  v_add_u32 v15, 3072, v15"]
    S_CD, S_B, S_TAB, S_PF, S_N, S_BE, S_RK, S_SLOT, S_MASK, S_PR, S_TH = 56, 57, 58, 60, 61, 62, 63, 65, 66, 68, 72
    LV = list(range(-nlv, nlv + 1)) if rk else [0]
    NX = 2 if rk else 0
    lo = W - 1 + max(LV) + NX
    NPS = blkn or 2
    xl = 8 * (blkn - 1) if blkn else 0
    lo += xl
    rend = lambda b: 16 * (b + 1) if (not blkn or b < 3) else 48 + (b - 3) // NPS * 16 * NPS + 8 * NPS + 8 * ((b - 3) % NPS + 1)
    fld = 2 | ((VBASE.bit_length() - 1) << 16)
    stubs = []

    def dma(which, j):
        go, sr = (54, S_K) if which == "K" else (55, S_V)
        return f"  buffer_load_dwordx4 v{(10 if which == 'K' else 14) + j}, {srd(sr)}, s{go} offen offset:{j*1024} {pol} lds"

    def part(dst, which, before, after=lambda: [], ng=2):
        go = 54 if which == "K" else 55
        for g in range(ng):
            dst += [f"  s_bfe_u32 m0, s{go}, {fld}"] if which == "K" else [f"  s_bfe_u32 s{S_T2}, s{go}, {fld}", f"  s_or_b32 m0, s{S_T2}, {VBASE}"]
            for j in range(4):
                w_ = before()
                dst += (w_ or (["  s_nop 0"] if j == 0 else [])) + [dma(which, j)] + after()
            dst.append(f"  s_add_u32 s{go}, s{go}, 16384")

    st = dict(pos=0, pend=[])

    def static():
        o = []
        x = W - 1
        if st["pos"] == W:
            o += [f"  s_waitcnt vmcnt({W})", "  s_barrier"]
        if st["pos"] > x:
            o.append(f"  s_waitcnt vmcnt({x})")
            while st["pend"] and st["pos"] - st["pend"][0] >= x:
                o.append("  s_barrier")
                st["pend"].pop(0)
        st["pos"] += 1
        return o
    if cmp:
        LD += ["L_k:", "  s_lshr_b32 m0, s54, 2", "  s_nop 0"] + [dma("K", j) for j in range(4)] + \
              ["  s_addk_i32 s54, 0x4000", f"  s_cmp_lg_u32 s54, {5*16384}", "  s_cbranch_scc1 L_k"]
        st["pos"] = 20
        assert W >= 21
    else:
        part(LD, "K", static); part(LD, "K", static)
    st["pend"].append(16)
    setup = [
        f"  s_mov_b32 s{S_DBG}, s12", f"  s_mov_b32 s{S_DBG+1}, s13", f"  s_mov_b32 s{S_DBG+2}, 256", f"  s_mov_b32 s{S_DBG+3}, 0x20000",
        f"  s_lshl_b32 s{S_DB}, s{S_BH}, 2", f"  v_mov_b32 v20, {LDS_MODE}",
    ] + blk(S_T2, S_T1) + [f"  s_add_u32 s{S_WS}, s14, s{S_T2}", f"  s_addc_u32 s{S_WS+1}, s15, 0",
        f"  s_mov_b32 s{S_WS+2}, {1 << GB}", f"  s_mov_b32 s{S_WS+3}, 0x20000",
        f"  v_and_b32 v24, {8*pfn-1}, v0", "  v_lshlrev_b32 v24, 7, v24", f"  s_mul_i32 s{S_PF}, s{S_SP}, {4*SLAB}",
    ]
    if oa:
        setup += [f"  s_lshl_b32 s{S_T2}, s{S_BH}, 15", f"  s_add_u32 s{S_OUT}, s10, s{S_T2}", f"  s_addc_u32 s{S_OUT+1}, s11, 0",
                  f"  s_mov_b32 s{S_OUT+2}, 32768", f"  s_mov_b32 s{S_OUT+3}, 0x20000",
                  "  v_lshlrev_b32 v19, 1, v24", f"  s_and_b32 s{S_T2}, s{S_SP}, 1", f"  s_lshl_b32 s78, s{S_T2}, 14",
                  f"  s_and_b32 s{S_T2}, s{S_SP}, 2", f"  s_lshl_b32 s{S_T2}, s{S_T2}, 6", f"  s_add_u32 s78, s78, s{S_T2}"]
        if own:
            k = setup.index("  v_lshlrev_b32 v19, 1, v24")
            setup[k:k + 1] = ["  v_lshlrev_b32 v19, 8, v4", "  v_and_b32 v5, 1, v3", "  v_lshl_add_u32 v19, v5, 13, v19"]
            setup[setup.index(f"  s_lshl_b32 s78, s{S_T2}, 14")] = f"  s_lshl_b32 s78, s{S_T2}, 12"
    lag1 = W - 1 + up[0]
    lo1 = lo - xl
    tabv = [d + 1 for d in up[1:]] + [1] * hold
    assert len(tabv) <= 16 and max(tabv) <= 15 and lag1 >= lo1
    bend = len(tabv) + (W - 1 + sum(up)) - lo
    tab_ = sum(v << (4 * i) for i, v in enumerate(tabv))
    setup += [f"  s_mul_i32 s{S_T2}, s{S_SP}, {stg}", f"  s_add_u32 s{S_CD}, s{S_T2}, {32 + lag1 - 48}", f"  s_add_u32 s{S_BE}, s{S_T2}, {bend}",
              f"  s_mov_b32 s{S_B}, 0", f"  s_mov_b32 s{S_TAB}, {tab_ & 0xffffffff}", f"  s_mov_b32 s{S_TAB+1}, {tab_ >> 32}",
              f"  s_mov_b32 s{S_N}, 0"]
    for sp in range(4):
        cd, nb_, t_, done = sp * stg + 32 + lag1 - 48, 0, tab_, 0
        for p in range(48, 16 * 63):
            u = p // 16
            need = (u + 1 - NSL) if p % 16 < 8 else (u - 1 - NSL + 2)
            if blkn:
                u0, i_ = 3 + (p - 48) // (16 * NPS) * NPS, (p - 48) % (16 * NPS) // 8
                need = (u0 + 1 + i_ - NSL) if i_ < NPS else (u0 - 1 + i_ - NPS - NSL + 2)
            assert done >= need, (sp, p)
            if cd == 0:
                done += 1
                assert p - rend(done) >= lo1, (sp, p, done)
                nb_ += 1
                cd = (t_ & 15) + 14 + (1 if nb_ > bend + sp * stg else 0)
                t_ >>= 4
                last = p - 16 * (done + 1)
            else:
                cd -= 1
        ndone = done if sp == 0 else ndone
        assert done == ndone and last == lo, (sp, done, last)
    if rk:
        setup += [f"  s_add_u32 s{S_PR}, s14, {OFF_PR}", f"  s_addc_u32 s{S_PR+1}, s15, 0", f"  s_mov_b32 s{S_PR+2}, {8*PR_STRIDE}", f"  s_mov_b32 s{S_PR+3}, 0x20000",
                  f"  s_and_b32 s{S_T2}, s2, 7", f"  s_mul_i32 s{S_T1}, s{S_T2}, {PR_STRIDE}",
                  "  v_and_b32 v28, 31, v0", f"  v_lshl_add_u32 v29, v28, {psh}, s{S_T1}",
                  ] + (["  v_lshrrev_b32 v5, 2, v28", "  v_lshlrev_b32 v5, 5, v5", "  v_and_b32 v28, 3, v28", "  v_add_u32 v28, v28, v5"] if grp != "xcd" else []) + [
                  f"  s_lshl_b32 s{S_T2}, s{S_T2}, {2 if grp != 'xcd' else 5}", f"  v_add_u32 v28, s{S_T2}, v28",
                  f"  s_lshr_b32 s{S_SLOT}, s2, 3", f"  s_lshl_b32 s{S_SLOT}, s{S_SLOT}, {psh}", f"  s_add_u32 s{S_SLOT}, s{S_SLOT}, s{S_T1}",
                  "  v_mov_b32 v30, 0", "  v_mov_b32 v23, 0"]
        setup += [f"  s_movk_i32 s{S_TH+i}, {-1000 if i < nlv else 1000}" for i in range(2 * nlv)]
        if xg:
            setup += ["  s_mov_b32 s80, 0", f"  s_mov_b32 s82, {x0}", f"  s_load_dword s81, s[{S_PR}:{S_PR+1}], 0x2000"]
    if cmp:
        rest = []
        part(rest, "K", static, ng=1)
        k = rest.index(f"  s_waitcnt vmcnt({W})")
        LD += rest[:k] + LATE + setup + rest[k:]
        part(LD, "V", static); part(LD, "K", static); part(LD, "V", static)
    else:
        LD += setup
        for _ in range(2):
            part(LD, "K", static); part(LD, "V", static)
    assert not st["pend"] and st["pos"] == 48

    def passes(lv):
        o = []
        k = [0]

        def before():
            x = W - 1 + lv
            k[0] += 1
            return [f"  s_waitcnt vmcnt({x + (NX if k[0] - 1 < x else 0)})"]

        def after():
            i = len(stubs)
            stubs.append(i)
            return [f"  s_sub_u32 s{S_CD}, s{S_CD}, 1", f"  s_cbranch_scc1 L_bar{i}", f"L_barret{i}:"]
        for wh in ("K" * NPS + "V" * NPS if blkn else "KVKV"):
            part(o, wh, before, after)
        return o + [f"  s_cmp_lg_u32 s{S_N}, {60 // NPS}", "  s_cbranch_scc1 L_ldloop"]
    STUB = ["  s_barrier", f"  s_and_b32 s{S_CD}, s{S_TAB}, 15", f"  s_lshr_b64 s[{S_TAB}:{S_TAB+1}], s[{S_TAB}:{S_TAB+1}], 4",
            f"  s_add_u32 s{S_B}, s{S_B}, 1", f"  s_cmp_gt_u32 s{S_B}, s{S_BE}", f"  s_addc_u32 s{S_CD}, s{S_CD}, 14"]
    D0 = []
    if rk:
        if xg:
            D0 += ["  s_cmp_lt_u32 s2, 8", "  s_cbranch_scc1 L_pilot", "L_pilotret:",
                   f"  s_lshl_b32 s{S_T2}, s{S_N}, 8", f"  v_readfirstlane_b32 s{S_T1}, v30", f"  v_cmp_le_u32 vcc, s{S_T2}, v30",
                   f"  s_add_u32 s{S_N}, s{S_N}, 1", f"  s_add_u32 s{S_T2}, s{S_T2}, 256", f"  s_or_b32 s{S_T2}, s{S_T2}, s80", f"  v_mov_b32 v31, s{S_T2}",
                   f"  s_bcnt1_i32_b32 s{S_RK}, vcc_lo", f"  s_sext_i32_i8 s{S_T1}, s{S_T1}", f"  s_add_i32 s{S_RK}, s{S_RK}, s{S_T1}"]
            PIL = ["L_pilot:", "  s_sub_u32 s82, s82, 1", "  s_cbranch_scc1 L_pilot2", "  s_cmp_lg_u32 s82, 0", "  s_cbranch_scc1 L_pilotret",
                   "  s_waitcnt lgkmcnt(0)", "  s_mov_b32 s83, 1", f"  s_atomic_add s83, s[{S_PR}:{S_PR+1}], 0x2000 glc", "  s_branch L_pilotret",
                   "L_pilot2:", "  s_waitcnt lgkmcnt(0)", "  s_sub_u32 s83, s83, s81", "  s_and_b32 s83, s83, 7", f"  s_mul_i32 s83, s83, {2*xg}",
                   f"  s_sub_u32 s83, s83, {7*xg}", "  s_ashr_i32 s83, s83, 1", "  s_and_b32 s80, s83, 0xff", f"  s_mov_b32 s82, {xp-1}", "  s_branch L_pilotret"]
        else:
            D0 += [f"  v_cmp_le_u32 vcc, s{S_N}, v30", f"  s_add_u32 s{S_N}, s{S_N}, 1", f"  v_mov_b32 v31, s{S_N}",
                   f"  s_bcnt1_i32_b32 s{S_RK}, vcc_lo"]
        D0 += [f"  buffer_load_dword v30, v29, {srd(S_PR)}, 0 offen {plp}", "  s_mov_b64 exec, 1",
               f"  buffer_store_dword v31, off, {srd(S_PR)}, s{S_SLOT} {psp}", "  s_mov_b64 exec, -1"]
        if "1" in abl:
            D0[-2] = D0[-4].replace("v30", "v31", 1)
        if "2" in abl:
            D0[-4] = D0[-2]
    else:
        D0 += [f"  s_add_u32 s{S_N}, s{S_N}, 1"]
    D0 += [f"  s_cmp_eq_u32 s{S_N}, {hsn}", "  s_cbranch_scc1 L_hs0", f"  s_cmp_eq_u32 s{S_N}, {hsn+2}", "  s_cbranch_scc1 L_hs1", "L_go:"]
    for i in range(nlv if rk else 0):
        D0 += [f"  s_cmp_lt_i32 s{S_RK}, s{S_TH+i}", f"  s_cbranch_scc1 L_lv{i}",
               f"  s_cmp_ge_i32 s{S_RK}, s{S_TH+2*nlv-1-i}", f"  s_cbranch_scc1 L_lv{2*nlv-i}"]
    D1 = passes(0)
    DA_ = []
    for i, lv in enumerate(LV):
        if lv:
            DA_ += [f"L_lv{i}:"] + passes(lv) + ["  s_branch L_ldtail"]
    if rk and xg:
        DA_ += PIL
    if tiny:
        DA_ += [".p2align 6", "L_barfn:"] + STUB + ["  s_setpc_b64 s[76:77]"]
    for i in stubs:
        DA_ += [f"L_bar{i}:"] + (["  s_call_b64 s[76:77], L_barfn"] if tiny else STUB) + [f"  s_branch L_barret{i}"]
    H0 = ["  v_mov_b32 v22, 0", f"  buffer_load_dword v22, off, {srd(S_DBG)}, s{S_DB} {hpol}"]
    if rk:
        H0 += [f"  buffer_load_ubyte v23, v28, {srd(S_DBG)}, 0 offen {hpol}"]
    H0 += ["  s_branch L_go"]
    chk4 = lambda m, lab: [f"  v_and_b32 v21, {m}, v22", f"  v_cmp_ne_u32 vcc, {m}, v21", f"  s_cbranch_vccz {lab}"]
    hello = lambda bits: [f"  s_getreg_b32 s{S_T2}, hwreg(HW_REG_XCC_ID, 0, 3)", f"  s_or_b32 s{S_T2}, s{S_T2}, {bits}", f"  v_mov_b32 v21, s{S_T2}",
                          f"  s_add_u32 s{S_T2}, s{S_DB}, s{S_SP}", f"  buffer_store_byte v21, off, {srd(S_DBG)}, s{S_T2} sc1"]
    memrd = ["  v_mov_b32 v22, 0", f"  buffer_atomic_or v22, off, {srd(S_DBG)}, s{S_DB} sc0 sc1", "  s_waitcnt vmcnt(0)"]
    H1 = []
    if rk:
        bt = sum(((bias[i] + 8) & 15) << (4 * i) for i in range(8))
        H1 += [f"  s_getreg_b32 s{S_T2}, hwreg(HW_REG_XCC_ID, 0, 3)", f"  s_or_b32 s{S_T1}, s{S_T2}, 0x80",
               f"  v_cmp_ne_u32 vcc, s{S_T1}, v23", "  s_cbranch_vccnz L_nork",
               f"  s_lshl_b32 s{S_T2}, s{S_T2}, 2", f"  s_lshr_b32 s{S_T2}, {bt}, s{S_T2}", f"  s_and_b32 s{S_T2}, s{S_T2}, 15"]
        H1 += [f"  s_sub_i32 s{S_TH+i}, {th[i] + 8}, s{S_T2}" for i in range(2 * nlv)] + ["L_nork:"]
    H1 += chk4("0x80808080", "L_hs2") + ["  s_mov_b64 exec, 1", f"  s_add_u32 s{S_T2}, s{S_DB}, s{S_SP}", "L_hs1a:",
           f"  buffer_load_ubyte v21, off, {srd(S_DBG)}, s{S_T2} sc1", "  s_waitcnt vmcnt(0)", "  v_cmp_eq_u32 vcc, 0, v21", "  s_cbranch_vccnz L_hs1a"] + hello("0x80") + ["L_hs1b:",
           f"  buffer_load_dword v22, off, {srd(S_DBG)}, s{S_DB} sc1", "  s_waitcnt vmcnt(0)"] + chk4("0x80808080", "L_hs2") \
        + memrd + chk4("0x80808080", "L_hs2") + ["  s_branch L_hs1b"]
    H2 = ["  s_mov_b64 exec, 1", "  v_alignbit_b32 v21, v22, v22, 8", "  v_xor_b32 v21, v21, v22", "  v_and_b32 v21, 0x07070707, v21",
          "  v_cmp_ne_u32 vcc, 0, v21", "  v_mov_b32 v21, 4", "  s_cbranch_vccnz L_hsfar", "L_hs3:",
          "  ds_write_b32 v20, v21", "  s_mov_b64 exec, -1", "  s_waitcnt lgkmcnt(0)",
          "  v_and_b32 v21, 3, v0", "  v_lshlrev_b32 v21, 7, v21", f"  s_mov_b32 s{S_T2}, {OFF_F}",
          f"  buffer_load_dword v23, v21, {srd(S_WS)}, s{S_T2} offen", "  s_branch L_go"]
    if lw == 4:
        H2 = H2[:-5] + H2[-1:]
    HX = ["L_hsfar:", "  s_mov_b64 exec, 15", "  v_lshlrev_b32 v21, 7, v0", "  v_mov_b32 v22, 0",
          f"  s_lshl_b32 s{S_T2}, s{S_SP}, 2", f"  s_add_u32 s{S_T2}, s{S_T2}, {OFF_F}",
          f"  buffer_store_dword v22, v21, {srd(S_WS)}, s{S_T2} offen sc1", "  s_mov_b64 exec, 1", "  s_waitcnt vmcnt(0)"] \
        + hello("0xc0") + ["L_hsfar2:"] + memrd + chk4("0x40404040", "L_hsfar3") + ["  s_branch L_hsfar2",
          "L_hsfar3:", "  v_mov_b32 v21, 0", "  s_branch L_hs3"]
    if "H" in abl:
        H1 = ["  v_mov_b32 v21, 4", "  s_branch L_hs3"]
    D6 = []
    st.update(pos=16 * 63, pend=[rend(b) for b in range(ndone + 1, 63)])
    part(D6, "V", static); st["pend"].append(st["pos"])
    part(D6, "V", static); st["pend"].append(st["pos"])
    D6 += [f"  s_mov_b32 m0, {LDS_JUNK}"]
    for q in range(-2 if oa else 0, -(-npf // pfn)):
        while st["pend"] and st["pos"] - st["pend"][0] >= pfw - 1:
            D6 += [f"  s_waitcnt vmcnt({st['pos'] - st['pend'].pop(0)})", "  s_barrier"]
        if q < 0:
            assert pfn == 4
            D6 += [f"  s_waitcnt vmcnt({pfw-1})", f"  buffer_load_dword v19, {srd(S_OUT)}, s78 offen {pfp} lds", f"  s_add_u32 s78, s78, {16384 if own else 8192}"]
            st["pos"] += 1
            continue
        D6 += [f"  s_waitcnt vmcnt({pfw-1})", f"  buffer_load_dword v24, {srd(S_WS)}, s{S_PF} offen {pfp} lds", f"  s_add_u32 s{S_PF}, s{S_PF}, {1024*pfn}"]
        st["pos"] += 1
    for e_ in st["pend"]:
        D6 += [f"  s_waitcnt vmcnt({st['pos'] - e_})", "  s_barrier"]
    D6.append("  s_endpgm")
    assert sum(l == "  s_barrier" for l in LD + D6) + ndone == NU + 2
    if "E" in abl or "B" in abl:
        LD = LD[:LD.index(next(l for l in LD if l.startswith("  s_bfe_u32 m0")))]
        for wh in "KKKKKKKKVVVV":
            part(LD, wh, lambda: ["  s_waitcnt vmcnt(40)"])
        LD += [f"  v_mov_b32 v20, {LDS_MODE}", "  v_mov_b32 v21, 4", "  ds_write_b32 v20, v21", "  s_waitcnt vmcnt(0) lgkmcnt(0)", "  s_barrier", "  s_endpgm"]
        D0 = D1 = D6 = ["  s_endpgm"]
        H0 = H1 = H2 = HX = DA_ = []
    traces["loader"] = E + LD + D0 + H0 + D1 + D0 + H1 + H1 + H2 + HX + H2 + DA_ + D0 + D1 + D6
    LOADER = LD + ["L_ldloop:"] + D0 + D1 + ["L_ldtail:"] + D6 + ["L_hs0:"] + H0 + ["L_hs1:"] + H1 + ["L_hs2:"] + H2 + HX + DA_

    P = []
    stamp(P)
    Qf = lambda qb, ks: V_Q + 4 * (qb * 4 + ks)
    P += [
        f"  s_sub_u32 s{S_W}, s3, 1",
        f"  s_lshl_b32 s{S_DB}, s{S_BH}, 2",
        f"  s_add_u32 s{S_T1}, s{S_DB}, s{S_W}",
        f"  s_lshl_b32 s{S_T2}, s{S_T1}, 13",
        f"  v_and_b32 v{V_T0}, 15, v0",
        f"  v_lshrrev_b32 v{V_T1}, 4, v0",
        f"  s_mov_b32 s{S_Q+3}, 0x20000",
        f"  s_movk_i32 s{S_T3}, 0x1000",
    ] + blk(S_T0, S_T1) + [
        "  s_waitcnt lgkmcnt(0)",
    ]
    for qb in range(2):
        for ks in range(4):
            so = f"s{S_T3}" if qb else "0"
            if not qlds:
                P.append(f"  buffer_load_dwordx4 {vr(Qf(qb,ks),4)}, v{V_T3}, {srd(S_Q)}, {so} offen offset:{ks*64} {qpol}")
    P += [
        f"  s_add_u32 s{S_WS}, s14, s{S_T0}",
        f"  s_addc_u32 s{S_WS+1}, s15, 0",
        f"  s_mov_b32 s{S_WS+2}, {1 << GB}",
        f"  s_mov_b32 s{S_WS+3}, 0x20000",
        f"  s_add_u32 s{S_OUT}, s10, s{S_T2}",
        f"  s_addc_u32 s{S_OUT+1}, s11, 0",
        f"  s_mov_b32 s{S_OUT+2}, 8192",
        f"  s_mov_b32 s{S_OUT+3}, 0x20000",
        f"  s_lshl_b32 s{S_F}, s{S_W}, 7",
        f"  s_add_u32 s{S_F}, s{S_F}, {OFF_F}",
        f"  s_lshl_b32 s{S_FO}, s{S_SP}, 2",
        f"  s_add_u32 s{S_FO}, s{S_FO}, s{S_F}",
        f"  v_mov_b32 v{V_T2}, 0",
        "  s_mov_b64 exec, 1",
        f"  buffer_store_dword v{V_T2}, off, {srd(S_WS)}, s{S_FO} {rpol}" if "Z" not in abl else "  s_nop 0",
    ]
    if rk:
        P += [f"  s_add_u32 s{S_Q}, s14, {OFF_PR}", f"  s_addc_u32 s{S_Q+1}, s15, 0", f"  s_mov_b32 s{S_Q+2}, {8*PR_STRIDE}",
              f"  s_and_b32 s{S_T1}, s2, 7", f"  s_mul_i32 s{S_T1}, s{S_T1}, {PR_STRIDE}", f"  s_lshr_b32 s{S_T0}, s2, 3",
              f"  s_lshl_b32 s{S_T0}, s{S_T0}, {psh}", f"  s_add_u32 s{S_T1}, s{S_T1}, s{S_T0}",
              f"  buffer_store_dword v{V_T2}, off, {srd(S_Q)}, s{S_T1}"]
    if warm:
        P.append(f"  buffer_load_dword v{V_JUNK}, off, {srd(S_OUT)}, 0")
    P += ["  s_mov_b64 exec, -1",
          f"  s_lshl_b32 s{S_OI}, s{S_SP}, 2", f"  s_add_u32 s{S_OI}, s{S_OI}, s{S_W}", f"  s_mul_i32 s{S_OI}, s{S_OI}, {SLAB}"]
    if clr:
        P += [f"  v_lshlrev_b32 v{V_T2}, 4, v0", f"  s_add_u32 s{S_T1}, s{S_OI}, 4096"] + [f"  v_mov_b32 v{V_X+i}, -1" for i in range(4)]
        for i in range(6):
            P.append(f"  buffer_store_dwordx4 {vr(V_X,4)}, v{V_T2}, {srd(S_WS)}, s{S_OI if i < 4 else S_T1} offen offset:{(i&3)*1024} {cpol}")
        P += ["  s_mov_b64 exec, 0xffff", f"  buffer_store_dwordx4 {vr(V_X,4)}, v{V_T2}, {srd(S_WS)}, s{S_T1} offen offset:2048 {cpol}", "  s_mov_b64 exec, -1", "  s_nop 0"]
    PF = [f"  v_min_u32 v{V_T2}, {SLAB // 128 - 1}, v0", f"  v_lshlrev_b32 v{V_T2}, 7, v{V_T2}",
          f"  buffer_load_dword v{V_JUNK+1}, v{V_T2}, {srd(S_WS)}, s{S_OI} offen"]
    assert bf16p or not pf
    if pf == 1:
        P += PF
    P += [
        f"  v_xor_b32 v{V_T2}, v{V_T0}, v{V_T1}",
        f"  v_lshlrev_b32 v{V_T2}, 4, v{V_T2}",
        f"  v_lshl_add_u32 v{V_KA}, v{V_T0}, 8, v{V_T2}",
    ]
    for ks in range(1, 4):
        P.append(f"  v_xor_b32 v{V_KA+ks}, {ks*64}, v{V_KA}")
    P += [
        f"  v_lshrrev_b32 v{V_T2}, 2, v0",
        f"  v_lshlrev_b32 v{V_T3}, 8, v{V_T2}",
        f"  v_and_b32 v{V_T2}, 7, v{V_T2}",
        f"  s_lshl_b32 s{S_T2}, s{S_SP}, 1",
    ] + ([f"  s_and_b32 s{S_T2}, s{S_T2}, 4"] if own else []) + [
        f"  v_xor_b32 v{V_T2}, s{S_T2}, v{V_T2}",
        f"  v_lshl_add_u32 v{V_T3}, v{V_T2}, 5, v{V_T3}",
        f"  v_and_b32 v{V_T2}, 3, v0",
        f"  v_lshl_add_u32 v{V_T3}, v{V_T2}, 3, v{V_T3}",
        f"  v_lshlrev_b32 v{V_FADDR}, 2, v{V_T2}",
        f"  v_add_u32 v{V_VA}, {VBASE}, v{V_T3}",
    ]
    for db in range(1, 8):
        P.append(f"  v_xor_b32 v{V_VA+db}, {db*32}, v{V_VA}")
    P += [
        f"  v_cmp_eq_u32 vcc, 0, v{V_T2}",
        f"  v_mov_b32 v{V_T3}, 0x3f803f80",
        f"  v_lshlrev_b32 v{V_LANE16}, 4, v0",
        f"  v_cndmask_b32 v{V_ONE}, 0, v{V_T3}, vcc",
        f"  v_cndmask_b32 v{V_ONE+1}, 0, v{V_T3}, vcc",
        f"  v_cndmask_b32 v{V_ONE+2}, 0, v{V_T3}, vcc",
        f"  v_cndmask_b32 v{V_ONE+3}, 0, v{V_T3}, vcc",
        f"  s_mov_b32 s{S_C}, {f32(c)}",
        f"  s_mov_b32 s{S_THR}, {f32(THR)}",
    ]
    for i in range(32):
        P.append(f"  v_mov_b64 v[{V_O+2*i}:{V_O+2*i+1}], 0")
    X = []
    for j in range(1, 4):
        X += [f"  s_xor_b32 s{S_T1}, s{S_SP}, {j}", f"  s_lshl_b32 s{S_T1}, s{S_T1}, 2", f"  s_add_u32 s{S_T1}, s{S_T1}, s{S_W}",
              f"  s_mul_i32 s{S_T1}, s{S_T1}, {SLAB}",
              f"  s_add_u32 s{S_ML+j}, s{S_T1}, {NQ*R}", f"  s_add_u32 s{S_OD+j-1}, s{S_T1}, {max(j-1-oa, 0)*R}"]
    X += [f"  s_add_u32 s{S_ML}, s{S_OI}, {NQ*R}", f"  v_and_b32 v{V_MLA}, 0xf0, v{V_LANE16}"]
    X += [
        f"  v_and_b32 v{V_T2}, 15, v0", f"  v_lshlrev_b32 v{V_OUTA}, 8, v{V_T2}",
        f"  v_bfe_u32 v{V_T2}, v0, 4, 1", f"  v_lshl_add_u32 v{V_OUTA}, v{V_T2}, 5, v{V_OUTA}",
        f"  v_lshrrev_b32 v{V_T2}, 5, v0", f"  v_lshl_add_u32 v{V_OUTA}, v{V_T2}, 4, v{V_OUTA}",
    ]
    if own:
        X += [f"  s_and_b32 s{S_T2}, s{S_SP}, 1", f"  s_lshl_b32 s47, s{S_T2}, 12", f"  s_and_b32 s{S_T2}, s{S_SP}, 2", f"  s_lshl_b32 s{S_T2}, s{S_T2}, 6",
              f"  s_add_u32 s{S_T2}, s{S_T2}, s47", f"  v_add_u32 v{V_OUTA}, s{S_T2}, v{V_OUTA}"]
        if oa:
            X += [f"  v_lshrrev_b32 v{V_T2}, 3, v0", f"  v_and_b32 v{V_JUNK}, 0x70, v{V_LANE16}", f"  v_lshl_add_u32 v{V_JUNK}, v{V_T2}, 8, v{V_JUNK}",
                  f"  v_add_u32 v{V_JUNK}, s{S_T2}, v{V_JUNK}", f"  v_xor_b32 v{V_JUNK+1}, 0x1000, v{V_JUNK}"]
    else:
        X += [f"  s_lshl_b32 s{S_T2}, s{S_SP}, 6", f"  v_add_u32 v{V_OUTA}, s{S_T2}, v{V_OUTA}"] + ([f"  v_xor_b32 v{V_JUNK+1}, 64, v{V_OUTA}"] if oa else [])
    if qlds:
        X += [f"  s_lshl_b32 s{S_T2}, s{S_W}, 13", f"  s_add_u32 s{S_T2}, s{S_T2}, {QBASE}"]
        if own:
            X += [f"  s_add_u32 s{S_T2}, s{S_T2}, s47"]
        X += [f"  v_add_u32 v{V_X+ks}, s{S_T2}, v{V_KA+ks}" for ks in range(4)]
        if own:
            X += [f"  v_xor_b32 v{V_X+4+ks}, 0x1000, v{V_X+ks}" for ks in range(4)]
        P += X + (PF[:2] if pf in (2, 3) else []) + ["  s_waitcnt vmcnt(0)", "  s_barrier"] + (PF[2:] if pf == 2 else [])
        P += [f"  ds_read_b128 {vr(Qf(qb,ks),4)}, v{V_X+ks+(4*qb if own else 0)} offset:{0 if own else qb*4096}" for qb in range(2) for ks in range(4)]
        P += ["  s_waitcnt lgkmcnt(0)"]
    elif pf >= 4:
        P += ["  s_barrier"] + X + ["  s_waitcnt vmcnt(0)"]
    elif pf >= 2:
        P += ["  s_barrier"] + X + PF[:2] + ["  s_waitcnt vmcnt(0)"] + (PF[2:] if pf == 2 else [])
    else:
        P += ["  s_barrier"] + X + [f"  s_waitcnt vmcnt({(1 if warm else 0) + (1 if pf else 0)})"]
    if pre == 1:
        P += [f"  v_mov_b32 v{V_T2}, s{S_C}"]
        for i in range(33):
            q = V_Q + i
            t = V_S + 2 * (i & 3)
            if i < 32:
                P += [f"  v_lshlrev_b32 v{t}, 16, v{q}", f"  v_and_b32 v{t+1}, 0xffff0000, v{q}",
                      f"  v_pk_mul_f32 v[{t}:{t+1}], v[{t}:{t+1}], v[{V_T2}:{V_T2+1}] op_sel_hi:[1,0]"]
            if i:
                t = V_S + 2 * ((i - 1) & 3)
                P += [f"  v_cvt_pk_bf16_f32 v{q-1}, v{t}, v{t+1}"]
    if bq:
        assert qlds == 1
        P += ["  s_barrier"]
    stamp(P)
    PA = [f"  s_mov_b32 s{S_DBG}, s12", f"  s_mov_b32 s{S_DBG+1}, s13", f"  s_mov_b32 s{S_DBG+2}, 256", f"  s_mov_b32 s{S_DBG+3}, 0x20000"]
    if hs:
        PA += [f"  s_getreg_b32 s{S_T2}, hwreg(HW_REG_XCC_ID, 0, 3)", f"  s_or_b32 s{S_T2}, s{S_T2}, 0x80", f"  v_mov_b32 v{V_T2}, s{S_T2}",
               f"  s_add_u32 s{S_T2}, s{S_DB}, s{S_SP}", "  s_mov_b64 exec, 1",
               f"  buffer_store_byte v{V_T2}, off, {srd(S_DBG)}, s{S_T2} {'sc1' if hs == 1 else ''}", "  s_mov_b64 exec, -1"]
    else:
        if l2:
            PA += [f"  s_getreg_b32 s{S_T2}, hwreg(HW_REG_XCC_ID, 0, 3)", f"  s_mul_i32 s{S_T2}, s{S_T2}, 3",
                   f"  s_lshl_b32 s{S_T2}, 16, s{S_T2}", f"  s_add_u32 s{S_T2}, s{S_T2}, 1", f"  v_mov_b32 v{V_T2}, s{S_T2}"]
        else:
            PA += [f"  v_mov_b32 v{V_T2}, 1"]
        PA += [
            "  s_mov_b64 exec, 1",
            f"  buffer_atomic_add v{V_T2}, off, {srd(S_DBG)}, s{S_DB} sc1",
            "  s_mov_b64 exec, -1",
        ]
    if "H" in abl:
        PA = []

    Sb = lambda par, kbl, qb: V_S + 16 * par + 4 * (kbl * 2 + qb)
    Pb = lambda par, qb: V_P + 8 * par + 4 * qb
    Lb = lambda par, qb: V_L + 8 * par + 4 * qb
    Ob = (lambda db, qb: V_O + 16 * ((db >> 2) * 2 + qb) + 4 * (db & 3)) if own else (lambda db, qb: V_O + 4 * (db * 2 + qb))
    Fr = lambda half, f: (V_FR + 16 * half if half < 2 else 240 if half == 2 else V_Q) + 4 * f
    bufs_ = lambda n: ((n & 1, (n & 1) ^ 1, 2, n & 1) if nb3 else (0, 1, 0, 1))

    def kreads(half, u, kbl):
        return [f"  ds_read_b128 {vr(Fr(half,ks),4)}, v{V_KA+ks} offset:{(u % NSL)*8192 + kbl*4096}" for ks in range(4)]

    def vreads(half, u, dbs):
        o = []
        for f, db in enumerate(dbs):
            for h in range(2):
                o.append(f"  ds_read_b64_tr_b16 {vr(Fr(half,f)+2*h,2)}, v{V_VA+db} offset:{(u % NSL)*8192 + h*4096}")
        return o

    def qkm(half, u, kbl, first=False):
        o = []
        for qb, ks in {1: [(a, b) for a in range(2) for b in range(4)], 0: [(a, b) for b in range(4) for a in range(2)], 2: [(0, 0), (0, 1), (0, 2), (0, 3), (1, 3), (1, 2), (1, 1), (1, 0)]}[chain]:
            if True:
                d = vr(Sb(u & 1, kbl, qb), 4)
                c0 = vr(V_NM + 4 * qb, 4) if (pre and not first) else 0
                o.append(f"  v_mfma_f32_16x16x32_bf16 {d}, {vr(Fr(half,ks),4)}, {vr(Qf(qb,ks),4)}, {d if ks != (3 if chain == 2 and qb else 0) else c0}")
        return o

    def pvm(half, u, dbs, order=None):
        o = []
        order = pvo if order is None else order
        seq = {0: [(f, qb) for f in range(4) for qb in range(2)],
               1: [(f, qb) for qb in range(2) for f in range(4)],
               2: [(f, (f + i) & 1) for i in range(2) for f in range(4)]}[order]
        for f, qb in seq:
            d = vr(Ob(dbs[f], qb), 4)
            o.append(f"  v_mfma_f32_16x16x32_bf16 {d}, {vr(Fr(half,f),4)}, {vr(Pb(u&1,qb),4)}, {d}")
        return o

    def lm(par, first=False):
        return [f"  v_mfma_f32_16x16x32_bf16 {vr(Lb(par,qb),4)}, {vr(V_ONE,4)}, {vr(Pb(par,qb),4)}, {0 if first else vr(Lb(par^1,qb),4)}"
                for qb in range(2)]

    def softmax(par):
        pairs = [(kbl, qb, h) for kbl in range(2) for qb in range(2) for h in range(2)]
        s3 = [[], [], []]
        for k, (kbl, qb, h) in enumerate(pairs):
            s = Sb(par, kbl, qb) + 2 * h
            x = V_X + 2 * (k & 3)
            if pre == 1:
                s3[0].append([])
                s3[1].append([f"  v_exp_f32 v{x}, v{s}", f"  v_exp_f32 v{x+1}, v{s+1}"])
            else:
                if pre == 2 and pk:
                    s3[0].append([f"  v_pk_mul_f32 v[{x}:{x+1}], v[{s}:{s+1}], s[{S_C}:{S_C+1}] op_sel_hi:[1,0]"])
                elif pre == 2:
                    s3[0].append([f"  v_mul_f32 v{x}, s{S_C}, v{s}", f"  v_mul_f32 v{x+1}, s{S_C}, v{s+1}"])
                elif pk:
                    s3[0].append([f"  v_pk_fma_f32 v[{x}:{x+1}], v[{s}:{s+1}], s[{S_C}:{S_C+1}], v[{V_M}:{V_M+1}] op_sel:[0,0,{qb}] op_sel_hi:[1,0,{qb}] neg_lo:[0,0,1] neg_hi:[0,0,1]"])
                else:
                    s3[0].append([f"  v_fma_f32 v{x}, v{s}, s{S_C}, -v{V_M+qb}", f"  v_fma_f32 v{x+1}, v{s+1}, s{S_C}, -v{V_M+qb}"])
                s3[1].append([f"  v_exp_f32 v{x}, v{x}", f"  v_exp_f32 v{x+1}, v{x+1}"])
            s3[2].append([f"  v_cvt_pk_bf16_f32 v{Pb(par,qb)+2*kbl+h}, v{x}, v{x+1}"])
        o = []
        for k in range(10):
            for j in range(3):
                if 0 <= k - j < 8:
                    o += s3[j][k - j]
        return o

    def softmax_plain(par):
        sm = softmax(par)
        return sm[:-1] + ["  s_nop 0", sm[-1], "  s_nop 1"]

    def chk(par):
        return [f"  v_add_f32 v{V_T0}, v{Lb(par,0)}, v{Lb(par,1)}", f"  v_cmp_nge_f32 vcc, s{S_THR}, v{V_T0}"]

    sites = []

    def br(par):
        k = len(sites)
        sites.append(par)
        return [f"  s_cbranch_vccnz L_fix{k}", f"L_ret{k}:"]

    def xmax(reg, tmp):
        return [f"  v_mov_b32 v{tmp}, v{reg}", "  s_nop 1", f"  v_permlane16_swap_b32 v{reg}, v{tmp}",
                f"  v_max_f32 v{reg}, v{reg}, v{tmp}",
                f"  v_mov_b32 v{tmp}, v{reg}", "  s_nop 1", f"  v_permlane32_swap_b32 v{reg}, v{tmp}",
                f"  v_max_f32 v{reg}, v{reg}, v{tmp}"]

    def maxof(dst, regs):
        o = [f"  v_max3_f32 v{dst}, v{regs[0]}, v{regs[1]}, v{regs[2]}"]
        k = 3
        while k + 1 < len(regs):
            o.append(f"  v_max3_f32 v{dst}, v{dst}, v{regs[k]}, v{regs[k+1]}")
            k += 2
        if k < len(regs):
            o.append(f"  v_max_f32 v{dst}, v{dst}, v{regs[k]}")
        return o

    def group(mf, reads, fill, rd=None):
        o = []
        rd = rd or RD
        per = -(-len(reads) // rd) if reads else 0
        for i, m in enumerate(mf):
            o.append(m)
            o += reads[i * per:(i + 1) * per]
            o += fill[i]
        return o

    def coarse(lines, pend):
        if WG >= 4:
            return auto_lgkm(lines, pend)
        out = []
        n = 4 // WG
        for l in lines:
            if l.strip().startswith("v_mfma"):
                a = int(l.split(",")[2 if "x" in abl else 1].split("[")[1].split(":")[0])
                if V_FR <= a < V_FR + 32 or a >= 240:
                    f = (a - V_FR) // 4
                    last = V_FR + 4 * ((f // n) * n + n - 1) + 3
                    out.append(f"  v_touch v{last}, v{last}")
            out.append(l)
        out, pend = auto_lgkm(out, pend)
        return [l for l in out if not l.strip().startswith("v_touch")], pend

    def ablate(B):
        if "d" in abl:
            B = [l for l in B if not l.strip().startswith("ds_")]
        if "v" in abl:
            B = [l for l in B if not l.strip().startswith(("v_exp", "v_fma", "v_cvt"))]
        if "B" in abl:
            B = [l for l in B if l.strip() != "s_barrier"]
        if "k" in abl:
            B = [l for l in B if not l.strip().startswith("ds_read_b128")]
        if "t" in abl:
            B = [l for l in B if not l.strip().startswith("ds_read_b64_tr")]
        if "o" in abl:
            B = [l for l in B if f"v[{V_ONE}:" not in l]
        if "q" in abl:
            B = [l for l in B if not (l.strip().startswith("v_mfma") and V_S <= int(l.split("[")[1].split(":")[0]) < V_S + 32)]
        if "p" in abl:
            B = [l for l in B if not (l.strip().startswith("v_mfma") and V_O <= int(l.split("[")[1].split(":")[0]) < V_O + 64)]
        if "x" in abl:
            BB = []
            for l in B:
                if l.strip().startswith("v_mfma"):
                    a = l.split(", ")
                    l = ", ".join([a[0], a[2], a[1], a[3]])
                BB.append(l)
            B = BB
        return B

    DA, DB_ = [0, 1, 2, 3], [4, 5, 6, 7]

    def fills(par, nfront):
        n = nfront + max(LPOS - 1, 0)
        wts = [1.0] * n
        if bal and nfront == 24:
            per = [-(-4 // RD), -(-8 // RD), -(-8 // RD)]
            cnt = [4, 8, 8]
            for g in range(3):
                for i in range(8):
                    nr = max(0, min(per[g], cnt[g] - i * per[g]))
                    wts[8 * g + i] = max(0.2, 3.1 - nr)
            for i in range(24, n):
                wts[i] = 2.1
        f = spread(softmax(par)[NE:], wts)
        return f + [[] for _ in range(nfront + 10 - n)]

    def closing(n, nxt_reads, tailfill, extra=()):
        o = ["  s_waitcnt lgkmcnt(0)", "  s_barrier"] + list(extra)
        mf = pvm(1, n - 1, DB_)
        mf = mf[:LPOS] + lm(n & 1) + mf[LPOS:]
        fl = [list(x) for x in tailfill]
        c2 = chk(n & 1)
        if n < NU - 1:
            for i, e in enumerate(spread(softmax((n + 1) & 1)[:NE], [1] * (8 - LPOS - 1))):
                fl[LPOS + 1 + i] += e
        fl[8] = fl[8] + c2
        o += group(mf, nxt_reads, fl)
        return o + br(n & 1)

    def front(n):
        f = fills(n & 1, 24)
        o = group(qkm(0, n + 1, 0), kreads(1, n + 1, 1), f[0:8])
        o += group(qkm(1, n + 1, 1), vreads(0, n - 1, DA), f[8:16])
        o += group(pvm(0, n - 1, DA), vreads(1, n - 1, DB_), f[16:24])
        return o, f[24:34]

    if tab:
        assert pre == 1
        slots = [x.replace("-", "") for x in tab.split()]
        assert len(slots) == 34
        NE = "".join(slots[:10]).count("e")
        sm0 = softmax

        def softmax(par):
            ex = [l for l in sm0(par) if "v_exp" in l]
            cv = [l for l in sm0(par) if "v_cvt" in l]
            o = ex[:NE]
            ne, nc = NE, 0
            while nc < 8:
                if ne < 16 and ne // 2 - 4 < nc:
                    o.append(ex[ne]); ne += 1
                if 2 * nc + 3 <= ne or (ne == 16 and "v_cvt" in o[-1]) or (ne // 2 - 4 >= nc):
                    o.append(cv[nc]); nc += 1
                elif ne == 16:
                    o.append("  s_nop 0"); o.append(cv[nc]); nc += 1
            return o

        def fill_slots(sl, q):
            return [[x for ch in s_ for x in ([q[ch].pop(0)] if ch != "k" else q["k"]) if x] for s_ in sl]

        def closing(n, nxt_reads, tailfill, extra=()):
            o = ["  s_waitcnt lgkmcnt(0)", "  s_barrier"] + list(extra)
            mf = pvm(bufs_(n)[3], n - 1, DB_)
            mf = mf[:LPOS] + lm(n & 1) + mf[LPOS:]
            nd = "".join(slots[:10]).count("d")
            per = len(nxt_reads) // nd
            q = dict(d=["\n".join(nxt_reads[i * per:(i + 1) * per]) for i in range(nd)], c=[""] * 8, k=chk(n & 1),
                     e=softmax((n + 1) & 1)[:NE] if n < NU - 1 else [""] * NE)
            fl = [list(a) + b for a, b in zip(tailfill, fill_slots(slots[:10], q))]
            fl = [[y for x in f_ for y in x.split("\n")] for f_ in fl]
            return o + group(mf, [], fl) + br(n & 1)

        def front(n):
            b = bufs_(n)
            sm = sm0(n & 1)
            q = dict(d=kreads(b[1], n + 1, 1) + vreads(b[2], n - 1, DA) + vreads(b[3], n - 1, DB_),
                     e=[l for l in sm if "v_exp" in l][NE:], c=[l for l in sm if "v_cvt" in l])
            nd = ne = nc = 0
            ne = NE
            for i, s_ in enumerate(slots[10:] + slots[:10]):
                for ch in s_:
                    if ch == "d" and i < 24:
                        lo_, hi_ = ((0, 8) if nd < 4 else (0 if nb3 else 8, 16) if nd < 12 else (8 if nb3 else 16, 24))
                        assert lo_ <= i < hi_, (tab, nd, i)
                        nd += 1
                    if ch == "e" and (i < 24 or True):
                        k_ = ne // 2
                        assert k_ - 4 < nc, (tab, "temp busy", ne)
                        ne += 1
                    if ch == "c":
                        assert 2 * nc + 2 <= ne and (i < 24 or i - 24 < LPOS - 1), (tab, "cvt", nc)
                        nc += 1
            assert nd == 20 and nc == 8 and ne == 16 + NE
            f = fill_slots(slots[10:], q)
            tfl = [[q["c"].pop(0) for ch in s_ if ch == "c"] for s_ in slots[:10]]
            o = group(qkm(b[0], n + 1, 0), [], f[0:8]) + group(qkm(b[1], n + 1, 1), [], f[8:16]) + group(pvm(b[2], n - 1, DA), [], f[16:24])
            return o, tfl

    P2 = kreads(0, 0, 0) + kreads(1, 0, 1) + qkm(0, 0, 0, True) + kreads(0, 1, 0) + qkm(1, 0, 1, True) + kreads(1, 1, 1) \
        + qkm(0, 1, 0, True) + qkm(1, 1, 1, True) + ["  s_nop 7"]
    for qb in range(2):
        P2 += maxof(V_M + qb, [Sb(par, kbl, qb) + r for par in range(2) for kbl in range(2) for r in range(4)])
    for qb in range(2):
        P2 += xmax(V_M + qb, V_T0)
    if pre:
        for qb in range(2):
            for par in range(2):
                for kbl in range(2):
                    for r in range(4):
                        s = Sb(par, kbl, qb) + r
                        P2.append(f"  v_sub_f32 v{s}, v{s}, v{V_M+qb}")
            for r in range(4):
                P2.append(f"  v_sub_f32 v{V_NM+4*qb+r}, 0, v{V_M+qb}")
    else:
        for qb in range(2):
            P2.append(f"  v_mul_f32 v{V_M+qb}, s{S_C}, v{V_M+qb}")
    P2 += softmax_plain(0) + lm(0, True) + softmax(1)[:NE]
    if fastp:
        V = []
        for qb in range(2):
            V += maxof(V_M + qb, [Sb(0, kbl, qb) + r for kbl in range(2) for r in range(4)])
        a, b = xmax(V_M, V_T0), xmax(V_M + 1, V_T1)
        for x, y in zip(a, b):
            V += [x, y] if "s_nop" not in x else ["  s_nop 0"]
        subm = lambda par: [f"  v_sub_f32 v{Sb(par,kbl,qb)+r}, v{Sb(par,kbl,qb)+r}, v{V_M+qb}" for kbl in range(2) for qb in range(2) for r in range(4)]
        if pre:
            V += subm(0)
        else:
            V += [f"  v_mul_f32 v{V_M+qb}, s{S_C}, v{V_M+qb}" for qb in range(2)]
        V += softmax(0)
        fl = [[] for _ in range(4)] + spread(V, [1] * 12)
        fl[3] = ["  s_nop 3"]
        P2 = kreads(0, 0, 0) + kreads(1, 0, 1) + qkm(0, 0, 0, True) + kreads(0, 1, 0) + qkm(1, 0, 1, True) + kreads(1, 1, 1)
        P2 += group(qkm(0, 1, 0, True) + qkm(1, 1, 1, True), [], fl) + ["  s_nop 1"] + lm(0, True)
        if pre:
            P2 += [f"  v_sub_f32 v{V_NM+4*qb+r}, 0, v{V_M+qb}" for qb in range(2) for r in range(4)] + subm(1)
        P2 += softmax(1)[:NE]
    nit = (NU - 2 + NSL - 1) // NSL
    P2 += [f"  s_mov_b32 s{S_CNT}, {nit}"] + (["  s_waitcnt vmcnt(0)"] if pf < 2 else PF[2:] if pf == 3 else []) + ["  s_barrier"] + kreads(bufs_(1)[0], 2, 0)
    P2, pend0 = auto_lgkm(P2)
    if diag in (3, 7):
        P2 += ["  s_mov_b32 s95, 0"]
    if hs == 3:
        assert qlds and pf >= 4
        k = P.index("  s_barrier") + 1
        if lw == 3:
            assert P[k - 2] == "  s_waitcnt vmcnt(0)"
            del P[k - 2]
            k = P2.index("  s_barrier")
            P2 = P2[:k] + ["  s_waitcnt vmcnt(0)"] + P2[k:] + [f"  s_cmp_lg_u32 s{S_W}, 0", "  s_cbranch_scc1 L_mid"] + PA + ["  s_branch L_mid"]
        if lw == 4:
            assert P[k - 2] == "  s_waitcnt vmcnt(0)"
            del P[k - 2]
            st_i = [i for i, l in enumerate(P) if l.strip().startswith("buffer_store_dword")]
            stores = [P[i].replace(f"s{S_T1}", "s47") for i in st_i]
            for i in st_i:
                P[i] = P[i].replace(f"buffer_store_dword v{V_T2}", f"buffer_load_dword v{V_JUNK}").rstrip() + " sc1"
            P[st_i[-1] + 1:st_i[-1] + 1] = [f"  s_mov_b32 s47, s{S_T1}"] + PA[:4] + [f"  buffer_load_dword v{V_JUNK}, off, {srd(S_DBG)}, s{S_DB} sc1"]
            PA = PA[4:]
            k = len(P) - P[::-1].index("  s_barrier")
            P[k:k] = [f"  v_mov_b32 v{V_T2}, 0", "  s_mov_b64 exec, 1", "  s_waitcnt vmcnt(0)"] + stores + ["  s_mov_b64 exec, -1"]
            k = P2.index("  s_barrier")
            P2 = P2[:k] + ["  s_waitcnt vmcnt(0)"] + P2[k:] + [f"  s_cmp_lg_u32 s{S_W}, 0", "  s_cbranch_scc1 L_mid"] + PA + ["  s_branch L_mid"]
        if lw == 2:
            assert P[k - 2] == "  s_waitcnt vmcnt(0)"
            del P[k - 2]
            i0 = P.index(f"  v_mov_b32 v{V_T2}, 0")
            i1 = P.index("  s_mov_b64 exec, -1") + 1
            clears = P[i0:i1]
            del P[i0:i1]
            k = P.index("  s_barrier") + 1
            P[k:k] = clears
            if touch == 3:
                P[k + 2:k + 2] = [f"  buffer_load_dword v{V_JUNK}, off, {srd(S_OUT)}, 0"]
            k = P2.index("  s_barrier")
            P2 = P2[:k] + ["  s_waitcnt vmcnt(0)"] + P2[k:] + [f"  s_cmp_lg_u32 s{S_W}, 0", "  s_cbranch_scc1 L_mid"] + PA + ["  s_branch L_mid"]
    if hs == 3 and lw < 2:
        if lw:
            assert P[k - 2] == "  s_waitcnt vmcnt(0)"
            del P[k - 2]
            k = len(P) - 1 - P[::-1].index("  s_barrier")
            P.insert(k, "  s_waitcnt vmcnt(0)")
            k += 2
            j = P.index("  s_mov_b64 exec, -1")
            P[j:j] = PA[:4] + [f"  buffer_load_dword v{V_JUNK}, off, {srd(S_DBG)}, s{S_DB}"]
            PA = PA[4:]
            k += 5
        P = P[:k] + [f"  s_cmp_lg_u32 s{S_W}, 0", "  s_cbranch_scc1 L_nohello"] + PA + ["L_nohello:"] + P[k:]
        k = P2.index("  s_barrier")
        P2 = P2[:k] + ["  s_waitcnt vmcnt(0)"] + P2[k:] + ["  s_branch L_mid"]


    BODY = []
    nfirst = NU - 1 - NSL
    tf = front(nfirst - 1)[1]
    midx = None
    for n in range(nfirst, NU - 1):
        extra = []
        if (diag == 3 and n % 2 == 1) or diag == 7:
            extra = ["  s_memrealtime s[92:93]", "  s_memtime s[90:91]", "  s_add_u32 s95, s95, 1", "  s_min_u32 s95, s95, 31", "  s_add_u32 s94, s95, 32", "  s_waitcnt lgkmcnt(0)",
                     "  s_mov_b32 m0, s95", f"  v_writelane_b32 v{V_TR}, s92, m0", "  s_mov_b32 m0, s94", f"  v_writelane_b32 v{V_TR}, s90, m0"]
        if diag == 4 and n == nfirst:
            extra = [f"  s_cmp_lg_u32 s{S_CNT}, {nit - 16 // NSL}", "  s_cbranch_scc1 L_nost", "  s_memtime s[96:97]", "  s_memrealtime s[98:99]",
                     "  s_waitcnt lgkmcnt(0)", "  s_mov_b32 s94, 0", "L_nost:"]
        cl = closing(n - 1, kreads(bufs_(n)[0], n + 1, 0), tf, extra)
        fr, tf = front(n)
        if n == NU - 2:
            k = max(i for i, l in enumerate(fr) if "v_mfma" in l)
            fr = fr[:k] + [f"  s_sub_u32 s{S_CNT}, s{S_CNT}, 1", f"  s_cmp_lg_u32 s{S_CNT}, 0"] + fr[k:] + ["  s_cbranch_scc1 L_loop"]
        cl, pendc = coarse(ablate(cl), [])
        assert abl or pendc == pend0 or (nb3 and n % 2 == 0)
        if "q" in abl or "p" in abl:
            fr = [x for l in fr for x in ([l, "  s_waitcnt lgkmcnt(6)"] if l.strip().startswith("ds_") else [l])]
        fr, pendf = coarse(ablate(fr), pendc)
        if n % NSL == 1 % NSL:
            midx = len(BODY)
        BODY.append((cl, fr))

    def fix(par):
        o = ["  s_nop 7"]
        for qb in range(2):
            o += maxof(V_T0 + qb, [Sb(par, kbl, qb) + r for kbl in range(2) for r in range(4)])
        for qb in range(2):
            o += xmax(V_T0 + qb, V_T2)
        for qb in range(2):
            t = V_T0 + qb
            if pre:
                o += [f"  v_max_f32 v{t}, 0, v{t}", f"  v_add_f32 v{V_M+qb}, v{V_M+qb}, v{t}"]
                for p2 in range(2):
                    for kbl in range(2):
                        for r in range(4):
                            s = Sb(p2, kbl, qb) + r
                            o.append(f"  v_sub_f32 v{s}, v{s}, v{t}")
                for r in range(4):
                    o.append(f"  v_sub_f32 v{V_NM+4*qb+r}, 0, v{V_M+qb}")
                if pre == 2:
                    o += [f"  v_mul_f32 v{t}, s{S_C}, v{t}"]
                o += [f"  v_exp_f32 v{t}, -v{t}"]
            else:
                o += [f"  v_mul_f32 v{t}, s{S_C}, v{t}", f"  v_max_f32 v{t}, v{t}, v{V_M+qb}",
                      f"  v_sub_f32 v{V_T2}, v{V_M+qb}, v{t}", f"  v_mov_b32 v{V_M+qb}, v{t}", f"  v_exp_f32 v{t}, v{V_T2}"]
        o.append("  s_nop 0")
        for qb in range(2):
            o.append(f"  v_mul_f32 v{Lb(par^1,qb)}, v{V_T0+qb}, v{Lb(par^1,qb)}")
            for db in range(8):
                for r in range(4):
                    o.append(f"  v_mul_f32 v{Ob(db,qb)+r}, v{V_T0+qb}, v{Ob(db,qb)+r}")
        return o + softmax_plain(par) + lm(par) + softmax(par ^ 1)[:NE] + ["  s_nop 7"]
    FIX = [fix(0), fix(1)]

    T1 = []
    if diag == 4:
        T1 += ["  s_waitcnt lgkmcnt(0)", "  s_memtime s[90:91]", "  s_memrealtime s[92:93]", "  s_waitcnt lgkmcnt(0)", "  s_sub_u32 s96, s90, s96", "  s_sub_u32 s98, s92, s98"]
    X = []
    if l2:
        X += [f"  v_mov_b32 v{V_T2}, {LDS_MODE}", f"  ds_read_b32 v{V_T3}, v{V_T2}", "  s_waitcnt lgkmcnt(0)",
              f"  v_readfirstlane_b32 s{S_MODE}, v{V_T3}"]
    if rotl:
        T1 += X[:2]
        X = X[3:]
    else:
        T1 += X
        X = []
    T1 += closing(NU - 2, vreads(bufs_(NU - 1)[2], NU - 2, DA), tf)
    T1 += X
    f = fills(1, 8)
    T1 += group(pvm(bufs_(NU - 1)[2], NU - 2, DA), vreads(1, NU - 2, DB_), f[0:8]) + (["  s_nop 1"] if LPOS == 0 else [])
    T1, pend = auto_lgkm(T1, pendf)
    c2 = closing(NU - 1, [], f[8:18])[2:]
    k = next(i for i, l in enumerate(c2) if l.strip().startswith("v_add_f32"))
    if rotl:
        rr = vreads(0, NU - 1, [2, 3, 4, 5]) + vreads(3, NU - 1, [6, 7, 0, 1])
        o = ["  s_waitcnt lgkmcnt(0)"]
        nstamp[0] = 2
        stamp(o)
        o.append("  s_barrier")
        stamp(o)
        i = 0
        for l in c2:
            o.append(l)
            if "v_mfma" in l and i < 7:
                o += rr[2 * i:2 * i + 2]
                i += 1
        c2 = o
    else:
        c2 = c2[:k] + ["  s_nop 3"] + c2[k:]
    c2, pendl = auto_lgkm(c2, pend)
    assert rotl or not pendl
    T1 += c2
    ML = V_X
    T1 += [
        f"  v_mov_b32 v{ML}, v{V_M}" if pre != 2 else f"  v_mul_f32 v{ML}, s{S_C}, v{V_M}",
        f"  v_mov_b32 v{ML+1}, v{V_M+1}" if pre != 2 else f"  v_mul_f32 v{ML+1}, s{S_C}, v{V_M+1}",
        f"  v_mov_b32 v{ML+2}, v{Lb(1,0)}", f"  v_mov_b32 v{ML+3}, v{Lb(1,1)}",
    ]

    def publish(spol):
        def ostore(j):
            o = []
            if bf16p:
                b = V_S + 8 * (j - 1)
                for i in range(8):
                    o.append(f"  v_cvt_pk_bf16_f32 v{b+i}, v{V_O+16*j+2*i}, v{V_O+16*j+2*i+1}")
                    if i & 3 == 3 and oa and j == 1:
                        o.append(f"  buffer_store_dwordx4 {vr(b+(i&4),4)}, v{V_JUNK+1}, {srd(S_OUT)}, {'s%d' % S_T3 if (i & 4 and not own) else 0} offen offset:{2048 if (i & 4 and own) else 0} {spol}")
                    elif i & 3 == 3:
                        o.append(f"  buffer_store_dwordx4 {vr(b+(i&4),4)}, v{V_LANE16}, {srd(S_WS)}, s{S_OD+j-1} offen offset:{(i>>2)*1024} {spol}")
            else:
                for i in range(4):
                    o.append(f"  buffer_store_dwordx4 {vr(V_O+16*j+4*i,4)}, v{V_LANE16}, {srd(S_WS)}, s{S_OD+j-1} offen offset:{i*1024} {spol}")
            return o
        nstamp[0] = 4 if rotl and diag else 2
        o = ["  s_mov_b64 exec, 0xffff", f"  buffer_store_dwordx4 {vr(ML,4)}, v{V_LANE16}, {srd(S_WS)}, s{S_ML} offen {spol}", "  s_mov_b64 exec, -1"]
        b1 = 3 if rotl else 1
        r0 = vreads(0, NU - 1, [4, 5, 6, 7] if own else [2, 3, 4, 5])
        r1 = vreads(b1, NU - 1, [0, 1, 2, 3] if own else [6, 7, 0, 1])
        assert not (own and rotl)
        if not rotl:
            stamp(o)
            o.append("  s_barrier")
            stamp(o)
            o += r0 + r1[:6]
        mf = pvm(0, NU - 1, [2, 3, 4, 5], 0) + pvm(b1, NU - 1, [6, 7, 0, 1], 0)
        if own:
            m1 = pvm(b1, NU - 1, [0, 1, 2, 3], 1)
            mf = pvm(0, NU - 1, [4, 5, 6, 7], 1) + m1[4:] + m1[:4]
        if tord == 0:
            o += mf[:2] + r1[6:] + mf[2:12] + ostore(1)[:5] + mf[12:14] + ostore(1)[5:] + mf[14:16] + ostore(2) + ostore(3)
        else:
            st_ = ostore(2) + ostore(3) + ostore(1) if own else ostore(1) + ostore(2) + ostore(3)
            o += mf[:2] + r1[6:] + mf[2:8]
            k = 0
            for i, n in zip(range(8, 16), (2, 3, 2, 3, 5, 5, 5, 5)):
                o += [mf[i]] + st_[k:k + n]
                k += n
        o, pend = auto_lgkm(o, pendl)
        assert not pend
        return o + [f"  v_mov_b32 v{V_T1}, 1", "  s_mov_b64 exec, 1", "  s_waitcnt vmcnt(0)",
                    f"  buffer_store_dword v{V_T1}, off, {srd(S_WS)}, s{S_FO} {spol}"]
    if l2:
        T1 += [f"  s_cmp_eq_u32 s{S_MODE}, 4", "  s_cbranch_scc0 L_far"]
        poll = lambda p: [f"  buffer_load_dword v{V_T1}, v{V_FADDR}, {srd(S_WS)}, s{S_F} offen {p}", "  s_waitcnt vmcnt(0)",
                          f"  v_cmp_ne_u32 vcc, 1, v{V_T1}"]
        FAR = publish("sc1") + ["  s_mov_b64 exec, 15"]
        stamp(FAR)
        FAR += ["L_fpoll:"] + poll("sc1") + ["  s_cbranch_vccnz L_fpoll", "  buffer_inv sc1", "  s_waitcnt vmcnt(0)", "  s_branch L_got"]
        T2 = publish(npol)
    T2 += ["  s_mov_b64 exec, 15"]
    stamp(T2)
    TP = []
    for i in range(npl):
        TP += poll("nt") + ["  s_cbranch_vccz L_got"]
    TP += poll("sc1") + ["  s_cbranch_vccnz L_poll"]
    T3 = ["  s_mov_b64 exec, -1"]
    stamp(T3)
    VML = V_FR
    VIN = V_S
    for j in range(1, 4):
        T3.append(f"  buffer_load_dwordx4 {vr(VML+4*(j-1),4)}, v{V_MLA}, {srd(S_WS)}, s{S_ML+j} offen {lpol}")
    nld = 2 if bf16p else 4
    for j in range(1, 4):
        if j > 1 and not bf16p:
            T3.append(f"  s_add_u32 s{S_OI}, s{S_OI}, {R}")
        if oa:
            for i in range(2):
                T3.append(f"  buffer_load_dwordx4 {vr(VIN+8*(j-1)+4*i,4)}, v{V_JUNK if own else V_OUTA}, {srd(S_OUT)}, {'s%d' % S_T3 if (i and not own) else 0} offen offset:{2048 if (i and own) else 0} {lpol}" if j == 1 else
                          f"  buffer_load_dwordx4 {vr(VIN+8*(j-1)+4*i,4)}, v{V_LANE16}, {srd(S_WS)}, s{S_OI} offen offset:{(j-2)*R + i*1024} {lpol}")
            continue
        if j == 3 and bf16p:
            T3.append(f"  s_add_u32 s{S_OI}, s{S_OI}, {2*R}")
        for i in range(nld):
            off = i * 1024 + (R if (bf16p and j == 2) else 0)
            T3.append(f"  buffer_load_dwordx4 {vr(VIN+4*nld*(j-1)+4*i,4)}, v{V_LANE16}, {srd(S_WS)}, s{S_OI} offen offset:{off} {lpol}")
    G = V_FR + 16
    p2 = lambda r: f"v[{r}:{r+1}]"
    ml = lambda j: ML if j == 0 else VML + 4 * (j - 1)
    WT = []
    for qb in range(2):
        WT += [f"  v_max3_f32 v{V_T0+qb}, v{ml(0)+qb}, v{ml(1)+qb}, v{ml(2)+qb}"]
    for qb in range(2):
        WT += [f"  v_max_f32 v{V_T0+qb}, v{V_T0+qb}, v{ml(3)+qb}"]
    for j in range(4):
        WT.append(f"  v_pk_add_f32 {p2(G+2*j)}, {p2(ml(j))}, {p2(V_T0)} neg_lo:[0,1] neg_hi:[0,1]")
    for j in range(8):
        WT.append(f"  v_exp_f32 v{G+j}, v{G+j}")
    WT.append(f"  v_pk_mul_f32 {p2(V_T0)}, {p2(G)}, {p2(ml(0)+2)}")
    for j in range(1, 4):
        WT.append(f"  v_pk_fma_f32 {p2(V_T0)}, {p2(G+2*j)}, {p2(ml(j)+2)}, {p2(V_T0)}")
    WT += [f"  v_rcp_f32 v{V_T0}, v{V_T0}", f"  v_rcp_f32 v{V_T1}, v{V_T1}", "  s_nop 0"]
    for j in range(4):
        WT.append(f"  v_pk_mul_f32 {p2(G+2*j)}, {p2(G+2*j)}, {p2(V_T0)}")
    NW0 = 16
    if own:
        mj = lambda j: ml(j) + (j & 1)
        WT = [f"  v_max3_f32 v{V_T0}, v{mj(0)}, v{mj(1)}, v{mj(2)}", f"  v_max_f32 v{V_T0}, v{V_T0}, v{mj(3)}"]
        WT += [f"  v_sub_f32 v{G+j}, v{mj(j)}, v{V_T0}" for j in range(4)] + [f"  v_exp_f32 v{G+j}, v{G+j}" for j in range(4)]
        NW0 = len(WT)
        WT += [f"  v_mul_f32 v{V_T0}, v{G}, v{mj(0)+2}"] + [f"  v_fmac_f32 v{V_T0}, v{G+j}, v{mj(j)+2}" for j in range(1, 4)]
        WT += [f"  v_rcp_f32 v{V_T0}, v{V_T0}"] + [f"  v_pk_mul_f32 {p2(G+2*j)}, {p2(G+2*j)}, {p2(V_T0)} op_sel_hi:[1,0]" for j in range(2)]
    UP = []
    U = V_O + 16 if bf16p else VIN
    if bf16p:
        for i in range(24):
            if i % 4 == 0:
                UP.append(f"  s_waitcnt vmcnt({5 - i // 4})")
            UP += [f"  v_lshlrev_b32 v{U+2*i}, 16, v{VIN+i}", f"  v_and_b32 v{U+2*i+1}, 0xffff0000, v{VIN+i}"]
    else:
        UP.append("  s_waitcnt vmcnt(0)")
    if rst:
        RS = [f"  s_sub_u32 s{S_T1}, s{S_OI}, 4096"] + [f"  buffer_store_dwordx4 {vr(VIN+4*i,4)}, v{V_LANE16}, {srd(S_WS)}, s{S_T1 if i < 4 else S_OI} offen offset:{(i&3)*1024} {rsp}" for i in range(6)]
        if rst == 1:
            UP = ["  s_waitcnt vmcnt(0)"] + RS + [l for l in UP if "s_waitcnt" not in l]
        else:
            k = UP.index("  s_waitcnt vmcnt(0)")
            UP = UP[:k + 1] + RS + UP[k + 1:]
    if wb is not None:
        k = UP.index("  s_waitcnt vmcnt(0)")
        UP = UP[:k + 1] + ["\n".join([f"  s_and_b32 s{S_T1}, s2, {wb}", f"  s_or_b32 s{S_T1}, s{S_T1}, s{S_W}", "  s_cbranch_scc1 L_nowb", "  buffer_wbl2 sc1", "L_nowb:"])] + UP[k + 1:]
    T3.append(f"  s_waitcnt vmcnt({3*nld})")
    T3 += WT[:NW0]
    k = 0
    for w_ in WT[NW0:]:
        T3 += UP[k:k + 2] + ([w_] if "s_nop" not in w_ or k >= len(UP) else [])
        k += 2
    T3 += UP[k:]
    T3 = [y for x in T3 for y in x.split("\n")]
    sel = lambda i, n: " op_sel:[0,%d%s] op_sel_hi:[1,%d%s]" % ((i >> 2) & 1, ",0" * n, (i >> 2) & 1, ",1" * n)
    for i in range(0, 16, 2):
        T3.append(f"  v_pk_mul_f32 {p2(V_O+i)}, {p2(V_O+i)}, {p2(G)}" + sel(0 if own else i, 0))
    for j in range(1, 4):
        for i in range(0, 16, 2):
            T3.append(f"  v_pk_fma_f32 {p2(V_O+i)}, {p2(U+16*(j-1)+i)}, {p2(G+(j&2 if own else 2*j))}, {p2(V_O+i)}" + sel(4*(j&1) if own else i, 1))
    stamp(T3)
    OV = V_FR
    for qb in range(2):
        for e in range(2):
            for h in range(2):
                src = Ob(2 * qb + e, 0) if own else Ob(e, qb)
                T3.append(f"  v_cvt_pk_bf16_f32 v{OV+4*qb+2*e+h}, v{src+2*h}, v{src+2*h+1}")
    T3 += [
        f"  v_permlane16_swap_b32 v{OV}, v{OV+2}",
        f"  v_permlane16_swap_b32 v{OV+1}, v{OV+3}",
        f"  buffer_store_dwordx4 {vr(OV,4)}, v{V_OUTA}, {srd(S_OUT)}, 0 offen {opol}",
        f"  v_permlane16_swap_b32 v{OV+4}, v{OV+6}",
        f"  v_permlane16_swap_b32 v{OV+5}, v{OV+7}",
        f"  buffer_store_dwordx4 {vr(OV+4,4)}, v{V_OUTA}, {srd(S_OUT)}, {'0 offen offset:64' if own else 's%d offen' % S_T3} {opol}",
    ]
    if diag:
        T3.append("  s_waitcnt vmcnt(0)")
        stamp(T3)
        T3 += [f"  s_mov_b32 s{S_WS}, s14", f"  s_mov_b32 s{S_WS+1}, s15", f"  s_mov_b32 s{S_WS+2}, {32<<20}"]
        T3.append("  s_getreg_b32 s4, hwreg(HW_REG_XCC_ID)")
        for k in range(nstamp[0]):
            T3.append(f"  v_mov_b32 v{V_S+k}, s{S_ST+2*k}")
        T3.append(f"  v_mov_b32 v{V_S+15}, s4")
        T3.append(f"  v_mov_b32 v{V_S+11}, 31")
        if diag in (3, 7):
            T3 += [f"  s_lshl_b32 s{S_T0}, s2, 2", f"  s_add_u32 s{S_T0}, s{S_T0}, s{S_W}", f"  s_lshl_b32 s{S_T0}, s{S_T0}, 8",
                   f"  s_add_u32 s{S_T0}, s{S_T0}, {OFF_T + (1 << 20)}", f"  v_lshrrev_b32 v{V_T0}, 2, v{V_LANE16}",
                   f"  buffer_store_dword v{V_TR}, v{V_T0}, {srd(S_WS)}, s{S_T0} offen"]
        if diag == 4:
            T3 += [f"  v_mov_b32 v{V_S+12}, s94", f"  v_mov_b32 v{V_S+13}, s96", f"  v_mov_b32 v{V_S+14}, s98"]
        T3 += [
            f"  s_lshl_b32 s{S_T0}, s2, 2",
            f"  s_add_u32 s{S_T0}, s{S_T0}, s{S_W}",
            f"  s_lshl_b32 s{S_T0}, s{S_T0}, 6",
            f"  s_add_u32 s{S_T0}, s{S_T0}, {OFF_T}",
            "  s_mov_b64 exec, 1",
        ]
        for i in range(4):
            T3.append(f"  buffer_store_dwordx4 {vr(V_S+4*i,4)}, off, {srd(S_WS)}, s{S_T0} offset:{16*i}")
    T3.append("  s_endpgm")

    if "S" in abl:
        T1 = [l for l in T1 if not l.strip().startswith("buffer_store")]
        T2 = [l for l in T2 if not l.strip().startswith("buffer_store_dwordx4")]
    if "F" in abl:
        T2 = [l for l in T2 if not l.strip().startswith("buffer_store_dword ")]
        TP = []
    if "R" in abl:
        T3 = [l for l in T3 if not l.strip().startswith("buffer_load")]

    def inline_fix(lines):
        o = []
        for l in lines:
            o.append(l)
            if l.strip().startswith("s_cbranch_vccnz L_fix"):
                o += FIX[sites[int(l.strip().split("L_fix")[1])]]
        return o
    flat = [l for cl, fr in BODY for l in cl + fr]
    first = BODY[midx][1] + [l for cl, fr in BODY[midx + 1:] for l in cl + fr]
    main = E + P + P2 + first + flat + T1 + T2 + TP + T3
    nbar = sum(l == "  s_barrier" for l in P + P2 + first + flat * (nit - 1) + T1 + T2)
    assert nbar == NU + 1 + bq or abl, nbar
    traces["cons_far"] = T1 + FAR + T3
    traces["cons_a"] = main
    traces["cons_b"] = inline_fix(main)
    errs = []
    for n, t in traces.items():
        errs += check_hazards(t, n)
    if errs and not abl.strip("L"):
        raise RuntimeError("hazards:\n" + "\n".join(errs))

    out = [HEADER.rstrip(),
           ";",
           "; GQA attention, split over keys (generated by my own script from a hand-made schedule).",
           "; * 256 workgroups = 64 (batch, kv head) pairs x 4 key splits (interleaved in 1 KB pieces); one workgroup per CU.",
           "; * wave 0 streams Q, K, V into LDS (LDS-DMA, swizzled, about 22 requests in flight, ring of 8 x 32 keys);",
           ";   waves 1-4 own one query head each: S^T = K Q^T and O^T += V^T P^T with 16x16x32 MFMAs, software-pipelined",
           ";   in units of 32 keys, one barrier per unit; scale*log2(e) is folded into Q, -max rides in the MFMA C operand.",
           "; * softmax guard: the reference point is the true max of the first unit; the running row sum (an extra MFMA",
           ";   with a ones fragment) is checked after EVERY unit, before that unit reaches O.  When it passes 2^24 or is",
           ";   not finite, L_fixfn* computes that unit's true row max (= the running max whenever a weight passes 2^24,",
           ";   since all earlier weights were below), moves the reference up to it, rescales O and l and recomputes P.",
           "; * the four splits of a pair combine their partial results: each owns a quarter of every head (16 rows x 64",
           ";   columns) and receives the other three's bf16 partials, two through d_ws and one through its own part of",
           ";   d_out (written by the sender, read after the flag, then overwritten with the result).",
           ";   A start-up greeting in d_debug (one byte per workgroup, with its XCD) orders the flag clears and tells",
           ";   whether all four share an XCD: then the hand-off stays in that L2, otherwise L_far uses write-through",
           ";   stores and an acquire.  Both paths give the same bits.",
           "; * speed only: the loader runs further ahead of the compute waves in the first microseconds, and keeps one",
           ";   request more or fewer in flight depending on how many workgroups of its XCD are ahead of it.",
           f"; @launch grid=(256,1,1) block=(320,1,1) lds={lds}",
           '.amdgcn_target "amdgcn-amd-amdhsa--gfx950"', ".text", f".globl {NAME}", ".p2align 8",
           f".type {NAME},@function", f"{NAME}:"]
    out += E + LOADER
    out += [".p2align 6", "L_cons:"] + P + P2
    out += [".p2align 6", "L_loop:"]
    loop = []
    for i, (cl, fr) in enumerate(BODY):
        loop += cl + (["L_mid:"] if i == midx else []) + fr
    if al == 1:
        loop, nmis, ph = align8(loop)
    if al == 2:
        loop, nmis, ph = align8(loop)
        loop = ["  s_nop 0"] + loop
    out += loop
    out += T1 + T2 + ["L_poll:"] + TP + ["L_got:"] + T3
    if l2:
        out += ["L_far:"] + FAR
    for k, par in enumerate(sites):
        out += [f"L_fix{k}:", f"  s_call_b64 s[{S_RET}:{S_RET+1}], L_fixfn{par}", f"  s_branch L_ret{k}"]
    for par in range(2):
        out += [f"L_fixfn{par}:"] + FIX[par] + [f"  s_setpc_b64 s[{S_RET}:{S_RET+1}]"]
    out += ["L_end:", "  s_endpgm"]
    out += ['.section .rodata,"a"', ".p2align 6", f".amdhsa_kernel {NAME}",
            f"  .amdhsa_next_free_vgpr {256 if nb3 else NVGPR}", "  .amdhsa_next_free_sgpr 102",
            f"  .amdhsa_accum_offset {256 if nb3 else NVGPR}", "  .amdhsa_group_segment_fixed_size 0",
            "  .amdhsa_kernarg_size 48", "  .amdhsa_user_sgpr_count 2",
            "  .amdhsa_user_sgpr_kernarg_segment_ptr 1", "  .amdhsa_system_sgpr_workgroup_id_x 1",
            ".end_amdhsa_kernel"]
    notes = {
        "L_pc:": "loader wave: own code into L2, descriptors, first touches, Q, then the K/V stream",
        "L_ldloop:": "two stages (K unit, V unit) per pass; s56 counts requests down to the next barrier",
        "L_ldtail:": "last two V units, then the hand-off lines of this workgroup are brought into L2",
        "L_hs0:": "greeting check: first look",
        "L_hs1:": "greeting check: decide (waits until all four members have greeted)",
        "L_hsfar:": "members on different XCDs: clear the flags in memory and greet again through memory",
        "L_barfn:": "barrier + next interval",
        "L_cons:": "compute waves: addresses, flag clear, Q fragments (scaled), units 0 and 1, true max of unit 0",
        "L_loop:": "8 steps; step n = barrier, PV(n-2) second half + row sum(n-1) + check, QK(n+1), PV(n-1) first half, softmax(n)",
        "L_poll:": "wait for the three other splits",
        "L_got:": "combine the four partial results of this quarter and store it",
        "L_far:": "publish when the splits do not share an XCD",
        "L_fixfn0:": "fall-back to the true running max, even unit",
        "L_fixfn1:": "fall-back to the true running max, odd unit",
    }
    out = [x for l in out for x in ([f"; ---- {notes[l]}", l] if l in notes else [l])]
    return "\n".join(l.rstrip() for l in out if l is not None) + "\n"


if __name__ == "__main__":
    kw = eval("dict(%s)" % sys.argv[1]) if len(sys.argv) > 1 else {}
    sys.stdout.write(gen(**kw))
```
